```python
import torch

def _softmax(x, axis=-1):
    return torch.softmax(x, dim=axis)
def _gelu(x):
    return torch.nn.functional.gelu(x, approximate="tanh")
def _silu(x):
    return torch.nn.functional.silu(x)
def _sigmoid(x):
    return torch.sigmoid(x)
def _layernorm(x, axis=-1, eps=1e-5):
    m = x.mean(dim=axis, keepdim=True)
    v = x.var(dim=axis, keepdim=True, unbiased=False)
    return (x - m) / torch.sqrt(v + eps)
def _scatter_add(tgt, idx, src, axis=0):
    return tgt.clone().index_add_(axis, idx, src)
def _segment_sum(src, seg, n):
    out = torch.zeros((n,) + src.shape[1:], dtype=src.dtype)
    return out.index_add_(0, seg, src)
def _pad(x, pw):
    flat = tuple(v for pair in reversed(pw) for v in pair)
    return torch.nn.functional.pad(x, flat)

kernel_name = 'standalone__mixer_s_mlp__sampling'

def setup_inputs():

    _w = (lambda a: (lambda t: t.to(torch.bfloat16) if t.is_floating_point() else t)(torch.as_tensor(a)))
    B, S, D, F = 32, 32, 576, 4608
    return {
        "x":  _w((lambda *s: torch.randn(*s, dtype=torch.bfloat16) * 0.4)(B, S, D)),
        "w1": _w((lambda *s: torch.randn(*s, dtype=torch.bfloat16) * 3.2)(D, D) * (D ** -0.5)),
        "w2": _w((lambda *s: torch.randn(*s, dtype=torch.bfloat16) * 3.2)(D, D) * (D ** -0.5)),
        "w3": _w((lambda *s: torch.randn(*s, dtype=torch.bfloat16) * 3.2)(D, F) * (D ** -0.5)),
        "w4": _w((lambda *s: torch.randn(*s, dtype=torch.bfloat16) * 0.8)(F, D) * (F ** -0.5)),
    }

def reference(x, w1, w2, w3, w4):
    B, S, D = x.shape
    h = _gelu(_layernorm(x, axis=-1) @ w1)
    c = D // 4
    g0 = _pad(h[:, :, 0*c:1*c], ((0, 0), (1, 0), (0, 0)))[:, :S, :]
    g1 = _pad(h[:, :, 1*c:2*c], ((0, 0), (0, 1), (0, 0)))[:, 1:, :]
    g2 = _pad(h[:, :, 2*c:3*c], ((0, 0), (2, 0), (0, 0)))[:, :S, :]
    g3 = _pad(h[:, :, 3*c:   ], ((0, 0), (0, 2), (0, 0)))[:, 2:, :]
    hs = torch.concatenate([g0, g1, g2, g3], axis=-1) @ w2
    x1 = x + hs
    h2 = _gelu(_layernorm(x1, axis=-1) @ w3) @ w4
    return x1 + h2
```

```python
import re

TRANS = ("v_exp_f32", "v_log_f32", "v_rcp_f32", "v_rsq_f32", "v_sqrt_f32", "v_sin_f32", "v_cos_f32")

def _regs(tok):
    tok = tok.strip()
    tok = re.sub(r"^-|^abs\(|\)$|^\|", "", tok).strip("|")
    m = re.fullmatch(r"([vas])\[(\d+):(\d+)\]", tok)
    if m:
        return [(m.group(1), i) for i in range(int(m.group(2)), int(m.group(3)) + 1)]
    m = re.fullmatch(r"([vas])(\d+)", tok)
    if m:
        return [(m.group(1), int(m.group(2)))]
    if tok in ("vcc", "vcc_lo", "vcc_hi"):
        return [("s", "vcc")]
    if tok == "m0":
        return [("s", "m0")]
    if tok in ("exec", "exec_lo", "exec_hi"):
        return [("s", "exec")]
    return []

class Ins:
    __slots__ = ("text", "op", "kind", "wr", "rd", "srcc", "ab", "nops", "is_label", "stdata", "dpp")
    def __init__(self, text):
        self.text = text
        self.is_label = text.endswith(":")
        self.wr = []; self.rd = []; self.srcc = []; self.ab = []; self.stdata = []
        self.kind = "other"; self.nops = 1; self.dpp = False
        if self.is_label or text.startswith(".") or text.startswith(";"):
            self.kind = "label" if self.is_label else "dir"; self.op = ""; self.nops = 0
            return
        body = text.split(";")[0].strip()
        parts = body.split(None, 1)
        op = parts[0]; self.op = op
        rest = parts[1] if len(parts) > 1 else ""
        ops = [o.strip() for o in rest.split(",")] if rest else []
        if ops:
            last = ops[-1].split()
            mods = last[1:]
            ops[-1] = last[0] if last else ""
        else:
            mods = []
        R = [_regs(o) for o in ops]
        if op == "s_nop":
            self.kind = "nop"; self.nops = int(ops[0], 0) + 1
        elif op.startswith("v_mfma"):
            self.kind = "mfma"; self.wr = R[0]; self.ab = R[1] + R[2]; self.srcc = R[3]; self.rd = self.ab + self.srcc
        elif op.startswith("v_"):
            self.kind = "trans" if op.split("_e")[0] in TRANS or op in TRANS else "valu"
            self.dpp = "_dpp" in op
            if op.startswith("v_cmp"):
                self.wr = R[0]; self.rd = sum(R[1:], [])
                if op.startswith("v_cmpx"): self.wr = self.wr + [("s", "exec")]
            elif op.startswith("v_permlane") and "swap" in op:
                self.wr = R[0] + R[1]; self.rd = R[0] + R[1]; self.kind = "permlane"
            elif op.startswith(("v_add_co", "v_sub_co", "v_addc_co", "v_subb_co")):
                self.wr = R[0] + R[1]; self.rd = sum(R[2:], [])
            elif op.startswith(("v_readfirstlane", "v_readlane")):
                self.wr = R[0]; self.rd = sum(R[1:], []); self.kind = "readlane"
            else:
                self.wr = R[0]; self.rd = sum(R[1:], [])
                if op.startswith(("v_fmac", "v_dot2c", "v_writelane")): self.rd = self.rd + R[0]
                if op.startswith("v_cndmask") and len(ops) == 3: self.rd = self.rd + [("s", "vcc")]
        elif op.startswith(("buffer_", "global_")):
            self.kind = "vmem"
            lds = "lds" in mods
            if op in ("buffer_wbl2", "buffer_inv"):
                pass
            elif op.startswith("buffer_load"):
                if lds:
                    self.rd = sum(R, []) + [("s", "m0")]; self.kind = "vmem_lds"
                else:
                    self.wr = R[0]; self.rd = sum(R[1:], [])
            elif op.startswith("buffer_store"):
                self.rd = sum(R, []); self.stdata = R[0] if len(R[0]) >= 3 else []
            elif op.startswith("buffer_atomic"):
                self.rd = sum(R, [])
                if "sc0" in mods: self.wr = R[0]
            elif op.startswith("global_load"):
                self.wr = R[0]; self.rd = sum(R[1:], [])
            elif op.startswith("global_store"):
                self.rd = sum(R, []); self.stdata = R[1] if len(R[1]) >= 3 else []
        elif op.startswith("ds_"):
            self.kind = "ds"
            if op.startswith(("ds_read", "ds_bpermute", "ds_swizzle", "ds_permute")):
                self.wr = R[0]; self.rd = sum(R[1:], [])
            else:
                self.rd = sum(R, [])
        elif op.startswith("s_"):
            self.kind = "salu"
            if op.startswith(("s_cbranch", "s_branch", "s_barrier", "s_waitcnt", "s_endpgm", "s_sleep", "s_setprio")):
                self.kind = "ctl"
            elif op.startswith("s_cmp"):
                self.rd = sum(R, [])
            else:
                self.wr = R[0] if R else []; self.rd = sum(R[1:], [])
                if "saveexec" in op: self.wr = self.wr + [("s", "exec")]

VALU_KINDS = ("valu", "trans", "permlane", "readlane")

def need_states(p, c):
    n = 0
    pw = set(p.wr); cr = set(c.rd); cw = set(c.wr)
    pwv = {r for r in pw if r[0] in "va"}
    pws = {r for r in pw if r[0] == "s"}
    if p.kind in VALU_KINDS:
        if c.kind == "mfma" and pwv & cr: n = max(n, 2)
        if c.kind == "mfma" and ("s", "exec") in pws: n = max(n, 4)
        if c.kind == "readlane" and pwv & cr: n = max(n, 1)
        if c.kind == "permlane" and pwv & cr: n = max(n, 2)
        if c.dpp and pwv & cr: n = max(n, 2)
        if p.kind == "trans" and c.kind in VALU_KINDS + ("mfma",) and pwv & cr: n = max(n, 2 if c.kind == "mfma" else 1)
        if pws:
            if c.kind in ("vmem", "vmem_lds") and pws & cr: n = max(n, 5)
            if c.kind in VALU_KINDS and pws & cr: n = max(n, 4 if c.kind == "readlane" else 2)
            if ("s", "exec") in pws and c.kind in ("readlane", "permlane"): n = max(n, 4)
            if ("s", "exec") in pws and c.dpp: n = max(n, 5)
            if c.kind in ("salu", "ctl") and (pws & cr or (c.op.startswith("s_cbranch_vcc") and ("s", "vcc") in pws)): n = max(n, 1)
    if p.op.startswith("v_dot") and c.kind in VALU_KINDS + ("mfma", "vmem", "ds"):
        if c.op == p.op:
            if c.op.startswith("v_dot2c"):
                srcab = set(c.rd) - set(c.wr)
            else:
                srcab = set(c.rd[:-1])
            if pwv & srcab: n = max(n, 3)
        elif pwv & (cr | cw): n = max(n, 3)
    if p.kind == "mfma":
        passes = 8 if "32x32" in p.op else 4
        big = {4: 8, 8: 12}[passes]
        if c.kind == "mfma":
            if pwv & set(c.ab): n = max(n, big)
            if pwv & set(c.srcc):
                if set(c.srcc) != pwv: n = max(n, {4: 6, 8: 10}[passes])
            if pwv & cw and not (pwv & set(c.srcc)): n = max(n, big)
        elif c.kind in VALU_KINDS + ("vmem", "vmem_lds", "ds"):
            if pwv & (cr | cw): n = max(n, big)
        if c.kind in VALU_KINDS and set(p.srcc) & cw: n = max(n, {4: 3, 8: 7}[passes])
    if p.kind == "salu" and ("s", "m0") in pws and c.kind == "vmem_lds": n = max(n, 1)
    if p.stdata and set(p.stdata) & cw: n = max(n, 2 if c.kind in VALU_KINDS else 1)
    return n

class Asm:
    def __init__(self):
        self.ins = []
        self.vm = []
        self.lg = []
        self.lbl = 0
    def __call__(self, text, tag=None):
        for line in text.split("\n"):
            line = line.strip()
            if not line: continue
            i = Ins(line)
            if i.kind in ("vmem", "vmem_lds") and len(self.vm) >= 60:
                self.ins.append(Ins("s_waitcnt vmcnt(52)")); self.vm = self.vm[-52:]
            if i.kind == "ds" and len(self.lg) >= 14:
                self.ins.append(Ins("s_waitcnt lgkmcnt(12)")); self.lg = self.lg[-12:]
            self.ins.append(i)
            if tag == "_untracked":
                continue
            if i.kind in ("vmem", "vmem_lds") and i.op not in ("buffer_wbl2", "buffer_inv"):
                self.vm.append(tag)
            if i.kind == "ds":
                self.lg.append(tag)
    def label(self, p="L"):
        self.lbl += 1
        return f"{p}_{self.lbl}"
    def wait_vm(self, tags=None):
        if tags is None:
            n = 0
        else:
            if not isinstance(tags, (list, tuple, set)): tags = [tags]
            idx = [i for i, t in enumerate(self.vm) if t in tags]
            if not idx: return
            n = len(self.vm) - 1 - idx[-1]
        if n >= len(self.vm) and n > 0: return
        n = min(n, 63)
        self(f"s_waitcnt vmcnt({n})")
        self.vm = self.vm[len(self.vm) - n:] if n else []
    def wait_lg(self, tags=None):
        if tags is None:
            n = 0
        else:
            if not isinstance(tags, (list, tuple, set)): tags = [tags]
            idx = [i for i, t in enumerate(self.lg) if t in tags]
            if not idx: return
            n = len(self.lg) - 1 - idx[-1]
        n = min(n, 15)
        self(f"s_waitcnt lgkmcnt({n})")
        self.lg = self.lg[len(self.lg) - n:] if n else []
    def text(self):
        out = []
        hist = []
        for i in self.ins:
            if i.kind in ("dir",):
                out.append(i.text); continue
            if i.kind == "label":
                worst = 0
                for p, d in hist:
                    lim = 0
                    if p.kind == "mfma": lim = 12 if "32x32" in p.op else 8
                    elif p.kind in VALU_KINDS: lim = 5 if any(r[0] == "s" for r in p.wr) else 3
                    elif p.kind == "salu" and ("s", "m0") in p.wr: lim = 1
                    elif p.stdata: lim = 2
                    worst = max(worst, lim - d)
                if worst > 0:
                    out.append(f"    s_nop {worst-1}")
                hist = []
                out.append(i.text); continue
            need = 0
            for p, d in hist:
                need = max(need, need_states(p, i) - d)
            if i.op.startswith(("s_cbranch", "s_branch")):
                for p, d in hist:
                    lim = 0
                    if p.kind == "mfma": lim = 12 if "32x32" in p.op else 8
                    elif p.kind in VALU_KINDS: lim = 5 if any(r[0] == "s" for r in p.wr) else 3
                    elif p.kind == "salu" and ("s", "m0") in p.wr: lim = 1
                    elif p.stdata: lim = 2
                    need = max(need, lim - d - 1)
            if need > 0:
                out.append(f"    s_nop {need-1}")
                hist = [(p, d + need) for p, d in hist]
            out.append("    " + i.text)
            hist = [(p, d + i.nops) for p, d in hist if d + i.nops < 13]
            hist.append((i, 0))
        return "\n".join(out) + "\n"
```

```python
import sys
sys.path.insert(0, "dev")
from asmlib import Asm

KNAME = "standalone__mixer_s_mlp__sampling_kernel"
NB = 159
SCR = NB * 1024
CS3_OFF = 256
NACT = 18
KE = 5
F1_OFF = 0x1000; F2_OFF = 0x3000; F3_OFF = 0x8000; FW_OFF = 0xc000; ST_OFF = 0x10000
FS_OFF = 0x800; CSP_OFF = 0x40000
H_OFF = 0x100000; X1_OFF = 0x300000; H3_OFF = 0x500000; P_OFF = 0x1000000; WP_OFF = 0x2400000; STAMP_OFF = 0x3000000
FRAGSZ = 0x120000
X, W1, W2, W3, W4, OUT, WS, DBG, HS = (f"s[{b}:{b+3}]" for b in (20, 24, 28, 32, 36, 40, 44, 48, 52))
sTAG, sW, sX, sR, sMT, sNT, sM, sJ = (f"s{i}" for i in range(56, 64))
sE = "s3"
sC = [f"s{84+i}" for i in range(5)]
sTO = "s89"; sTAG8 = "s82"; sWV = "s81"; sWK = "s83"
vLANE, vG, vJ = "v1", "v2", "v3"
vLB = ["v4", "v5", "v6"]
vL16 = "v4"; vFLG = "v8"; vSTAMP = "v9"; vCTR = "v10"; vSCR = "v11"
T0 = 12
AF0 = 24; NAF = 6
ACC0 = 48
BF0 = 112
DUMMY = "v7"

def vr(b, n=4): return f"v[{b}:{b+n-1}]"
MFMA = "v_mfma_f32_16x16x32_bf16"

def w3_idx(u, s):  return s * 6 + u if u < 6 else 108 + s * 3 + (u - 6)
def w4_idx(o, k):
    if o < 6: return 162 + (k * 6 + o if k < KE else 6 * KE + o * (18 - KE) + (k - KE))
    return 162 + 108 + (o - 6) * 18 + k

class Gen:
    def __init__(self, stop=99, stamps=False, local_plain=False, exp=""):
        self.exp = exp.split(",")
        self.ld_local = "nt" if "ldnt" in self.exp else ("" if "ldplain" in self.exp else "sc1")
        self.a = Asm(); self.stop = stop; self.stamps = stamps; self.nst = 0
        self.af = 0
        self.st_local = "" if local_plain else "sc1"
    def reset(self, nst=None):
        self.a.vm = []; self.a.lg = []
        if nst is not None: self.nst = nst
    def stamp(self):
        if not self.stamps: return
        a = self.a
        a.wait_lg()
        a("s_memrealtime s[90:91]\ns_waitcnt lgkmcnt(0)")
        a(f"v_writelane_b32 {vSTAMP}, s90, {self.nst}")
        self.nst += 1
    def next_af(self):
        b = AF0 + 4 * (self.af % NAF); self.af += 1
        return b
    def lb(self, kb):
        off = kb * 1024
        return vLB[off >> 16], off & 0xffff
    def read_blk(self, n, tag, dst=None):
        b = self.next_af() if dst is None else dst
        v, off = self.lb(n % NB)
        self.a(f"ds_read_b128 {vr(b)}, {v} offset:{off}", tag)
        return b
    def read_tr(self, vbase, off, tag, dst=None):
        b = self.next_af() if dst is None else dst
        self.a(f"ds_read_b64_tr_b16 {vr(b,2)}, {vbase} offset:{off}", tag)
        self.a(f"ds_read_b64_tr_b16 {vr(b+2,2)}, {vbase} offset:{off+2048}", tag)
        return b
    def poll(self, soff, vflag, mask=None):
        a = self.a
        t = f"v{T0}"
        L = a.label("Lpoll")
        a(f"s_mov_b32 {sTO}, 0")
        a(f"{L}:")
        a(f"buffer_load_dword {t}, {vflag}, {WS}, {soff} offen sc1")
        a(f"s_add_u32 {sTO}, {sTO}, 1\ns_cmp_gt_u32 {sTO}, 100000\ns_cbranch_scc1 L_end")
        a.wait_vm()
        a(f"v_cmp_ne_u32 vcc, {sTAG}, {t}")
        if mask is not None:
            a(f"s_and_b32 vcc_lo, vcc_lo, {mask}\ns_cbranch_scc1 {L}")
        else:
            a(f"s_cbranch_vccnz {L}")
    def set_flag(self, soff, mods, tags=None):
        a = self.a
        a.wait_vm(tags)
        a(f"v_mov_b32 v{T0}, {sTAG}\nv_mov_b32 v{T0+1}, 0")
        a("s_mov_b64 exec, 1")
        a(f"buffer_store_dword v{T0}, v{T0+1}, {WS}, {soff} offen {mods}", "flag")
        a("s_mov_b64 exec, -1")
    def signal(self, val):
        a = self.a
        a(f"v_mov_b32 v{T0}, {val}\ns_mov_b64 exec, 1")
        a(f"ds_write_b32 {vCTR}, v{T0}", "sig")
        a("s_mov_b64 exec, -1")
    def wait_ctr(self, grp, val, one=False, sleep=1):
        a = self.a
        L = a.label("Lw"); L2 = a.label("Lw")
        a(f"s_mov_b32 {sTO}, 0\ns_branch {L2}")
        a(f"{L}:")
        a(f"s_sleep {sleep}")
        a(f"{L2}:")
        t = T0
        if one:
            a(f"v_xor_b32 v{t+1}, 16, {vCTR}")
            a(f"ds_read_b32 v{t}, v{t+1}", "ctr")
        else:
            a(f"ds_read_b128 {vr(t)}, {vSCR} offset:{16*grp}", "ctr")
        a(f"s_add_u32 {sTO}, {sTO}, 1\ns_cmp_gt_u32 {sTO}, 1000000\ns_cbranch_scc1 L_end")
        a.wait_lg()
        if not one:
            a(f"v_min_u32 v{t}, v{t}, v{t+1}\nv_min3_u32 v{t}, v{t}, v{t+2}, v{t+3}")
        a(f"v_readfirstlane_b32 s64, v{t}")
        a(f"s_cmp_lt_u32 s64, {val}\ns_cbranch_scc1 {L}")
    def xlane_sum(self, v, t):
        a = self.a
        a(f"v_mov_b32 {t}, {v}\nv_permlane16_swap_b32 {v}, {t}\nv_add_f32 {v}, {v}, {t}")
        a(f"v_mov_b32 {t}, {v}\nv_permlane32_swap_b32 {v}, {t}\nv_add_f32 {v}, {v}, {t}")
    def bf16r(self, v):
        self.a(f"v_cvt_pk_bf16_f32 {v}, {v}, {v}\nv_lshlrev_b32 {v}, 16, {v}")
    def ln_consts(self, vS, vQ, K, t):
        a = self.a
        vNM, vSD, vC1, vC2 = K
        a(f"v_mul_f32 {vS}, 0x3ae38e39, {vS}")
        a(f"v_mul_f32 {t}, {vS}, {vS}")
        a(f"v_mov_b32 {vC1}, 0x3ae38e39")
        a(f"v_fma_f32 {vQ}, {vQ}, {vC1}, -{t}")
        a(f"v_max_f32 {vQ}, 0, {vQ}")
        self.bf16r(vQ)
        a(f"v_add_f32 {vQ}, 0x3727c5ac, {vQ}")
        self.bf16r(vQ)
        a(f"v_sqrt_f32 {vSD}, {vQ}")
        self.bf16r(vSD)
        self.bf16r(vS)
        a(f"v_sub_f32 {vNM}, 0, {vS}")
        a(f"v_rcp_f32 {t}, {vSD}")
        a(f"v_mul_f32 {vC1}, 0xc0135761, {t}")
        a(f"v_mul_f32 {vC2}, {t}, {t}")
        a(f"v_mul_f32 {vC2}, {vC2}, {t}")
        a(f"v_mul_f32 {vC2}, 0xbdd2d3e8, {vC2}")
    def gelu_ops(self, acc, cs, K, t):
        vNM, vSD, vC1, vC2 = K
        return [f"v_fma_f32 {acc}, {cs}, {vNM}, {acc}",
                f"v_mul_f32 {t}, {acc}, {acc}",
                f"v_fma_f32 {t}, {t}, {vC2}, {vC1}",
                f"v_mul_f32 {t}, {t}, {acc}",
                f"v_exp_f32 {t}, {t}",
                f"v_fma_f32 {t}, {t}, {vSD}, {vSD}",
                f"v_rcp_f32 {t}, {t}",
                f"v_mul_f32 {acc}, {acc}, {t}"]
    def gelu4(self, acc0, cs0, K, t0):
        seqs = [self.gelu_ops(f"v{acc0+i}", f"v{cs0+i}", K, f"v{t0+i}") for i in range(4)]
        for k in range(8):
            for s in seqs: self.a(s[k])
    def srd(self, name, ptr, nbytes):
        b = int(name[2:name.index(":")]); a = self.a
        a(f"s_mov_b32 s{b}, s{ptr}\ns_mov_b32 s{b+1}, s{ptr+1}\ns_mov_b32 s{b+2}, {nbytes}\ns_mov_b32 s{b+3}, 0x20000")
    def modn(self, s, n):
        self.a(f"s_sub_u32 s65, {s}, {n}\ns_min_u32 {s}, {s}, s65")
    def tr_bases(self, dst, base):
        a = self.a; t0, t1 = f"v{T0}", f"v{T0+1}"
        a(f"v_lshrrev_b32 {t0}, 2, {vLANE}")
        a(f"v_bfe_u32 {t1}, {vLANE}, 3, 2")
        a(f"v_lshlrev_b32 {t0}, 7, {t0}\nv_and_b32 {dst[0]}, 3, {vLANE}\nv_lshl_add_u32 {t0}, {dst[0]}, 3, {t0}")
        a(f"v_add_u32 {t0}, {base}, {t0}")
        for u in range(4):
            a(f"v_xor_b32 {dst[u]}, {u}, {t1}\nv_lshl_add_u32 {dst[u]}, {dst[u]}, 5, {t0}")
    def common_late(self):
        a = self.a
        for i in range(5): a(f"s_mov_b32 {sC[i]}, {4096*i}")
        self.srd(W2, 8, 663552)
        self.srd(OUT, 14, 1179648); self.srd(DBG, 16, 256); self.srd(WS, 18, 0x10000000)
        a(f"s_add_u32 s52, s18, {H_OFF}\ns_addc_u32 s53, s19, 0\ns_mov_b32 s54, {FRAGSZ}\ns_mov_b32 s55, 0x20000")
        a(f"v_add_u32 {vLB[1]}, 0x10000, {vLB[0]}\nv_add_u32 {vLB[2]}, 0x20000, {vLB[0]}")
        a(f"v_min_u32 {vFLG}, 17, {vLANE}\nv_lshlrev_b32 {vFLG}, 2, {vFLG}")
        a(f"v_mov_b32 {vSCR}, {SCR}\ns_lshl_b32 s64, {sWV}, 2\nv_add_u32 {vCTR}, s64, {vSCR}")
        a(f"v_mov_b32 v{T0}, 0\nds_write_b32 {vCTR}, v{T0}")
        a.wait_lg()
        a("s_waitcnt lgkmcnt(0)")
        a(f"s_add_u32 {sE}, {sE}, 1\ns_and_b32 {sTAG8}, {sE}, 0xff\ns_mul_i32 {sTAG}, {sE}, 0x9e3779b1\ns_xor_b32 {sTAG}, {sTAG}, 0x5bd1e995")
        a("s_barrier")
        L = a.label("Lfs")
        a(f"s_cmp_lg_u32 {sWV}, 3\ns_cbranch_scc1 {L}")
        a(f"s_lshl_b32 s64, s2, 2\ns_add_u32 s64, s64, {FS_OFF}\nv_mov_b32 v{T0}, {sTAG}\nv_mov_b32 v{T0+1}, 0\ns_mov_b64 exec, 1")
        a(f"buffer_store_dword v{T0}, v{T0+1}, {WS}, s64 offen sc1", "_untracked")
        a("s_mov_b64 exec, -1")
        a(f"{L}:")

    def build(self):
        a = self.a
        a("s_cmp_ge_u32 s2, 256\ns_cbranch_scc1 L_end")
        a("s_load_dwordx16 s[4:19], s[0:1], 0")
        a("s_getpc_b64 s[66:67]\nL_pc:")
        a(f"v_and_b32 {vLANE}, 63, v0\nv_lshrrev_b32 {vG}, 6, v0")
        a(f"s_and_b32 {sX}, s2, 7\ns_lshr_b32 {sR}, s2, 3")
        a(f"v_readfirstlane_b32 {sWV}, {vG}")
        a(f"s_lshl_b32 s64, {sR}, 11\nv_lshlrev_b32 v{T0}, 2, v0\nv_add_u32 v{T0}, s64, v{T0}")
        a(f"v_min_u32 v{T0}, L_code_end-L_pc-4, v{T0}")
        a(f"global_load_dword {DUMMY}, v{T0}, s[66:67]", "code")
        a(f"v_lshlrev_b32 {vL16}, 4, {vLANE}\nv_lshrrev_b32 {vG}, 4, {vLANE}\nv_and_b32 {vJ}, 15, {vLANE}")
        a(f"s_and_b32 {sW}, {sWV}, 3\ns_lshl_b32 {sWK}, {sW}, 10")
        a(f"v_mov_b32 {vSTAMP}, 0")
        a(f"s_lshr_b32 {sM}, {sR}, 2\ns_and_b32 {sJ}, {sR}, 3")
        a(f"s_cmp_ge_u32 {sR}, 9\ns_cselect_b32 {sMT}, 1, 0\ns_mul_i32 s64, {sMT}, 9\ns_sub_u32 {sNT}, {sR}, s64")
        a(f"s_cmp_ge_u32 {sR}, {NACT}\ns_cbranch_scc1 L_repack")
        a(f"s_cmp_ge_u32 {sWV}, 4\ns_cbranch_scc1 L_h_act")
        self.c_phaseA()
        a("s_branch L_c_mlp")
        a("L_h_act:")
        self.reset(0); a.vm = ["code"]
        self.h_phaseA()
        a("s_branch L_h_mlp")
        a("L_repack:")
        self.reset(0); a.vm = ["code"]
        self.repack()
        a("L_split:")
        a(f"s_cmp_ge_u32 {sWV}, 4\ns_cbranch_scc1 L_h_mlp")
        a("L_c_mlp:")
        a("s_waitcnt lgkmcnt(0)")
        self.reset(24); a.vm = ["old"] * 4
        if self.stop > 2: self.c_mlp()
        a("s_branch L_fin")
        a("L_h_mlp:")
        a("s_waitcnt lgkmcnt(0)")
        self.reset(24); a.vm = ["old"] * 4
        self.h_mlp()
        a("L_fin:")
        self.reset(63)
        if self.stamps:
            self.stamp()
            a(f"s_lshl_b32 s64, s2, 3\ns_add_u32 s64, s64, {sWV}\ns_lshl_b32 s64, s64, 8\ns_add_u32 s64, s64, {STAMP_OFF}")
            a(f"v_lshlrev_b32 v{T0}, 2, {vLANE}")
            a(f"buffer_store_dword {vSTAMP}, v{T0}, {WS}, s64 offen")
        a("L_end:\ns_endpgm\nL_code_end:")
        return self.wrap(a.text())

    def kernarg_wait(self):
        a = self.a
        a("s_waitcnt lgkmcnt(0)")
        a(f"s_load_dword {sE}, s[18:19], 0")

    STEPS = (((0, 1), (0, 1, 2)), ((2, 3), (3, 4, 5)), ((4, 5), (6, 7, 8)), ((6, 7, 8), (9, 10)), ((), (11, 12, 13, 14)), ((), (15, 16, 17)))
    def ctr_issue(self, grp, dst):
        self.a(f"ds_read_b128 {vr(dst)}, {vSCR} offset:{16*grp}", "ctrp")
    def ctr_check(self, grp, dst, val):
        a = self.a
        L = a.label("Lok")
        a.wait_lg("ctrp")
        a(f"v_min_u32 v{dst}, v{dst}, v{dst+1}\nv_min3_u32 v{dst}, v{dst}, v{dst+2}, v{dst+3}")
        a(f"v_readfirstlane_b32 s64, v{dst}")
        a(f"s_cmp_ge_u32 s64, {val}\ns_cbranch_scc1 {L}")
        lg = list(a.lg)
        self.wait_ctr(grp, val)
        a(f"{L}:")
        a.lg = lg
    def c_phaseA(self):
        a = self.a
        XF = BF0; HF = BF0 + 72
        t0, t1, t2 = f"v{T0}", f"v{T0+1}", f"v{T0+2}"
        vTOK = f"v{T0+4}"; CT = T0 + 4 + 4
        ACC = ACC0; CS = ACC0 + 16; SUM = ACC0 + 32; GR = ACC0 + 36; OB = ACC0 + 40; XR = ACC0 + 44; PK = ACC0 + 52
        K = [f"v{ACC0+60+i}" for i in range(4)]
        vXB = [f"v{HF+i}" for i in range(2)]
        vT1 = [f"v{HF+4+i}" for i in range(4)]; vT1b = [f"v{HF+8+i}" for i in range(4)]
        vSH = [f"v{PK+4+i}" for i in range(4)]
        a(f"s_lshl_b32 s69, {sX}, 3\ns_lshl_b32 s64, {sMT}, 2\ns_add_u32 s69, s69, s64\ns_add_u32 s69, s69, {sW}")
        self.kernarg_wait()
        self.srd(W1, 6, 663552)
        self.stamp()
        a(f"s_lshl_b32 s64, {sR}, 2\ns_add_u32 s64, s64, {sW}\ns_lshl_b32 s64, s64, 10\ns_add_u32 s64, s64, {3*32*1152}")
        for i in range(0 if "nopf" in self.exp else 4):
            a(f"buffer_load_dwordx4 {vr(252)}, {vL16}, {W1}, s64 offen", "pf")
            a(f"s_add_u32 s64, s64, {72*1024}")
        self.srd(X, 4, 1179648); self.srd(W3, 10, 5308416); self.srd(W4, 12, 5308416)
        self.common_late()
        if "prio" in self.exp: a("s_setprio 2")
        for i in range(4): a(f"v_mov_b32 v{OB+i}, 0x3f803f80")
        a(f"s_lshl_b32 s64, {sW}, 11\ns_add_u32 s64, s64, {72*1024}\nv_lshlrev_b32 {t0}, 7, {vJ}\nv_add_u32 {t0}, s64, {t0}\nv_lshrrev_b32 {t1}, 1, {vJ}")
        for par in range(2):
            a(f"v_add_u32 {t2}, {4*par}, {vG}\nv_xor_b32 {t2}, {t2}, {t1}\nv_lshl_add_u32 {vXB[par]}, {t2}, 4, {t0}")
        self.tr_bases(vT1, 0)
        for u in range(4): a(f"v_add_u32 {vT1b[u]}, {9*4096}, {vT1[u]}")
        vXR = [f"v{HF+16+i}" for i in range(4)]
        a(f"s_lshl_b32 s64, {sW}, 11\ns_lshl_b32 s65, {sNT}, 13\ns_add_u32 s64, s64, s65\ns_add_u32 s64, s64, {72*1024}")
        a(f"v_lshlrev_b32 {t0}, 7, {vJ}\nv_add_u32 {t0}, s64, {t0}\nv_and_b32 {t1}, 1, {vG}\nv_lshl_add_u32 {t0}, {t1}, 3, {t0}")
        a(f"v_lshrrev_b32 {t1}, 1, {vJ}\nv_lshrrev_b32 {t2}, 1, {vG}\nv_xor_b32 {t1}, {t1}, {t2}")
        for u in range(4): a(f"v_xor_b32 {t2}, {2*u}, {t1}\nv_lshl_add_u32 {vXR[u]}, {t2}, 4, {t0}")
        vCO = [f"v{HF+20}", f"v{HF+21}"]
        a(f"v_mov_b32 {vCO[0]}, {vT1[0]}")
        for u in range(1, 4):
            a(f"s_cmp_eq_u32 {sW}, {u}\ns_cselect_b64 vcc, -1, 0\nv_cndmask_b32 {vCO[0]}, {vCO[0]}, {vT1[u]}, vcc")
        a(f"v_add_u32 {vCO[1]}, {9*4096}, {vCO[0]}")
        a(f"s_mul_i32 s64, s69, 18\ns_lshl_b32 s65, {sNT}, 1\ns_add_u32 s64, s64, s65\ns_lshl_b32 s77, s64, 10")
        a(f"s_lshr_b32 s64, s69, 1\ns_lshl_b32 s76, s64, 7")
        a(f"s_and_b32 s64, s69, 1\ns_mul_i32 s64, s64, 9\ns_add_u32 s64, s64, {sNT}\ns_lshl_b32 s64, s64, 2\ns_add_u32 s75, s64, s76")
        a(f"s_and_b32 s64, s69, 1\ns_lshl_b32 s64, s64, 4\nv_add_u32 {t0}, s64, {vJ}")
        a(f"s_mul_i32 s74, s69, 18432")
        vST = [f"v{HF+24+i}" for i in range(4)]
        a(f"s_andn2_b32 s66, s69, 1\ns_mul_i32 s66, s66, 18432\ns_lshl_b32 s64, {sNT}, 11\ns_add_u32 s66, s66, s64")
        for u in range(4):
            a(f"s_lshl_b32 s64, {sNT}, 2\ns_add_u32 s64, s64, {u}\ns_mul_i32 s64, s64, 7282\ns_lshr_b32 s64, s64, 16")
            a(f"s_lshr_b32 s65, s64, 1\ns_add_u32 s65, s65, 1\ns_sub_u32 s67, 0, s65\ns_bitcmp1_b32 s64, 0\ns_cselect_b32 s65, s67, s65")
            a(f"v_add_u32 {t1}, s65, {t0}")
            a(f"v_cmp_gt_u32 s[{92+2*u}:{93+2*u}], 32, {t1}")
            a(f"v_bfe_u32 {t2}, {t1}, 4, 1\nv_mul_u32_u24 {t2}, 18432, {t2}")
            a(f"v_and_b32 {vST[u]}, 15, {t1}\nv_lshl_add_u32 {vST[u]}, {vG}, 4, {vST[u]}")
            a(f"v_lshl_add_u32 {t2}, {vST[u]}, 4, {t2}\nv_add_u32 {vST[u]}, s66, {t2}")
        if "touch" in self.exp:
            a(f"buffer_load_dwordx4 {vr(248)}, {vL16}, {HS}, s77 offen sc1", "pf")
            a(f"buffer_load_dwordx4 {vr(248)}, {vL16}, {HS}, s77 offen offset:1024 sc1", "pf")
            a(f"s_add_u32 s64, s76, {F1_OFF}")
            a(f"buffer_load_dword v248, {vFLG}, {WS}, s64 offen sc1", "pf")
        def tr1(bases, s, u, tag):
            return self.read_tr(bases[0][u] if s < 9 else bases[1][u], (s % 9) * 4096, tag)
        PF = 5
        order = [(s, u) for s in range(18) for u in range(4)]
        step_of = {s: i for i, (xl, kk) in enumerate(self.STEPS) for s in kk}
        first_n = {i: 4 * kk[0] for i, (xl, kk) in enumerate(self.STEPS)}
        fr = {}
        done_step = -1
        statq = []
        def enter_step(i):
            if i == 0: self.wait_ctr(1, 1)
            else: self.ctr_check(1, CT, i + 1)
            if i in (0, 3, 5): self.stamp()
            for L in self.STEPS[i][0]:
                for q in range(2):
                    off = 8192 * L
                    if off < 65536: a(f"ds_read_b128 {vr(XF+4*(2*L+q))}, {vXB[q]} offset:{off}", f"x{2*L+q}")
                    else:
                        a(f"v_add_u32 {t0}, {off}, {vXB[q]}")
                        a(f"ds_read_b128 {vr(XF+4*(2*L+q))}, {t0}", f"x{2*L+q}")
                    statq.append(2 * L + q)
        def issue(n):
            nonlocal done_step
            s, u = order[n]
            i = step_of[s]
            if i > done_step:
                enter_step(i); done_step = i
            fr[order[n]] = tr1((vT1, vT1b), s, u, f"f{n}")
            if i + 1 < len(self.STEPS) and n == first_n[i + 1] - 3: self.ctr_issue(1, CT)
        CFS = [CS + 4, CS + 8]
        def cs_read(s): self.read_tr(vCO[0] if s < 9 else vCO[1], (s % 9) * 4096, f"c{s}", dst=CFS[s & 1])
        def cs_mfma(s):
            a.wait_lg(f"c{s}")
            a(f"{MFMA} {vr(CS)}, {vr(CFS[s&1])}, {vr(OB)}, {'0' if s == 0 else vr(CS)}")
        for n in range(PF): issue(n)
        nstat = 0; cs_next = 0; cs_pend = []
        for n, (s, u) in enumerate(order):
            a.wait_lg([f"f{n}", f"x{s}"])
            a(f"{MFMA} {vr(ACC+4*u)}, {vr(fr[s,u])}, {vr(XF+4*s)}, {'0' if s == 0 else vr(ACC+4*u)}")
            if n + PF < len(order): issue(n + PF)
            if cs_pend and n >= cs_pend[0][1] + 2:
                cs_mfma(cs_pend.pop(0)[0])
                if cs_next == 18 and not cs_pend:
                    cs_at = n
            if cs_next < 18 and step_of[cs_next] <= done_step and len(cs_pend) < 2 and (not cs_pend or n > cs_pend[-1][1]):
                cs_read(cs_next); cs_pend.append((cs_next, n)); cs_next += 1
            if cs_next == 18 and not cs_pend and n == cs_at + 1:
                a(f"s_lshl_b32 s64, {sW}, 6\nv_lshl_add_u32 {t1}, {vG}, 4, {vSCR}\nv_add_u32 {t2}, s64, {t1}")
                a(f"ds_write_b128 {t2}, {vr(CS)} offset:{CS3_OFF}", "csw")
                self.signal(2)
            if statq and (n & 1):
                q = statq.pop(0)
                a.wait_lg(f"x{q}")
                a(f"{MFMA} {vr(SUM)}, {vr(OB)}, {vr(XF+4*q)}, {'0' if q == 0 else vr(SUM)}")
                a(f"{MFMA} {vr(GR)}, {vr(XF+4*q)}, {vr(XF+4*q)}, {'0' if q == 0 else vr(GR)}")
                nstat += 1
                if nstat == 13:
                    for uu in range(4): a(f"ds_read_b64 {vr(XR+2*uu,2)}, {vXR[uu]}", "xr")
                if nstat == 18:
                    a.wait_lg("xr")
                    self.signal(1)
                    stat_at = n
            if nstat == 18 and n == stat_at + 3:
                vS, vQ = f"v{SUM}", f"v{GR}"
                a(f"v_and_b32 {t0}, 3, {vJ}")
                for r in range(1, 4):
                    a(f"v_cmp_eq_u32 vcc, {r}, {t0}")
                    a(f"v_cndmask_b32 {vQ}, {vQ}, v{GR+r}, vcc")
                a(f"v_lshrrev_b32 {t0}, 2, {vJ}\nv_cmp_eq_u32 vcc, {t0}, {vG}")
                a(f"v_cndmask_b32 {vQ}, 0, {vQ}, vcc")
                self.xlane_sum(vQ, t0)
                self.ln_consts(vS, vQ, K, t0)
        assert cs_next == 18 and not cs_pend and cs_at + 1 < len(order)
        self.stamp()
        self.wait_ctr(0, 2)
        a(f"v_lshl_add_u32 {t1}, {vG}, 4, {vSCR}")
        for u in range(4): a(f"ds_read_b128 {vr(CS+4*u)}, {t1} offset:{CS3_OFF+64*u}", f"cs{u}")
        for u in range(4):
            a.wait_lg(f"cs{u}")
            if u == 3: self.signal(3)
            self.gelu4(ACC + 4 * u, CS + 4 * u, K, T0)
            for d in range(2): a(f"v_cvt_pk_bf16_f32 v{XF+2*u+d}, v{ACC+4*u+2*d}, v{ACC+4*u+2*d+1}")
            for d in range(2): a(f"v_cndmask_b32 v{XF+2*u+d}, 0, v{XF+2*u+d}, s[{92+2*u}:{93+2*u}]")
            a(f"buffer_store_dwordx2 {vr(XF+2*u,2)}, {vST[u]}, {HS}, 0 offen offset:{1024*(u>>1)+8*(u&1)} {self.st_local}", "hst")
        self.stamp()
        vT2 = [f"v{CS+i}" for i in range(4)]; vT2b = [f"v{CS+4+i}" for i in range(4)]; vSH = [f"v{CS+8+i}" for i in range(4)]
        for u in range(4): a(f"v_add_u32 {vT2[u]}, {72*1024}, {vT1[u]}\nv_add_u32 {vT2b[u]}, {72*1024}, {vT1b[u]}")
        a(f"v_add_u32 {vSH[0]}, s74, {vL16}")
        a(f"s_add_u32 s64, s75, {F1_OFF}")
        self.set_flag("s64", self.st_local)
        self.stamp()
        a(f"s_add_u32 s64, s76, {F1_OFF}")
        self.poll("s64", vFLG)
        self.stamp()
        def hload(s):
            a(f"buffer_load_dwordx4 {vr(HF+4*s)}, {vSH[0]}, {HS}, {sC[s>>2]} offen offset:{(s&3)*1024} {self.ld_local}", f"h{s}")
        HA = 8
        for s in range(HA): hload(s)
        self.wait_ctr(1, 7)
        self.stamp()
        fr = {}
        for n in range(PF): fr[order[n]] = tr1((vT2, vT2b), *order[n], f"f{n}")
        for n, (s, u) in enumerate(order):
            if u == 0: a.wait_vm(f"h{s}")
            a.wait_lg(f"f{n}")
            a(f"{MFMA} {vr(ACC+4*u)}, {vr(fr[s,u])}, {vr(HF+4*s)}, {'0' if s == 0 else vr(ACC+4*u)}")
            if n + PF < len(order): fr[order[n+PF]] = tr1((vT2, vT2b), *order[n+PF], f"f{n+PF}")
            if u == 1 and s + HA < 18: hload(s + HA)
        self.signal(4)
        self.stamp()
        vS, vQ = f"v{SUM}", f"v{SUM+1}"
        a(f"v_mov_b32 {vS}, 0\nv_mov_b32 {vQ}, 0")
        a(f"s_add_u32 s64, s77, {X1_OFF}")
        for d in range(8):
            t3 = f"v{T0+3}"
            a(f"v_cvt_pk_bf16_f32 {t0}, v{ACC+2*d}, v{ACC+2*d+1}")
            a(f"v_lshlrev_b32 {t1}, 16, {t0}\nv_and_b32 {t0}, 0xffff0000, {t0}")
            a(f"v_lshlrev_b32 {t2}, 16, v{XR+d}\nv_and_b32 {t3}, 0xffff0000, v{XR+d}")
            a(f"v_add_f32 {t1}, {t1}, {t2}\nv_add_f32 {t0}, {t0}, {t3}")
            a(f"v_cvt_pk_bf16_f32 v{PK+d}, {t1}, {t0}")
            if d & 3 == 3: a(f"buffer_store_dwordx4 {vr(PK+d-3)}, {vL16}, {WS}, s64 offen offset:{1024*(d>>2)} sc1", "x1st")
        for d in range(8):
            a(f"v_dot2_f32_bf16 {vS}, v{PK+d}, v{OB}, {vS}")
            a(f"v_dot2_f32_bf16 {vQ}, v{PK+d}, v{PK+d}, {vQ}")
        self.xlane_sum(vS, t0); self.xlane_sum(vQ, t0)
        a(f"s_lshr_b32 s64, s69, 1\ns_mul_i32 s64, s64, 12\ns_add_u32 s64, s64, {sNT}\ns_lshl_b32 s64, s64, 8")
        a(f"s_and_b32 s65, s69, 1\ns_lshl_b32 s65, s65, 7\ns_add_u32 s64, s64, s65\ns_add_u32 s64, s64, {ST_OFF}")
        a(f"v_lshlrev_b32 {t0}, 3, {vJ}")
        a("s_mov_b64 exec, 0xffff")
        a(f"buffer_store_dwordx2 {vr(SUM,2)}, {t0}, {WS}, s64 offen sc1", "x1st")
        a("s_mov_b64 exec, -1")
        self.stamp()
        a(f"s_add_u32 s64, s75, {F2_OFF}")
        self.set_flag("s64", "sc1")
        self.stamp()

    def h_phaseA(self):
        a = self.a
        vD1, vD2, vDX, vDX2 = "v48", "v49", "v50", "v51"
        t0, t1, t2 = f"v{T0}", f"v{T0+1}", f"v{T0+2}"
        ks = 32 * 1152
        a(f"s_lshl_b32 s69, {sX}, 3\ns_lshl_b32 s64, {sMT}, 2\ns_add_u32 s69, s69, s64\ns_add_u32 s69, s69, {sW}\ns_mul_i32 s71, s69, 18432")
        a(f"v_lshrrev_b32 {t0}, 3, {vLANE}\nv_lshrrev_b32 {t1}, 4, {vLANE}\nv_and_b32 {t2}, 7, {vLANE}\nv_xor_b32 {t1}, {t1}, {t2}")
        a(f"v_mul_u32_u24 {vDX}, 1152, {t0}\nv_lshl_add_u32 {vDX}, {t1}, 4, {vDX}")
        a(f"v_xor_b32 {vDX2}, 64, {vDX}\nv_add_u32 {vDX2}, {8*1152}, {vDX2}")
        a(f"s_lshl_b32 s64, {sW}, 3\nv_add_u32 {t0}, s64, {t0}")
        a(f"v_and_b32 {t1}, 6, {t0}\nv_xor_b32 {t1}, {t1}, {t2}\nv_lshlrev_b32 {t1}, 4, {t1}")
        a(f"v_mul_u32_u24 {vD2}, 1152, {t0}\nv_add_u32 {vD2}, {vD2}, {t1}")
        a(f"v_and_b32 {t2}, 12, {t0}\nv_lshlrev_b32 {t2}, 1, {t2}\nv_and_b32 {vD1}, 3, {t0}\nv_add_u32 {t2}, {t2}, {vD1}")
        a(f"v_lshrrev_b32 {t0}, 4, {t0}\nv_lshl_add_u32 {t0}, {t0}, 2, {t2}")
        a(f"v_mul_u32_u24 {vD1}, 1152, {t0}\nv_add_u32 {vD1}, {vD1}, {t1}")
        a(f"s_lshl_b32 s79, {sNT}, 7\ns_mov_b32 s70, s79\ns_lshl_b32 s72, {sW}, 11\ns_add_u32 s72, s72, {72*1024}")
        self.kernarg_wait()
        self.srd(X, 4, 1179648); self.srd(W1, 6, 663552)
        self.stamp()
        NS = len(self.STEPS)
        for i, (xl, kk) in enumerate(self.STEPS):
            for L in xl:
                a(f"s_add_u32 m0, s72, {8192*L}")
                a(f"buffer_load_dwordx4 {vDX}, {X}, s71 offen lds", f"ld{i}")
                a(f"s_add_u32 m0, s72, {8192*L+1024}")
                a(f"buffer_load_dwordx4 {vDX2}, {X}, s71 offen lds", f"ld{i}")
                a(f"s_add_u32 s71, s71, 128")
            for s in kk:
                a(f"s_add_u32 m0, {sWK}, {4096*s}")
                a(f"buffer_load_dwordx4 {vD1}, {W1}, s70 offen lds", f"ld{i}")
                a(f"s_add_u32 s70, s70, {ks}")
            if i == 0 and "lat" in self.exp:
                a.wait_vm("code"); self.stamp()
                for q in range(6, -1, -1):
                    a(f"s_waitcnt vmcnt({q})"); self.stamp()
            if i == 0:
                self.srd(W3, 10, 5308416); self.srd(W4, 12, 5308416)
                self.common_late()
            if i >= 1:
                a.wait_vm(f"ld{i-1}"); self.signal(i)
            self.stamp()
        a.wait_vm(f"ld{NS-1}"); self.signal(NS)
        self.stamp()
        self.wait_ctr(0, 2, sleep=3)
        a(f"s_mov_b32 s70, s79")
        for s in range(18):
            a(f"s_add_u32 m0, {sWK}, {72*1024+4096*s}")
            a(f"buffer_load_dwordx4 {vD2}, {W2}, s70 offen lds", "w2")
            a(f"s_add_u32 s70, s70, {ks}")
        a.wait_vm("w2")
        self.signal(7)
        self.stamp()

    def repack(self):
        a = self.a
        a(f"s_sub_u32 s68, {sR}, {NACT}\ns_lshl_b32 s68, s68, 3\ns_add_u32 s68, s68, {sWV}")
        a(f"s_mul_i32 s69, {sWV}, 12288")
        vR, vCK = "v48", "v49"
        a(f"v_lshrrev_b32 {vR}, 3, {vLANE}")
        a(f"v_and_b32 v{T0}, 6, {vR}\nv_and_b32 {vCK}, 7, {vLANE}\nv_xor_b32 {vCK}, {vCK}, v{T0}\nv_lshlrev_b32 {vCK}, 4, {vCK}")
        a(f"s_lshl_b32 s70, s68, 10\ns_and_b32 s71, s70, 0x7fff\ns_add_u32 s71, s71, {112*1024}\ns_mul_i32 s72, {sX}, 147456")
        self.kernarg_wait()
        self.srd(X, 4, 1179648); self.srd(W1, 6, 663552); self.srd(W2, 8, 663552)
        self.stamp()
        DUM = vr(252)
        if "nopf" in self.exp:
            self.srd(W3, 10, 5308416); self.srd(W4, 12, 5308416)
            self.common_late(); a.wait_vm(); self.stamp(); return
        a(f"s_add_u32 s64, s70, s72")
        a(f"buffer_load_dwordx4 {DUM}, {vL16}, {X}, s64 offen", "pf")
        a(f"s_add_u32 s64, s71, s72")
        a(f"buffer_load_dwordx4 {DUM}, {vL16}, {X}, s64 offen", "pf")
        a(f"s_add_u32 s64, s70, {11*32*1152}")
        for i in range(3):
            a(f"buffer_load_dwordx4 {DUM}, {vL16}, {W1}, s64 offen", "pf")
            a(f"s_add_u32 s64, s64, {112*1024}")
        if "waitpf" in self.exp: a.wait_vm()
        if "norepack" in self.exp:
            self.srd(W3, 10, 5308416); self.srd(W4, 12, 5308416)
            self.common_late(); a.wait_vm(); self.stamp(); return
        for i in range(6):
            a(f"buffer_load_dwordx4 {DUM}, {vL16}, {W2}, s70 offen", "pf")
            a(f"s_add_u32 s70, s70, {112*1024}")
        self.srd(W3, 10, 5308416); self.srd(W4, 12, 5308416)
        self.common_late()
        for t in range(3):
            sK, sLC, sM4 = f"s{70+3*t}", f"s{71+3*t}", f"s{72+3*t}"
            a(f"s_add_u32 s64, s68, {112*t}\ns_min_u32 s64, s64, 323")
            a(f"s_cmp_ge_u32 s64, 162\ns_cselect_b32 {sM4}, 1, 0\ns_mul_i32 s65, {sM4}, 162\ns_sub_u32 s64, s64, s65")
            a(f"s_mul_i32 {sK}, s64, 7282\ns_lshr_b32 {sK}, {sK}, 16\ns_mul_i32 s65, {sK}, 9\ns_sub_u32 {sLC}, s64, s65")
            Lw4, Lj = a.label("Lrw4"), a.label("Lrj")
            a(f"s_cmp_eq_u32 {sM4}, 1\ns_cbranch_scc1 {Lw4}")
            vm0 = list(a.vm)
            a(f"s_mul_i32 s66, {sK}, {32*9216}\ns_mul_i32 s64, {sX}, 1152\ns_add_u32 s66, s66, s64\ns_lshl_b32 s64, {sLC}, 7\ns_add_u32 s66, s66, s64")
            a(f"v_mul_u32_u24 v{T0}, 9216, {vR}\nv_add_u32 v{T0}, v{T0}, {vCK}")
            for i in range(4):
                a(f"s_add_u32 m0, s69, {t*4096+i*1024}")
                a(f"buffer_load_dwordx4 v{T0}, {W3}, s66 offen nt lds", f"j{t}")
                a(f"s_add_u32 s66, s66, {8*9216}")
            a(f"s_branch {Lj}")
            a(f"{Lw4}:")
            a.vm = vm0
            a(f"s_lshr_b32 s64, {sK}, 2\ns_mul_i32 s64, s64, 144\ns_and_b32 s65, {sK}, 3\ns_lshl_b32 s65, s65, 5\ns_add_u32 s64, s64, s65")
            a(f"s_and_b32 s65, {sK}, 1\ns_mul_i32 s65, s65, 288\ns_add_u32 s65, s65, 128")
            a(f"s_cmp_ge_u32 {sK}, 16\ns_cselect_b32 s64, s65, s64\ns_cselect_b32 s67, {128*1152}, 0")
            a(f"s_mul_i32 s65, {sX}, 576\ns_add_u32 s64, s64, s65\ns_mul_i32 s66, s64, 1152\ns_lshl_b32 s64, {sLC}, 7\ns_add_u32 s66, s66, s64")
            a(f"v_mul_u32_u24 v{T0}, 1152, {vR}\nv_add_u32 v{T0}, v{T0}, {vCK}")
            for i in range(4):
                a(f"s_add_u32 m0, s69, {t*4096+i*1024}")
                a(f"buffer_load_dwordx4 v{T0}, {W4}, s66 offen nt lds", f"j{t}")
                a(f"s_add_u32 s66, s66, {8*1152}")
                if i == 1: a(f"s_add_u32 s66, s66, s67")
            a(f"{Lj}:")
        vT = [f"v{52+i}" for i in range(4)]
        self.tr_bases(vT, "s69")
        for i in range(4): a(f"v_mov_b32 v{136+i}, 0x3f803f80")
        R = [f"v{120+i}" for i in range(16)]
        vid, vk, vu, vj, vm4, vi3, vo, vd, vp, vkp, va, vb = R[:12]
        a(f"v_lshrrev_b32 {va}, 2, {vLANE}\nv_mul_u32_u24 {vid}, 112, {va}\nv_add_u32 {vid}, s68, {vid}\nv_min_u32 {vid}, 323, {vid}")
        a(f"v_subrev_u32 {va}, 162, {vid}\nv_cmp_le_u32 vcc, 162, {vid}\ns_mov_b64 s[92:93], vcc\nv_min_u32 {vid}, {vid}, {va}")
        a(f"v_mul_u32_u24 {vk}, 7282, {vid}\nv_lshrrev_b32 {vk}, 16, {vk}\nv_mul_u32_u24 {va}, 9, {vk}\nv_sub_u32 {va}, {vid}, {va}")
        a(f"v_and_b32 {vb}, 3, {vLANE}\nv_lshl_add_u32 {vu}, {va}, 2, {vb}")
        a(f"v_mul_u32_u24 {vj}, 7282, {vu}\nv_lshrrev_b32 {vj}, 16, {vj}\nv_mul_u32_u24 {va}, 9, {vj}\nv_sub_u32 {vu}, {vu}, {va}")
        a(f"v_lshrrev_b32 {va}, 1, {va}\nv_add_u32 {vb}, 18, {vk}\nv_sub_u32 {vb}, {vb}, {va}\nv_subrev_u32 {va}, 18, {vb}\nv_min_u32 {vb}, {vb}, {va}")
        a(f"v_mad_u32_u24 {vi3}, {vb}, 6, {vu}\nv_mad_u32_u24 {va}, {vb}, 3, {vu}\nv_add_u32 {va}, 102, {va}")
        a(f"v_cmp_gt_u32 vcc, 6, {vu}\nv_cndmask_b32 {vi3}, {va}, {vi3}, vcc")
        a(f"v_subrev_u32 {vo}, {sX}, {vu}\nv_add_u32 {vo}, 7, {vo}\nv_and_b32 {vo}, 7, {vo}\nv_add_u32 {vo}, 1, {vo}")
        a(f"v_cmp_eq_u32 vcc, 8, {vu}\nv_cndmask_b32 {vo}, {vo}, 0, vcc")
        a(f"v_lshrrev_b32 {vd}, 2, {vk}\nv_xor_b32 {vd}, {vd}, {vj}\nv_and_b32 {vp}, 3, {vk}")
        a(f"v_lshl_add_u32 {vkp}, {vp}, 2, {vd}\nv_add_u32 {vkp}, 1, {vkp}\nv_add_u32 {va}, 12, {vd}")
        a(f"v_cmp_eq_u32 vcc, 0, {vd}\nv_cndmask_b32 {va}, {va}, 0, vcc")
        a(f"v_cmp_eq_u32 vcc, 3, {vp}\nv_cndmask_b32 {vkp}, {vkp}, {va}, vcc")
        a(f"v_lshrrev_b32 {va}, 1, {vj}\nv_xor_b32 {va}, {va}, {vk}")
        a(f"v_cmp_le_u32 vcc, 16, {vk}\nv_cndmask_b32 {vkp}, {vkp}, {va}, vcc")
        a(f"v_mad_u32_u24 {va}, {vkp}, 6, {vo}\nv_mad_u32_u24 {vb}, {vo}, {18-KE}, {vkp}\nv_add_u32 {vb}, {5*KE}, {vb}")
        a(f"v_cmp_gt_u32 vcc, {KE}, {vkp}\nv_cndmask_b32 {va}, {vb}, {va}, vcc")
        a(f"v_mad_u32_u24 {vb}, {vo}, 18, {vkp}")
        a(f"v_cmp_le_u32 vcc, 6, {vo}\nv_cndmask_b32 {va}, {va}, {vb}, vcc\nv_add_u32 {va}, 162, {va}")
        a(f"v_cndmask_b32 {va}, {vi3}, {va}, s[92:93]")
        a(f"s_lshl_b32 s64, {sX}, 2\nv_add_u32 {vb}, s64, {vj}\nv_mul_u32_u24 {vb}, 324, {vb}\nv_add_u32 {va}, {va}, {vb}")
        a(f"v_lshlrev_b32 {va}, 10, {va}\nv_add_u32 {va}, {WP_OFF}, {va}")
        for t in range(3):
            for uu in range(4): a(f"v_readlane_b32 s{92+uu}, {va}, {4*t+uu}")
            a.wait_vm(f"j{t}")
            if t == 0: self.stamp()
            for uu in range(4): self.read_tr(vT[uu], t * 4096, f"r{uu}", dst=56 + 16 * t + 4 * uu)
            for uu in range(4):
                a.wait_lg(f"r{uu}")
                a(f"buffer_store_dwordx4 {vr(56+16*t+4*uu)}, {vL16}, {WS}, s{92+uu} offen {self.st_local}", f"st{t}")
                if t < 2: a(f"{MFMA} {vr(140+4*uu)}, {vr(56+16*t+4*uu)}, {vr(136)}, 0")
            if t < 2:
                sK, sLC, sM4 = f"s{70+3*t}", f"s{71+3*t}", f"s{72+3*t}"
                a(f"s_cmp_eq_u32 {sM4}, 1\ns_cselect_b32 s64, 18, {sK}\ns_mul_i32 s65, {sX}, 20\ns_add_u32 s64, s64, s65\ns_mul_i32 s64, s64, 2304")
                a(f"s_lshl_b32 s65, {sLC}, 8\ns_add_u32 s64, s64, s65\ns_add_u32 s64, s64, {CSP_OFF}")
                a(f"v_lshlrev_b32 v{T0}, 4, {vG}")
                a("s_mov_b32 exec_lo, 0x00010001\ns_mov_b32 exec_hi, 0x00010001")
                for uu in range(4):
                    a(f"buffer_store_dwordx4 {vr(140+4*uu)}, v{T0}, {WS}, s64 offen offset:{64*uu} {self.st_local}", f"st{t}")
                a("s_mov_b64 exec, -1")
            if t > 0: self.repack_flag(t - 1)
        self.signal(10)
        self.repack_flag(2)
        self.stamp()
    def repack_flag(self, t):
        a = self.a
        sK, sLC, sM4 = f"s{70+3*t}", f"s{71+3*t}", f"s{72+3*t}"
        a(f"s_lshl_b32 s64, {sX}, 1\ns_add_u32 s64, s64, {sM4}\ns_lshl_b32 s64, s64, 10")
        a(f"s_mul_i32 s65, {sLC}, 18\ns_add_u32 s65, s65, {sK}\ns_lshl_b32 s65, s65, 2\ns_add_u32 s64, s64, s65\ns_add_u32 s64, s64, {FW_OFF}")
        self.set_flag("s64", self.st_local, f"st{t}")

    def load_stats(self, K2, R):
        a = self.a
        va, vb = f"v{R+12}", f"v{R+13}"
        a(f"v_lshl_add_u32 {va}, {vG}, 5, {vJ}\nv_lshlrev_b32 {va}, 3, {va}\nv_mov_b32 {vb}, 0x40000000")
        a(f"v_cmp_eq_u32 vcc, 0, {vG}\nv_cndmask_b32 {vb}, {vb}, {va}, vcc")
        a(f"s_lshl_b32 s64, {sM}, 2\ns_add_u32 s64, s64, {sW}\ns_mul_i32 s64, s64, 3072\ns_add_u32 s64, s64, {ST_OFF}")
        for tt in range(2):
            for q in range(3):
                a(f"buffer_load_dwordx2 {vr(R+6*tt+2*q,2)}, {va if q < 2 else vb}, {WS}, s64 offen offset:{1024*q+128*tt} sc1", "st")
    def finish_stats(self, K2, R):
        a = self.a
        a.wait_vm("st")
        for tt in range(2):
            b = R + 6 * tt
            for c in range(2):
                a(f"v_add_f32 v{b+c}, v{b+c}, v{b+2+c}\nv_add_f32 v{b+c}, v{b+c}, v{b+4+c}")
                self.xlane_sum(f"v{b+c}", f"v{T0}")
            self.ln_consts(f"v{b}", f"v{b+1}", K2[tt], f"v{T0}")
    def h3_base(self, dst):
        self.a(f"s_lshl_b32 s64, {sM}, 3\ns_lshl_b32 s65, {sW}, 1\ns_add_u32 s64, s64, s65\ns_lshl_b32 s64, s64, 3\ns_add_u32 s64, s64, {sX}")
        self.a(f"s_mul_i32 s64, s64, 18432\ns_add_u32 {dst}, s64, {H3_OFF}")
    def f3_base(self, dst):
        self.a(f"s_lshl_b32 s64, {sM}, 3\ns_add_u32 s64, s64, {sX}\ns_lshl_b32 s64, s64, 2\ns_add_u32 s64, s64, {sW}\ns_lshl_b32 s64, s64, 6\ns_add_u32 {dst}, s64, {F3_OFF}")

    def c_mlp(self):
        a = self.a
        t0, t1 = f"v{T0}", f"v{T0+1}"
        vX2, vH2, vF3, vEX = (f"v{T0+4+i}" for i in range(4))
        CT = T0 + 8
        ACC = ACC0
        K2 = [[f"v{ACC0+48+4*tt+i}" for i in range(4)] for tt in range(2)]
        def B(k, tt): return BF0 + 8 * k + 4 * tt
        a(f"v_add_u32 {vX2}, 18432, {vL16}\nv_add_u32 {vH2}, 147456, {vL16}")
        a(f"v_min_u32 {vF3}, 15, {vLANE}\nv_lshlrev_b32 {vF3}, 2, {vF3}")
        a(f"s_mul_i32 s64, {sW}, 12288\nv_add_u32 {vEX}, s64, {vL16}")
        a(f"s_lshl_b32 s64, {sM}, 3\ns_lshl_b32 s65, {sW}, 1\ns_add_u32 s64, s64, s65\ns_mul_i32 s64, s64, 18432\ns_add_u32 s68, s64, {X1_OFF}")
        a(f"s_mul_i32 s69, {sJ}, 9\ns_lshr_b32 s69, s69, 1\ns_lshl_b32 s69, s69, 10")
        self.h3_base("s70")
        for d in range(4): a(f"s_xor_b32 s64, {sJ}, {d}\ns_lshl_b32 s64, s64, 12\ns_add_u32 s{71+d}, s64, s70")
        for e in range(2): a(f"s_lshr_b32 s64, {sJ}, 1\ns_xor_b32 s64, s64, {e}\ns_add_u32 s64, s64, 16\ns_lshl_b32 s64, s64, 10\ns_add_u32 s{75+e}, s64, s70")
        self.f3_base("s77")
        a(f"s_lshl_b32 s64, {sM}, 2\ns_add_u32 s64, s64, {sW}\ns_lshl_b32 s64, s64, 7\ns_add_u32 s78, s64, {F2_OFF}")
        self.stamp()
        self.poll("s78", vFLG)
        self.signal(11)
        self.stamp()
        self.load_stats(K2, ACC)
        def x1load(s):
            a(f"s_add_u32 s64, s68, s69")
            a(f"buffer_load_dwordx4 {vr(B(s,0))}, {vL16}, {WS}, s64 offen sc1", f"b{s}")
            a(f"buffer_load_dwordx4 {vr(B(s,1))}, {vX2}, {WS}, s64 offen sc1", f"b{s}")
            a(f"s_add_u32 s69, s69, 1024\ns_sub_u32 s65, s69, 18432\ns_min_u32 s69, s69, s65")
        XA = 6
        for s in range(XA): x1load(s)
        self.finish_stats(K2, ACC)
        self.wait_ctr(1, 11)
        self.stamp()
        PF = 5
        def stream(items, hooks_issue, hooks_after):
            fr = {}
            def issue(i):
                if i in hooks_issue: hooks_issue[i]()
                fr[i] = self.read_blk(items[i][0], f"f{i}")
            for i in range(min(PF, len(items))): issue(i)
            for i, (n, mm, pre) in enumerate(items):
                if pre: a.wait_vm(pre)
                a.wait_lg(f"f{i}")
                for acc, breg, first in mm:
                    a(f"{MFMA} {vr(acc)}, {vr(fr[i])}, {vr(breg)}, {'0' if first else vr(acc)}")
                if i + PF < len(items): issue(i + PF)
                if i in hooks_after: hooks_after[i]()
        items = [(w3_idx(u, s), [(ACC + 8 * u + 4 * tt, B(s, tt), s == 0) for tt in range(2)], f"b{s}" if u == 0 else None)
                 for s in range(18) for u in range(6)]
        hi = {50: lambda: self.ctr_issue(1, CT), 54: lambda: self.ctr_check(1, CT, 12)}
        ha = {6 * s + 1: (lambda s=s: x1load(s + XA)) for s in range(18 - XA)}
        ha[56] = lambda: self.signal(12)
        ha[100] = lambda: self.ctr_issue(0, CT)
        stream(items, hi, ha)
        self.stamp()
        self.ctr_check(0, CT, 12)
        for e in range(12): a(f"ds_write_b128 {vEX}, {vr(ACC+4*e)} offset:{1024*e}", "ex")
        self.signal(13)
        self.ctr_issue(1, CT); self.ctr_check(1, CT, 13)
        self.stamp()
        def h3load(k):
            if k < 13: d, p = (k - 1) & 3, (k - 1) >> 2; so, io = f"s{71+d}", 1024 * p
            elif k < 16: so, io = f"s{71+k-12}", 3072
            else: so, io = f"s{75+k-16}", 0
            a(f"buffer_load_dwordx4 {vr(B(k,0))}, {vL16}, {WS}, {so} offen offset:{io} {self.ld_local}", f"g{k}")
            a(f"buffer_load_dwordx4 {vr(B(k,1))}, {vH2}, {WS}, {so} offen offset:{io} {self.ld_local}", f"g{k}")
        items = [(w3_idx(u, s), [(ACC + 8 * (u - 6) + 4 * tt, B(s, tt), s == 0) for tt in range(2)], None)
                 for s in range(18) for u in range(6, 9)]
        hi = {47: lambda: self.ctr_issue(1, CT), 51: lambda: self.ctr_check(1, CT, 15)}
        stream(items, hi, {})
        self.signal(14)
        self.stamp()
        CSR = ACC + 24
        a(f"v_lshl_add_u32 {t1}, {vG}, 4, {vSCR}")
        for u in range(3): a(f"ds_read_b128 {vr(CSR+4*u)}, {t1} offset:{CS3_OFF+64*(6+u)}", "cs")
        self.poll("s77", vF3, mask=0x1111)
        for k in range(1, 5): h3load(k)
        self.stamp()
        a.wait_lg()
        S8 = ACC + 36
        a(f"s_lshl_b32 s64, {sJ}, 12\ns_add_u32 s66, s64, s70\ns_add_u32 s66, s66, 3072")
        a(f"s_and_b32 s64, {sJ}, 1\ns_lshl_b32 s64, s64, 3\ns_add_u32 s67, s64, s75")
        for tt in range(2):
            for u in range(3):
                b = ACC + 8 * u + 4 * tt
                self.gelu4(b, CSR + 4 * u, K2[tt], T0)
                dst = B(0, tt) + 2 * u if u < 2 else S8 + 2 * tt
                for d in range(2): a(f"v_cvt_pk_bf16_f32 v{dst+d}, v{b+2*d}, v{b+2*d+1}")
            vo = vL16 if tt == 0 else vH2
            a(f"buffer_store_dwordx4 {vr(B(0,tt))}, {vo}, {WS}, s66 offen {self.st_local}", "cst")
            a(f"buffer_store_dwordx2 {vr(S8+2*tt,2)}, {vo}, {WS}, s67 offen {self.st_local}", "cst")
        a(f"s_lshl_b32 s64, {sJ}, 4\ns_add_u32 s64, s64, s77\ns_add_u32 s64, s64, 12")
        self.set_flag("s64", self.st_local, "cst")
        self.stamp()
        self.poll("s77", vF3, mask=0x7777)
        for k in range(5, 13): h3load(k)
        self.wait_ctr(1, 16)
        self.stamp()
        items = [(w4_idx(o, k), [(ACC + 8 * o + 4 * tt, B(k, tt), k == 0) for tt in range(2)], f"g{k}" if o == 0 and k > 0 else None)
                 for k in range(KE) for o in range(6)]
        stream(items, {}, {})
        self.signal(15)
        self.stamp()
        self.poll("s77", vF3)
        for k in range(13, 18): h3load(k)
        self.wait_ctr(1, 17)
        self.wait_ctr(0, 15)
        self.stamp()
        items = []; hi = {}; ha = {}
        a(f"s_lshl_b32 s64, {sW}, 11\nv_add_u32 {vEX}, s64, {vL16}")
        for o in range(9):
            acc = ACC + 8 * o if o < 6 else ACC + 8 * (o - 6)
            for k in range(KE if o < 6 else 0, 18):
                items.append((w4_idx(o, k), [(acc + 4 * tt, B(k, tt), k == 0) for tt in range(2)], f"g{k}" if o == 0 else None))
            def dump(o=o, acc=acc):
                kb = (165 + 8 * o) % NB
                for tt in range(2):
                    off = kb * 1024 + 1024 * tt
                    if off + 6144 < 65536: a(f"ds_write_b128 {vEX}, {vr(acc+4*tt)} offset:{off}", "ex")
                    else:
                        a(f"v_add_u32 {t1}, {off}, {vEX}")
                        a(f"ds_write_b128 {t1}, {vr(acc+4*tt)}", "ex")
                self.signal(16 + o)
            ha[len(items) - 1 + (2 if o < 8 else 0)] = dump
            if o in (2, 5):
                n = len(items)
                ha[n + 3] = lambda: self.ctr_issue(0, CT)
                ha[n + 8] = (lambda o=o: self.ctr_check(0, CT, 16 + (1 if o == 2 else 3)))
        idx_of = {it[0]: i for i, it in enumerate(items)}
        for blk, val in ((267, 18), (321, 19)):
            i = idx_of[blk]
            hi[i - 4] = lambda: self.ctr_issue(1, CT)
            hi[i] = (lambda val=val: self.ctr_check(1, CT, val))
        stream(items, hi, ha)
        self.stamp()

    def h_mlp(self):
        a = self.a
        t0, t1 = f"v{T0}", f"v{T0+1}"
        vFW, vH2, vEX, vT8 = (f"v{T0+4+i}" for i in range(4))
        sSRC = "s68"
        if self.stop <= 2:
            self.epoch_advance(); return
        a(f"v_min_u32 {vFW}, 53, {vLANE}\nv_lshlrev_b32 {vFW}, 2, {vFW}\nv_add_u32 {vH2}, 147456, {vL16}")
        a(f"s_mul_i32 s64, {sW}, 12288\nv_add_u32 {vEX}, s64, {vL16}\nv_mov_b32 {vT8}, {sTAG8}")
        a(f"s_lshl_b32 s64, {sX}, 2\ns_add_u32 s64, s64, {sJ}\ns_mul_i32 s64, s64, {324*1024}\ns_add_u32 s69, s64, {WP_OFF}")
        a(f"s_lshl_b32 s64, {sX}, 11\ns_mul_i32 s65, {sJ}, 144\ns_add_u32 s64, s64, s65\ns_add_u32 s70, s64, {FW_OFF}")
        self.h3_base("s71"); self.f3_base("s72")
        a(f"s_lshl_b32 s64, {sJ}, 12\ns_add_u32 s71, s71, s64\ns_lshl_b32 s64, {sJ}, 4\ns_add_u32 s72, s72, s64")
        def dma_list(lo, hi, tagf):
            out = []
            n = lo
            while n < hi:
                li = n % NB
                cnt = min(4 - li % 4, NB - li, hi - n)
                assert li % 4 == 0 or True
                def f(n=n, li=li, cnt=cnt):
                    if cnt == 4:
                        a(f"s_add_u32 m0, {sWK}, {li*1024}\ns_add_u32 s66, {sWK}, s69\ns_add_u32 s66, s66, {n*1024}")
                    else:
                        a(f"s_min_u32 s64, {sWK}, {(cnt-1)*1024}\ns_add_u32 m0, s64, {li*1024}\ns_add_u32 s66, s64, s69\ns_add_u32 s66, s66, {n*1024}")
                    a(f"buffer_load_dwordx4 {vL16}, {WS}, s66 offen {self.ld_local} lds", tagf(n))
                out.append(f); n += cnt
            return out
        self.stamp()
        self.poll("s70", vFW)
        self.stamp()
        self.wait_ctr(1, 7, sleep=2); self.wait_ctr(0, 3, sleep=2)
        tg = lambda n: "d0" if n < 56 else ("d1" if n < 108 else "d2")
        for f in dma_list(0, 72, tg): f()
        CP = 100
        a(f"s_lshl_b32 s64, {sW}, 6\nv_add_u32 {t1}, s64, {vLANE}\nv_min_u32 {t1}, 143, {t1}\nv_lshlrev_b32 v{CP+18}, 2, {t1}")
        a(f"s_mul_i32 s64, {sX}, {20*2304}\ns_mul_i32 s65, {sJ}, 576\ns_add_u32 s64, s64, s65\ns_add_u32 s64, s64, {CSP_OFF}")
        for k in range(18):
            a(f"buffer_load_dword v{CP+k}, v{CP+18}, {WS}, s64 offen {self.ld_local}", "cp")
            a(f"s_add_u32 s64, s64, 2304")
        a.wait_vm("d0"); self.signal(11)
        self.wait_ctr(0, 4, sleep=2)
        self.stamp()
        for f in dma_list(72, 159, tg): f()
        a.wait_vm("cp")
        for k in range(1, 18): a(f"v_add_f32 v{CP}, v{CP}, v{CP+k}")
        a(f"v_add_u32 {t1}, {vSCR}, v{CP+18}")
        a(f"ds_write_b32 {t1}, v{CP} offset:{CS3_OFF}", "csw")
        a.wait_vm("d1"); self.signal(12)
        a.wait_vm("d2"); self.signal(13)
        self.stamp()
        self.epoch_advance()
        K2 = [[f"v{48+4*tt+i}" for i in range(4)] for tt in range(2)]
        self.wait_ctr(0, 11, one=True, sleep=2)
        self.load_stats(K2, 100)
        self.finish_stats(K2, 100)
        a(f"s_add_u32 s70, s70, 1024")
        self.poll("s70", vFW)
        CSR = 56
        self.wait_ctr(1, 12)
        a(f"v_lshl_add_u32 {t1}, {vG}, 4, {vSCR}")
        for u in range(6): a(f"ds_read_b128 {vr(CSR+4*u)}, {t1} offset:{CS3_OFF+64*u}", "cs")
        AC = 128
        PKR = 80
        self.stamp()
        self.wait_ctr(0, 13, one=True, sleep=2)
        self.stamp()
        for e in range(12): a(f"ds_read_b128 {vr(AC+4*e)}, {vEX} offset:{1024*e}", "ex")
        a.wait_lg()
        self.signal(14)
        self.wait_ctr(1, 14); self.wait_ctr(0, 13)
        dq = dma_list(159, 267, lambda n: "e0" if n < 163 else ("e1" if n < 195 else "e2"))
        def pop(k):
            for _ in range(k):
                if dq: dq.pop(0)()
        pop(2)
        for p in range(3):
            for tt in range(2):
                for uu in range(2):
                    u = 2 * p + uu; b = AC + 8 * u + 4 * tt
                    self.gelu4(b, CSR + 4 * u, K2[tt], T0)
                    for d in range(2): a(f"v_cvt_pk_bf16_f32 v{PKR+8*p+4*tt+2*uu+d}, v{b+2*d}, v{b+2*d+1}")
                    pop(2)
                    if p == 0 and tt == 0 and uu == 1:
                        a.wait_vm("e0"); self.signal(15)
                    if p > 0 and tt == 0 and uu == 0:
                        a(f"s_add_u32 s64, s72, {4*(p-1)}")
                        self.set_flag("s64", self.st_local, f"h3_{p-1}")
                a(f"buffer_store_dwordx4 {vr(PKR+8*p+4*tt)}, {vL16 if tt == 0 else vH2}, {WS}, s71 offen offset:{1024*p} {self.st_local}", f"h3_{p}")
            self.stamp()
        a(f"s_add_u32 s64, s72, 8")
        self.set_flag("s64", self.st_local, "h3_2")
        pop(99)
        a.wait_vm("e1"); self.signal(16)
        self.wait_ctr(0, 14, sleep=2)
        for f in dma_list(267, 321, lambda n: "e3"): f()
        a.wait_vm("e2"); self.signal(17)
        self.wait_ctr(0, 15, sleep=2)
        for f in dma_list(321, 324, lambda n: "e4"): f()
        self.stamp()
        a(f"s_lshl_b32 s64, {sM}, 2\ns_add_u32 s64, s64, {sJ}\ns_mul_i32 s64, s64, {9*64*1024}\ns_add_u32 s73, s64, {P_OFF}")
        a(f"s_lshl_b32 s64, {sW}, 11\nv_add_u32 {vEX}, s64, {vL16}")
        a(f"s_lshl_b32 s65, {sX}, 13\ns_add_u32 s74, s64, s65\ns_add_u32 s74, s74, s73")
        a(f"s_mov_b32 s75, 0xff")
        XRr = 100
        a(f"s_mul_i32 s64, {sJ}, 9\ns_add_u32 s76, s64, {sX}")
        a(f"s_lshl_b32 s64, {sM}, 3\ns_lshl_b32 s65, {sW}, 1\ns_add_u32 s77, s64, s65")
        a(f"s_mul_i32 s64, s77, 18\ns_lshr_b32 s65, s76, 1\ns_add_u32 s64, s64, s65\ns_lshl_b32 s64, s64, 10\ns_and_b32 s65, s76, 1\ns_lshl_b32 s65, s65, 3\ns_add_u32 s64, s64, s65\ns_add_u32 s64, s64, {X1_OFF}")
        a(f"v_add_u32 {t1}, 18432, {vL16}")
        a(f"buffer_load_dwordx2 {vr(XRr,2)}, {vL16}, {WS}, s64 offen sc1", "xr")
        a(f"buffer_load_dwordx2 {vr(XRr+2,2)}, {t1}, {WS}, s64 offen sc1", "xr")
        a(f"s_mul_i32 s64, {sJ}, 9\ns_add_u32 s78, s64, 8\ns_lshl_b32 s64, {sM}, 3\ns_add_u32 s79, s64, {sX}")
        a(f"s_mul_i32 s64, s79, 18\ns_lshr_b32 s65, s78, 1\ns_add_u32 s64, s64, s65\ns_lshl_b32 s64, s64, 10\ns_and_b32 s65, s78, 1\ns_lshl_b32 s65, s65, 3\ns_add_u32 s64, s64, s65\ns_add_u32 s64, s64, {X1_OFF}")
        a(f"buffer_load_dwordx2 {vr(XRr+4,2)}, {vL16}, {WS}, s64 offen sc1", "xr")
        vO = "v106"
        a(f"v_mul_u32_u24 {vO}, 1152, {vJ}\nv_lshl_add_u32 {vO}, {vG}, 3, {vO}")
        DB = 108
        for o in range(9):
            if o == 1: a.wait_vm("e3"); self.signal(18)
            if o == 3: a.wait_vm("e4"); self.signal(19)
            self.wait_ctr(0, 16 + o, one=True, sleep=2)
            d = DB + 8 * (o & 1)
            kb = (165 + 8 * o) % NB
            a(f"v_add_u32 {t1}, {kb*1024}, {vEX}")
            for tt in range(2): a(f"ds_read_b128 {vr(d+4*tt)}, {t1} offset:{1024*tt}", "dp")
            if o == 8: break
            if o == 0: a(f"s_add_u32 s66, s74, {8*65536}")
            else: a(f"s_add_u32 s64, {sX}, {o}\ns_and_b32 s64, s64, 7\ns_lshl_b32 s64, s64, 16\ns_add_u32 s66, s64, s74")
            a.wait_lg()
            for e in range(8): a(f"v_bfi_b32 v{d+e}, s75, {vT8}, v{d+e}")
            for tt in range(2): a(f"buffer_store_dwordx4 {vr(d+4*tt)}, {vL16}, {WS}, s66 offen offset:{1024*tt} sc1", "pst")
            if o == 5:
                L8 = a.label("Lu8")
                a(f"s_lshr_b32 s64, {sX}, 1\ns_cmp_lg_u32 s64, {sW}\ns_cbranch_scc1 {L8}")
                vm = list(a.vm)
                a(f"s_lshl_b32 s64, {sX}, 10\ns_add_u32 s67, s64, s73\ns_add_u32 s67, s67, {8*65536}")
                self.gather(128, 8, 1, "s67", None)
                self.finish_out(128, XRr + 4, vO, "s79", "s78")
                a(f"{L8}:")
                a.vm = vm
        self.stamp()
        d = DB
        a(f"s_lshl_b32 s64, {sX}, 16\ns_add_u32 s67, s64, s73\ns_lshl_b32 s64, {sW}, 11\ns_add_u32 s67, s67, s64")
        self.gather(128, 7, 2, "s67", sX)
        self.stamp()
        a.wait_lg()
        for tt in range(2):
            for e in range(4): a(f"v_add_f32 v{128+4*tt+e}, v{128+4*tt+e}, v{d+4*tt+e}")
            a(f"s_add_u32 s79, s77, {tt}")
            self.finish_out(128 + 4 * tt, XRr + 2 * tt, vO, "s79", "s76")

    def gather(self, R, nsrc, ntt, sbase, skip):
        a = self.a
        L = a.label("Lg"); t0 = f"v{T0}"; vT8 = f"v{T0+7}"
        a(f"s_mov_b32 {sTO}, 0")
        a(f"{L}:")
        for i in range(nsrc):
            if skip: a(f"s_add_u32 s64, {skip}, {i+1}\ns_and_b32 s64, s64, 7\ns_lshl_b32 s64, s64, 13\ns_add_u32 s64, s64, {sbase}")
            else: a(f"s_add_u32 s64, {sbase}, {8192*i}")
            for tt in range(ntt):
                a(f"buffer_load_dwordx4 {vr(R+4*(ntt*i+tt))}, {vL16}, {WS}, s64 offen offset:{1024*tt} sc1", "pg")
        a(f"s_add_u32 {sTO}, {sTO}, 1\ns_cmp_gt_u32 {sTO}, 50000\ns_cbranch_scc1 L_end")
        a.wait_vm()
        n = 4 * nsrc * ntt
        a(f"v_xor_b32 {t0}, v{R}, {vT8}")
        for e in range(1, n): a(f"v_bitop3_b32 {t0}, {t0}, v{R+e}, {vT8} bitop3:0xf6")
        a(f"v_and_b32 {t0}, 0xff, {t0}\nv_cmp_ne_u32 vcc, 0, {t0}")
        a(f"s_cbranch_vccnz {L}")
        for i in range(1, nsrc):
            for e in range(4 * ntt): a(f"v_add_f32 v{R+e}, v{R+e}, v{R+4*ntt*i+e}")
    def finish_out(self, S, XR, vO, sTile, sU):
        a = self.a
        t0, t1, t2, t3 = (f"v{T0+i}" for i in range(4))
        for d in range(2):
            a(f"v_cvt_pk_bf16_f32 {t0}, v{S+2*d}, v{S+2*d+1}")
            a(f"v_lshlrev_b32 {t1}, 16, {t0}\nv_and_b32 {t0}, 0xffff0000, {t0}")
            a(f"v_lshlrev_b32 {t2}, 16, v{XR+d}\nv_and_b32 {t3}, 0xffff0000, v{XR+d}")
            a(f"v_add_f32 {t1}, {t1}, {t2}\nv_add_f32 {t0}, {t0}, {t3}")
            a(f"v_cvt_pk_bf16_f32 v{S+d}, {t1}, {t0}")
        a(f"s_mul_i32 s64, {sTile}, 18432\ns_lshl_b32 s65, {sU}, 5\ns_add_u32 s64, s64, s65")
        a(f"buffer_store_dwordx2 {vr(S,2)}, {vO}, {OUT}, s64 offen", "out")
    def epoch_advance(self):
        a = self.a
        L = a.label("Lep"); L2 = a.label("Lep")
        a(f"s_cmp_lg_u32 s2, 255\ns_cbranch_scc1 {L}\ns_cmp_lg_u32 {sW}, 3\ns_cbranch_scc1 {L}")
        vm = list(a.vm)
        a(f"s_mov_b32 {sTO}, 0")
        a(f"{L2}:")
        a(f"buffer_load_dwordx4 {vr(T0)}, {vL16}, {WS}, 0 offen offset:{FS_OFF} sc1")
        a(f"s_add_u32 {sTO}, {sTO}, 1\ns_cmp_gt_u32 {sTO}, 100000\ns_cbranch_scc1 L_end")
        a.wait_vm()
        a(f"v_xor_b32 v{T0}, {sTAG}, v{T0}\nv_xor_b32 v{T0+1}, {sTAG}, v{T0+1}\nv_xor_b32 v{T0+2}, {sTAG}, v{T0+2}\nv_xor_b32 v{T0+3}, {sTAG}, v{T0+3}")
        a(f"v_or3_b32 v{T0}, v{T0}, v{T0+1}, v{T0+2}\nv_or_b32 v{T0}, v{T0}, v{T0+3}\nv_cmp_ne_u32 vcc, 0, v{T0}")
        a(f"s_cbranch_vccnz {L2}")
        a(f"v_mov_b32 v{T0}, {sE}\nv_mov_b32 v{T0+1}, 0\ns_mov_b64 exec, 1")
        a(f"buffer_store_dword v{T0}, v{T0+1}, {WS}, 0 offen sc1", "_untracked")
        a("s_mov_b64 exec, -1")
        a(f"{L}:")
        a.vm = vm

    def wrap(self, body):
        hdr = open("standalone__mixer_s_mlp__sampling.s.ref").read().split("; Override")[0]
        s = hdr + "; @launch grid=(256,1,1) block=(512,1,1) lds=163840\n"
        s += '.amdgcn_target "amdgcn-amd-amdhsa--gfx950"\n.text\n'
        s += f".globl {KNAME}\n.p2align 8\n.type {KNAME},@function\n{KNAME}:\n"
        s += body
        s += f'.section .rodata,"a"\n.p2align 6\n.amdhsa_kernel {KNAME}\n'
        s += "  .amdhsa_next_free_vgpr 256\n  .amdhsa_next_free_sgpr 102\n  .amdhsa_accum_offset 256\n"
        s += "  .amdhsa_group_segment_fixed_size 0\n  .amdhsa_kernarg_size 64\n  .amdhsa_user_sgpr_count 2\n"
        s += "  .amdhsa_user_sgpr_kernarg_segment_ptr 1\n  .amdhsa_system_sgpr_workgroup_id_x 1\n"
        s += "  .amdhsa_float_denorm_mode_32 3\n.end_amdhsa_kernel\n"
        return s

if __name__ == "__main__":
    import argparse
    p = argparse.ArgumentParser()
    p.add_argument("-o", default="mk.s"); p.add_argument("--stop", type=int, default=99)
    p.add_argument("--stamps", action="store_true"); p.add_argument("--plain", action="store_true"); p.add_argument("--exp", default="")
    args = p.parse_args()
    open(args.o, "w").write(Gen(args.stop, args.stamps, args.plain, args.exp).build())
```

```python
import sys
sys.path.insert(0, "dev")
from asmlib import Asm

KNAME = "standalone__mixer_s_mlp__sampling_kernel"
NB = 159
SCR = NB * 1024
CS3_OFF = 256
NACT = 18
KE = 4
SL = 9216; NSL = 17
EX1 = 11
ROT3 = (0, 4, 10, 14)
FS_OFF = 0xF80000; ST_OFF = 0x10000; CSP_OFF = 0x40000
F1_OFF = 0xE00000; F2_OFF = 0xE20000; FW_OFF = 0xE40000; F3_OFF = 0xF00000
H_OFF = 0x100000; X1_OFF = 0x300000; H3_OFF = 0x500000; P_OFF = 0x1000000; WP_OFF = 0x2400000; STAMP_OFF = 0x3000000
FRAGSZ = 0x120000
X, W1, W2, W3, W4, OUT, WS, DBG, HS = (f"s[{b}:{b+3}]" for b in (20, 24, 28, 32, 36, 40, 44, 48, 52))
sTAG, sW, sX, sR, sMT, sNT, sM, sJ = (f"s{i}" for i in range(56, 64))
sE = "s3"
sC = [f"s{84+i}" for i in range(5)]
sMODE = "s80"; sTO = "s89"; sTAG8 = "s82"; sWV = "s81"; sWK = "s83"
vLANE, vG, vJ = "v1", "v2", "v3"
vLB = ["v4", "v5", "v6"]
vL16 = "v4"; vFLG = "v8"; vSTAMP = "v9"; vCTR = "v10"; vSCR = "v11"
T0 = 12
AF0 = 24; NAF = 6
ACC0 = 48
BF0 = 112
DUMMY = "v7"

def vr(b, n=4): return f"v[{b}:{b+n-1}]"
MFMA = "v_mfma_f32_16x16x32_bf16"

def kprime(k, j):
    if k >= 16: return 16 + ((k - 16) ^ (j >> 1))
    d, p = (k >> 2) ^ j, k & 3
    return p if d == 0 else 4 + 3 * p + (d - 1)

class Gen:
    def __init__(self, stop=99, stamps=False, local_plain=False, exp=""):
        self.exp = exp.split(",")
        self.psleep = 0
        for e in self.exp:
            if e.startswith("ps"): self.psleep = int(e[2:])
        self.ld_local = "nt" if "ldnt" in self.exp else ("" if "ldplain" in self.exp else "sc1")
        self.a = Asm(); self.stop = stop; self.stamps = stamps; self.nst = 0
        self.af = 0
        self.st_local = "" if local_plain else "sc1"
    def reset(self, nst=None):
        self.a.vm = []; self.a.lg = []
        if nst is not None: self.nst = nst
    def stamp(self):
        if not self.stamps: return
        a = self.a
        a.wait_lg()
        a(("s_memtime" if "cyc" in self.exp else "s_memrealtime") + " s[90:91]\ns_waitcnt lgkmcnt(0)")
        a(f"v_writelane_b32 {vSTAMP}, s90, {self.nst}")
        self.nst += 1
    def next_af(self):
        b = AF0 + 4 * (self.af % NAF); self.af += 1
        return b
    def lb(self, kb):
        off = kb * 1024
        return vLB[off >> 16], off & 0xffff
    def read_blk(self, n, tag, dst=None):
        b = self.next_af() if dst is None else dst
        v, off = self.lb(n % NB)
        self.a(f"ds_read_b128 {vr(b)}, {v} offset:{off}", tag)
        return b
    def read_tr(self, vbase, off, tag, dst=None):
        b = self.next_af() if dst is None else dst
        self.a(f"ds_read_b64_tr_b16 {vr(b,2)}, {vbase} offset:{off}", tag)
        self.a(f"ds_read_b64_tr_b16 {vr(b+2,2)}, {vbase} offset:{off+2048}", tag)
        return b
    def poll(self, soff, vflag, mask=None, sleep=None):
        a = self.a
        t = f"v{T0}"
        if sleep is None: sleep = self.psleep
        L = a.label("Lpoll"); L2 = a.label("Lpoll")
        a(f"s_mov_b32 {sTO}, 0\ns_branch {L2}")
        a(f"{L}:")
        if sleep: a(f"s_sleep {sleep}")
        a(f"{L2}:")
        a(f"buffer_load_dword {t}, {vflag}, {WS}, {soff} offen sc1")
        a(f"s_add_u32 {sTO}, {sTO}, 1\ns_cmp_gt_u32 {sTO}, 100000\ns_cbranch_scc1 L_end")
        a.wait_vm()
        a(f"v_cmp_ne_u32 vcc, {sTAG}, {t}")
        if mask is not None:
            a(f"s_and_b32 vcc_lo, vcc_lo, {mask}\ns_cbranch_scc1 {L}")
        else:
            a(f"s_cbranch_vccnz {L}")
    def poll_one(self, soff, vflag, val):
        a = self.a
        L = a.label("Lp1"); L2 = a.label("Lp1"); L3 = a.label("Lp1")
        vm = list(a.vm)
        a(f"s_cmp_lg_u32 {sW}, 0\ns_cbranch_scc1 {L}")
        self.poll(soff, vflag)
        a(f"v_mov_b32 v{T0}, {val}\ns_mov_b64 exec, 1")
        a(f"ds_write_b32 {vSCR}, v{T0} offset:32", "sig")
        a("s_mov_b64 exec, -1")
        a.wait_lg()
        a(f"s_branch {L3}")
        a(f"{L}:")
        a(f"s_mov_b32 {sTO}, 0")
        a(f"{L2}:")
        a(f"s_sleep 2\nds_read_b32 v{T0}, {vSCR} offset:32", "ctr")
        a(f"s_add_u32 {sTO}, {sTO}, 1\ns_cmp_gt_u32 {sTO}, 1000000\ns_cbranch_scc1 L_end")
        a.wait_lg()
        a(f"v_readfirstlane_b32 s64, v{T0}")
        a(f"s_cmp_lt_u32 s64, {val}\ns_cbranch_scc1 {L2}")
        a(f"{L3}:")
        a.vm = vm
    def set_flag(self, soff, mods, tags=None):
        a = self.a
        for i in range(4): a(f"v_mov_b32 v{T0+i}, {sTAG}")
        a.wait_vm(tags)
        a("s_mov_b64 exec, 0xff")
        if mods == "local": self.local_store(f"buffer_store_dwordx4 {vr(T0)}, {vL16}, {WS}, {soff} offen", "flag")
        else: a(f"buffer_store_dwordx4 {vr(T0)}, {vL16}, {WS}, {soff} offen {mods}", "flag")
        a("s_mov_b64 exec, -1")
    def signal(self, val):
        a = self.a
        a(f"v_mov_b32 v0, {val}\ns_mov_b64 exec, 1")
        a(f"ds_write_b32 {vCTR}, v0", "sig")
        a("s_mov_b64 exec, -1")
    def wait_ctr(self, grp, val, one=False, sleep=1, tmp=None):
        a = self.a
        L = a.label("Lw"); L2 = a.label("Lw")
        a(f"s_mov_b32 {sTO}, 0\ns_branch {L2}")
        a(f"{L}:")
        if sleep: a(f"s_sleep {sleep}")
        a(f"{L2}:")
        t = T0 if tmp is None else tmp
        if one:
            a(f"v_xor_b32 v{t+1}, {16 if one is True else one}, {vCTR}")
            a(f"ds_read_b32 v{t}, v{t+1}", "ctr")
        else:
            a(f"ds_read_b128 {vr(t)}, {vSCR} offset:{16*grp}", "ctr")
        a(f"s_add_u32 {sTO}, {sTO}, 1\ns_cmp_gt_u32 {sTO}, 1000000\ns_cbranch_scc1 L_end")
        a.wait_lg()
        if not one:
            a(f"v_min_u32 v{t}, v{t}, v{t+1}\nv_min3_u32 v{t}, v{t}, v{t+2}, v{t+3}")
        a(f"v_readfirstlane_b32 s64, v{t}")
        a(f"s_cmp_lt_u32 s64, {val}\ns_cbranch_scc1 {L}")
    def xlane_sum(self, v, t):
        a = self.a
        a(f"v_mov_b32 {t}, {v}\nv_permlane16_swap_b32 {v}, {t}\nv_add_f32 {v}, {v}, {t}")
        a(f"v_mov_b32 {t}, {v}\nv_permlane32_swap_b32 {v}, {t}\nv_add_f32 {v}, {v}, {t}")
    def bf16r(self, v):
        self.a(f"v_cvt_pk_bf16_f32 {v}, {v}, {v}\nv_lshlrev_b32 {v}, 16, {v}")
    def ln_consts(self, vS, vQ, K, t):
        a = self.a
        vNM, vSD, vC1, vC2 = K
        a(f"v_mul_f32 {vS}, 0x3ae38e39, {vS}")
        a(f"v_mul_f32 {t}, {vS}, {vS}")
        a(f"v_mov_b32 {vC1}, 0x3ae38e39")
        a(f"v_fma_f32 {vQ}, {vQ}, {vC1}, -{t}")
        a(f"v_max_f32 {vQ}, 0, {vQ}")
        self.bf16r(vQ)
        a(f"v_add_f32 {vQ}, 0x3727c5ac, {vQ}")
        self.bf16r(vQ)
        a(f"v_sqrt_f32 {vSD}, {vQ}")
        self.bf16r(vSD)
        self.bf16r(vS)
        a(f"v_sub_f32 {vNM}, 0, {vS}")
        a(f"v_rcp_f32 {t}, {vSD}")
        a(f"v_mul_f32 {vC1}, 0xc0135761, {t}")
        a(f"v_mul_f32 {vC2}, {t}, {t}")
        a(f"v_mul_f32 {vC2}, {vC2}, {t}")
        a(f"v_mul_f32 {vC2}, 0xbdd2d3e8, {vC2}")
    def gelu_ops(self, acc, cs, K, t):
        vNM, vSD, vC1, vC2 = K
        return [f"v_fma_f32 {acc}, {cs}, {vNM}, {acc}",
                f"v_mul_f32 {t}, {acc}, {acc}",
                f"v_fma_f32 {t}, {t}, {vC2}, {vC1}",
                f"v_mul_f32 {t}, {t}, {acc}",
                f"v_exp_f32 {t}, {t}",
                f"v_fma_f32 {t}, {t}, {vSD}, {vSD}",
                f"v_rcp_f32 {t}, {t}",
                f"v_mul_f32 {acc}, {acc}, {t}"]
    def gelu4(self, acc0, cs0, K, t0):
        seqs = [self.gelu_ops(f"v{acc0+i}", f"v{cs0+i}", K, f"v{t0+i}") for i in range(4)]
        for k in range(8):
            for s in seqs: self.a(s[k])
    def srd(self, name, ptr, nbytes):
        b = int(name[2:name.index(":")]); a = self.a
        a(f"s_mov_b32 s{b}, s{ptr}\ns_mov_b32 s{b+1}, s{ptr+1}\ns_mov_b32 s{b+2}, {nbytes}\ns_mov_b32 s{b+3}, 0x20000")
    def modn(self, s, n):
        self.a(f"s_sub_u32 s65, {s}, {n}\ns_min_u32 {s}, {s}, s65")
    def tr_bases(self, dst, base):
        a = self.a; t0, t1 = f"v{T0}", f"v{T0+1}"
        a(f"v_lshrrev_b32 {t0}, 2, {vLANE}")
        a(f"v_bfe_u32 {t1}, {vLANE}, 3, 2")
        a(f"v_lshlrev_b32 {t0}, 7, {t0}\nv_and_b32 {dst[0]}, 3, {vLANE}\nv_lshl_add_u32 {t0}, {dst[0]}, 3, {t0}")
        a(f"v_add_u32 {t0}, {base}, {t0}")
        for u in range(4):
            a(f"v_xor_b32 {dst[u]}, {u}, {t1}\nv_lshl_add_u32 {dst[u]}, {dst[u]}, 5, {t0}")
    def common_late(self):
        a = self.a
        for i in range(5): a(f"s_mov_b32 {sC[i]}, {4096*i}")
        self.srd(W2, 8, 663552)
        self.srd(OUT, 14, 1179648); self.srd(DBG, 16, 256); self.srd(WS, 18, 0x10000000)
        a(f"s_add_u32 s52, s18, {H_OFF}\ns_addc_u32 s53, s19, 0\ns_mov_b32 s54, {FRAGSZ}\ns_mov_b32 s55, 0x20000")
        a(f"v_add_u32 {vLB[1]}, 0x10000, {vLB[0]}\nv_add_u32 {vLB[2]}, 0x20000, {vLB[0]}")
        a(f"v_min_u32 {vFLG}, 17, {vLANE}\nv_lshlrev_b32 {vFLG}, 7, {vFLG}")
        a(f"v_mov_b32 {vSCR}, {SCR}\ns_lshl_b32 s64, {sWV}, 2\nv_add_u32 {vCTR}, s64, {vSCR}")
        a(f"v_mov_b32 v{T0}, 0\nds_write_b32 {vCTR}, v{T0}\nds_write_b32 {vSCR}, v{T0} offset:32\nds_write_b32 {vSCR}, v{T0} offset:36")
        a.wait_lg()
        a("s_waitcnt lgkmcnt(0)")
        a(f"s_add_u32 {sE}, {sE}, 1\ns_and_b32 {sTAG8}, {sE}, 0xff\ns_mul_i32 {sTAG}, {sE}, 0x9e3779b1\ns_xor_b32 {sTAG}, {sTAG}, 0x5bd1e995")
        a("s_barrier")
        L = a.label("Lfs")
        a(f"s_cmp_lg_u32 {sWV}, 3\ns_cbranch_scc1 {L}")
        a(f"s_getreg_b32 s65, hwreg(HW_REG_XCC_ID)\ns_and_b32 s65, s65, 15\ns_add_u32 s65, s65, {sTAG}")
        a(f"s_lshl_b32 s64, {sX}, 5\ns_add_u32 s64, s64, {sR}\ns_lshl_b32 s64, s64, 7\ns_add_u32 s64, s64, {FS_OFF}")
        a(f"v_mov_b32 v{T0}, {sTAG}\nv_mov_b32 v{T0+1}, s65\nv_mov_b32 v{T0+2}, {sTAG}\nv_mov_b32 v{T0+3}, s65\ns_mov_b64 exec, 0xff")
        a(f"buffer_store_dwordx4 {vr(T0)}, {vL16}, {WS}, s64 offen sc1", "_untracked")
        a("s_mov_b64 exec, -1")
        a(f"{L}:")
    def mode_probe(self, wave=3):
        a = self.a
        L = a.label("Lmp"); L1 = a.label("Lmp"); L2 = a.label("Lmp"); L3 = a.label("Lmp")
        vm = list(a.vm)
        a(f"s_cmp_lg_u32 {sWV}, {wave}\ns_cbranch_scc1 {L}")
        a(f"s_getreg_b32 s65, hwreg(HW_REG_XCC_ID)\ns_and_b32 s65, s65, 15\ns_add_u32 s65, s65, {sTAG}")
        a(f"s_lshl_b32 s64, {sX}, 12\ns_add_u32 s64, s64, {FS_OFF}\nv_and_b32 v{T0+2}, 31, {vLANE}\nv_lshlrev_b32 v{T0+2}, 7, v{T0+2}")
        a(f"s_mov_b32 {sTO}, 0\ns_mov_b32 s66, 1")
        a(f"{L1}:")
        a(f"buffer_load_dwordx2 {vr(T0,2)}, v{T0+2}, {WS}, s64 offen sc1")
        a(f"s_add_u32 {sTO}, {sTO}, 1\ns_cmp_gt_u32 {sTO}, 6\ns_cbranch_scc1 {L2}")
        a.wait_vm()
        a(f"v_cmp_ne_u32 vcc, {sTAG}, v{T0}")
        a(f"s_cbranch_vccnz {L1}")
        a(f"v_cmp_ne_u32 vcc, s65, v{T0+1}")
        a(f"s_cbranch_vccnz {L2}")
        a(f"s_mov_b32 s66, {1 if 'slow' in self.exp else 2}")
        a(f"{L2}:")
        a("s_waitcnt vmcnt(0)")
        a(f"v_mov_b32 v{T0}, s66\ns_mov_b64 exec, 1")
        a(f"ds_write_b32 {vSCR}, v{T0} offset:36", "sig")
        a("s_mov_b64 exec, -1")
        a.wait_lg()
        a(f"{L}:")
        a.vm = vm
    def mode_get(self):
        a = self.a
        L = a.label("Lmg")
        a(f"s_mov_b32 {sTO}, 0")
        a(f"{L}:")
        a(f"ds_read_b32 v{T0}, {vSCR} offset:36", "ctr")
        a(f"s_add_u32 {sTO}, {sTO}, 1\ns_cmp_gt_u32 {sTO}, 1000000\ns_cbranch_scc1 L_end")
        a.wait_lg()
        a(f"v_readfirstlane_b32 {sMODE}, v{T0}")
        a(f"s_cmp_eq_u32 {sMODE}, 0\ns_cbranch_scc1 {L}")
    def local_store(self, text, tag):
        a = self.a
        L = a.label("Lls"); L2 = a.label("Lls")
        a(f"s_cmp_eq_u32 {sMODE}, 2\ns_cbranch_scc1 {L}")
        a(text + " sc1", "_untracked")
        a(f"s_branch {L2}")
        a(f"{L}:")
        a(text, tag)
        a(f"{L2}:")

    def build(self):
        a = self.a
        a("s_cmp_ge_u32 s2, 256\ns_cbranch_scc1 L_end")
        a("s_load_dwordx16 s[4:19], s[0:1], 0")
        a("s_getpc_b64 s[66:67]\nL_pc:")
        a(f"v_and_b32 {vLANE}, 63, v0\nv_lshrrev_b32 {vG}, 6, v0")
        a(f"s_and_b32 {sX}, s2, 7\ns_lshr_b32 {sR}, s2, 3")
        a(f"v_readfirstlane_b32 {sWV}, {vG}")
        a(f"s_lshl_b32 s64, {sR}, 11\nv_lshlrev_b32 v{T0}, 2, v0\nv_add_u32 v{T0}, s64, v{T0}")
        a(f"v_min_u32 v{T0}, L_code_end-L_pc-4, v{T0}")
        a(f"global_load_dword {DUMMY}, v{T0}, s[66:67]", "code")
        a(f"v_lshlrev_b32 {vL16}, 4, {vLANE}\nv_lshrrev_b32 {vG}, 4, {vLANE}\nv_and_b32 {vJ}, 15, {vLANE}")
        a(f"s_and_b32 {sW}, {sWV}, 3\ns_lshl_b32 {sWK}, {sW}, 10")
        a(f"v_mov_b32 {vSTAMP}, 0")
        a(f"s_lshr_b32 {sM}, {sR}, 2\ns_and_b32 {sJ}, {sR}, 3")
        a(f"s_cmp_ge_u32 {sR}, 9\ns_cselect_b32 {sMT}, 1, 0\ns_mul_i32 s64, {sMT}, 9\ns_sub_u32 {sNT}, {sR}, s64")
        a(f"s_cmp_ge_u32 {sR}, {NACT}\ns_cbranch_scc1 L_repack")
        a(f"s_cmp_ge_u32 {sWV}, 4\ns_cbranch_scc1 L_h_act")
        self.c_phaseA()
        a("s_branch L_c_mlp")
        a("L_h_act:")
        self.reset(0); a.vm = ["code"]
        self.h_phaseA()
        a("s_branch L_h_mlp")
        a("L_repack:")
        self.reset(0); a.vm = ["code"]
        self.repack()
        a("L_split:")
        a(f"s_cmp_ge_u32 {sWV}, 4\ns_cbranch_scc1 L_h_mlp")
        a("L_c_mlp:")
        a("s_waitcnt lgkmcnt(0)")
        self.reset(24); a.vm = ["old"] * 4
        if self.stop > 2: self.c_mlp()
        a("s_branch L_fin")
        a("L_h_mlp:")
        a("s_waitcnt lgkmcnt(0)")
        self.reset(24); a.vm = ["old"] * 4
        self.h_mlp()
        a("L_fin:")
        self.reset(63)
        if self.stamps:
            self.stamp()
            a(f"s_lshl_b32 s64, s2, 3\ns_add_u32 s64, s64, {sWV}\ns_lshl_b32 s64, s64, 8\ns_add_u32 s64, s64, {STAMP_OFF}")
            a(f"v_lshlrev_b32 v{T0}, 2, {vLANE}")
            a(f"buffer_store_dword {vSTAMP}, v{T0}, {WS}, s64 offen")
        a("L_end:\ns_endpgm\nL_code_end:")
        return self.wrap(a.text())

    def kernarg_wait(self):
        a = self.a
        a("s_waitcnt lgkmcnt(0)")
        a(f"s_load_dword {sE}, s[18:19], 0")

    STEPS = (((0, 1), (0, 1, 2)), ((2, 3), (3, 4, 5)), ((4, 5), (6, 7, 8)), ((6, 7, 8), (9, 10)), ((), (11, 12, 13, 14)), ((), (15, 16, 17)))
    def ctr_issue(self, grp, dst):
        self.a(f"ds_read_b128 {vr(dst)}, {vSCR} offset:{16*grp}", f"ctrp{dst}")
    def ctr_check(self, grp, dst, val, tmp=None):
        a = self.a
        L = a.label("Lok")
        a.wait_lg(f"ctrp{dst}")
        a(f"v_min_u32 v{dst}, v{dst}, v{dst+1}\nv_min3_u32 v{dst}, v{dst}, v{dst+2}, v{dst+3}")
        a(f"v_readfirstlane_b32 s64, v{dst}")
        a(f"s_cmp_ge_u32 s64, {val}\ns_cbranch_scc1 {L}")
        lg = list(a.lg)
        self.wait_ctr(grp, val, tmp=tmp)
        a(f"{L}:")
        a.lg = lg
    def c_phaseA(self):
        a = self.a
        XF = BF0; HF = BF0 + 72
        t0, t1, t2 = f"v{T0}", f"v{T0+1}", f"v{T0+2}"
        vTOK = f"v{T0+4}"; CT = T0 + 4 + 4
        ACC = ACC0; CS = ACC0 + 16; SUM = ACC0 + 32; GR = ACC0 + 36; OB = ACC0 + 40; XR = ACC0 + 44; PK = ACC0 + 52
        K = [f"v{ACC0+60+i}" for i in range(4)]
        vXB = [f"v{HF+i}" for i in range(2)]
        vT1 = [f"v{HF+4+i}" for i in range(4)]; vT1b = [f"v{HF+8+i}" for i in range(4)]
        vSH = [f"v{PK+4+i}" for i in range(4)]
        a(f"s_lshl_b32 s69, {sX}, 3\ns_lshl_b32 s64, {sMT}, 2\ns_add_u32 s69, s69, s64\ns_add_u32 s69, s69, {sW}")
        self.kernarg_wait()
        self.srd(W1, 6, 663552)
        self.stamp()
        a(f"s_lshl_b32 s64, {sR}, 2\ns_add_u32 s64, s64, {sW}\ns_lshl_b32 s64, s64, 10\ns_add_u32 s64, s64, {3*32*1152}")
        for i in range(0 if "nopf" in self.exp else 4):
            a(f"buffer_load_dwordx4 {vr(252)}, {vL16}, {W1}, s64 offen", "pf")
            a(f"s_add_u32 s64, s64, {72*1024}")
        self.srd(X, 4, 1179648); self.srd(W3, 10, 5308416); self.srd(W4, 12, 5308416)
        self.common_late()
        if "prio" in self.exp: a("s_setprio 2")
        for i in range(4): a(f"v_mov_b32 v{OB+i}, 0x3f803f80")
        a(f"s_lshl_b32 s64, {sW}, 11\ns_add_u32 s64, s64, {72*1024}\nv_lshlrev_b32 {t0}, 7, {vJ}\nv_add_u32 {t0}, s64, {t0}\nv_lshrrev_b32 {t1}, 1, {vJ}")
        for par in range(2):
            a(f"v_add_u32 {t2}, {4*par}, {vG}\nv_xor_b32 {t2}, {t2}, {t1}\nv_lshl_add_u32 {vXB[par]}, {t2}, 4, {t0}")
        self.tr_bases(vT1, 0)
        for u in range(4): a(f"v_add_u32 {vT1b[u]}, {9*4096}, {vT1[u]}")
        vXR = [f"v{HF+16+i}" for i in range(4)]
        a(f"s_lshl_b32 s64, {sW}, 11\ns_lshl_b32 s65, {sNT}, 13\ns_add_u32 s64, s64, s65\ns_add_u32 s64, s64, {72*1024}")
        a(f"v_lshlrev_b32 {t0}, 7, {vJ}\nv_add_u32 {t0}, s64, {t0}\nv_and_b32 {t1}, 1, {vG}\nv_lshl_add_u32 {t0}, {t1}, 3, {t0}")
        a(f"v_lshrrev_b32 {t1}, 1, {vJ}\nv_lshrrev_b32 {t2}, 1, {vG}\nv_xor_b32 {t1}, {t1}, {t2}")
        for u in range(4): a(f"v_xor_b32 {t2}, {2*u}, {t1}\nv_lshl_add_u32 {vXR[u]}, {t2}, 4, {t0}")
        vCO = [f"v{HF+20}", f"v{HF+21}"]
        a(f"v_mov_b32 {vCO[0]}, {vT1[0]}")
        for u in range(1, 4):
            a(f"s_cmp_eq_u32 {sW}, {u}\ns_cselect_b64 vcc, -1, 0\nv_cndmask_b32 {vCO[0]}, {vCO[0]}, {vT1[u]}, vcc")
        a(f"v_add_u32 {vCO[1]}, {9*4096}, {vCO[0]}")
        a(f"s_mul_i32 s64, s69, 18\ns_lshl_b32 s65, {sNT}, 1\ns_add_u32 s64, s64, s65\ns_lshl_b32 s77, s64, 10")
        a(f"s_lshr_b32 s64, s69, 1\ns_lshl_b32 s76, s64, 12")
        a(f"s_and_b32 s64, s69, 1\ns_mul_i32 s64, s64, 9\ns_add_u32 s64, s64, {sNT}\ns_lshl_b32 s64, s64, 7\ns_add_u32 s75, s64, s76")
        a(f"s_and_b32 s64, s69, 1\ns_lshl_b32 s64, s64, 4\nv_add_u32 {t0}, s64, {vJ}")
        a(f"s_mul_i32 s74, s69, 18432")
        vST = [f"v{HF+24+i}" for i in range(4)]; vHW = f"v{HF+28}"
        a(f"s_lshl_b32 s64, {sW}, 11\ns_add_u32 s64, s64, {144*1024}\nv_add_u32 {vHW}, s64, {vL16}")
        a(f"s_andn2_b32 s66, {sW}, 1\ns_lshl_b32 s66, s66, 11\ns_add_u32 s66, s66, {144*1024}")
        for u in range(4):
            a(f"s_lshl_b32 s64, {sNT}, 2\ns_add_u32 s64, s64, {u}\ns_mul_i32 s64, s64, 7282\ns_lshr_b32 s64, s64, 16")
            a(f"s_lshr_b32 s65, s64, 1\ns_add_u32 s65, s65, 1\ns_sub_u32 s67, 0, s65\ns_bitcmp1_b32 s64, 0\ns_cselect_b32 s65, s67, s65")
            a(f"v_subrev_u32 {t1}, s65, {t0}")
            a(f"v_cmp_gt_u32 s[{92+2*u}:{93+2*u}], 32, {t1}")
            a(f"v_bfe_u32 {t2}, {t1}, 4, 1\nv_lshlrev_b32 {t2}, 11, {t2}")
            a(f"v_and_b32 {vST[u]}, 15, {t1}\nv_lshl_add_u32 {vST[u]}, {vG}, 4, {vST[u]}")
            a(f"v_lshl_add_u32 {t2}, {vST[u]}, 4, {t2}\nv_add_u32 {vST[u]}, s66, {t2}")
        a(f"buffer_load_dwordx4 {vr(248)}, {vL16}, {HS}, s77 offen sc1", "pf")
        a(f"buffer_load_dwordx4 {vr(248)}, {vL16}, {HS}, s77 offen offset:1024 sc1", "pf")
        a(f"s_add_u32 s64, s75, {F1_OFF}\nv_mov_b32 {t0}, 0")
        a(f"buffer_load_dword v248, {t0}, {WS}, s64 offen sc1", "pf")
        def tr1(bases, s, u, tag):
            return self.read_tr(bases[0][u] if s < 9 else bases[1][u], (s % 9) * 4096, tag)
        PF = 5
        order = [(s, u) for s in range(18) for u in range(4)]
        step_of = {s: i for i, (xl, kk) in enumerate(self.STEPS) for s in kk}
        first_n = {i: 4 * kk[0] for i, (xl, kk) in enumerate(self.STEPS)}
        fr = {}
        done_step = -1
        statq = []
        def enter_step(i):
            if i == 0: self.wait_ctr(1, 1)
            else: self.ctr_check(1, CT, i + 1)
            if i in (0, 3, 5): self.stamp()
            for L in self.STEPS[i][0]:
                for q in range(2):
                    off = 8192 * L
                    if off < 65536: a(f"ds_read_b128 {vr(XF+4*(2*L+q))}, {vXB[q]} offset:{off}", f"x{2*L+q}")
                    else:
                        a(f"v_add_u32 {t0}, {off}, {vXB[q]}")
                        a(f"ds_read_b128 {vr(XF+4*(2*L+q))}, {t0}", f"x{2*L+q}")
                    statq.append(2 * L + q)
        def issue(n):
            nonlocal done_step
            s, u = order[n]
            i = step_of[s]
            if i > done_step:
                enter_step(i); done_step = i
            fr[order[n]] = tr1((vT1, vT1b), s, u, f"f{n}")
            if i + 1 < len(self.STEPS) and n == first_n[i + 1] - 3: self.ctr_issue(1, CT)
        CFS = [CS + 4, CS + 8]
        def cs_read(s): self.read_tr(vCO[0] if s < 9 else vCO[1], (s % 9) * 4096, f"c{s}", dst=CFS[s & 1])
        def cs_mfma(s):
            a.wait_lg(f"c{s}")
            a(f"{MFMA} {vr(CS)}, {vr(CFS[s&1])}, {vr(OB)}, {'0' if s == 0 else vr(CS)}")
        for n in range(PF): issue(n)
        nstat = 0; cs_next = 0; cs_pend = []
        for n, (s, u) in enumerate(order):
            a.wait_lg([f"f{n}", f"x{s}"])
            a(f"{MFMA} {vr(ACC+4*u)}, {vr(fr[s,u])}, {vr(XF+4*s)}, {'0' if s == 0 else vr(ACC+4*u)}")
            if n + PF < len(order): issue(n + PF)
            if cs_pend and n >= cs_pend[0][1] + 2:
                cs_mfma(cs_pend.pop(0)[0])
                if cs_next == 18 and not cs_pend:
                    cs_at = n
            if cs_next < 18 and step_of[cs_next] <= done_step and len(cs_pend) < 2 and (not cs_pend or n > cs_pend[-1][1]):
                cs_read(cs_next); cs_pend.append((cs_next, n)); cs_next += 1
            if cs_next == 18 and not cs_pend and n == cs_at + 1:
                a(f"s_lshl_b32 s64, {sW}, 6\nv_lshl_add_u32 {t1}, {vG}, 4, {vSCR}\nv_add_u32 {t2}, s64, {t1}")
                a(f"ds_write_b128 {t2}, {vr(CS)} offset:{CS3_OFF}", "csw")
                self.signal(2)
            if statq and (n & 1):
                q = statq.pop(0)
                a.wait_lg(f"x{q}")
                a(f"{MFMA} {vr(SUM)}, {vr(OB)}, {vr(XF+4*q)}, {'0' if q == 0 else vr(SUM)}")
                a(f"{MFMA} {vr(GR)}, {vr(XF+4*q)}, {vr(XF+4*q)}, {'0' if q == 0 else vr(GR)}")
                nstat += 1
                if nstat == 13:
                    for uu in range(4): a(f"ds_read_b64 {vr(XR+2*uu,2)}, {vXR[uu]}", "xr")
                if nstat == 18:
                    a.wait_lg("xr")
                    self.signal(1)
                    stat_at = n
            if nstat == 18 and n == stat_at + 3:
                vS, vQ = f"v{SUM}", f"v{GR}"
                a(f"v_and_b32 {t0}, 3, {vJ}")
                for r in range(1, 4):
                    a(f"v_cmp_eq_u32 vcc, {r}, {t0}")
                    a(f"v_cndmask_b32 {vQ}, {vQ}, v{GR+r}, vcc")
                a(f"v_lshrrev_b32 {t0}, 2, {vJ}\nv_cmp_eq_u32 vcc, {t0}, {vG}")
                a(f"v_cndmask_b32 {vQ}, 0, {vQ}, vcc")
                self.xlane_sum(vQ, t0)
                self.ln_consts(vS, vQ, K, t0)
        assert cs_next == 18 and not cs_pend and cs_at + 1 < len(order)
        self.stamp()
        self.wait_ctr(0, 2)
        self.mode_get()
        a(f"v_lshl_add_u32 {t1}, {vG}, 4, {vSCR}")
        for u in range(4): a(f"ds_read_b128 {vr(CS+4*u)}, {t1} offset:{CS3_OFF+64*u}", f"cs{u}")
        for u in range(4):
            a.wait_lg(f"cs{u}")
            self.gelu4(ACC + 4 * u, CS + 4 * u, K, T0)
            for d in range(2): a(f"v_cvt_pk_bf16_f32 v{XF+2*u+d}, v{ACC+4*u+2*d}, v{ACC+4*u+2*d+1}")
            if u & 1: a(f"ds_write_b128 {vHW}, {vr(XF+4*(u>>1))} offset:{1024*(u>>1)}", "hw")
        self.signal(3)
        self.wait_ctr(0, 3, one=4, sleep=0)
        for u in range(4): a(f"ds_read_b64 {vr(XF+8+2*u,2)}, {vST[u]} offset:{1024*(u>>1)+8*(u&1)}", f"hr{u}")
        for u in range(4):
            a.wait_lg(f"hr{u}")
            for d in range(2): a(f"v_cndmask_b32 v{XF+8+2*u+d}, 0, v{XF+8+2*u+d}, s[{92+2*u}:{93+2*u}]")
            if u & 1: self.local_store(f"buffer_store_dwordx4 {vr(XF+8+4*(u>>1))}, {vL16}, {HS}, s77 offen offset:{1024*(u>>1)}", "hst")
        self.stamp()
        vT2 = [f"v{CS+i}" for i in range(4)]; vT2b = [f"v{CS+4+i}" for i in range(4)]; vSH = [f"v{CS+8+i}" for i in range(4)]
        for u in range(4): a(f"v_add_u32 {vT2[u]}, {72*1024}, {vT1[u]}\nv_add_u32 {vT2b[u]}, {72*1024}, {vT1b[u]}")
        a(f"v_add_u32 {vSH[0]}, s74, {vL16}")
        a(f"s_add_u32 s64, s75, {F1_OFF}")
        self.set_flag("s64", "local")
        self.stamp()
        a(f"s_and_b32 s64, s69, 1\ns_mul_i32 s64, s64, {9*128}\ns_add_u32 s64, s64, s76\ns_add_u32 s64, s64, {F1_OFF}")
        a(f"v_min_u32 v{T0+4}, {8*128}, {vFLG}")
        self.poll("s64", f"v{T0+4}")
        self.stamp()
        def hload(s):
            a(f"buffer_load_dwordx4 {vr(HF+4*s)}, {vSH[0]}, {HS}, {sC[s>>2]} offen offset:{(s&3)*1024} {self.ld_local}", f"h{s}")
        HA = 8
        for s in range(HA): hload(s)
        self.wait_ctr(1, 7)
        self.stamp()
        fr = {}
        for n in range(PF): fr[order[n]] = tr1((vT2, vT2b), *order[n], f"f{n}")
        for n, (s, u) in enumerate(order):
            if u == 0: a.wait_vm(f"h{s}")
            a.wait_lg(f"f{n}")
            a(f"{MFMA} {vr(ACC+4*u)}, {vr(fr[s,u])}, {vr(HF+4*s)}, {'0' if s == 0 else vr(ACC+4*u)}")
            if n + PF < len(order): fr[order[n+PF]] = tr1((vT2, vT2b), *order[n+PF], f"f{n+PF}")
            if u == 1 and s + HA < 18: hload(s + HA)
        self.signal(4)
        self.stamp()
        vS, vQ = f"v{SUM}", f"v{SUM+1}"
        a(f"v_mov_b32 {vS}, 0\nv_mov_b32 {vQ}, 0")
        a(f"s_add_u32 s64, s77, {X1_OFF}")
        for d in range(8):
            t3 = f"v{T0+3}"
            a(f"v_cvt_pk_bf16_f32 {t0}, v{ACC+2*d}, v{ACC+2*d+1}")
            a(f"v_lshlrev_b32 {t1}, 16, {t0}\nv_and_b32 {t0}, 0xffff0000, {t0}")
            a(f"v_lshlrev_b32 {t2}, 16, v{XR+d}\nv_and_b32 {t3}, 0xffff0000, v{XR+d}")
            a(f"v_add_f32 {t1}, {t1}, {t2}\nv_add_f32 {t0}, {t0}, {t3}")
            a(f"v_cvt_pk_bf16_f32 v{PK+d}, {t1}, {t0}")
            if d & 3 == 3: a(f"buffer_store_dwordx4 {vr(PK+d-3)}, {vL16}, {WS}, s64 offen offset:{1024*(d>>2)} sc1", "x1st")
        for d in range(8):
            a(f"v_dot2_f32_bf16 {vS}, v{PK+d}, v{OB}, {vS}")
            a(f"v_dot2_f32_bf16 {vQ}, v{PK+d}, v{PK+d}, {vQ}")
        self.xlane_sum(vS, t0); self.xlane_sum(vQ, t0)
        a(f"s_lshr_b32 s64, s69, 1\ns_mul_i32 s64, s64, 12\ns_add_u32 s64, s64, {sNT}\ns_lshl_b32 s64, s64, 8")
        a(f"s_and_b32 s65, s69, 1\ns_lshl_b32 s65, s65, 7\ns_add_u32 s64, s64, s65\ns_add_u32 s64, s64, {ST_OFF}")
        a(f"v_lshlrev_b32 {t0}, 3, {vJ}")
        a("s_mov_b64 exec, 0xffff")
        a(f"buffer_store_dwordx2 {vr(SUM,2)}, {t0}, {WS}, s64 offen sc1", "x1st")
        a("s_mov_b64 exec, -1")
        self.stamp()
        a(f"s_add_u32 s64, s75, {F2_OFF}")
        self.set_flag("s64", "sc1")
        self.signal(5)
        self.stamp()

    def h_phaseA(self):
        a = self.a
        vD1, vD2, vDX, vDX2 = "v48", "v49", "v50", "v51"
        t0, t1, t2 = f"v{T0}", f"v{T0+1}", f"v{T0+2}"
        ks = 32 * 1152
        a(f"s_lshl_b32 s69, {sX}, 3\ns_lshl_b32 s64, {sMT}, 2\ns_add_u32 s69, s69, s64\ns_add_u32 s69, s69, {sW}\ns_mul_i32 s71, s69, 18432")
        a(f"v_lshrrev_b32 {t0}, 3, {vLANE}\nv_lshrrev_b32 {t1}, 4, {vLANE}\nv_and_b32 {t2}, 7, {vLANE}\nv_xor_b32 {t1}, {t1}, {t2}")
        a(f"v_mul_u32_u24 {vDX}, 1152, {t0}\nv_lshl_add_u32 {vDX}, {t1}, 4, {vDX}")
        a(f"v_xor_b32 {vDX2}, 64, {vDX}\nv_add_u32 {vDX2}, {8*1152}, {vDX2}")
        a(f"s_lshl_b32 s64, {sW}, 3\nv_add_u32 {t0}, s64, {t0}")
        a(f"v_and_b32 {t1}, 6, {t0}\nv_xor_b32 {t1}, {t1}, {t2}\nv_lshlrev_b32 {t1}, 4, {t1}")
        a(f"v_mul_u32_u24 {vD2}, 1152, {t0}\nv_add_u32 {vD2}, {vD2}, {t1}")
        a(f"v_and_b32 {t2}, 12, {t0}\nv_lshlrev_b32 {t2}, 1, {t2}\nv_and_b32 {vD1}, 3, {t0}\nv_add_u32 {t2}, {t2}, {vD1}")
        a(f"v_lshrrev_b32 {t0}, 4, {t0}\nv_lshl_add_u32 {t0}, {t0}, 2, {t2}")
        a(f"v_mul_u32_u24 {vD1}, 1152, {t0}\nv_add_u32 {vD1}, {vD1}, {t1}")
        a(f"s_lshl_b32 s79, {sNT}, 7\ns_mov_b32 s70, s79\ns_lshl_b32 s72, {sW}, 11\ns_add_u32 s72, s72, {72*1024}")
        self.kernarg_wait()
        self.srd(X, 4, 1179648); self.srd(W1, 6, 663552)
        self.stamp()
        NS = len(self.STEPS)
        for i, (xl, kk) in enumerate(self.STEPS):
            for L in xl:
                a(f"s_add_u32 m0, s72, {8192*L}")
                a(f"buffer_load_dwordx4 {vDX}, {X}, s71 offen lds", f"ld{i}")
                a(f"s_add_u32 m0, s72, {8192*L+1024}")
                a(f"buffer_load_dwordx4 {vDX2}, {X}, s71 offen lds", f"ld{i}")
                a(f"s_add_u32 s71, s71, 128")
            for s in kk:
                a(f"s_add_u32 m0, {sWK}, {4096*s}")
                a(f"buffer_load_dwordx4 {vD1}, {W1}, s70 offen lds", f"ld{i}")
                a(f"s_add_u32 s70, s70, {ks}")
            if i == 0 and "lat" in self.exp:
                a.wait_vm("code"); self.stamp()
                for q in range(6, -1, -1):
                    a(f"s_waitcnt vmcnt({q})"); self.stamp()
            if i == 0:
                self.srd(W3, 10, 5308416); self.srd(W4, 12, 5308416)
                self.common_late()
            if i >= 1:
                a.wait_vm(f"ld{i-1}"); self.signal(i)
            self.stamp()
        a.wait_vm(f"ld{NS-1}"); self.signal(NS)
        self.stamp()
        self.mode_probe(7)
        self.wait_ctr(0, 1, sleep=3)
        a(f"s_mul_i32 s70, {sMT}, 9")
        for s in range(18):
            a(f"s_lshl_b32 s64, s70, 12\ns_add_u32 s64, s64, {sWK}\ns_add_u32 m0, s64, {72*1024}")
            a(f"s_mul_i32 s66, s70, {ks}\ns_add_u32 s66, s66, s79")
            a(f"buffer_load_dwordx4 {vD2}, {W2}, s66 offen lds", "w2")
            a(f"s_add_u32 s70, s70, 1"); self.modn("s70", 18)
        a.wait_vm("w2")
        self.signal(7)
        self.stamp()

    def repack(self):
        a = self.a
        a(f"s_sub_u32 s67, {sR}, {NACT}\ns_lshl_b32 s68, s67, 3\ns_add_u32 s68, s68, {sWV}")
        a(f"s_lshl_b32 s69, {sWV}, 13")
        vR, vCK = "v48", "v49"
        a(f"v_lshrrev_b32 {vR}, 3, {vLANE}")
        a(f"v_and_b32 v{T0}, 6, {vR}\nv_and_b32 {vCK}, 7, {vLANE}\nv_xor_b32 {vCK}, {vCK}, v{T0}\nv_lshlrev_b32 {vCK}, 4, {vCK}")
        a(f"s_lshl_b32 s70, s68, 10\ns_and_b32 s71, s70, 0x7fff\ns_add_u32 s71, s71, {112*1024}\ns_mul_i32 s72, {sX}, 147456")
        self.kernarg_wait()
        self.srd(X, 4, 1179648); self.srd(W1, 6, 663552); self.srd(W2, 8, 663552)
        self.stamp()
        DUM = vr(252)
        a(f"s_add_u32 s64, s70, s72")
        a(f"buffer_load_dwordx4 {DUM}, {vL16}, {X}, s64 offen", "pf")
        a(f"s_add_u32 s64, s71, s72")
        a(f"buffer_load_dwordx4 {DUM}, {vL16}, {X}, s64 offen", "pf")
        a(f"s_add_u32 s64, s70, {11*32*1152}")
        for i in range(3):
            a(f"buffer_load_dwordx4 {DUM}, {vL16}, {W1}, s64 offen", "pf")
            a(f"s_add_u32 s64, s64, {112*1024}")
        self.srd(W3, 10, 5308416); self.srd(W4, 12, 5308416)
        self.common_late()
        for i in range(6):
            a(f"buffer_load_dwordx4 {DUM}, {vL16}, {W2}, s70 offen", "pf")
            a(f"s_add_u32 s70, s70, {112*1024}")
        a("s_barrier")
        Lno = a.label("Lnj")
        a(f"s_mul_i32 s64, {sWV}, 14\ns_add_u32 s64, s64, s67\ns_cmp_ge_u32 s64, 81\ns_cbranch_scc1 {Lno}")
        vm0 = list(a.vm)
        a(f"s_mul_i32 s70, s64, 7282\ns_lshr_b32 s70, s70, 16\ns_mul_i32 s65, s70, 9\ns_sub_u32 s71, s64, s65")
        a(f"s_mul_i32 s66, s70, {64*9216}\ns_mul_i32 s64, {sX}, 1152\ns_add_u32 s66, s66, s64\ns_lshl_b32 s64, s71, 7\ns_add_u32 s66, s66, s64")
        a(f"v_mul_u32_u24 v{T0}, 9216, {vR}\nv_add_u32 v{T0}, v{T0}, {vCK}")
        for i in range(8):
            a(f"s_add_u32 m0, s69, {i*1024}")
            a(f"buffer_load_dwordx4 v{T0}, {W3}, s66 offen nt lds", "job")
            a(f"s_add_u32 s66, s66, {8*9216}")
        vT = [f"v{52+i}" for i in range(4)]
        self.tr_bases(vT, "s69")
        for i in range(4): a(f"v_mov_b32 v{136+i}, 0x3f803f80")
        a(f"s_mul_i32 s64, {sX}, 9\ns_add_u32 s64, s64, s70\ns_mul_i32 s64, s64, 2304\ns_lshl_b32 s65, s71, 8\ns_add_u32 s64, s64, s65\ns_add_u32 s72, s64, {CSP_OFF}")
        a(f"v_mov_b32 v{T0+4}, {sTAG8}\ns_mov_b32 s73, 0xff")
        a.wait_vm("job")
        self.stamp()
        for kk in range(2):
            for uu in range(4): self.read_tr(vT[uu], kk * 4096, f"r{kk}{uu}", dst=56 + 16 * kk + 4 * uu)
        for kk in range(2):
            for uu in range(4):
                a.wait_lg(f"r{kk}{uu}")
                a(f"{MFMA} {vr(140+4*uu)}, {vr(56+16*kk+4*uu)}, {vr(136)}, {'0' if kk == 0 else vr(140+4*uu)}")
        for uu in range(1, 4):
            a(f"v_cmp_eq_u32 vcc, {uu}, {vJ}")
            for e in range(4): a(f"v_cndmask_b32 v{140+e}, v{140+e}, v{140+4*uu+e}, vcc")
        for e in range(4): a(f"v_bfi_b32 v{140+e}, s73, v{T0+4}, v{140+e}")
        a(f"v_lshlrev_b32 v{T0}, 4, {vG}\nv_lshl_add_u32 v{T0}, {vJ}, 6, v{T0}")
        a("s_mov_b32 exec_lo, 0x000f000f\ns_mov_b32 exec_hi, 0x000f000f")
        a(f"buffer_store_dwordx4 {vr(140)}, v{T0}, {WS}, s72 offen sc1", "st")
        a("s_mov_b64 exec, -1")
        a(f"{Lno}:")
        a.vm = vm0; a.lg = []
        self.nst = 2
        self.signal(10)
        self.mode_probe()
        L4 = a.label("Lp4")
        a(f"s_cmp_ge_u32 {sWV}, 4\ns_cbranch_scc1 {L4}")
        self.wait_ctr(1, 14, sleep=4)
        a(f"s_lshl_b32 s64, s67, 2\ns_add_u32 s64, s64, {sW}\ns_lshl_b32 s64, s64, 10\ns_mul_i32 s65, {sX}, 663552\ns_add_u32 s66, s64, s65")
        for i in range(12):
            if i == 11: a(f"s_and_b32 s64, s64, 0x7fff\ns_add_u32 s66, s64, s65\ns_add_u32 s66, s66, {616*1024}")
            a(f"buffer_load_dwordx4 {vr(252)}, {vL16}, {W4}, s66 offen", "_untracked")
            a(f"s_add_u32 s66, s66, {56*1024}")
        a(f"{L4}:")
        self.stamp()

    def load_stats(self, tt, R):
        a = self.a
        va, vb = f"v{R+6}", f"v{R+7}"
        a(f"v_lshl_add_u32 {va}, {vG}, 5, {vJ}\nv_lshlrev_b32 {va}, 3, {va}\nv_mov_b32 {vb}, 0x40000000")
        a(f"v_cmp_eq_u32 vcc, 0, {vG}\nv_cndmask_b32 {vb}, {vb}, {va}, vcc")
        a(f"s_lshl_b32 s64, {sM}, 2\ns_add_u32 s64, s64, {sW}\ns_mul_i32 s64, s64, 3072\ns_add_u32 s64, s64, {ST_OFF}")
        for q in range(3):
            a(f"buffer_load_dwordx2 {vr(R+2*q,2)}, {va if q < 2 else vb}, {WS}, s64 offen offset:{1024*q+128*tt} sc1", "st")
    def finish_stats(self, K, R):
        a = self.a
        a.wait_vm("st")
        for c in range(2):
            a(f"v_add_f32 v{R+c}, v{R+c}, v{R+2+c}\nv_add_f32 v{R+c}, v{R+c}, v{R+4+c}")
            self.xlane_sum(f"v{R+c}", f"v{T0}")
        self.ln_consts(f"v{R}", f"v{R+1}", K, f"v{T0}")
    def h3_base(self, dst):
        self.a(f"s_lshl_b32 s64, {sM}, 3\ns_lshl_b32 s65, {sW}, 1\ns_add_u32 s64, s64, s65\ns_lshl_b32 s64, s64, 3\ns_add_u32 s64, s64, {sX}")
        self.a(f"s_mul_i32 s64, s64, 18432\ns_add_u32 {dst}, s64, {H3_OFF}")
    def f3_base(self, dst):
        self.a(f"s_lshl_b32 s64, {sM}, 3\ns_add_u32 s64, s64, {sX}\ns_lshl_b32 s64, s64, 2\ns_add_u32 s64, s64, {sW}\ns_lshl_b32 s64, s64, 11\ns_add_u32 {dst}, s64, {F3_OFF}")

    def gelu_tile(self, acc, CSB, K, dst, vo, vo8, sPair, sSingle, sFlag, between=None):
        a = self.a
        t1 = f"v{T0+1}"
        a(f"v_lshl_add_u32 v0, {vG}, 4, {vSCR}")
        for u in range(2): a(f"ds_read_b128 {vr(CSB+4*u)}, v0 offset:{CS3_OFF+64*u}", f"cs{u}")
        for u in range(9):
            a.wait_lg(f"cs{u}")
            self.gelu4(acc(u), CSB + 4 * (u & 1), K, T0)
            if u + 2 < 9:
                a(f"v_lshl_add_u32 v0, {vG}, 4, {vSCR}")
                a(f"ds_read_b128 {vr(CSB+4*(u&1))}, v0 offset:{CS3_OFF+64*(u+2)}", f"cs{u+2}")
            p = u >> 1
            for d in range(2): a(f"v_cvt_pk_bf16_f32 v{dst(p)+2*(u&1)+d}, v{acc(u)+2*d}, v{acc(u)+2*d+1}")
            if u & 1: a(f"buffer_store_dwordx4 {vr(dst(p))}, {vo}, {WS}, {sPair} offen offset:{1024*p} sc1", f"h3_{p>>1}")
            if u == 8: a(f"buffer_store_dwordx2 {vr(dst(4),2)}, {vo8}, {WS}, {sSingle} offen sc1", "h3_1")
            if between: between(u)
            if u == 8: self.set_flag(sFlag, "local", "h3_0")
    def c_mlp(self):
        a = self.a
        t0, t1 = f"v{T0}", f"v{T0+1}"
        vX2, vH2, vF3, vEX = (f"v{T0+4+i}" for i in range(4))
        vA = ["v5", "v6", "v8"]
        CT = T0
        ACC = 40
        vL8 = [vX2, DUMMY]
        def B(k, tt): return BF0 + 8 * k + 4 * tt
        self.mode_get()
        a(f"v_add_u32 {vX2}, 18432, {vL16}\nv_add_u32 {vH2}, 147456, {vL16}")
        a(f"v_min_u32 {vF3}, 15, {vLANE}\nv_lshlrev_b32 {vF3}, 7, {vF3}")
        a(f"s_mul_i32 s64, {sW}, {13*1024}\ns_add_u32 s64, s64, {EX1*SL}\nv_add_u32 {vEX}, s64, {vL16}")
        a(f"s_lshl_b32 s64, {sM}, 3\ns_lshl_b32 s65, {sW}, 1\ns_add_u32 s64, s64, s65\ns_mul_i32 s64, s64, 18432\ns_add_u32 s68, s64, {X1_OFF}")
        self.rot3("s69"); a("s_lshl_b32 s69, s69, 10")
        self.h3_base("s70")
        for d in range(4): a(f"s_xor_b32 s64, {sJ}, {d}\ns_lshl_b32 s64, s64, 12\ns_add_u32 s{71+d}, s64, s70")
        for e in range(2): a(f"s_lshr_b32 s64, {sJ}, 1\ns_xor_b32 s64, s64, {e}\ns_add_u32 s64, s64, 16\ns_lshl_b32 s64, s64, 10\ns_add_u32 s{75+e}, s64, s70")
        self.f3_base("s77")
        a(f"s_lshl_b32 s64, {sM}, 2\ns_add_u32 s64, s64, {sW}\ns_lshl_b32 s64, s64, 12\ns_add_u32 s78, s64, {F2_OFF}")
        a(f"v_lshrrev_b32 {t0}, 2, {vLANE}\nv_mul_u32_u24 {vA[0]}, 288, {t0}\nv_and_b32 {t0}, 3, {vLANE}\nv_lshl_add_u32 {vA[0]}, {t0}, 3, {vA[0]}")
        a(f"v_add_u32 {vA[1]}, {6*SL}, {vA[0]}")
        self.stamp()
        self.poll("s78", vFLG)
        self.signal(11)
        a(f"v_add_u32 {vA[2]}, {12*SL}, {vA[0]}")
        self.stamp()
        def x1load(s):
            a(f"s_add_u32 s64, s68, s69")
            a(f"buffer_load_dwordx4 {vr(B(s,0))}, {vL16}, {WS}, s64 offen sc1", f"b{s}")
            a(f"buffer_load_dwordx4 {vr(B(s,1))}, {vX2}, {WS}, s64 offen sc1", f"b{s}")
            a(f"s_add_u32 s69, s69, 1024\ns_sub_u32 s65, s69, 18432\ns_min_u32 s69, s69, s65")
        XA = 7
        for s in range(XA): x1load(s)
        self.wait_ctr(1, 11)
        self.stamp()
        LOOK = 6
        base_pool = [20, 24, 28, 32, 36]
        def rd(addr, tag, dst):
            v, off = addr
            a(f"ds_read_b64_tr_b16 {vr(dst,2)}, {v} offset:{off}", tag)
            a(f"ds_read_b64_tr_b16 {vr(dst+2,2)}, {v} offset:{off+4608}", tag)
        def stream(items, hooks_issue, hooks_after, pool):
            fr = {}; nxt = [0]
            def can(i): return bool(nxt[0] < len(items) and nxt[0] <= i + LOOK and pool)
            def half(h):
                n = nxt[0]
                if h == 0:
                    if n in hooks_issue: hooks_issue[n]()
                    fr[n] = pool.pop(0)
                v, off = items[n][0]
                a(f"ds_read_b64_tr_b16 {vr(fr[n]+2*h,2)}, {v} offset:{off+4608*h}", f"f{n}")
                if h == 1: nxt[0] += 1
            while can(-1): half(0); half(1)
            for i, (n, mm, pre) in enumerate(items):
                if pre: a.wait_vm(pre)
                a.wait_lg(f"f{i}")
                go = can(i)
                for q, (acc, breg, first) in enumerate(mm):
                    a(f"{MFMA} {vr(acc)}, {vr(fr[i])}, {vr(breg)}, {'0' if first else vr(acc)}")
                    if go: half(q)
                pool.append(fr[i])
                if i in hooks_after:
                    for h in hooks_after[i]: h(pool)
                if nxt[0] <= i + 1 or (len(pool) > 1 and can(i) and (i & 1)):
                    if can(i): half(0); half(1)
        def hook(d, i, f): d.setdefault(i, []).append(f)
        def slot_addr(bases, f, extra):
            sl = f % NSL
            return bases[sl // 6], (sl % 6) * SL + extra
        items = [(slot_addr(vA, s, 32 * u), [(ACC + 8 * u + 4 * tt, B(s, tt), s == 0) for tt in range(2)], f"b{s}" if u == 0 else None)
                 for s in range(18) for u in range(9)]
        hi = {}; ha = {}
        for ks_, val in ((4, 12), (8, 13), (12, 14), (16, 15)):
            hi[9 * ks_ - 5] = lambda: self.ctr_issue(1, CT)
            hi[9 * ks_] = (lambda val=val: self.ctr_check(1, CT, val))
        for s in range(18 - XA): hook(ha, 9 * s + 1, lambda pool, s=s: x1load(s + XA))
        hook(ha, 8, lambda pool: pool.extend([B(0, 0), B(0, 1)]))
        SR = B(2, 0)
        K = [f"v{B(3,1)+i}" for i in range(4)]
        hook(ha, 9 * 11 + 4, lambda pool: self.load_stats(0, SR))
        hook(ha, 9 * 5 - 1, lambda pool: self.signal(12))
        hook(ha, 9 * 11 - 1, lambda pool: self.signal(13))
        hook(ha, 9 * 17 - 1, lambda pool: self.signal(14))
        stream(items, hi, ha, list(base_pool))
        self.stamp()
        self.wait_ctr(0, 14, sleep=0)
        for u in range(9): a(f"ds_write_b128 {vEX}, {vr(ACC+8*u+4)} offset:{1024*u}", "ex")
        self.signal(15)
        self.finish_stats(K, SR)
        self.stamp()
        a(f"s_and_b32 s64, {sJ}, 1\ns_lshl_b32 s64, s64, 9\ns_add_u32 s67, s64, s75")
        a(f"v_lshlrev_b32 {vL8[0]}, 3, {vLANE}\nv_add_u32 {vL8[1]}, 147456, {vL8[0]}")
        a(f"s_lshl_b32 s64, {sJ}, 9\ns_add_u32 s66, s64, s77")
        self.gelu_tile(lambda u: ACC + 8 * u, B(4, 0), K, lambda p: B(p, 0) if p < 4 else B(5, 0), vL16, vL8[0], "s71", "s67", "s66")
        self.stamp()
        def h3load(k):
            if k < 16: d, p = 1 + (k - 4) % 3, (k - 4) // 3; so, io = f"s{71+d}", 1024 * p
            else:
                for tt in range(2):
                    for hf in range(2):
                        a(f"buffer_load_dwordx2 {vr(B(k,tt)+2*hf,2)}, {vL8[tt]}, {WS}, s{75+k-16} offen offset:{512*hf} sc1", f"g{k}")
                return
            a(f"buffer_load_dwordx4 {vr(B(k,0))}, {vL16}, {WS}, {so} offen offset:{io} sc1", f"g{k}")
            a(f"buffer_load_dwordx4 {vr(B(k,1))}, {vH2}, {WS}, {so} offen offset:{io} sc1", f"g{k}")
        vU = [f"v{B(12,0)+o}" for o in range(9)]
        for o in range(9):
            if o == 0: a("s_mov_b32 s92, 256")
            else: a(f"s_add_u32 s64, {sX}, {o}\ns_and_b32 s64, s64, 7\ns_lshl_b32 s{92+o}, s64, 5")
            a(f"v_add_u32 {vU[o]}, s{92+o}, {vA[0]}")
        self.wait_ctr(1, 17, one=True, sleep=0)
        for p in range(4): a(f"ds_read_b128 {vr(B(p,1))}, {vEX} offset:{1024*(9+p)}", "own")
        a(f"s_add_u32 s64, s66, 128")
        self.set_flag("s64", "local", "h3_1")
        self.wait_ctr(1, 16)
        self.signal(16)
        self.stamp()
        self.poll("s77", vF3, mask=0x5555)
        for k in range(4, 10): h3load(k)
        self.stamp()
        items = [((vU[o], (1 + k) * SL), [(ACC + 8 * o + 4 * tt, B(k, tt), k == 0) for tt in range(2)], None)
                 for k in range(KE) for o in range(9)]
        stream(items, {}, {9: [lambda pool: self.signal(17)]}, list(base_pool) + [B(17, 0), B(17, 1)])
        self.signal(18)
        self.stamp()
        self.poll("s77", vF3)
        for k in range(10, 18): h3load(k)
        self.wait_ctr(1, 19)
        self.wait_ctr(0, 18)
        self.stamp()
        items = []; hi = {}; ha = {}
        a(f"s_lshl_b32 s64, {sW}, 11\nv_add_u32 {vEX}, s64, {vL16}")
        UB = [[f"v{B(2,0)+4*q+i}" for i in range(3)] for q in range(2)]
        C0 = B(3, 0)
        for o in range(9):
            acc = ACC + 8 * o
            ub = UB[o & 1]
            def setb(o=o, ub=ub):
                for i in range(3): a(f"v_add_u32 {ub[i]}, s{92+o}, {vA[i]}")
            hi[len(items)] = setb
            for k in range(KE, 18):
                items.append((slot_addr(ub, 18 + k, 0), [(acc + 4 * tt, B(k, tt), False) for tt in range(2)], f"g{k}" if o == 0 else None))
            def dump(pool, o=o, acc=acc):
                if o >= 3:
                    a.wait_lg("pc")
                    L = a.label("Lok")
                    a(f"v_readfirstlane_b32 s64, v{C0}")
                    a(f"s_cmp_ge_u32 s64, {20+o-3}\ns_cbranch_scc1 {L}")
                    lg = list(a.lg)
                    self.wait_ctr(1, 20 + o - 3, one=True, tmp=C0)
                    a(f"{L}:")
                    a.lg = lg
                for tt in range(2): a(f"ds_write_b128 {vEX}, {vr(acc+4*tt)} offset:{(2+o%3)*SL+1024*tt}", "ex")
                self.signal(19 + o)
            if o >= 3:
                hook(ha, len(items) - 5, lambda pool: (a(f"v_xor_b32 v{C0+1}, 16, {vCTR}"), a(f"ds_read_b32 v{C0}, v{C0+1}", "pc")))
            hook(ha, len(items) - 1 + (2 if o < 8 else 0), dump)
        stream(items, hi, ha, list(base_pool) + [B(0, 0), B(0, 1)])
        self.stamp()

    def rot3(self, dst):
        self.a(f"s_lshl_b32 {dst}, {sJ}, 2\ns_and_b32 s64, {sJ}, 2\ns_add_u32 {dst}, {dst}, s64")

    def h_mlp(self):
        a = self.a
        t0, t1, t2 = f"v{T0}", f"v{T0+1}", f"v{T0+2}"
        vH2, vEX, vT8 = (f"v{T0+5+i}" for i in range(3))
        vH8 = f"v{T0+8}"
        if self.stop <= 2:
            self.epoch_advance(); return
        a(f"v_add_u32 {vH2}, 147456, {vL16}\nv_lshlrev_b32 {vH8}, 3, {vLANE}\nv_add_u32 {vH8}, 147456, {vH8}")
        a(f"s_mul_i32 s64, {sW}, {13*1024}\ns_add_u32 s64, s64, {EX1*SL}\nv_add_u32 {vEX}, s64, {vL16}\nv_mov_b32 {vT8}, {sTAG8}")
        self.h3_base("s71"); self.f3_base("s72")
        a(f"s_lshr_b32 s64, {sJ}, 1\ns_add_u32 s64, s64, 16\ns_lshl_b32 s64, s64, 10\ns_add_u32 s68, s64, s71\ns_and_b32 s64, {sJ}, 1\ns_lshl_b32 s64, s64, 9\ns_add_u32 s68, s68, s64")
        a(f"s_lshl_b32 s64, {sJ}, 12\ns_add_u32 s71, s71, s64\ns_lshl_b32 s64, {sJ}, 9\ns_add_u32 s72, s72, s64")
        V3 = [f"v{200+i}" for i in range(5)]; V4 = [f"v{205+i}" for i in range(5)]; V4s = [f"v{210+i}" for i in range(5)]
        sP = [f"s{92+i}" for i in range(5)]
        for i in range(5):
            a(f"s_add_u32 s64, {sW}, {4*i}\ns_sub_u32 s65, s64, 9\ns_min_u32 s64, s64, s65\ns_lshl_b32 {sP[i]}, s64, 10\ns_lshl_b32 s64, s64, 6")
            a(f"v_add_u32 {t0}, s64, {vLANE}\nv_mul_u32_u24 {t1}, 3641, {t0}\nv_lshrrev_b32 {t1}, 16, {t1}")
            a(f"v_mul_u32_u24 {t2}, 18, {t1}\nv_sub_u32 {t0}, {t0}, {t2}\nv_lshlrev_b32 {t0}, 4, {t0}")
            a(f"v_mul_u32_u24 {V3[i]}, 9216, {t1}\nv_add_u32 {V3[i]}, {V3[i]}, {t0}")
            a(f"v_mul_u32_u24 {V4[i]}, 1152, {t1}\nv_add_u32 {V4[i]}, {V4[i]}, {t0}")
            a(f"v_lshrrev_b32 {t1}, 4, {t1}\nv_mul_u32_u24 {t1}, {128*1152}, {t1}\nv_add_u32 {V4s[i]}, {V4[i]}, {t1}")
        def pair(f, srd, V, sA, sB, tag):
            rA, rB = (f % NSL) * SL, ((f + 1) % NSL) * SL
            L = a.label("Lx")
            a(f"s_cmp_ge_u32 {sW}, 2\ns_cbranch_scc1 {L}")
            a(f"s_add_u32 m0, {sP[4]}, {rB}")
            a(f"buffer_load_dwordx4 {V[4]}, {srd}, {sB} offen lds", "_untracked")
            a(f"{L}:")
            for i in range(4):
                if i < 2: a(f"s_add_u32 m0, {sP[i]}, {rA}"); so = sA
                elif i == 3: a(f"s_add_u32 m0, {sP[i]}, {rB}"); so = sB
                else:
                    a(f"s_mov_b32 s64, {rB}\ns_cmp_eq_u32 {sW}, 0\ns_cselect_b32 s64, {rA}, s64\ns_cselect_b32 s66, {sA}, {sB}\ns_add_u32 m0, {sP[i]}, s64"); so = "s66"
                a(f"buffer_load_dwordx4 {V[i]}, {srd}, {so} offen lds", tag)
        k3 = 32 * 9216
        self.rot3("s69")
        a(f"s_mul_i32 s69, s69, {k3}\ns_lshl_b32 s64, {sX}, 2\ns_add_u32 s64, s64, {sJ}\ns_mul_i32 s70, s64, 288")
        def w3pair(s, tag):
            a(f"s_add_u32 s73, s69, s70\ns_add_u32 s74, s73, {k3}")
            pair(s, W3, V3, "s73", "s74", tag)
            a(f"s_add_u32 s69, s69, {2*k3}\ns_sub_u32 s65, s69, {18*k3}\ns_min_u32 s69, s69, s65")
        a(f"s_mul_i32 s64, {sX}, {576*1152}\ns_mul_i32 s65, {sJ}, 288\ns_add_u32 s101, s64, s65")
        for d in range(4): a(f"s_xor_b32 s64, {sJ}, {d}\ns_mul_i32 s64, s64, {144*1152}\ns_add_u32 s{97+d}, s64, s101")
        def w4src(k, dst):
            if k < 4: d, p = 0, k
            elif k < 16: d, p = 1 + (k - 4) % 3, (k - 4) // 3
            else:
                a(f"s_lshr_b32 s64, {sJ}, 1\ns_xor_b32 s64, s64, {k-16}\ns_mul_i32 s64, s64, {288*1152}\ns_add_u32 s64, s64, s101\ns_add_u32 {dst}, s64, {128*1152}")
                return
            a(f"s_add_u32 {dst}, s{97+d}, {32*p*1152}")
        def w4pair(k, tag):
            w4src(k, "s73"); w4src(k + 1, "s74")
            pair(18 + k, W4, V4 if k < 16 else V4s, "s73", "s74", tag)
        self.mode_get()
        a(f"v_and_b32 {t0}, 3, {vLANE}\nv_lshlrev_b32 {t0}, 7, {t0}")
        self.stamp()
        self.wait_ctr(1, 7, sleep=2); self.wait_ctr(0, 3, sleep=2)
        self.stamp()
        for s in range(0, 8, 2): w3pair(s, f"d{s//4}")
        a.wait_vm("d0"); self.signal(11)
        self.wait_ctr(0, 5, sleep=2)
        self.stamp()
        for s in range(8, 16, 2):
            w3pair(s, f"d{s//4}")
            if s == 8: a.wait_vm("d1"); self.signal(12)
        a(f"v_and_b32 {t0}, 3, {vLANE}\nv_lshlrev_b32 {t0}, 7, {t0}")
        a(f"buffer_load_dword v248, {t0}, {WS}, s72 offen sc1", "pf")
        a.wait_vm("d2"); self.signal(13)
        a.wait_vm("d3"); self.signal(14)
        self.stamp()
        CP = 100
        a(f"s_lshl_b32 s64, {sW}, 6\nv_add_u32 {t1}, s64, {vLANE}\nv_min_u32 {t1}, 143, {t1}\nv_lshlrev_b32 v{CP+9}, 2, {t1}")
        L = a.label("Lcs")
        a(f"s_mov_b32 {sTO}, 0")
        a(f"{L}:")
        a(f"s_mul_i32 s64, {sX}, {9*2304}\ns_mul_i32 s65, {sJ}, 576\ns_add_u32 s64, s64, s65\ns_add_u32 s64, s64, {CSP_OFF}")
        for k in range(9):
            a(f"buffer_load_dword v{CP+k}, v{CP+9}, {WS}, s64 offen sc1", "cp")
            a(f"s_add_u32 s64, s64, 2304")
        a(f"s_add_u32 {sTO}, {sTO}, 1\ns_cmp_gt_u32 {sTO}, 100000\ns_cbranch_scc1 L_end")
        a.wait_vm()
        a(f"v_xor_b32 {t0}, v{CP}, {vT8}")
        for k in range(1, 9): a(f"v_bitop3_b32 {t0}, {t0}, v{CP+k}, {vT8} bitop3:0xf6")
        a(f"v_and_b32 {t0}, 0xff, {t0}\nv_cmp_ne_u32 vcc, 0, {t0}")
        a(f"s_cbranch_vccnz {L}")
        for k in range(1, 9): a(f"v_add_f32 v{CP}, v{CP}, v{CP+k}")
        a(f"v_add_u32 {t1}, {vSCR}, v{CP+9}")
        a(f"ds_write_b32 {t1}, v{CP} offset:{CS3_OFF}", "csw")
        self.epoch_advance()
        K = [f"v{48+i}" for i in range(4)]
        self.wait_ctr(0, 11, one=True, sleep=2)
        self.load_stats(1, 100)
        self.finish_stats(K, 100)
        self.stamp()
        self.wait_ctr(0, 12, sleep=3)
        w3pair(16, "e0")
        for k in (0, 2): w4pair(k, "e1")
        a.wait_vm("e0"); self.signal(15)
        self.wait_ctr(0, 13, sleep=3)
        for k in (4, 6, 8): w4pair(k, "e2")
        a.wait_vm("e1"); self.signal(16)
        self.stamp()
        AC = 128; PKR = 80
        self.wait_ctr(1, 15)
        self.wait_ctr(0, 15, one=True, sleep=1)
        self.stamp()
        for u in range(9): a(f"ds_read_b128 {vr(AC+4*u)}, {vEX} offset:{1024*u}", "ex")
        a.wait_lg()
        a(f"s_add_u32 s67, s72, 256")
        def back(u):
            if u & 1: a(f"ds_write_b128 {vEX}, {vr(PKR+4*(u>>1))} offset:{1024*(9+(u>>1))}", "bk")
            if u == 7: self.signal(17)
        self.gelu_tile(lambda u: AC + 4 * u, 56, K, lambda p: PKR + 4 * p, vH2, vH8, "s71", "s68", "s67", between=back)
        a(f"s_add_u32 s64, s72, 384")
        self.set_flag("s64", "local", "h3_1")
        self.stamp()
        self.wait_ctr(0, 16, sleep=2); self.wait_ctr(1, 17, sleep=2)
        for k in (10, 12, 14): w4pair(k, "e3")
        self.wait_ctr(0, 17, sleep=2)
        w4pair(16, "e3")
        a(f"s_lshl_b32 s64, {sM}, 2\ns_add_u32 s64, s64, {sJ}\ns_mul_i32 s64, s64, {9*64*1024}\ns_add_u32 s73, s64, {P_OFF}")
        a(f"s_lshl_b32 s64, {sW}, 11\nv_add_u32 {vEX}, s64, {vL16}")
        a(f"s_lshl_b32 s65, {sX}, 13\ns_add_u32 s74, s64, s65\ns_add_u32 s74, s74, s73")
        a(f"s_mov_b32 s75, 0xff")
        a.wait_vm("e3"); self.signal(19)
        self.stamp()
        XRr = 100
        a(f"s_mul_i32 s64, {sJ}, 9\ns_add_u32 s76, s64, {sX}")
        a(f"s_lshl_b32 s64, {sM}, 3\ns_lshl_b32 s65, {sW}, 1\ns_add_u32 s77, s64, s65")
        a(f"s_mul_i32 s64, s77, 18\ns_lshr_b32 s65, s76, 1\ns_add_u32 s64, s64, s65\ns_lshl_b32 s64, s64, 10\ns_and_b32 s65, s76, 1\ns_lshl_b32 s65, s65, 3\ns_add_u32 s64, s64, s65\ns_add_u32 s64, s64, {X1_OFF}")
        a(f"v_add_u32 {t1}, 18432, {vL16}")
        a(f"buffer_load_dwordx2 {vr(XRr,2)}, {vL16}, {WS}, s64 offen sc1", "xr")
        a(f"buffer_load_dwordx2 {vr(XRr+2,2)}, {t1}, {WS}, s64 offen sc1", "xr")
        a(f"s_mul_i32 s64, {sJ}, 9\ns_add_u32 s78, s64, 8\ns_lshl_b32 s64, {sM}, 3\ns_add_u32 s79, s64, {sX}")
        a(f"s_mul_i32 s64, s79, 18\ns_lshr_b32 s65, s78, 1\ns_add_u32 s64, s64, s65\ns_lshl_b32 s64, s64, 10\ns_and_b32 s65, s78, 1\ns_lshl_b32 s65, s65, 3\ns_add_u32 s64, s64, s65\ns_add_u32 s64, s64, {X1_OFF}")
        a(f"buffer_load_dwordx2 {vr(XRr+4,2)}, {vL16}, {WS}, s64 offen sc1", "xr")
        vO = "v106"
        a(f"v_mul_u32_u24 {vO}, 1152, {vJ}\nv_lshl_add_u32 {vO}, {vG}, 3, {vO}")
        a(f"s_lshl_b32 s64, {sX}, 16\ns_add_u32 s68, s64, s73\ns_lshl_b32 s64, {sW}, 11\ns_add_u32 s68, s68, s64")
        DB = 108; GR = 128
        SUMR = 56
        for e in range(8): a(f"v_mov_b32 v{SUMR+e}, 0")
        def g_issue(i):
            a(f"s_sub_u32 s64, {sX}, {i}\ns_and_b32 s64, s64, 7\ns_lshl_b32 s64, s64, 13\ns_add_u32 s64, s64, s68")
            for tt in range(2): a(f"buffer_load_dwordx4 {vr(GR+8*i+4*tt)}, {vL16}, {WS}, s64 offen offset:{1024*tt} sc1", f"pg{i}")
        def g_take(i):
            L = a.label("Lg"); L2 = a.label("Lg")
            a.wait_vm(f"pg{i}")
            vm = list(a.vm)
            a(f"s_mov_b32 {sTO}, 0")
            a(f"{L}:")
            a(f"v_xor_b32 {t0}, v{GR+8*i}, {vT8}")
            for e in range(1, 8): a(f"v_bitop3_b32 {t0}, {t0}, v{GR+8*i+e}, {vT8} bitop3:0xf6")
            a(f"v_and_b32 {t0}, 0xff, {t0}\nv_cmp_ne_u32 vcc, 0, {t0}")
            a(f"s_cbranch_vccz {L2}")
            a(f"s_add_u32 {sTO}, {sTO}, 1\ns_cmp_gt_u32 {sTO}, 100000\ns_cbranch_scc1 L_end")
            g_issue(i)
            a.wait_vm()
            a(f"s_branch {L}")
            a(f"{L2}:")
            a.vm = vm
            for e in range(8): a(f"v_add_f32 v{SUMR+e}, v{SUMR+e}, v{GR+8*i+e}")
        for o in range(9):
            self.wait_ctr(0, 19 + o, one=True, sleep=2)
            d = DB + 8 * (o & 1)
            for tt in range(2): a(f"ds_read_b128 {vr(d+4*tt)}, {vEX} offset:{(2+o%3)*SL+1024*tt}", "dp")
            if o == 8: break
            if o == 0: a(f"s_add_u32 s66, s74, {8*65536}")
            else: a(f"s_add_u32 s64, {sX}, {o}\ns_and_b32 s64, s64, 7\ns_lshl_b32 s64, s64, 16\ns_add_u32 s66, s64, s74")
            a.wait_lg()
            self.signal(20 + o)
            for e in range(8): a(f"v_bfi_b32 v{d+e}, s75, {vT8}, v{d+e}")
            for tt in range(2): a(f"buffer_store_dwordx4 {vr(d+4*tt)}, {vL16}, {WS}, s66 offen offset:{1024*tt} sc1", "pst")
            if o >= 5: g_issue(o - 4)
            if o == 7:
                for i in (4, 5): g_issue(i)
        self.stamp()
        for i in (6, 7): g_issue(i)
        L8 = a.label("Lu8")
        a(f"s_lshr_b32 s64, {sX}, 1\ns_cmp_lg_u32 s64, {sW}\ns_cbranch_scc1 {L8}")
        vm = list(a.vm)
        a(f"s_lshl_b32 s64, {sX}, 10\ns_add_u32 s67, s64, s73\ns_add_u32 s67, s67, {8*65536}")
        self.gather(200, 8, 1, "s67", None)
        self.finish_out(200, XRr + 4, vO, "s79", "s78")
        a(f"{L8}:")
        a.vm = vm
        for i in range(1, 8): g_take(i)
        self.stamp()
        a.wait_lg()
        for tt in range(2):
            for e in range(4): a(f"v_add_f32 v{SUMR+4*tt+e}, v{SUMR+4*tt+e}, v{DB+4*tt+e}")
            a(f"s_add_u32 s79, s77, {tt}")
            self.finish_out(SUMR + 4 * tt, XRr + 2 * tt, vO, "s79", "s76")

    def gather(self, R, nsrc, ntt, sbase, skip):
        a = self.a
        L = a.label("Lg"); t0 = f"v{T0}"; vT8 = f"v{T0+7}"
        a(f"s_mov_b32 {sTO}, 0")
        a(f"{L}:")
        for i in range(nsrc):
            a(f"s_add_u32 s64, {sbase}, {8192*i}")
            for tt in range(ntt):
                a(f"buffer_load_dwordx4 {vr(R+4*(ntt*i+tt))}, {vL16}, {WS}, s64 offen offset:{1024*tt} sc1", "pg")
        a(f"s_add_u32 {sTO}, {sTO}, 1\ns_cmp_gt_u32 {sTO}, 50000\ns_cbranch_scc1 L_end")
        a.wait_vm()
        n = 4 * nsrc * ntt
        a(f"v_xor_b32 {t0}, v{R}, {vT8}")
        for e in range(1, n): a(f"v_bitop3_b32 {t0}, {t0}, v{R+e}, {vT8} bitop3:0xf6")
        a(f"v_and_b32 {t0}, 0xff, {t0}\nv_cmp_ne_u32 vcc, 0, {t0}")
        a(f"s_cbranch_vccnz {L}")
        for i in range(1, nsrc):
            for e in range(4 * ntt): a(f"v_add_f32 v{R+e}, v{R+e}, v{R+4*ntt*i+e}")
    def finish_out(self, S, XR, vO, sTile, sU):
        a = self.a
        t0, t1, t2, t3 = (f"v{T0+i}" for i in range(4))
        for d in range(2):
            a(f"v_cvt_pk_bf16_f32 {t0}, v{S+2*d}, v{S+2*d+1}")
            a(f"v_lshlrev_b32 {t1}, 16, {t0}\nv_and_b32 {t0}, 0xffff0000, {t0}")
            a(f"v_lshlrev_b32 {t2}, 16, v{XR+d}\nv_and_b32 {t3}, 0xffff0000, v{XR+d}")
            a(f"v_add_f32 {t1}, {t1}, {t2}\nv_add_f32 {t0}, {t0}, {t3}")
            a(f"v_cvt_pk_bf16_f32 v{S+d}, {t1}, {t0}")
        a(f"s_mul_i32 s64, {sTile}, 18432\ns_lshl_b32 s65, {sU}, 5\ns_add_u32 s64, s64, s65")
        a(f"buffer_store_dwordx2 {vr(S,2)}, {vO}, {OUT}, s64 offen", "out")
    def epoch_advance(self):
        a = self.a
        L = a.label("Lep"); L2 = a.label("Lep")
        a(f"s_cmp_lg_u32 s2, 255\ns_cbranch_scc1 {L}\ns_cmp_lg_u32 {sW}, 3\ns_cbranch_scc1 {L}")
        vm = list(a.vm)
        a(f"s_mov_b32 {sTO}, 0")
        a(f"{L2}:")
        a(f"v_lshlrev_b32 v247, 7, {vLANE}\ns_mov_b32 s64, {FS_OFF}")
        for i in range(4):
            a(f"buffer_load_dword v{T0+i}, v247, {WS}, s64 offen sc1")
            a(f"s_add_u32 s64, s64, 8192")
        a(f"s_add_u32 {sTO}, {sTO}, 1\ns_cmp_gt_u32 {sTO}, 100000\ns_cbranch_scc1 L_end")
        a.wait_vm()
        a(f"v_xor_b32 v{T0}, {sTAG}, v{T0}\nv_xor_b32 v{T0+1}, {sTAG}, v{T0+1}\nv_xor_b32 v{T0+2}, {sTAG}, v{T0+2}\nv_xor_b32 v{T0+3}, {sTAG}, v{T0+3}")
        a(f"v_or3_b32 v{T0}, v{T0}, v{T0+1}, v{T0+2}\nv_or_b32 v{T0}, v{T0}, v{T0+3}\nv_cmp_ne_u32 vcc, 0, v{T0}")
        a(f"s_cbranch_vccnz {L2}")
        a(f"v_mov_b32 v{T0}, {sE}\nv_mov_b32 v{T0+1}, 0\ns_mov_b64 exec, 1")
        a(f"buffer_store_dword v{T0}, v{T0+1}, {WS}, 0 offen sc1", "_untracked")
        a("s_mov_b64 exec, -1")
        a(f"{L}:")
        a.vm = vm

    def wrap(self, body):
        hdr = open("standalone__mixer_s_mlp__sampling.s.ref").read().split("; Override")[0]
        s = hdr + "; @launch grid=(256,1,1) block=(512,1,1) lds=163840\n"
        s += '.amdgcn_target "amdgcn-amd-amdhsa--gfx950"\n.text\n'
        s += f".globl {KNAME}\n.p2align 8\n.type {KNAME},@function\n{KNAME}:\n"
        s += body
        s += f'.section .rodata,"a"\n.p2align 6\n.amdhsa_kernel {KNAME}\n'
        s += "  .amdhsa_next_free_vgpr 256\n  .amdhsa_next_free_sgpr 102\n  .amdhsa_accum_offset 256\n"
        s += "  .amdhsa_group_segment_fixed_size 0\n  .amdhsa_kernarg_size 64\n  .amdhsa_user_sgpr_count 2\n"
        s += "  .amdhsa_user_sgpr_kernarg_segment_ptr 1\n  .amdhsa_system_sgpr_workgroup_id_x 1\n"
        s += "  .amdhsa_float_denorm_mode_32 3\n.end_amdhsa_kernel\n"
        return s

if __name__ == "__main__":
    import argparse
    p = argparse.ArgumentParser()
    p.add_argument("-o", default="mk.s"); p.add_argument("--stop", type=int, default=99)
    p.add_argument("--stamps", action="store_true"); p.add_argument("--plain", action="store_true"); p.add_argument("--exp", default="")
    args = p.parse_args()
    open(args.o, "w").write(Gen(args.stop, args.stamps, args.plain, args.exp).build())
```

```python
import re

TRANS = ("v_exp_f32", "v_log_f32", "v_rcp_f32", "v_rsq_f32", "v_sqrt_f32", "v_sin_f32", "v_cos_f32")

def _regs(tok):
    tok = tok.strip()
    tok = re.sub(r"^-|^abs\(|\)$|^\|", "", tok).strip("|")
    m = re.fullmatch(r"([vas])\[(\d+):(\d+)\]", tok)
    if m:
        return [(m.group(1), i) for i in range(int(m.group(2)), int(m.group(3)) + 1)]
    m = re.fullmatch(r"([vas])(\d+)", tok)
    if m:
        return [(m.group(1), int(m.group(2)))]
    if tok in ("vcc", "vcc_lo", "vcc_hi"):
        return [("s", "vcc")]
    if tok == "m0":
        return [("s", "m0")]
    if tok in ("exec", "exec_lo", "exec_hi"):
        return [("s", "exec")]
    return []

class Ins:
    __slots__ = ("text", "op", "kind", "wr", "rd", "srcc", "ab", "nops", "is_label", "stdata", "dpp")
    def __init__(self, text):
        self.text = text
        self.is_label = text.endswith(":")
        self.wr = []; self.rd = []; self.srcc = []; self.ab = []; self.stdata = []
        self.kind = "other"; self.nops = 1; self.dpp = False
        if self.is_label or text.startswith(".") or text.startswith(";"):
            self.kind = "label" if self.is_label else "dir"; self.op = ""; self.nops = 0
            return
        body = text.split(";")[0].strip()
        parts = body.split(None, 1)
        op = parts[0]; self.op = op
        rest = parts[1] if len(parts) > 1 else ""
        rest = re.sub(r"\s+op_sel(_hi)?:\[[^\]]*\]", "", rest)
        ops = [o.strip() for o in rest.split(",")] if rest else []
        if ops:
            last = ops[-1].split()
            mods = last[1:]
            ops[-1] = last[0] if last else ""
        else:
            mods = []
        R = [_regs(o) for o in ops]
        if op == "s_nop":
            self.kind = "nop"; self.nops = int(ops[0], 0) + 1
        elif op.startswith("v_mfma"):
            self.kind = "mfma"; self.wr = R[0]; self.ab = R[1] + R[2]; self.srcc = R[3]; self.rd = self.ab + self.srcc
        elif op.startswith("v_"):
            self.kind = "trans" if op.split("_e")[0] in TRANS or op in TRANS else "valu"
            self.dpp = "_dpp" in op
            if op.startswith("v_cmp"):
                self.wr = R[0]; self.rd = sum(R[1:], [])
                if op.startswith("v_cmpx"): self.wr = self.wr + [("s", "exec")]
            elif op.startswith("v_swap"):
                self.wr = R[0] + R[1]; self.rd = R[0] + R[1]
            elif op.startswith("v_permlane") and "swap" in op:
                self.wr = R[0] + R[1]; self.rd = R[0] + R[1]; self.kind = "permlane"
            elif op.startswith(("v_add_co", "v_sub_co", "v_addc_co", "v_subb_co")):
                self.wr = R[0] + R[1]; self.rd = sum(R[2:], [])
            elif op.startswith(("v_readfirstlane", "v_readlane")):
                self.wr = R[0]; self.rd = sum(R[1:], []); self.kind = "readlane"
            else:
                self.wr = R[0]; self.rd = sum(R[1:], [])
                if op.startswith(("v_fmac", "v_dot2c", "v_writelane")): self.rd = self.rd + R[0]
                if op.startswith("v_cndmask") and len(ops) == 3: self.rd = self.rd + [("s", "vcc")]
        elif op.startswith(("buffer_", "global_")):
            self.kind = "vmem"
            lds = "lds" in mods
            if op in ("buffer_wbl2", "buffer_inv"):
                pass
            elif op.startswith("buffer_load"):
                if lds:
                    self.rd = sum(R, []) + [("s", "m0")]; self.kind = "vmem_lds"
                else:
                    self.wr = R[0]; self.rd = sum(R[1:], [])
            elif op.startswith("buffer_store"):
                self.rd = sum(R, []); self.stdata = R[0] if len(R[0]) >= 3 else []
            elif op.startswith("buffer_atomic"):
                self.rd = sum(R, [])
                if "sc0" in mods: self.wr = R[0]
            elif op.startswith("global_load_lds"):
                self.rd = sum(R, []) + [("s", "m0")]; self.kind = "vmem_lds"
            elif op.startswith("global_load"):
                self.wr = R[0]; self.rd = sum(R[1:], [])
            elif op.startswith("global_store"):
                self.rd = sum(R, []); self.stdata = R[1] if len(R[1]) >= 3 else []
        elif op.startswith("ds_"):
            self.kind = "ds"
            if op.startswith(("ds_read", "ds_bpermute", "ds_swizzle", "ds_permute")):
                self.wr = R[0]; self.rd = sum(R[1:], [])
            else:
                self.rd = sum(R, [])
        elif op.startswith("s_"):
            self.kind = "salu"
            if op.startswith(("s_cbranch", "s_branch", "s_barrier", "s_waitcnt", "s_endpgm", "s_sleep", "s_setprio")):
                self.kind = "ctl"
            elif op.startswith("s_cmp"):
                self.rd = sum(R, [])
            else:
                self.wr = R[0] if R else []; self.rd = sum(R[1:], [])
                if "saveexec" in op: self.wr = self.wr + [("s", "exec")]

VALU_KINDS = ("valu", "trans", "permlane", "readlane")

def need_states(p, c):
    n = 0
    pw = set(p.wr); cr = set(c.rd); cw = set(c.wr)
    pwv = {r for r in pw if r[0] in "va"}
    pws = {r for r in pw if r[0] == "s"}
    if p.kind in VALU_KINDS:
        if c.kind == "mfma" and pwv & cr: n = max(n, 2)
        if c.kind == "mfma" and ("s", "exec") in pws: n = max(n, 4)
        if c.kind == "readlane" and pwv & cr: n = max(n, 1)
        if c.kind == "permlane" and pwv & cr: n = max(n, 2)
        if c.dpp and pwv & cr: n = max(n, 2)
        if p.kind == "trans" and c.kind in VALU_KINDS + ("mfma",) and pwv & cr: n = max(n, 2 if c.kind == "mfma" else 1)
        if pws:
            if c.kind in ("vmem", "vmem_lds") and pws & cr: n = max(n, 5)
            if c.kind in VALU_KINDS and pws & cr: n = max(n, 4 if c.kind == "readlane" else 2)
            if ("s", "exec") in pws and c.kind in ("readlane", "permlane"): n = max(n, 4)
            if ("s", "exec") in pws and c.dpp: n = max(n, 5)
            if c.kind in ("salu", "ctl") and (pws & cr or (c.op.startswith("s_cbranch_vcc") and ("s", "vcc") in pws)): n = max(n, 1)
    if p.op.startswith("v_dot") and c.kind in VALU_KINDS + ("mfma", "vmem", "ds"):
        if c.op == p.op:
            if c.op.startswith("v_dot2c"):
                srcab = set(c.rd) - set(c.wr)
            else:
                srcab = set(c.rd[:-1])
            if pwv & srcab: n = max(n, 3)
        elif pwv & (cr | cw): n = max(n, 3)
    if p.kind == "mfma":
        passes = 8 if "32x32" in p.op else 4
        big = {4: 8, 8: 12}[passes]
        if c.kind == "mfma":
            if pwv & set(c.ab): n = max(n, big)
            if pwv & set(c.srcc):
                if set(c.srcc) != pwv: n = max(n, {4: 6, 8: 10}[passes])
            if pwv & cw and not (pwv & set(c.srcc)): n = max(n, big)
        elif c.kind in VALU_KINDS + ("vmem", "vmem_lds", "ds"):
            if pwv & (cr | cw): n = max(n, big)
        if c.kind in VALU_KINDS and set(p.srcc) & cw: n = max(n, {4: 3, 8: 7}[passes])
    if p.kind == "salu" and ("s", "m0") in pws and c.kind == "vmem_lds": n = max(n, 1)
    if p.stdata and set(p.stdata) & cw: n = max(n, 2 if c.kind in VALU_KINDS else 1)
    return n

class Asm:
    def __init__(self):
        self.ins = []
        self.vm = []
        self.lg = []
        self.lbl = 0
        self.deferred = []
    def __call__(self, text, tag=None):
        for line in text.split("\n"):
            line = line.strip()
            if not line: continue
            i = Ins(line)
            if i.kind in ("vmem", "vmem_lds") and len(self.vm) >= 60:
                self.ins.append(Ins("s_waitcnt vmcnt(52)")); self.vm = self.vm[-52:]
            if i.kind == "ds" and len(self.lg) >= 14:
                self.ins.append(Ins("s_waitcnt lgkmcnt(12)")); self.lg = self.lg[-12:]
            self.ins.append(i)
            if tag == "_untracked":
                continue
            if i.kind in ("vmem", "vmem_lds") and i.op not in ("buffer_wbl2", "buffer_inv"):
                self.vm.append(tag)
            if i.kind == "ds":
                self.lg.append(tag)
    def slow(self, fn):
        self.lbl += 1
        ls, lr = f"Ls_s{self.lbl}", f"Ls_r{self.lbl}"
        self(f"s_cbranch_scc0 {ls}")
        self(f"{lr}:")
        self.deferred.append((ls, lr, fn))
    def flush_deferred(self):
        while self.deferred:
            ls, lr, fn = self.deferred.pop(0)
            self.vm = ["old"] * 8; self.lg = ["old"] * 8
            self(f"{ls}:")
            self("s_nop 7\ns_nop 3")
            fn()
            self("s_nop 7")
            self(f"s_branch {lr}")
    def label(self, p="L"):
        self.lbl += 1
        return f"{p}_{self.lbl}"
    def wait_vm(self, tags=None):
        if tags is None:
            n = 0
        else:
            if not isinstance(tags, (list, tuple, set)): tags = [tags]
            idx = [i for i, t in enumerate(self.vm) if t in tags]
            if not idx: return
            n = len(self.vm) - 1 - idx[-1]
        if n >= len(self.vm) and n > 0: return
        n = min(n, 63)
        self(f"s_waitcnt vmcnt({n})")
        self.vm = self.vm[len(self.vm) - n:] if n else []
    def wait_lg(self, tags=None):
        if tags is None:
            n = 0
        else:
            if not isinstance(tags, (list, tuple, set)): tags = [tags]
            idx = [i for i, t in enumerate(self.lg) if t in tags]
            if not idx: return
            n = len(self.lg) - 1 - idx[-1]
        n = min(n, 15)
        self(f"s_waitcnt lgkmcnt({n})")
        self.lg = self.lg[len(self.lg) - n:] if n else []
    def text(self):
        out = []
        hist = []
        for i in self.ins:
            if i.kind in ("dir",):
                out.append(i.text); continue
            if i.kind == "label" and i.text.startswith("Ls_"):
                out.append(i.text); continue
            if i.kind == "label":
                worst = 0
                for p, d in hist:
                    lim = 0
                    if p.kind == "mfma": lim = 12 if "32x32" in p.op else 8
                    elif p.kind in VALU_KINDS: lim = 5 if any(r[0] == "s" for r in p.wr) else 3
                    elif p.kind == "salu" and ("s", "m0") in p.wr: lim = 1
                    elif p.stdata: lim = 2
                    worst = max(worst, lim - d)
                if worst > 0:
                    out.append(f"    s_nop {worst-1}")
                hist = []
                out.append(i.text); continue
            need = 0
            for p, d in hist:
                need = max(need, need_states(p, i) - d)
            if i.op.startswith(("s_cbranch", "s_branch")) and " Ls_" not in i.text:
                for p, d in hist:
                    lim = 0
                    if p.kind == "mfma": lim = 12 if "32x32" in p.op else 8
                    elif p.kind in VALU_KINDS: lim = 5 if any(r[0] == "s" for r in p.wr) else 3
                    elif p.kind == "salu" and ("s", "m0") in p.wr: lim = 1
                    elif p.stdata: lim = 2
                    need = max(need, lim - d - 1)
            if need > 0:
                out.append(f"    s_nop {need-1}")
                hist = [(p, d + need) for p, d in hist]
            out.append("    " + i.text)
            hist = [(p, d + i.nops) for p, d in hist if d + i.nops < 13]
            hist.append((i, 0))
        return "\n".join(out) + "\n"
```

```python
import sys
sys.path.insert(0, "dev")
from asmlib import Asm

KNAME = "standalone__mixer_s_mlp__sampling_kernel"
NB = 159
SCR = NB * 1024
CS3_OFF = 256
KC_OFF = 153 * 1024
NACT = 18
KE = 7
SL = 9216; NSL = 17
EX1 = 11
ROT3 = (0, 4, 10, 14)
FS2_OFF = 0x1000; ST_OFF = 0x10000; CSP_OFF = 0x28000
F1_OFF = 0x60000; F2_OFF = 0x80000; F3_OFF = 0xA0000
H_OFF = 0xE0000; X1_OFF = 0x200000; H3_OFF = 0x400000; P_OFF = 0xE00000; STAMP_OFF = 0x3000000
FAR = 0x1800000
FRAGSZ = 0x120000
X, W1, W2, W3, W4, OUT, WS, DBG, HS = (f"s[{b}:{b+3}]" for b in (20, 24, 28, 32, 36, 40, 44, 48, 52))
sTAG, sW, sX, sR, sMT, sNT, sM, sJ = (f"s{i}" for i in range(56, 64))
sE = "s3"
sC = [f"s{84+i}" for i in range(5)]
sTAGX = "s80"; sTO = "s89"; sTAG8 = "s82"; sWV = "s81"; sWK = "s83"
vLANE, vG, vJ = "v1", "v2", "v3"
vLB = ["v4", "v5", "v6"]
vL16 = "v4"; vFLG = "v8"; vSTAMP = "v9"; vCTR = "v10"; vSCR = "v11"
T0 = 12
AF0 = 24; NAF = 6
ACC0 = 48
BF0 = 112
DUMMY = "v7"

def vr(b, n=4): return f"v[{b}:{b+n-1}]"
MFMA = "v_mfma_f32_16x16x32_bf16"

def kprime(k, j):
    if k >= 16: return 16 + ((k - 16) ^ (j >> 1))
    d, p = (k >> 2) ^ j, k & 3
    return p if d == 0 else 4 + 3 * p + (d - 1)

class Gen:
    def __init__(self, stop=99, stamps=False, local_plain=False, exp=""):
        self.exp = exp.split(",")
        self.psleep = 0
        for e in self.exp:
            if e.startswith("ps"): self.psleep = int(e[2:])
        self.ld_local = "nt" if "ldnt" in self.exp else ("" if "ldplain" in self.exp else "sc1")
        self.a = Asm(); self.stop = stop; self.stamps = stamps; self.nst = 0
        self.af = 0
        self.st_local = "" if local_plain else "sc1"
    def reset(self, nst=None):
        self.a.vm = []; self.a.lg = []
        if nst is not None: self.nst = nst
    def stamp(self):
        if not self.stamps: return
        a = self.a
        a.wait_lg()
        a(("s_memtime" if "cyc" in self.exp else "s_memrealtime") + " s[90:91]\ns_waitcnt lgkmcnt(0)")
        a(f"v_writelane_b32 {vSTAMP}, s90, {self.nst}")
        self.nst += 1
    def next_af(self):
        b = AF0 + 4 * (self.af % NAF); self.af += 1
        return b
    def lb(self, kb):
        off = kb * 1024
        return vLB[off >> 16], off & 0xffff
    def read_blk(self, n, tag, dst=None):
        b = self.next_af() if dst is None else dst
        v, off = self.lb(n % NB)
        self.a(f"ds_read_b128 {vr(b)}, {v} offset:{off}", tag)
        return b
    def read_tr(self, vbase, off, tag, dst=None):
        b = self.next_af() if dst is None else dst
        self.a(f"ds_read_b64_tr_b16 {vr(b,2)}, {vbase} offset:{off}", tag)
        self.a(f"ds_read_b64_tr_b16 {vr(b+2,2)}, {vbase} offset:{off+2048}", tag)
        return b
    def poll(self, soff, vflag, mask=None, sleep=None):
        a = self.a
        t = f"v{T0}"
        if sleep is None: sleep = self.psleep
        L = a.label("Lpoll"); L2 = a.label("Lpoll")
        a(f"s_mov_b32 {sTO}, 0\ns_branch {L2}")
        a(f"{L}:")
        if sleep: a(f"s_sleep {sleep}")
        a(f"{L2}:")
        a(f"buffer_load_dword {t}, {vflag}, {WS}, {soff} offen sc1")
        a(f"s_add_u32 {sTO}, {sTO}, 1\ns_cmp_gt_u32 {sTO}, 100000\ns_cbranch_scc1 L_end")
        a.wait_vm()
        a(f"v_cmp_ne_u32 vcc, {sTAG}, {t}")
        if mask is not None:
            a(f"s_and_b32 vcc_lo, vcc_lo, {mask}\ns_cbranch_scc1 {L}")
        else:
            a(f"s_cbranch_vccnz {L}")
    def poll_one(self, soff, vflag, val):
        a = self.a
        L = a.label("Lp1"); L2 = a.label("Lp1"); L3 = a.label("Lp1")
        vm = list(a.vm)
        a(f"s_cmp_lg_u32 {sW}, 0\ns_cbranch_scc1 {L}")
        self.poll(soff, vflag)
        a(f"v_mov_b32 v{T0}, {val}\ns_mov_b64 exec, 1")
        a(f"ds_write_b32 {vSCR}, v{T0} offset:32", "sig")
        a("s_mov_b64 exec, -1")
        a.wait_lg()
        a(f"s_branch {L3}")
        a(f"{L}:")
        a(f"s_mov_b32 {sTO}, 0")
        a(f"{L2}:")
        a(f"s_sleep 2\nds_read_b32 v{T0}, {vSCR} offset:32", "ctr")
        a(f"s_add_u32 {sTO}, {sTO}, 1\ns_cmp_gt_u32 {sTO}, 1000000\ns_cbranch_scc1 L_end")
        a.wait_lg()
        a(f"v_readfirstlane_b32 s64, v{T0}")
        a(f"s_cmp_lt_u32 s64, {val}\ns_cbranch_scc1 {L2}")
        a(f"{L3}:")
        a.vm = vm
    def set_flag(self, soff, mods, tags=None):
        a = self.a
        for i in range(4): a(f"v_mov_b32 v{T0+i}, {sTAG if mods == 'sc1' else sTAGX}")
        if mods in ("far", "both"): a(f"s_add_u32 s65, {soff}, {FAR}")
        a.wait_vm(tags)
        a("s_mov_b64 exec, 0xff")
        if mods == "sc1": a(f"buffer_store_dwordx4 {vr(T0)}, {vL16}, {WS}, {soff} offen sc1", "flag")
        if mods in ("near", "both") and not ("far" in self.exp and mods == "both"): a(f"buffer_store_dwordx4 {vr(T0)}, {vL16}, {WS}, {soff} offen", "flag")
        if mods in ("far", "both"): a(f"buffer_store_dwordx4 {vr(T0)}, {vL16}, {WS}, s65 offen sc1", "flag")
        a("s_mov_b64 exec, -1")
    def poll2(self, soff, vflag, same_die, mask=None, hook=None):
        a = self.a
        t = f"v{T0}"
        L = a.label("Lpoll"); L2 = a.label("Lpoll"); L3 = a.label("Lpoll")
        a(f"s_mov_b32 {sTO}, 0\ns_branch {L2}")
        a(f"{L}:")
        if self.psleep: a(f"s_sleep {self.psleep}")
        a(f"{L2}:")
        a(f"s_and_b32 s65, {sTO}, 7\ns_cmp_eq_u32 s65, 7\ns_cselect_b32 s67, {FAR}, 0\ns_add_u32 s65, {soff}, s67")
        a(f"buffer_load_dword {t}, {vflag}, {WS}, s65 offen sc1")
        a(f"s_add_u32 {sTO}, {sTO}, 1\ns_cmp_gt_u32 {sTO}, 100000\ns_cbranch_scc1 L_end")
        a.wait_vm()
        if hook:
            a(f"s_cmp_lg_u32 {sTO}, 5\ns_cbranch_scc1 {L3}")
            a(f"v_mov_b32 v0, {t}")
            hook()
            a(f"v_mov_b32 {t}, v0")
            a(f"{L3}:")
        if same_die: a(f"s_cmp_eq_u32 s67, 0\ns_cselect_b32 s65, {sTAGX}, {sTAG}\ns_cselect_b32 s66, 1, 16")
        else: a(f"s_mov_b32 s65, {sTAG}\ns_mov_b32 s66, 16")
        a(f"v_subrev_u32 {t}, s65, {t}")
        a(f"v_cmp_le_u32 vcc, s66, {t}")
        if mask is not None: a(f"s_and_b32 vcc_lo, vcc_lo, {mask}\ns_cbranch_scc1 {L}")
        else: a(f"s_cbranch_vccnz {L}")
        a.vm = ["flag"] if hook else []
    def signal(self, val):
        a = self.a
        a(f"v_mov_b32 v0, {val}")
        a(f"ds_write_b32 {vCTR}, v0", "sig")
    def wait_ctr(self, grp, val, one=False, sleep=1, tmp=None):
        a = self.a
        L = a.label("Lw"); L2 = a.label("Lw")
        a(f"s_mov_b32 {sTO}, 0\ns_branch {L2}")
        a(f"{L}:")
        if sleep: a(f"s_sleep {sleep}")
        a(f"{L2}:")
        t = T0 if tmp is None else tmp
        if one:
            a(f"v_xor_b32 v{t+1}, {16 if one is True else one}, {vCTR}")
            a(f"ds_read_b32 v{t}, v{t+1}", "ctr")
        else:
            a(f"ds_read_b128 {vr(t)}, {vSCR} offset:{16*grp}", "ctr")
        a(f"s_add_u32 {sTO}, {sTO}, 1\ns_cmp_gt_u32 {sTO}, 1000000\ns_cbranch_scc1 L_end")
        a.wait_lg()
        if not one:
            a(f"v_min_u32 v{t}, v{t}, v{t+1}\nv_min3_u32 v{t}, v{t}, v{t+2}, v{t+3}")
        a(f"v_readfirstlane_b32 s64, v{t}")
        a(f"s_cmp_lt_u32 s64, {val}\ns_cbranch_scc1 {L}")
    def xlane_sum(self, v, t):
        a = self.a
        a(f"v_mov_b32 {t}, {v}\nv_permlane16_swap_b32 {v}, {t}\nv_add_f32 {v}, {v}, {t}")
        a(f"v_mov_b32 {t}, {v}\nv_permlane32_swap_b32 {v}, {t}\nv_add_f32 {v}, {v}, {t}")
    def bf16r(self, v):
        self.a(f"v_cvt_pk_bf16_f32 {v}, {v}, {v}\nv_lshlrev_b32 {v}, 16, {v}")
    def ln_consts(self, vS, vQ, K, t):
        a = self.a
        vNM, vSD, vC1, vC2 = K
        a(f"v_mul_f32 {vS}, 0x3ae38e39, {vS}")
        a(f"v_mul_f32 {t}, {vS}, {vS}")
        a(f"v_mov_b32 {vC1}, 0x3ae38e39")
        a(f"v_fma_f32 {vQ}, {vQ}, {vC1}, -{t}")
        a(f"v_max_f32 {vQ}, 0, {vQ}")
        self.bf16r(vQ)
        a(f"v_add_f32 {vQ}, 0x3727c5ac, {vQ}")
        self.bf16r(vQ)
        a(f"v_sqrt_f32 {vSD}, {vQ}")
        self.bf16r(vSD)
        self.bf16r(vS)
        a(f"v_sub_f32 {vNM}, 0, {vS}")
        a(f"v_rcp_f32 {t}, {vSD}")
        a(f"v_mul_f32 {vC1}, 0xc0135761, {t}")
        a(f"v_mul_f32 {vC2}, {t}, {t}")
        a(f"v_mul_f32 {vC2}, {vC2}, {t}")
        a(f"v_mul_f32 {vC2}, 0xbdd2d3e8, {vC2}")
    def gelu_ops(self, acc, cs, K, t):
        vNM, vSD, vC1, vC2 = K
        return [f"v_fma_f32 {acc}, {cs}, {vNM}, {acc}",
                f"v_mul_f32 {t}, {acc}, {acc}",
                f"v_fma_f32 {t}, {t}, {vC2}, {vC1}",
                f"v_mul_f32 {t}, {t}, {acc}",
                f"v_exp_f32 {t}, {t}",
                f"v_fma_f32 {t}, {t}, {vSD}, {vSD}",
                f"v_rcp_f32 {t}, {t}",
                f"v_mul_f32 {acc}, {acc}, {t}"]
    def gelu4(self, acc0, cs0, K, t0):
        seqs = [self.gelu_ops(f"v{acc0+i}", f"v{cs0+i}", K, f"v{t0+i}") for i in range(4)]
        for k in range(8):
            for s in seqs: self.a(s[k])
    def gelu_pk(self, groups, t0):
        a = self.a
        P = [(acc + 2 * h, cs + 2 * h, K, t0 + 4 * g + 2 * h) for g, (acc, cs, K) in enumerate(groups) for h in range(2)]
        for x, c, K, t in P: a(f"v_pk_fma_f32 {vr(x,2)}, {vr(c,2)}, {vr(K,2)}, {vr(x,2)} op_sel_hi:[1,0,1]")
        for x, c, K, t in P: a(f"v_pk_mul_f32 {vr(t,2)}, {vr(x,2)}, {vr(x,2)}")
        for x, c, K, t in P: a(f"v_pk_fma_f32 {vr(t,2)}, {vr(t,2)}, {vr(K+2,2)}, {vr(K+2,2)} op_sel:[0,1,0] op_sel_hi:[1,1,0]")
        for x, c, K, t in P: a(f"v_pk_mul_f32 {vr(t,2)}, {vr(t,2)}, {vr(x,2)}")
        for x, c, K, t in P: a(f"v_exp_f32 v{t}, v{t}\nv_exp_f32 v{t+1}, v{t+1}")
        for x, c, K, t in P: a(f"v_pk_fma_f32 {vr(t,2)}, {vr(t,2)}, {vr(K,2)}, {vr(K,2)} op_sel:[0,1,1] op_sel_hi:[1,1,1]")
        for x, c, K, t in P: a(f"v_rcp_f32 v{t}, v{t}\nv_rcp_f32 v{t+1}, v{t+1}")
        for x, c, K, t in P: a(f"v_pk_mul_f32 {vr(x,2)}, {vr(x,2)}, {vr(t,2)}")
    def srd(self, name, ptr, nbytes):
        b = int(name[2:name.index(":")]); a = self.a
        a(f"s_mov_b32 s{b}, s{ptr}\ns_mov_b32 s{b+1}, s{ptr+1}\ns_mov_b32 s{b+2}, {nbytes}\ns_mov_b32 s{b+3}, 0x20000")
    def modn(self, s, n):
        self.a(f"s_sub_u32 s65, {s}, {n}\ns_min_u32 {s}, {s}, s65")
    def tr_bases(self, dst, base):
        a = self.a; t0, t1 = f"v{T0}", f"v{T0+1}"
        a(f"v_lshrrev_b32 {t0}, 2, {vLANE}")
        a(f"v_bfe_u32 {t1}, {vLANE}, 3, 2")
        a(f"v_lshlrev_b32 {t0}, 7, {t0}\nv_and_b32 {dst[0]}, 3, {vLANE}\nv_lshl_add_u32 {t0}, {dst[0]}, 3, {t0}")
        a(f"v_add_u32 {t0}, {base}, {t0}")
        for u in range(4):
            a(f"v_xor_b32 {dst[u]}, {u}, {t1}\nv_lshl_add_u32 {dst[u]}, {dst[u]}, 5, {t0}")
    def common_late(self, barrier=True):
        a = self.a
        for i in range(5): a(f"s_mov_b32 {sC[i]}, {4096*i}")
        self.srd(W2, 8, 663552)
        self.srd(OUT, 14, 1179648); self.srd(DBG, 16, 256); self.srd(WS, 18, 0x10000000)
        a(f"s_add_u32 s52, s18, {H_OFF}\ns_addc_u32 s53, s19, 0\ns_mov_b32 s54, {FRAGSZ+FAR}\ns_mov_b32 s55, 0x20000")
        if "tlb" in self.exp:
            L = a.label("Ltlb")
            a(f"s_cmp_lg_u32 {sWV}, 2\ns_cbranch_scc1 {L}")
            a(f"v_mov_b32 v{T0}, 0\ns_mov_b64 exec, 1")
            def touch(srd, so): a(f"buffer_load_dword {DUMMY}, v{T0}, {srd}, {so} offen", "_untracked")
            a(f"s_mov_b32 s64, {ST_OFF}"); touch(WS, "s64")
            a(f"s_mov_b32 s64, {X1_OFF}"); touch(WS, "s64")
            touch(W2, 0)
            a(f"s_mul_i32 s64, {sM}, {8*147456}\ns_add_u32 s64, s64, {H3_OFF}"); touch(WS, "s64")
            a(f"s_add_u32 s64, s64, {8*147456-4}"); touch(WS, "s64")
            a(f"s_mul_i32 s64, {sR}, {9*32*1024}\ns_add_u32 s64, s64, {P_OFF}"); touch(WS, "s64")
            a(f"s_add_u32 s64, s64, {9*32*1024-4}"); touch(WS, "s64")
            for q in range(3):
                a(f"s_mov_b32 s64, {q*0x200000}"); touch(W3, "s64")
            a(f"s_mov_b32 s64, {5308416-4}"); touch(W3, "s64")
            a(f"s_mul_i32 s64, {sX}, 663552"); touch(W4, "s64")
            a(f"s_add_u32 s64, s64, {663552-4}"); touch(W4, "s64")
            touch(OUT, 0)
            a("s_mov_b64 exec, -1")
            a(f"{L}:")
        a(f"v_add_u32 {vLB[1]}, 0x10000, {vLB[0]}\nv_add_u32 {vLB[2]}, 0x20000, {vLB[0]}")
        a(f"v_min_u32 {vFLG}, 17, {vLANE}\nv_lshlrev_b32 {vFLG}, 7, {vFLG}")
        a(f"v_mov_b32 {vSCR}, {SCR}\ns_lshl_b32 s64, {sWV}, 2\nv_add_u32 {vCTR}, s64, {vSCR}")
        a(f"v_mov_b32 v{T0}, 0\nds_write_b32 {vCTR}, v{T0}\nds_write_b32 {vSCR}, v{T0} offset:32\nds_write_b32 {vSCR}, v{T0} offset:36")
        a.wait_lg()
        a("s_waitcnt lgkmcnt(0)")
        a(f"s_add_u32 {sE}, {sE}, 1\ns_and_b32 {sTAG8}, {sE}, 0xff\ns_mul_i32 {sTAG}, {sE}, 0x9e3779b1\ns_xor_b32 {sTAG}, {sTAG}, 0x5bd1e995")
        def fs(off):
            L = a.label("Lfs")
            a(f"s_cmp_lg_u32 {sWV}, 3\ns_cbranch_scc1 {L}")
            a(f"s_getreg_b32 s65, hwreg(HW_REG_XCC_ID)\ns_and_b32 s65, s65, 15\ns_add_u32 s65, s65, {sTAG}")
            a(f"s_lshl_b32 s64, {sX}, 5\ns_add_u32 s64, s64, {sR}\ns_lshl_b32 s64, s64, 7\ns_add_u32 s64, s64, {off}")
            a(f"v_mov_b32 v{T0}, {sTAG}\nv_mov_b32 v{T0+1}, s65\nv_mov_b32 v{T0+2}, {sTAG}\nv_mov_b32 v{T0+3}, s65\ns_mov_b64 exec, 0xff")
            a(f"buffer_store_dwordx4 {vr(T0)}, {vL16}, {WS}, s64 offen sc1", "_untracked")
            a("s_mov_b64 exec, -1")
            a(f"{L}:")
        self.fs = fs
        a(f"s_getreg_b32 s65, hwreg(HW_REG_XCC_ID)\ns_and_b32 s65, s65, 15\ns_add_u32 {sTAGX}, s65, {sTAG}")
        if "far" in self.exp: a(f"s_and_b32 s65, s2, 15\ns_add_u32 {sTAGX}, s65, {sTAG}")
        if barrier: a("s_barrier")

    def build(self):
        a = self.a
        a("s_cmp_ge_u32 s2, 256\ns_cbranch_scc1 L_end")
        a("s_load_dwordx16 s[4:19], s[0:1], 0")
        a("s_getpc_b64 s[66:67]\nL_pc:")
        a(f"v_and_b32 {vLANE}, 63, v0\nv_lshrrev_b32 {vG}, 6, v0")
        a(f"s_and_b32 {sX}, s2, 7\ns_lshr_b32 {sR}, s2, 3")
        a(f"v_readfirstlane_b32 {sWV}, {vG}")
        a(f"s_lshl_b32 s64, {sR}, 11\nv_lshlrev_b32 v{T0}, 2, v0\nv_add_u32 v{T0}, s64, v{T0}")
        a(f"v_min_u32 v{T0}, L_code_end-L_pc-4, v{T0}")
        a(f"global_load_dword {DUMMY}, v{T0}, s[66:67]", "code")
        a(f"v_lshlrev_b32 {vL16}, 4, {vLANE}\nv_lshrrev_b32 {vG}, 4, {vLANE}\nv_and_b32 {vJ}, 15, {vLANE}")
        a(f"s_and_b32 {sW}, {sWV}, 3\ns_lshl_b32 {sWK}, {sW}, 10")
        a(f"v_mov_b32 {vSTAMP}, 0")
        a(f"s_lshr_b32 {sM}, {sR}, 2\ns_and_b32 {sJ}, {sR}, 3")
        a(f"s_cmp_ge_u32 {sR}, 9\ns_cselect_b32 {sMT}, 1, 0\ns_mul_i32 s64, {sMT}, 9\ns_sub_u32 {sNT}, {sR}, s64")
        a(f"s_cmp_ge_u32 {sR}, {NACT}\ns_cbranch_scc1 L_repack")
        a(f"s_cmp_ge_u32 {sWV}, 4\ns_cbranch_scc1 L_h_act")
        self.c_phaseA()
        a("s_branch L_c_mlp")
        a("L_h_act:")
        self.reset(0); a.vm = ["code"]
        self.h_phaseA()
        a("s_branch L_h_mlp")
        a("L_repack:")
        self.reset(0); a.vm = ["code"]
        self.repack()
        a("L_split:")
        a(f"s_cmp_ge_u32 {sWV}, 4\ns_cbranch_scc1 L_h_mlp")
        a("L_c_mlp:")
        a("s_waitcnt lgkmcnt(0)")
        self.reset(24); a.vm = ["old"] * 4
        if self.stop > 2: self.c_mlp()
        a("s_branch L_fin")
        a("L_h_mlp:")
        a("s_waitcnt lgkmcnt(0)")
        self.reset(24); a.vm = ["old"] * 4
        self.h_mlp()
        a("L_fin:")
        self.reset(63)
        if self.stamps:
            self.stamp()
            a(f"s_lshl_b32 s64, s2, 3\ns_add_u32 s64, s64, {sWV}\ns_lshl_b32 s64, s64, 8\ns_add_u32 s64, s64, {STAMP_OFF}")
            a(f"v_lshlrev_b32 v{T0}, 2, {vLANE}")
            a(f"buffer_store_dword {vSTAMP}, v{T0}, {WS}, s64 offen")
        a("L_end:\ns_endpgm")
        a.flush_deferred()
        a("L_code_end:")
        return self.wrap(a.text())

    def kernarg_wait(self):
        a = self.a
        a("s_waitcnt lgkmcnt(0)")
        a(f"s_load_dword {sE}, s[18:19], 0")

    STEPS = (((0,), (0, 1)), ((1,), (2, 3)), ((2, 3), (4, 5)), ((4, 5, 6), (6, 7)), ((7, 8), (8, 9, 10)), ((), (11, 12, 13, 14, 15, 16, 17)))
    def ctr_issue(self, grp, dst):
        self.a(f"ds_read_b128 {vr(dst)}, {vSCR} offset:{16*grp}", f"ctrp{dst}")
    def ctr_check(self, grp, dst, val, tmp=None):
        a = self.a
        a.wait_lg(f"ctrp{dst}")
        a(f"v_min_u32 v{dst}, v{dst}, v{dst+1}\nv_min3_u32 v{dst}, v{dst}, v{dst+2}, v{dst+3}")
        a(f"v_readfirstlane_b32 s64, v{dst}")
        a(f"s_cmp_ge_u32 s64, {val}")
        a.slow(lambda: self.wait_ctr(grp, val, tmp=tmp))
    def c_phaseA(self):
        a = self.a
        def XF(t, s): return BF0 + 72 * t + 4 * s
        HF = BF0
        t0, t1, t2 = f"v{T0}", f"v{T0+1}", f"v{T0+2}"
        CT = T0 + 8
        ACC = ACC0; CS = ACC0 + 16; SUM = ACC0 + 24; GR = ACC0 + 28; OB = ACC0 + 32; XR = ACC0 + 36; KR = ACC0 + 44; PK = ACC0 + 16
        vXB = [[f"v{ACC0+52+2*t+q}" for q in range(2)] for t in range(2)]
        vT = [[f"v{ACC0+56+2*f+h}" for h in range(2)] for f in range(2)]
        vBP = [f"v{ACC0+60}", f"v{ACC0+61}"]
        vXR = [f"v{T0+4+i}" for i in range(4)]
        a(f"s_lshl_b32 s69, {sX}, 3\ns_lshl_b32 s64, {sMT}, 2\ns_add_u32 s69, s69, s64\ns_add_u32 s69, s69, {sW}")
        a(f"v_lshlrev_b32 {t0}, 6, {vLANE}")
        a(f"s_lshl_b32 s64, {sR}, 2\ns_add_u32 s64, s64, {sW}\ns_lshl_b32 s70, s64, 12\ns_add_u32 s70, s70, {3*32*1152}")
        self.kernarg_wait()
        self.srd(W1, 6, 663552)
        self.stamp()
        a(f"buffer_load_dword {DUMMY}, {t0}, {W1}, s70 offen", "pf")
        if "wstlb" in self.exp:
            a(f"v_mov_b32 {t1}, 256")
            a(f"global_load_dword {DUMMY}, {t1}, s[18:19]", "pf")
        self.srd(X, 4, 1179648); self.srd(W3, 10, 5308416); self.srd(W4, 12, 5308416)
        self.common_late()
        for i in range(4): a(f"v_mov_b32 v{OB+i}, 0x3f803f80")
        a(f"s_and_b32 s68, {sW}, 1\ns_lshr_b32 s67, {sW}, 1")
        a(f"v_lshlrev_b32 {t0}, 7, {vJ}\nv_lshrrev_b32 {t1}, 1, {vJ}")
        for t in range(2):
            a(f"s_xor_b32 s64, {sW}, {t}\ns_lshl_b32 s64, s64, 11\ns_add_u32 s64, s64, {72*1024}")
            for par in range(2):
                a(f"v_add_u32 {t2}, {4*par}, {vG}\nv_xor_b32 {t2}, {t2}, {t1}\nv_lshl_add_u32 {t2}, {t2}, 4, {t0}\nv_add_u32 {vXB[t][par]}, s64, {t2}")
        a(f"v_lshrrev_b32 {t0}, 2, {vLANE}\nv_lshlrev_b32 {t0}, 7, {t0}\nv_and_b32 {t1}, 3, {vLANE}\nv_lshl_add_u32 {t0}, {t1}, 3, {t0}\nv_bfe_u32 {t1}, {vLANE}, 3, 2")
        for f in range(2):
            a(f"s_xor_b32 s64, s67, {f}\ns_lshl_b32 s65, s68, 1\ns_add_u32 s64, s64, s65")
            a(f"v_xor_b32 {t2}, s64, {t1}\nv_lshl_add_u32 {vT[f][0]}, {t2}, 5, {t0}\nv_add_u32 {vT[f][1]}, {9*4096}, {vT[f][0]}")
        a(f"s_lshl_b32 s64, {sW}, 11\ns_lshl_b32 s65, {sNT}, 13\ns_add_u32 s64, s64, s65\ns_add_u32 s64, s64, {72*1024}")
        a(f"v_lshlrev_b32 {t0}, 7, {vJ}\nv_add_u32 {t0}, s64, {t0}\nv_and_b32 {t1}, 1, {vG}\nv_lshl_add_u32 {t0}, {t1}, 3, {t0}")
        a(f"v_lshrrev_b32 {t1}, 1, {vJ}\nv_lshrrev_b32 {t2}, 1, {vG}\nv_xor_b32 {t1}, {t1}, {t2}")
        for u in range(4): a(f"v_xor_b32 {t2}, {2*u}, {t1}\nv_lshl_add_u32 {vXR[u]}, {t2}, 4, {t0}")
        a(f"s_mul_i32 s64, s69, 18\ns_lshl_b32 s65, {sNT}, 1\ns_add_u32 s64, s64, s65\ns_lshl_b32 s77, s64, 10")
        a(f"s_lshl_b32 s64, s68, 10\ns_add_u32 s72, s77, s64")
        a(f"s_mul_i32 s64, s68, {2*18432}\ns_sub_u32 s73, s72, s64\ns_add_u32 s73, s73, 18432")
        a(f"s_lshr_b32 s64, s69, 1\ns_lshl_b32 s76, s64, 12")
        a(f"s_mul_i32 s64, s68, 9\ns_add_u32 s64, s64, {sNT}\ns_lshl_b32 s64, s64, 7\ns_add_u32 s75, s64, s76")
        a(f"s_lshl_b32 s64, {sNT}, 1\ns_add_u32 s64, s64, s68\ns_lshl_b32 s64, s64, 7\ns_add_u32 s71, s64, s76\ns_add_u32 s71, s71, {F1_OFF}")
        a(f"s_mul_i32 s74, s69, 18432")
        MS = [[f"s[{92+4*u+2*t}:{93+4*u+2*t}]" for t in range(2)] for u in range(2)]
        MO = [["s[100:101]", "s[78:79]"], ["s[0:1]", "vcc"]]
        for u in range(2):
            a(f"s_lshl_b32 s64, {sNT}, 2\ns_lshl_b32 s65, s68, 1\ns_add_u32 s64, s64, s65\ns_add_u32 s64, s64, {u}\ns_mul_i32 s64, s64, 7282\ns_lshr_b32 s64, s64, 16")
            a(f"s_lshr_b32 s65, s64, 1\ns_add_u32 s65, s65, 1\ns_sub_u32 s66, 0, s65\ns_bitcmp1_b32 s64, 0\ns_cselect_b32 s65, s66, s65")
            a(f"v_subrev_u32 {t0}, s65, {vJ}")
            a(f"v_and_b32 {t1}, 15, {t0}\nv_lshl_add_u32 {t1}, {vG}, 4, {t1}\nv_lshlrev_b32 {vBP[u]}, 2, {t1}")
            a(f"v_cmp_gt_u32 {MS[u][0]}, 16, {t0}")
            for t in range(2):
                a(f"s_xor_b32 s64, s68, {t}\ns_lshl_b32 s64, s64, 4\nv_add_u32 {t1}, s64, {t0}")
                dst = MS[u][1] if t == 0 else ("s[100:101]" if u == 0 else "s[78:79]")
                a(f"v_cmp_gt_u32 {dst}, 32, {t1}")
        VAL = [[MS[0][1], "s[100:101]"], [MS[1][1], "s[78:79]"]]
        def xread(t, k):
            off = 8192 * (k >> 1)
            if off < 65536: a(f"ds_read_b128 {vr(XF(t,k))}, {vXB[t][k&1]} offset:{off}", f"x{t}_{k}")
            else:
                a(f"v_add_u32 v0, {off}, {vXB[t][k&1]}")
                a(f"ds_read_b128 {vr(XF(t,k))}, v0", f"x{t}_{k}")
        order = [(s, f) for s in range(18) for f in range(2)]
        step_of = {s: i for i, (xl, kk) in enumerate(self.STEPS) for s in kk}
        first_n = {i: 2 * kk[0] for i, (xl, kk) in enumerate(self.STEPS)}
        fr = {}; st = {"done": -1, "nxt": 0}
        xq = []; statq = []
        LOOK = 5
        def xr():
            t, k = xq.pop(0); xread(t, k)
            if t == 0: statq.append(k)
        def half(h):
            n = st["nxt"]; s, f = order[n]
            if h == 0:
                i = step_of[s]
                if i > st["done"]:
                    if i == 0: self.wait_ctr(1, 1, sleep=0, tmp=CT); self.stamp()
                    else: self.ctr_check(1, CT, i + 1, tmp=CT)
                    st["done"] = i
                    xq.extend((t, 2 * L + q) for L in self.STEPS[i][0] for q in range(2) for t in range(2))
                while xq and xq[0][1] <= s: xr()
                fr[n] = self.next_af()
            a(f"ds_read_b64_tr_b16 {vr(fr[n]+2*h,2)}, {vT[f][0 if s < 9 else 1]} offset:{(s%9)*4096+2048*h}", f"f{n}")
            if h == 1:
                st["nxt"] += 1
                i = step_of[s]
                if i + 1 < len(self.STEPS) and n == first_n[i + 1] - 2: self.ctr_issue(1, CT)
        for n in range(4): half(0); half(1)
        vS, vQ = f"v{SUM}", f"v{GR}"
        q = Asm(); self.a = q
        q(f"v_and_b32 {t0}, 3, {vJ}")
        for r in range(1, 4):
            q(f"v_cmp_eq_u32 vcc, {r}, {t0}")
            q(f"v_cndmask_b32 {vQ}, {vQ}, v{GR+r}, vcc")
        q(f"v_lshrrev_b32 {t0}, 2, {vJ}\nv_cmp_eq_u32 vcc, {t0}, {vG}")
        q(f"v_cndmask_b32 {vQ}, 0, {vQ}, vcc")
        self.xlane_sum(vQ, t0)
        self.ln_consts(vS, vQ, [f"v{KR+i}" for i in range(4)], t0)
        q(f"s_lshl_b32 s65, {sW}, 8\ns_add_u32 s65, s65, {KC_OFF}\nv_lshl_add_u32 {vXR[0]}, {vJ}, 4, s65\nv_xor_b32 {vXR[1]}, 256, {vXR[0]}")
        q(f"ds_write_b128 {vXR[0]}, {vr(KR)}")
        q(f"s_lshl_b32 s65, {sW}, 6\nv_lshl_add_u32 {vXR[2]}, {vG}, 4, {vSCR}\nv_add_u32 {vXR[2]}, s65, {vXR[2]}\nv_xor_b32 {vXR[3]}, 128, {vXR[2]}")
        self.a = a
        fill = [i.text for i in q.ins]
        nstat = 0; ready = None
        def slot():
            if xq:
                xr()
                if xq: xr()
            elif ready is not None and fill: a(fill.pop(0), "kw")
        for n, (s, f) in enumerate(order):
            a.wait_lg([f"f{n}", f"x0_{s}", f"x1_{s}"])
            go = st["nxt"] < len(order)
            for t in range(2):
                a(f"{MFMA} {vr(ACC+8*f+4*t)}, {vr(fr[n])}, {vr(XF(t,s))}, {'0' if s == 0 else vr(ACC+8*f+4*t)}")
                if go: half(t)
                else: slot()
                if t == 0: slot()
            if f == 0:
                a(f"{MFMA} {vr(CS)}, {vr(fr[n])}, {vr(OB)}, {'0' if s == 0 else vr(CS)}")
                slot()
            for _ in range(2):
                if len(statq) > (1 if xq else 0):
                    k = statq.pop(0)
                    a.wait_lg(f"x0_{k}")
                    a(f"{MFMA} {vr(SUM)}, {vr(OB)}, {vr(XF(0,k))}, {'0' if k == 0 else vr(SUM)}")
                    slot(); slot()
                    a(f"{MFMA} {vr(GR)}, {vr(XF(0,k))}, {vr(XF(0,k))}, {'0' if k == 0 else vr(GR)}")
                    slot()
                    nstat += 1
            if st["done"] >= 4 and not xq and "xr" not in st:
                for uu in range(4): a(f"ds_read_b64 {vr(XR+2*uu,2)}, {vXR[uu]}", "xr")
                st["xr"] = n
            if "xr" in st and n == st["xr"] + 1:
                a.wait_lg("xr"); self.signal(1)
            if nstat == 18 and ready is None:
                ready = n
                self.stamp()
        while fill: a(fill.pop(0), "kw")
        a(f"ds_write_b128 {vXR[2]}, {vr(CS)} offset:{CS3_OFF}", "csw")
        self.signal(2)
        self.stamp()
        TB = XF(0, 0)
        self.gelu_pk([(ACC, CS, KR)], TB)
        self.wait_ctr(0, 2, sleep=0)
        a(f"ds_read_b128 {vr(KR+4)}, {vXR[1]}", "rk")
        a(f"ds_read_b128 {vr(CS+4)}, {vXR[3]} offset:{CS3_OFF}", "rk")
        a.wait_lg()
        self.signal(3)
        self.gelu_pk([(ACC + 4, CS, KR + 4), (ACC + 8, CS + 4, KR), (ACC + 12, CS + 4, KR + 4)], TB)
        P = TB + 20; R = TB + 28; O = KR
        for f in range(2):
            for t in range(2):
                for d in range(2): a(f"v_cvt_pk_bf16_f32 v{P+4*f+2*t+d}, v{ACC+8*f+4*t+2*d}, v{ACC+8*f+4*t+2*d+1}")
        L = a.label("Lsw")
        a(f"s_cmp_eq_u32 s67, 0\ns_cbranch_scc1 {L}")
        for e in range(4): a(f"v_swap_b32 v{P+e}, v{P+4+e}")
        a(f"{L}:")
        for u in range(2):
            for e in range(4): a(f"ds_bpermute_b32 v{R+4*u+e}, {vBP[u]}, v{P+4*u+e}", "bp")
        a.wait_lg()
        for t in range(2):
            for u in range(2):
                for d in range(2):
                    o = O + 4 * t + 2 * u + d
                    a(f"v_cndmask_b32 v{o}, v{R+4*u+2*(1-t)+d}, v{R+4*u+2*t+d}, {MS[u][0]}")
                    a(f"v_cndmask_b32 v{o}, 0, v{o}, {VAL[u][t]}")
            a(f"buffer_store_dwordx4 {vr(O+4*t)}, {vL16}, {HS}, {'s72' if t == 0 else 's73'} offen", "hst")
        self.stamp()
        vT2 = [[f"v{ACC0+52+2*u+h}" for h in range(2)] for u in range(4)]; vSH = f"v{ACC0+60}"
        a(f"v_lshrrev_b32 {t0}, 2, {vLANE}\nv_lshlrev_b32 {t0}, 7, {t0}\nv_and_b32 {t1}, 3, {vLANE}\nv_lshl_add_u32 {t0}, {t1}, 3, {t0}\nv_bfe_u32 {t1}, {vLANE}, 3, 2\nv_add_u32 {t0}, {72*1024}, {t0}")
        for u in range(4): a(f"v_xor_b32 {t2}, {u}, {t1}\nv_lshl_add_u32 {vT2[u][0]}, {t2}, 5, {t0}\nv_add_u32 {vT2[u][1]}, {9*4096}, {vT2[u][0]}")
        a(f"v_add_u32 {vSH}, s74, {vL16}")
        self.set_flag("s71", "near")
        a(f"s_add_u32 s72, s72, {FAR}\ns_add_u32 s73, s73, {FAR}")
        a("s_mov_b32 s70, 0")
        def far_st(tag):
            for t in range(2): a(f"buffer_store_dwordx4 {vr(O+4*t)}, {vL16}, {HS}, {'s72' if t == 0 else 's73'} offen sc1", tag)
        def far_copy():
            far_st("hfar")
            self.set_flag("s71", "far")
            a("s_mov_b32 s70, 1")
        self.stamp()
        order = [(s, u) for s in range(18) for u in range(4)]
        pool = [BF0 + 72 + 4 * i for i in range(18)] + [AF0 + 4 * i for i in range(6)]
        fr = {}; nx = [0]
        def rd2():
            n = nx[0]; s, u = order[n]
            fr[n] = self.read_tr(vT2[u][0 if s < 9 else 1], (s % 9) * 4096, f"f{n}", dst=pool.pop(0)); nx[0] += 1
        self.wait_ctr(1, 7, sleep=0)
        while pool: rd2()
        a(f"s_add_u32 s64, s76, {F1_OFF}")
        self.poll2("s64", vFLG, True, hook=far_copy)
        a(f"v_add_u32 {vSH}, s67, {vSH}")
        self.stamp()
        for s in range(18):
            a(f"buffer_load_dwordx4 {vr(HF+4*s)}, {vSH}, {HS}, {sC[s>>2]} offen offset:{(s&3)*1024} sc1", f"h{s}")
        far_st("hfar")
        self.stamp()
        for n, (s, u) in enumerate(order):
            if u == 0: a.wait_vm(f"h{s}")
            a.wait_lg(f"f{n}")
            a(f"{MFMA} {vr(ACC+4*u)}, {vr(fr[n])}, {vr(HF+4*s)}, {'0' if s == 0 else vr(ACC+4*u)}")
            pool.append(fr[n])
            if nx[0] < len(order): rd2()
        self.signal(4)
        self.stamp()
        vS, vQ = f"v{SUM}", f"v{SUM+1}"
        a(f"v_mov_b32 {vS}, 0\nv_mov_b32 {vQ}, 0")
        a(f"s_add_u32 s64, s77, {X1_OFF}")
        for d in range(8):
            t3 = f"v{T0+3}"
            a(f"v_cvt_pk_bf16_f32 {t0}, v{ACC+2*d}, v{ACC+2*d+1}")
            a(f"v_lshlrev_b32 {t1}, 16, {t0}\nv_and_b32 {t0}, 0xffff0000, {t0}")
            a(f"v_lshlrev_b32 {t2}, 16, v{XR+d}\nv_and_b32 {t3}, 0xffff0000, v{XR+d}")
            a(f"v_add_f32 {t1}, {t1}, {t2}\nv_add_f32 {t0}, {t0}, {t3}")
            a(f"v_cvt_pk_bf16_f32 v{PK+d}, {t1}, {t0}")
            if d & 3 == 3: a(f"buffer_store_dwordx4 {vr(PK+d-3)}, {vL16}, {WS}, s64 offen offset:{1024*(d>>2)} sc1", "x1st")
        for d in range(8):
            a(f"v_dot2_f32_bf16 {vS}, v{PK+d}, v{OB}, {vS}")
            a(f"v_dot2_f32_bf16 {vQ}, v{PK+d}, v{PK+d}, {vQ}")
        self.xlane_sum(vS, t0); self.xlane_sum(vQ, t0)
        a(f"s_lshr_b32 s64, s69, 1\ns_mul_i32 s64, s64, 12\ns_add_u32 s64, s64, {sNT}\ns_lshl_b32 s64, s64, 8")
        a(f"s_and_b32 s65, s69, 1\ns_lshl_b32 s65, s65, 7\ns_add_u32 s64, s64, s65\ns_add_u32 s64, s64, {ST_OFF}")
        a(f"v_lshlrev_b32 {t0}, 3, {vJ}")
        a("s_mov_b64 exec, 0xffff")
        a(f"buffer_store_dwordx2 {vr(SUM,2)}, {t0}, {WS}, s64 offen sc1", "x1st")
        a("s_mov_b64 exec, -1")
        self.stamp()
        a(f"s_add_u32 s64, s75, {F2_OFF}")
        self.set_flag("s64", "sc1")
        self.set_flag("s71", "far", "none")
        self.signal(5)
        self.stamp()

    def h_phaseA(self):
        a = self.a
        vD1, vD2, vDX, vDX2 = "v48", "v49", "v50", "v51"
        vXB = [f"v{52+e}" for e in range(4)]; OB = 56; SUM = 60; GR = 64; KR = 68; XH = 112
        t0, t1, t2 = f"v{T0}", f"v{T0+1}", f"v{T0+2}"
        ks = 32 * 1152
        a(f"s_lshl_b32 s69, {sX}, 3\ns_lshl_b32 s64, {sMT}, 2\ns_add_u32 s69, s69, s64\ns_add_u32 s69, s69, {sW}\ns_mul_i32 s71, s69, 18432")
        a(f"v_lshrrev_b32 {t0}, 3, {vLANE}\nv_lshrrev_b32 {t1}, 4, {vLANE}\nv_and_b32 {t2}, 7, {vLANE}\nv_xor_b32 {t1}, {t1}, {t2}")
        a(f"v_mul_u32_u24 {vDX}, 1152, {t0}\nv_lshl_add_u32 {vDX}, {t1}, 4, {vDX}")
        a(f"v_xor_b32 {vDX2}, 64, {vDX}\nv_add_u32 {vDX2}, {8*1152}, {vDX2}")
        a(f"s_lshl_b32 s64, {sW}, 3\nv_add_u32 {t0}, s64, {t0}")
        a(f"v_and_b32 {t1}, 6, {t0}\nv_xor_b32 {t1}, {t1}, {t2}\nv_lshlrev_b32 {t1}, 4, {t1}")
        a(f"v_mul_u32_u24 {vD2}, 1152, {t0}\nv_add_u32 {vD2}, {vD2}, {t1}")
        a(f"v_and_b32 {t2}, 12, {t0}\nv_lshlrev_b32 {t2}, 1, {t2}\nv_and_b32 {vD1}, 3, {t0}\nv_add_u32 {t2}, {t2}, {vD1}")
        a(f"v_lshrrev_b32 {t0}, 4, {t0}\nv_lshl_add_u32 {t0}, {t0}, 2, {t2}")
        a(f"v_mul_u32_u24 {vD1}, 1152, {t0}\nv_add_u32 {vD1}, {vD1}, {t1}")
        a(f"s_lshl_b32 s79, {sNT}, 7\ns_mov_b32 s70, s79\ns_lshl_b32 s72, {sW}, 11\ns_add_u32 s72, s72, {72*1024}")
        self.kernarg_wait()
        self.srd(X, 4, 1179648); self.srd(W1, 6, 663552)
        self.stamp()
        NS = len(self.STEPS)
        for i, (xl, kk) in enumerate(self.STEPS):
            for L in xl:
                a(f"s_add_u32 m0, s72, {8192*L}")
                a(f"buffer_load_dwordx4 {vDX}, {X}, s71 offen lds", f"ld{i}")
                a(f"s_add_u32 m0, s72, {8192*L+1024}")
                a(f"buffer_load_dwordx4 {vDX2}, {X}, s71 offen lds", f"ld{i}")
                a(f"s_add_u32 s71, s71, 128")
            for s in kk:
                a(f"s_add_u32 m0, {sWK}, {4096*s}")
                a(f"buffer_load_dwordx4 {vD1}, {W1}, s70 offen lds", f"ld{i}")
                a(f"s_add_u32 s70, s70, {ks}")
            if i == 0:
                self.srd(W3, 10, 5308416); self.srd(W4, 12, 5308416)
                self.common_late()
            if i >= 1:
                a.wait_vm(f"ld{i-1}"); self.signal(i)
            if i < 2: self.stamp()
        a.wait_vm(f"ld{NS-1}"); self.signal(NS)
        self.stamp()
        self.wait_ctr(0, 1, sleep=1)
        a(f"s_mov_b32 s70, s79")
        for s in range(18):
            a(f"s_add_u32 m0, {sWK}, {72*1024+4096*s}")
            a(f"buffer_load_dwordx4 {vD2}, {W2}, s70 offen lds", "w2")
            a(f"s_add_u32 s70, s70, {ks}")
        a.wait_vm("w2")
        self.signal(7)
        self.stamp()

    def repack(self):
        a = self.a
        a(f"s_sub_u32 s67, {sR}, {NACT}\ns_lshl_b32 s68, s67, 3\ns_add_u32 s68, s68, {sWV}")
        a(f"s_lshl_b32 s69, {sWV}, 13")
        vR, vCK = "v48", "v49"
        a(f"v_lshrrev_b32 {vR}, 3, {vLANE}")
        a(f"v_and_b32 v{T0}, 6, {vR}\nv_and_b32 {vCK}, 7, {vLANE}\nv_xor_b32 {vCK}, {vCK}, v{T0}\nv_lshlrev_b32 {vCK}, 4, {vCK}")
        a(f"s_lshl_b32 s70, s68, 10\ns_and_b32 s71, s70, 0x7fff\ns_add_u32 s71, s71, {112*1024}\ns_mul_i32 s72, {sX}, 147456")
        self.kernarg_wait()
        self.srd(X, 4, 1179648); self.srd(W1, 6, 663552); self.srd(W2, 8, 663552)
        self.stamp()
        DUM = vr(252)
        a(f"s_add_u32 s64, s70, s72")
        a(f"buffer_load_dwordx4 {DUM}, {vL16}, {X}, s64 offen", "pf")
        a(f"s_add_u32 s64, s71, s72")
        a(f"buffer_load_dwordx4 {DUM}, {vL16}, {X}, s64 offen", "pf")
        a(f"s_add_u32 s64, s70, {11*32*1152}")
        for i in range(3):
            a(f"buffer_load_dwordx4 {DUM}, {vL16}, {W1}, s64 offen", "pf")
            a(f"s_add_u32 s64, s64, {112*1024}")
        self.srd(W3, 10, 5308416); self.srd(W4, 12, 5308416)
        self.common_late()
        a.wait_vm()
        a(f"v_lshlrev_b32 v{T0}, 6, {vLANE}\ns_lshl_b32 s64, s68, 12\ns_add_u32 s65, s64, s72\ns_add_u32 s65, s65, {H_OFF}")
        a(f"s_lshl_b32 s66, {sX}, 14\ns_add_u32 s66, s66, s64\ns_add_u32 s66, s66, {F1_OFF-36*4096}")
        a(f"s_cmp_lt_u32 s68, 36\ns_cselect_b32 s65, s65, s66\ns_cmp_ge_u32 s68, 40\ns_cselect_b32 s65, 0, s65")
        a(f"buffer_load_dword {DUMMY}, v{T0}, {WS}, s65 offen sc1", "pf")
        for i in range(6):
            a(f"buffer_load_dwordx4 {DUM}, {vL16}, {W2}, s70 offen", "pf")
            a(f"s_add_u32 s70, s70, {112*1024}")
        a("s_barrier")
        Lno = a.label("Lnj")
        a(f"s_mul_i32 s64, {sWV}, 14\ns_add_u32 s64, s64, s67\ns_cmp_ge_u32 s64, 81\ns_cbranch_scc1 {Lno}")
        vm0 = list(a.vm)
        a(f"s_mul_i32 s70, s64, 7282\ns_lshr_b32 s70, s70, 16\ns_mul_i32 s65, s70, 9\ns_sub_u32 s71, s64, s65")
        a(f"s_mul_i32 s66, s70, {64*9216}\ns_mul_i32 s64, {sX}, 1152\ns_add_u32 s66, s66, s64\ns_lshl_b32 s64, s71, 7\ns_add_u32 s66, s66, s64")
        a(f"v_mul_u32_u24 v{T0}, 9216, {vR}\nv_add_u32 v{T0}, v{T0}, {vCK}")
        for i in range(8):
            a(f"s_add_u32 m0, s69, {i*1024}")
            a(f"buffer_load_dwordx4 v{T0}, {W3}, s66 offen nt lds", "job")
            a(f"s_add_u32 s66, s66, {8*9216}")
        vT = [f"v{52+i}" for i in range(4)]
        self.tr_bases(vT, "s69")
        for i in range(4): a(f"v_mov_b32 v{136+i}, 0x3f803f80")
        a(f"s_mul_i32 s64, {sX}, 9\ns_add_u32 s64, s64, s70\ns_mul_i32 s64, s64, 2304\ns_lshl_b32 s65, s71, 8\ns_add_u32 s64, s64, s65\ns_add_u32 s72, s64, {CSP_OFF}")
        a(f"v_mov_b32 v{T0+4}, {sTAG8}\ns_mov_b32 s73, 0xff")
        a.wait_vm("job")
        self.stamp()
        for kk in range(2):
            for uu in range(4): self.read_tr(vT[uu], kk * 4096, f"r{kk}{uu}", dst=56 + 16 * kk + 4 * uu)
        for kk in range(2):
            for uu in range(4):
                a.wait_lg(f"r{kk}{uu}")
                a(f"{MFMA} {vr(140+4*uu)}, {vr(56+16*kk+4*uu)}, {vr(136)}, {'0' if kk == 0 else vr(140+4*uu)}")
        for uu in range(1, 4):
            a(f"v_cmp_eq_u32 vcc, {uu}, {vJ}")
            for e in range(4): a(f"v_cndmask_b32 v{140+e}, v{140+e}, v{140+4*uu+e}, vcc")
        for e in range(4): a(f"v_bfi_b32 v{140+e}, s73, v{T0+4}, v{140+e}")
        a(f"v_lshlrev_b32 v{T0}, 4, {vG}\nv_lshl_add_u32 v{T0}, {vJ}, 6, v{T0}")
        a("s_mov_b32 exec_lo, 0x000f000f\ns_mov_b32 exec_hi, 0x000f000f")
        a(f"buffer_store_dwordx4 {vr(140)}, v{T0}, {WS}, s72 offen sc1", "st")
        a("s_mov_b64 exec, -1")
        a(f"{Lno}:")
        a.vm = vm0; a.lg = []
        self.nst = 2
        self.signal(10)
        L4 = a.label("Lp4")
        a(f"s_cmp_ge_u32 {sWV}, 4\ns_cbranch_scc1 {L4}")
        self.wait_ctr(1, 13, sleep=4)
        a(f"s_lshl_b32 s64, s67, 2\ns_add_u32 s64, s64, {sW}\ns_lshl_b32 s64, s64, 10\ns_mul_i32 s65, {sX}, 663552\ns_add_u32 s66, s64, s65")
        for i in range(12):
            if i == 11: a(f"s_and_b32 s64, s64, 0x7fff\ns_add_u32 s66, s64, s65\ns_add_u32 s66, s66, {616*1024}")
            a(f"buffer_load_dwordx4 {vr(252)}, {vL16}, {W4}, s66 offen", "_untracked")
            a(f"s_add_u32 s66, s66, {56*1024}")
        a(f"{L4}:")
        self.stamp()

    def load_stats(self, tt, R):
        a = self.a
        va, vb = f"v{R+6}", f"v{R+7}"
        a(f"v_lshl_add_u32 {va}, {vG}, 5, {vJ}\nv_lshlrev_b32 {va}, 3, {va}\nv_mov_b32 {vb}, 0x40000000")
        a(f"v_cmp_eq_u32 vcc, 0, {vG}\nv_cndmask_b32 {vb}, {vb}, {va}, vcc")
        a(f"s_lshl_b32 s64, {sM}, 2\ns_add_u32 s64, s64, {sW}\ns_mul_i32 s64, s64, 3072\ns_add_u32 s64, s64, {ST_OFF}")
        for q in range(3):
            a(f"buffer_load_dwordx2 {vr(R+2*q,2)}, {va if q < 2 else vb}, {WS}, s64 offen offset:{1024*q+128*tt} sc1", "st")
    def finish_stats(self, K, R):
        a = self.a
        a.wait_vm("st")
        for c in range(2):
            a(f"v_add_f32 v{R+c}, v{R+c}, v{R+2+c}\nv_add_f32 v{R+c}, v{R+c}, v{R+4+c}")
            self.xlane_sum(f"v{R+c}", f"v{T0}")
        self.ln_consts(f"v{R}", f"v{R+1}", K, f"v{T0}")
    def h3_base(self, dst):
        self.a(f"s_lshl_b32 s64, {sM}, 3\ns_lshl_b32 s65, {sW}, 1\ns_add_u32 s64, s64, s65\ns_lshl_b32 s64, s64, 3\ns_add_u32 s64, s64, {sX}")
        self.a(f"s_mul_i32 s64, s64, 18432\ns_add_u32 {dst}, s64, {H3_OFF}")
    def f3_base(self, dst):
        self.a(f"s_lshl_b32 s64, {sM}, 3\ns_add_u32 s64, s64, {sX}\ns_lshl_b32 s64, s64, 2\ns_add_u32 s64, s64, {sW}\ns_lshl_b32 s64, s64, 10\ns_add_u32 {dst}, s64, {F3_OFF}")

    def gelu_tile(self, acc, CSB, K, dst, vo, vo8, sPair, sSingle, sFlag, between=None):
        a = self.a
        t1 = f"v{T0+1}"
        a(f"v_lshl_add_u32 v0, {vG}, 4, {vSCR}")
        for u in range(2): a(f"ds_read_b128 {vr(CSB+4*u)}, v0 offset:{CS3_OFF+64*u}", f"cs{u}")
        for u in range(9):
            a.wait_lg(f"cs{u}")
            self.gelu4(acc(u), CSB + 4 * (u & 1), K, T0)
            if u + 2 < 9:
                a(f"v_lshl_add_u32 v0, {vG}, 4, {vSCR}")
                a(f"ds_read_b128 {vr(CSB+4*(u&1))}, v0 offset:{CS3_OFF+64*(u+2)}", f"cs{u+2}")
            p = u >> 1
            for d in range(2): a(f"v_cvt_pk_bf16_f32 v{dst(p)+2*(u&1)+d}, v{acc(u)+2*d}, v{acc(u)+2*d+1}")
            if u & 1: a(f"buffer_store_dwordx4 {vr(dst(p))}, {vo}, {WS}, {sPair} offen offset:{1024*p} sc1", f"h3_{p>>1}")
            if u == 8: a(f"buffer_store_dwordx2 {vr(dst(4),2)}, {vo8}, {WS}, {sSingle} offen sc1", "h3_1")
            if between: between(u)
            if u == 8: self.set_flag(sFlag, "both", "h3_0")
    def c_mlp(self):
        a = self.a
        t0, t1 = f"v{T0}", f"v{T0+1}"
        vX2, vH2, vF3, vEX = (f"v{T0+4+i}" for i in range(4))
        vA = ["v5", "v6", "v8"]
        CT = T0
        ACC = 40
        vL8 = [vX2, DUMMY]
        def B(k, tt): return BF0 + 8 * k + 4 * tt
        self.fs(FS2_OFF)
        a(f"v_add_u32 {vX2}, 18432, {vL16}\nv_add_u32 {vH2}, 147456, {vL16}")
        a(f"v_min_u32 {vF3}, 7, {vLANE}\nv_lshlrev_b32 {vF3}, 7, {vF3}")
        a(f"s_mul_i32 s64, {sW}, {13*1024}\ns_add_u32 s64, s64, {EX1*SL}\nv_add_u32 {vEX}, s64, {vL16}")
        a(f"s_lshl_b32 s64, {sM}, 3\ns_lshl_b32 s65, {sW}, 1\ns_add_u32 s64, s64, s65\ns_mul_i32 s64, s64, 18432\ns_add_u32 s68, s64, {X1_OFF}")
        self.rot3("s69"); a("s_lshl_b32 s69, s69, 10")
        self.h3_base("s70")
        for d in range(4): a(f"s_xor_b32 s64, {sJ}, {d}\ns_lshl_b32 s64, s64, 12\ns_add_u32 s{71+d}, s64, s70")
        for e in range(2): a(f"s_lshr_b32 s64, {sJ}, 1\ns_xor_b32 s64, s64, {e}\ns_add_u32 s64, s64, 16\ns_lshl_b32 s64, s64, 10\ns_add_u32 s{75+e}, s64, s70")
        self.f3_base("s77")
        a(f"s_lshl_b32 s64, {sM}, 2\ns_add_u32 s64, s64, {sW}\ns_lshl_b32 s64, s64, 12\ns_add_u32 s78, s64, {F2_OFF}")
        a(f"v_lshrrev_b32 {t0}, 2, {vLANE}\nv_mul_u32_u24 {vA[0]}, 288, {t0}\nv_and_b32 {t0}, 3, {vLANE}\nv_lshl_add_u32 {vA[0]}, {t0}, 3, {vA[0]}")
        a(f"v_add_u32 {vA[1]}, {6*SL}, {vA[0]}")
        self.stamp()
        self.wait_ctr(1, 13, sleep=2)
        self.poll("s78", vFLG)
        a(f"v_add_u32 {vA[2]}, {12*SL}, {vA[0]}")
        self.stamp()
        def x1load(s):
            a(f"s_add_u32 s64, s68, s69")
            a(f"buffer_load_dwordx4 {vr(B(s,0))}, {vL16}, {WS}, s64 offen sc1", f"b{s}")
            a(f"buffer_load_dwordx4 {vr(B(s,1))}, {vX2}, {WS}, s64 offen sc1", f"b{s}")
            a(f"s_add_u32 s69, s69, 1024\ns_sub_u32 s65, s69, 18432\ns_min_u32 s69, s69, s65")
        XA = 7
        for s in range(XA): x1load(s)
        self.signal(11)
        self.stamp()
        LOOK = 6
        base_pool = [20, 24, 28, 32, 36]
        def rd(addr, tag, dst):
            v, off = addr
            a(f"ds_read_b64_tr_b16 {vr(dst,2)}, {v} offset:{off}", tag)
            a(f"ds_read_b64_tr_b16 {vr(dst+2,2)}, {v} offset:{off+4608}", tag)
        def stream(items, hooks_issue, hooks_after, pool):
            fr = {}; nxt = [0]
            def can(i): return bool(nxt[0] < len(items) and nxt[0] <= i + LOOK and pool)
            def half(h):
                n = nxt[0]
                if h == 0:
                    if n in hooks_issue: hooks_issue[n]()
                    fr[n] = pool.pop(0)
                v, off = items[n][0]
                a(f"ds_read_b64_tr_b16 {vr(fr[n]+2*h,2)}, {v} offset:{off+4608*h}", f"f{n}")
                if h == 1: nxt[0] += 1
            while can(-1): half(0); half(1)
            for i, (n, mm, pre) in enumerate(items):
                if pre: a.wait_vm(pre)
                a.wait_lg(f"f{i}")
                go = can(i)
                for q, (acc, breg, first) in enumerate(mm):
                    a(f"{MFMA} {vr(acc)}, {vr(fr[i])}, {vr(breg)}, {'0' if first else vr(acc)}")
                    if go: half(q)
                pool.append(fr[i])
                if i in hooks_after:
                    for h in hooks_after[i]: h(pool)
                if nxt[0] <= i + 1 or (len(pool) > 1 and can(i) and (i & 1)):
                    if can(i): half(0); half(1)
        def hook(d, i, f): d.setdefault(i, []).append(f)
        def slot_addr(bases, f, extra):
            sl = f % NSL
            return bases[sl // 6], (sl % 6) * SL + extra
        items = [(slot_addr(vA, s, 32 * u), [(ACC + 8 * u + 4 * tt, B(s, tt), s == 0) for tt in range(2)], f"b{s}" if u == 0 else None)
                 for s in range(18) for u in range(9)]
        hi = {}; ha = {}
        for ks_, val in ((12, 14), (16, 15)):
            hi[9 * ks_ - 5] = lambda: self.ctr_issue(1, CT)
            hi[9 * ks_] = (lambda val=val: self.ctr_check(1, CT, val))
        for s in range(18 - XA): hook(ha, 9 * s + 1, lambda pool, s=s: x1load(s + XA))
        hook(ha, 8, lambda pool: pool.extend([B(0, 0), B(0, 1)]))
        hook(ha, 9 * 5 - 1, lambda pool: self.signal(12))
        hook(ha, 9 * 9 - 1, lambda pool: self.signal(13))
        hook(ha, 9 * 13 - 1, lambda pool: self.signal(14))
        KB = B(5, 0); CSB = B(6, 0); TB = B(11, 0); S8 = B(12, 0)
        def consts(pool):
            a(f"s_lshl_b32 s64, {sW}, 9\ns_add_u32 s64, s64, {KC_OFF}\nv_lshl_add_u32 v0, {vJ}, 4, s64")
            for tt in range(2): a(f"ds_read_b128 {vr(KB+4*tt)}, v0 offset:{256*tt}", "kc")
        def csums(pool, u):
            if u == 0: a(f"v_lshl_add_u32 {vEX}, {vG}, 4, {vSCR}")
            a(f"ds_read_b128 {vr(CSB+4*u)}, {vEX} offset:{CS3_OFF+64*u}", "kc")
        hook(ha, 9 * 16 + 2, consts)
        for u in range(9): hook(ha, 9 * 16 + 4 + u, lambda pool, u=u: csums(pool, u))
        stream(items, hi, ha, list(base_pool))
        self.signal(15)
        self.stamp()
        a(f"s_and_b32 s64, {sJ}, 1\ns_lshl_b32 s64, s64, 9\ns_add_u32 s67, s64, s75")
        a(f"v_lshlrev_b32 {vL8[0]}, 3, {vLANE}\nv_add_u32 {vL8[1]}, 147456, {vL8[0]}")
        a(f"s_lshl_b32 s64, {sJ}, 8\ns_add_u32 s79, s64, s77")
        a.wait_lg()
        for u in range(9):
            self.gelu_pk([(ACC + 8 * u + 4 * tt, CSB + 4 * u, KB + 4 * tt) for tt in range(2)], TB)
            p = u >> 1
            for tt in range(2):
                dst = B(p, tt) + 2 * (u & 1) if u < 8 else S8 + 2 * tt
                b = ACC + 8 * u + 4 * tt
                for d in range(2): a(f"v_cvt_pk_bf16_f32 v{dst+d}, v{b+2*d}, v{b+2*d+1}")
            for tt in range(2):
                if u & 1: a(f"buffer_store_dwordx4 {vr(B(p,tt))}, {vL16 if tt == 0 else vH2}, {WS}, s71 offen offset:{1024*p} sc1", f"h3_{p>>1}")
                if u == 8: a(f"buffer_store_dwordx2 {vr(S8+2*tt,2)}, {vL8[tt]}, {WS}, s67 offen sc1", "h3_1")
            if u == 6: self.set_flag("s79", "both", "h3_0")
        self.stamp()
        def h3load(k):
            if k < 16: d, p = 1 + (k - 4) % 3, (k - 4) // 3; so, io = f"s{71+d}", 1024 * p
            else:
                for tt in range(2):
                    for hf in range(2):
                        a(f"buffer_load_dwordx2 {vr(B(k,tt)+2*hf,2)}, {vL8[tt]}, {WS}, s{75+k-16} offen offset:{512*hf} sc1", f"g{k}")
                return
            a(f"buffer_load_dwordx4 {vr(B(k,0))}, {vL16}, {WS}, {so} offen offset:{io} sc1", f"g{k}")
            a(f"buffer_load_dwordx4 {vr(B(k,1))}, {vH2}, {WS}, {so} offen offset:{io} sc1", f"g{k}")
        vU = [f"v{B(14,0)+o}" for o in range(9)]
        for o in range(9):
            if o == 0: a("s_mov_b32 s92, 256")
            else: a(f"s_add_u32 s64, {sX}, {o}\ns_and_b32 s64, s64, 7\ns_lshl_b32 s{92+o}, s64, 5")
            a(f"v_add_u32 {vU[o]}, s{92+o}, {vA[0]}\nv_add_u32 {vU[o]}, {SL}, {vU[o]}")
        self.ctr_issue(1, B(13, 0))
        self.poll2("s77", vF3, False, mask=0x55)
        a(f"s_add_u32 s64, s79, 128")
        self.set_flag("s64", "both", "h3_1")
        for k in range(4, 10): h3load(k)
        self.ctr_check(1, B(13, 0), 17)
        self.stamp()
        items = [((vU[o], k * SL), [(ACC + 8 * o + 4 * tt, B(k, tt), k == 0) for tt in range(2)], f"g{k}" if o == 0 and k >= 4 else None)
                 for k in range(KE) for o in range(9)]
        def second(pool):
            lg = list(a.lg)
            self.poll2("s77", vF3, False)
            for k in (10, 11, 12, 13, 16): h3load(k)
            a.lg = lg
        stream(items, {}, {9: [lambda pool: self.signal(17)], 9 * 4 - 1: [second]}, list(base_pool) + [B(17, 0), B(17, 1)])
        self.signal(18)
        for k in (14, 15, 17): h3load(k)
        self.stamp()
        self.wait_ctr(1, 19)
        self.wait_ctr(0, 18)
        self.stamp()
        items = []; hi = {}; ha = {}
        a(f"s_lshl_b32 s64, {sW}, 11\nv_add_u32 {vEX}, s64, {vL16}")
        UB = [[f"v{B(2,0)+4*q+i}" for i in range(3)] for q in range(2)]
        C0 = B(3, 0)
        for o in range(9):
            acc = ACC + 8 * o
            ub = UB[o & 1]
            def setb(o=o, ub=ub):
                for i in range(3): a(f"v_add_u32 {ub[i]}, s{92+o}, {vA[i]}")
            hi[len(items)] = setb
            for k in [k for k in (4, 5, 6, 7, 8, 9, 10, 11, 12, 13, 16, 14, 15, 17) if k >= KE]:
                items.append((slot_addr(ub, 18 + k, 0), [(acc + 4 * tt, B(k, tt), False) for tt in range(2)], f"g{k}" if o == 0 else None))
            def dump(pool, o=o, acc=acc):
                if o >= 3:
                    a.wait_lg("pc")
                    a(f"v_readfirstlane_b32 s64, v{C0}")
                    a(f"s_cmp_ge_u32 s64, {20+o-3}")
                    a.slow(lambda o=o: self.wait_ctr(1, 20 + o - 3, one=True, tmp=C0))
                for tt in range(2): a(f"ds_write_b128 {vEX}, {vr(acc+4*tt)} offset:{(2+o%3)*SL+1024*tt}", "ex")
                self.signal(19 + o)
            if o >= 3:
                hook(ha, len(items) - 5, lambda pool: (a(f"v_xor_b32 v{C0+1}, 16, {vCTR}"), a(f"ds_read_b32 v{C0}, v{C0+1}", "pc")))
            hook(ha, len(items) - 1 + (2 if o < 8 else 0), dump)
        stream(items, hi, ha, list(base_pool) + [B(0, 0), B(0, 1)])
        self.stamp()
        L8 = a.label("Lu8")
        a(f"s_lshr_b32 s64, {sX}, 1\ns_cmp_lg_u32 s64, {sW}\ns_cbranch_scc1 {L8}")
        XRr = B(4, 0) - 4; G8 = B(5, 0); SUM8 = B(10, 0); vT8 = f"v{B(11,0)}"; vO = f"v{B(11,0)+1}"; U = B(12, 0)
        a(f"s_lshl_b32 s64, {sM}, 2\ns_add_u32 s64, s64, {sJ}\ns_mul_i32 s64, s64, {9*32*1024}\ns_add_u32 s69, s64, {P_OFF+8*32768}\ns_add_u32 s69, s69, {sWK}")
        g_issue, g_take = self.part_helpers(vT8, U)
        for i in range(8): g_issue(i, "s69", G8, "p8")
        a(f"s_mul_i32 s64, {sJ}, 9\ns_add_u32 s78, s64, 8\ns_lshl_b32 s64, {sM}, 3\ns_add_u32 s79, s64, {sX}")
        a(f"s_mul_i32 s64, s79, 18\ns_lshr_b32 s65, s78, 1\ns_add_u32 s64, s64, s65\ns_lshl_b32 s64, s64, 10\ns_and_b32 s65, s78, 1\ns_lshl_b32 s65, s65, 3\ns_add_u32 s64, s64, s65\ns_add_u32 s64, s64, {X1_OFF}")
        a(f"buffer_load_dwordx2 {vr(XRr+4,2)}, {vL16}, {WS}, s64 offen sc1", "xr")
        self.part_consts(vT8)
        a(f"v_mul_u32_u24 {vO}, 1152, {vJ}\nv_lshl_add_u32 {vO}, {vG}, 3, {vO}")
        a(f"s_bitcmp1_b32 {sX}, 0\ns_cselect_b64 s[98:99], -1, 0")
        for e in range(4): a(f"v_mov_b32 v{SUM8+e}, 0")
        for i in range(8): g_take(i, "s69", G8, "p8", SUM8, half="s[98:99]")
        a.wait_vm("xr")
        self.finish_out(SUM8, XRr + 4, vO, "s79", "s78")
        a(f"{L8}:")

    def rot3(self, dst):
        self.a(f"s_lshl_b32 {dst}, {sJ}, 2\ns_and_b32 s64, {sJ}, 2\ns_add_u32 {dst}, {dst}, s64")

    def h_mlp(self):
        a = self.a
        t0, t1, t2 = f"v{T0}", f"v{T0+1}", f"v{T0+2}"
        vH2, vEX, vT8 = (f"v{T0+5+i}" for i in range(3))
        vH8 = f"v{T0+8}"
        if self.stop <= 2:
            self.epoch_advance(); return
        a(f"v_add_u32 {vH2}, 147456, {vL16}\nv_lshlrev_b32 {vH8}, 3, {vLANE}\nv_add_u32 {vH8}, 147456, {vH8}")
        a(f"s_mul_i32 s64, {sW}, {13*1024}\ns_add_u32 s64, s64, {EX1*SL}\nv_add_u32 {vEX}, s64, {vL16}\nv_mov_b32 {vT8}, {sTAG8}")
        self.h3_base("s71"); self.f3_base("s72")
        a(f"s_lshr_b32 s64, {sJ}, 1\ns_add_u32 s64, s64, 16\ns_lshl_b32 s64, s64, 10\ns_add_u32 s68, s64, s71\ns_and_b32 s64, {sJ}, 1\ns_lshl_b32 s64, s64, 9\ns_add_u32 s68, s68, s64")
        a(f"s_lshl_b32 s64, {sJ}, 12\ns_add_u32 s71, s71, s64\ns_lshl_b32 s64, {sJ}, 8\ns_add_u32 s72, s72, s64")
        V3 = [f"v{200+i}" for i in range(5)]; V4 = [f"v{205+i}" for i in range(5)]; V4s = [f"v{210+i}" for i in range(5)]
        sP = [f"s{92+i}" for i in range(5)]
        for i in range(5):
            a(f"s_add_u32 s64, {sW}, {4*i}\ns_sub_u32 s65, s64, 9\ns_min_u32 s64, s64, s65\ns_lshl_b32 {sP[i]}, s64, 10\ns_lshl_b32 s64, s64, 6")
            a(f"v_add_u32 {t0}, s64, {vLANE}\nv_mul_u32_u24 {t1}, 3641, {t0}\nv_lshrrev_b32 {t1}, 16, {t1}")
            a(f"v_mul_u32_u24 {t2}, 18, {t1}\nv_sub_u32 {t0}, {t0}, {t2}\nv_lshlrev_b32 {t0}, 4, {t0}")
            a(f"v_mul_u32_u24 {V3[i]}, 9216, {t1}\nv_add_u32 {V3[i]}, {V3[i]}, {t0}")
            a(f"v_mul_u32_u24 {V4[i]}, 1152, {t1}\nv_add_u32 {V4[i]}, {V4[i]}, {t0}")
            a(f"v_lshrrev_b32 {t1}, 4, {t1}\nv_mul_u32_u24 {t1}, {128*1152}, {t1}\nv_add_u32 {V4s[i]}, {V4[i]}, {t1}")
        def pair(f, srd, V, sA, sB, tag):
            rA, rB = (f % NSL) * SL, ((f + 1) % NSL) * SL
            L = a.label("Lx")
            a(f"s_cmp_ge_u32 {sW}, 2\ns_cbranch_scc1 {L}")
            a(f"s_add_u32 m0, {sP[4]}, {rB}")
            a(f"buffer_load_dwordx4 {V[4]}, {srd}, {sB} offen lds", "_untracked")
            a(f"{L}:")
            for i in range(4):
                if i < 2: a(f"s_add_u32 m0, {sP[i]}, {rA}"); so = sA
                elif i == 3: a(f"s_add_u32 m0, {sP[i]}, {rB}"); so = sB
                else:
                    a(f"s_mov_b32 s64, {rB}\ns_cmp_eq_u32 {sW}, 0\ns_cselect_b32 s64, {rA}, s64\ns_cselect_b32 s66, {sA}, {sB}\ns_add_u32 m0, {sP[i]}, s64"); so = "s66"
                a(f"buffer_load_dwordx4 {V[i]}, {srd}, {so} offen lds", tag)
        k3 = 32 * 9216
        self.rot3("s69")
        a(f"s_mul_i32 s69, s69, {k3}\ns_lshl_b32 s64, {sX}, 2\ns_add_u32 s64, s64, {sJ}\ns_mul_i32 s70, s64, 288")
        def w3pair(s, tag):
            a(f"s_add_u32 s73, s69, s70\ns_add_u32 s74, s73, {k3}")
            pair(s, W3, V3, "s73", "s74", tag)
            a(f"s_add_u32 s69, s69, {2*k3}\ns_sub_u32 s65, s69, {18*k3}\ns_min_u32 s69, s69, s65")
        a(f"s_mul_i32 s64, {sX}, {576*1152}\ns_mul_i32 s65, {sJ}, 288\ns_add_u32 s101, s64, s65")
        for d in range(4): a(f"s_xor_b32 s64, {sJ}, {d}\ns_mul_i32 s64, s64, {144*1152}\ns_add_u32 s{97+d}, s64, s101")
        def w4src(k, dst):
            if k < 4: d, p = 0, k
            elif k < 16: d, p = 1 + (k - 4) % 3, (k - 4) // 3
            else:
                a(f"s_lshr_b32 s64, {sJ}, 1\ns_xor_b32 s64, s64, {k-16}\ns_mul_i32 s64, s64, {288*1152}\ns_add_u32 s64, s64, s101\ns_add_u32 {dst}, s64, {128*1152}")
                return
            a(f"s_add_u32 {dst}, s{97+d}, {32*p*1152}")
        def w4pair(k, tag):
            w4src(k, "s73"); w4src(k + 1, "s74")
            pair(18 + k, W4, V4 if k < 16 else V4s, "s73", "s74", tag)
        a(f"v_and_b32 {t0}, 3, {vLANE}\nv_lshlrev_b32 {t0}, 7, {t0}")
        self.stamp()
        self.wait_ctr(1, 7, sleep=2); self.wait_ctr(0, 3, sleep=2)
        self.stamp()
        for s in range(0, 8, 2): w3pair(s, f"d{s//4}")
        self.wait_ctr(0, 5, sleep=2)
        self.stamp()
        for s in (8, 10): w3pair(s, "d2")
        Le = a.label("Learly")
        a(f"s_cmp_lt_u32 {sR}, {NACT}\ns_cbranch_scc1 {Le}")
        for s in (12, 14): w3pair(s, "_untracked")
        a(f"{Le}:")
        a(f"v_and_b32 {t0}, 1, {vLANE}\nv_lshlrev_b32 {t0}, 7, {t0}")
        a(f"buffer_load_dword v248, {t0}, {WS}, s72 offen sc1", "pf")
        a.wait_vm("d2"); self.signal(13)
        self.stamp()
        CP = 100
        a(f"s_lshl_b32 s64, {sW}, 6\nv_add_u32 {t1}, s64, {vLANE}\nv_min_u32 {t1}, 143, {t1}\nv_lshlrev_b32 v{CP+9}, 2, {t1}")
        L = a.label("Lcs")
        a(f"s_mov_b32 {sTO}, 0")
        a(f"{L}:")
        a(f"s_mul_i32 s64, {sX}, {9*2304}\ns_mul_i32 s65, {sJ}, 576\ns_add_u32 s64, s64, s65\ns_add_u32 s64, s64, {CSP_OFF}")
        for k in range(9):
            a(f"buffer_load_dword v{CP+k}, v{CP+9}, {WS}, s64 offen sc1", "cp")
            a(f"s_add_u32 s64, s64, 2304")
        a(f"s_add_u32 {sTO}, {sTO}, 1\ns_cmp_gt_u32 {sTO}, 100000\ns_cbranch_scc1 L_end")
        a.wait_vm()
        a(f"v_xor_b32 {t0}, v{CP}, {vT8}")
        for k in range(1, 9): a(f"v_bitop3_b32 {t0}, {t0}, v{CP+k}, {vT8} bitop3:0xf6")
        a(f"v_and_b32 {t0}, 0xff, {t0}\nv_cmp_ne_u32 vcc, 0, {t0}")
        a(f"s_cbranch_vccnz {L}")
        for k in range(1, 9): a(f"v_add_f32 v{CP}, v{CP}, v{CP+k}")
        a(f"v_add_u32 {t1}, {vSCR}, v{CP+9}")
        a(f"ds_write_b32 {t1}, v{CP} offset:{CS3_OFF}", "csw")
        self.wait_ctr(0, 11, sleep=2)
        for tt in range(2): self.load_stats(tt, 100 + 8 * tt)
        for tt in range(2): self.finish_stats([f"v{48+4*tt+i}" for i in range(4)], 100 + 8 * tt)
        a(f"s_lshl_b32 s64, {sW}, 9\ns_add_u32 s64, s64, {KC_OFF}\nv_lshl_add_u32 {t1}, {vJ}, 4, s64")
        for tt in range(2): a(f"ds_write_b128 {t1}, {vr(48+4*tt)} offset:{256*tt}", "kc")
        self.wait_ctr(0, 12, sleep=3)
        Le = a.label("Llate")
        a(f"s_cmp_ge_u32 {sR}, {NACT}\ns_cbranch_scc1 {Le}")
        for s in (12, 14): w3pair(s, "_untracked")
        a("s_waitcnt vmcnt(0)")
        a(f"{Le}:")
        self.signal(14)
        self.stamp()
        self.wait_ctr(0, 13, sleep=3)
        w3pair(16, "e0")
        a.wait_vm("e0"); self.signal(15)
        self.wait_ctr(0, 14, sleep=3)
        for k in (0, 2, 4, 6): w4pair(k, "e1")
        for k in (8, 10): w4pair(k, "e2")
        a.wait_vm("e1"); self.signal(17)
        self.epoch_advance()
        self.stamp()
        self.wait_ctr(0, 15, sleep=3)
        for k in (12, 14): w4pair(k, "e3")
        self.wait_ctr(0, 17, sleep=3)
        w4pair(16, "e3")
        a(f"s_lshl_b32 s64, {sM}, 2\ns_add_u32 s64, s64, {sJ}\ns_mul_i32 s64, s64, {9*32*1024}\ns_add_u32 s73, s64, {P_OFF}")
        a(f"s_lshl_b32 s64, {sW}, 11\nv_add_u32 {vEX}, s64, {vL16}")
        a(f"s_lshl_b32 s65, {sX}, 12\ns_add_u32 s74, {sWK}, s65\ns_add_u32 s74, s74, s73")
        self.part_consts(vT8)
        a("s_mov_b32 s75, 0x1fff\ns_mov_b32 s92, 0x03ffffff\ns_mov_b32 s93, 0x0c000000\ns_mov_b32 s94, 0x4b400000")
        a.wait_vm("e3"); self.signal(19)
        self.stamp()
        XRr = 100
        a(f"s_mul_i32 s64, {sJ}, 9\ns_add_u32 s76, s64, {sX}")
        a(f"s_lshl_b32 s64, {sM}, 3\ns_lshl_b32 s65, {sW}, 1\ns_add_u32 s77, s64, s65")
        a(f"s_mul_i32 s64, s77, 18\ns_lshr_b32 s65, s76, 1\ns_add_u32 s64, s64, s65\ns_lshl_b32 s64, s64, 10\ns_and_b32 s65, s76, 1\ns_lshl_b32 s65, s65, 3\ns_add_u32 s64, s64, s65\ns_add_u32 s64, s64, {X1_OFF}")
        a(f"v_add_u32 {t1}, 18432, {vL16}")
        a(f"buffer_load_dwordx2 {vr(XRr,2)}, {vL16}, {WS}, s64 offen sc1", "xr")
        a(f"buffer_load_dwordx2 {vr(XRr+2,2)}, {t1}, {WS}, s64 offen sc1", "xr")
        vO = "v106"
        a(f"v_mul_u32_u24 {vO}, 1152, {vJ}\nv_lshl_add_u32 {vO}, {vG}, 3, {vO}")
        a(f"s_lshl_b32 s64, {sX}, 15\ns_add_u32 s68, s64, s73\ns_add_u32 s68, s68, {sWK}")
        a(f"s_add_u32 s69, s73, {8*32768}\ns_add_u32 s69, s69, {sWK}")
        DB = 108; GR = 128; G8 = 160; SUMR = 56; SUM8 = 64; PKD = 72; U = 80
        for e in range(16): a(f"v_mov_b32 v{SUMR+e}, 0")
        g_issue, g_take = self.part_helpers(vT8, U)
        if "hprio" in self.exp: a("s_setprio 3")
        for o in range(9):
            self.wait_ctr(0, 19 + o, one=True, sleep=1)
            d = DB + 8 * (o & 1)
            for tt in range(2): a(f"ds_read_b128 {vr(d+4*tt)}, {vEX} offset:{(2+o%3)*SL+1024*tt}", "dp")
            if o == 8: break
            if o == 0: a(f"s_add_u32 s66, s74, {8*32768}")
            else: a(f"s_add_u32 s64, {sX}, {o}\ns_and_b32 s64, s64, 7\ns_lshl_b32 s64, s64, 15\ns_add_u32 s66, s64, s74")
            a.wait_lg()
            self.signal(20 + o)
            p = PKD + 4 * (o & 1)
            a(f"v_max3_f32 {t0}, |v{d}|, |v{d+1}|, |v{d+2}|\nv_max3_f32 {t1}, |v{d+3}|, |v{d+4}|, |v{d+5}|")
            a(f"v_max3_f32 {t0}, {t0}, |v{d+6}|, |v{d+7}|\nv_max_f32 {t0}, {t0}, {t1}")
            a(f"v_and_b32 {t0}, 0x7f800000, {t0}\nv_max_u32 {t0}, {12<<23}, {t0}\nv_sub_u32 {t1}, {(264<<23)|0x7ff000}, {t0}")
            for e in range(8): a(f"v_fma_f32 v{d+e}, v{d+e}, {t1}, s94")
            for i in range(4):
                sh = 3 - 2 * i
                a(f"v_lshlrev_b32 v{d+2*i+1}, 13, v{d+2*i+1}\nv_bfi_b32 v{d+2*i}, s75, v{d+2*i}, v{d+2*i+1}")
                a((f"v_lshlrev_b32 {t2}, {sh}, {t0}" if sh > 0 else f"v_lshrrev_b32 {t2}, {-sh}, {t0}") + f"\nv_bfi_b32 {t2}, s93, {t2}, {vT8}")
                a(f"v_bfi_b32 v{p+i}, s92, v{d+2*i}, {t2}")
            a(f"buffer_store_dwordx4 {vr(p)}, {vL16}, {WS}, s66 offen sc1", "pst")
            if o >= 4: g_issue(o - 3, "s68", GR, "pg")
            if o == 7:
                self.stamp()
                for i in (1, 2, 3): g_take(i, "s68", GR, "pg", SUMR)
                g_issue(5, "s68", GR, "pg")
                g_take(4, "s68", GR, "pg", SUMR)
                g_issue(6, "s68", GR, "pg")
        g_issue(7, "s68", GR, "pg")
        a.wait_lg()
        for e in range(8): a(f"v_add_f32 v{SUMR+e}, v{SUMR+e}, v{DB+e}")
        for i in (5, 6, 7): g_take(i, "s68", GR, "pg", SUMR)
        self.stamp()
        for tt in range(2):
            a(f"s_add_u32 s79, s77, {tt}")
            self.finish_out(SUMR + 4 * tt, XRr + 2 * tt, vO, "s79", "s76")

    def part_consts(self, vT8):
        a = self.a
        a(f"s_lshl_b32 s64, {sE}, 28\nv_mov_b32 {vT8}, s64")
        a("s_mov_b32 s95, 0x01800000\ns_mov_b32 s96, 0x07800000\ns_mov_b32 s97, 0x1f800000")
    def part_helpers(self, vT8, U):
        a = self.a
        t0, t1 = f"v{T0}", f"v{T0+1}"
        def g_issue(i, base, R, tag):
            a(f"s_sub_u32 s64, {sX}, {i}\ns_and_b32 s64, s64, 7\ns_lshl_b32 s64, s64, 12\ns_add_u32 s64, s64, {base}")
            a(f"buffer_load_dwordx4 {vr(R+4*i)}, {vL16}, {WS}, s64 offen sc1", f"{tag}{i}")
        def g_take(i, base, R, tag, S, half=None):
            r = R + 4 * i
            a.wait_vm(f"{tag}{i}")
            def check():
                a(f"v_xor_b32 {t0}, v{r}, {vT8}")
                for e in range(1, 4): a(f"v_bitop3_b32 {t0}, {t0}, v{r+e}, {vT8} bitop3:0xf6")
                a(f"v_cmp_gt_u32 vcc, 0x10000000, {t0}")
                a("s_cmp_eq_u64 vcc, -1")
            check()
            def retry():
                L = a.label("Lg")
                a(f"s_mov_b32 {sTO}, 0")
                a(f"{L}:")
                a(f"s_add_u32 {sTO}, {sTO}, 1\ns_cmp_gt_u32 {sTO}, 100000\ns_cbranch_scc1 L_end")
                g_issue(i, base, R, tag)
                a.wait_vm()
                check()
                a(f"s_cbranch_scc0 {L}")
            a.slow(retry)
            a(f"v_lshrrev_b32 {t0}, 3, v{r}\nv_lshrrev_b32 {t1}, 1, v{r+1}\nv_bfi_b32 {t0}, s95, {t0}, {t1}")
            a(f"v_lshlrev_b32 {t1}, 1, v{r+2}\nv_bfi_b32 {t0}, s96, {t0}, {t1}\nv_lshlrev_b32 {t1}, 3, v{r+3}\nv_bfi_b32 {t0}, s97, {t0}, {t1}")
            a(f"v_and_b32 {t0}, 0x7f800000, {t0}\nv_add_u32 {t0}, {(0x800 - (11 << 23)) & 0xffffffff}, {t0}")
            n = 8
            if half:
                for e in range(2): a(f"v_cndmask_b32 v{r+e}, v{r+e}, v{r+2+e}, {half}")
                n = 4
            for e in range(n): a(f"v_bfe_i32 v{U+e}, v{r+(e>>1)}, {13*(e&1)}, 13")
            for e in range(n): a(f"v_cvt_f32_i32 v{U+e}, v{U+e}")
            for e in range(n): a(f"v_fma_f32 v{S+e}, v{U+e}, {t0}, v{S+e}")
        return g_issue, g_take
    def finish_out(self, S, XR, vO, sTile, sU):
        a = self.a
        t0, t1, t2, t3 = (f"v{T0+i}" for i in range(4))
        for d in range(2):
            a(f"v_cvt_pk_bf16_f32 {t0}, v{S+2*d}, v{S+2*d+1}")
            a(f"v_lshlrev_b32 {t1}, 16, {t0}\nv_and_b32 {t0}, 0xffff0000, {t0}")
            a(f"v_lshlrev_b32 {t2}, 16, v{XR+d}\nv_and_b32 {t3}, 0xffff0000, v{XR+d}")
            a(f"v_add_f32 {t1}, {t1}, {t2}\nv_add_f32 {t0}, {t0}, {t3}")
            a(f"v_cvt_pk_bf16_f32 v{S+d}, {t1}, {t0}")
        a(f"s_mul_i32 s64, {sTile}, 18432\ns_lshl_b32 s65, {sU}, 5\ns_add_u32 s64, s64, s65")
        a(f"buffer_store_dwordx2 {vr(S,2)}, {vO}, {OUT}, s64 offen", "out")
    def epoch_advance(self):
        a = self.a
        L = a.label("Lep"); L2 = a.label("Lep")
        a(f"s_cmp_lg_u32 s2, 255\ns_cbranch_scc1 {L}\ns_cmp_lg_u32 {sW}, 3\ns_cbranch_scc1 {L}")
        vm = list(a.vm)
        a(f"s_mov_b32 {sTO}, 0")
        a(f"{L2}:")
        a(f"v_lshlrev_b32 v247, 7, {vLANE}\ns_mov_b32 s64, {FS2_OFF}")
        for i in range(4):
            a(f"buffer_load_dword v{T0+i}, v247, {WS}, s64 offen sc1")
            a(f"s_add_u32 s64, s64, 8192")
        a(f"s_add_u32 {sTO}, {sTO}, 1\ns_cmp_gt_u32 {sTO}, 100000\ns_cbranch_scc1 L_end")
        a.wait_vm()
        a(f"v_xor_b32 v{T0}, {sTAG}, v{T0}\nv_xor_b32 v{T0+1}, {sTAG}, v{T0+1}\nv_xor_b32 v{T0+2}, {sTAG}, v{T0+2}\nv_xor_b32 v{T0+3}, {sTAG}, v{T0+3}")
        a(f"v_or3_b32 v{T0}, v{T0}, v{T0+1}, v{T0+2}\nv_or_b32 v{T0}, v{T0}, v{T0+3}\nv_cmp_ne_u32 vcc, 0, v{T0}")
        a(f"s_cbranch_vccnz {L2}")
        a(f"v_mov_b32 v{T0}, {sE}\nv_mov_b32 v{T0+1}, 0\ns_mov_b64 exec, 1")
        a(f"buffer_store_dword v{T0}, v{T0+1}, {WS}, 0 offen sc1", "_untracked")
        a("s_mov_b64 exec, -1")
        a(f"{L}:")
        a.vm = vm

    def wrap(self, body):
        hdr = open("standalone__mixer_s_mlp__sampling.s.ref").read().split("; Override")[0]
        s = hdr + "; @launch grid=(256,1,1) block=(512,1,1) lds=163840\n"
        s += '.amdgcn_target "amdgcn-amd-amdhsa--gfx950"\n.text\n'
        s += f".globl {KNAME}\n.p2align 8\n.type {KNAME},@function\n{KNAME}:\n"
        s += body
        s += f'.section .rodata,"a"\n.p2align 6\n.amdhsa_kernel {KNAME}\n'
        s += "  .amdhsa_next_free_vgpr 256\n  .amdhsa_next_free_sgpr 102\n  .amdhsa_accum_offset 256\n"
        s += "  .amdhsa_group_segment_fixed_size 0\n  .amdhsa_kernarg_size 64\n  .amdhsa_user_sgpr_count 2\n"
        s += "  .amdhsa_user_sgpr_kernarg_segment_ptr 1\n  .amdhsa_system_sgpr_workgroup_id_x 1\n"
        s += "  .amdhsa_float_denorm_mode_32 3\n.end_amdhsa_kernel\n"
        return s

if __name__ == "__main__":
    import argparse
    p = argparse.ArgumentParser()
    p.add_argument("-o", default="mk.s"); p.add_argument("--stop", type=int, default=99)
    p.add_argument("--stamps", action="store_true"); p.add_argument("--plain", action="store_true"); p.add_argument("--exp", default="")
    args = p.parse_args()
    open(args.o, "w").write(Gen(args.stop, args.stamps, args.plain, args.exp).build())
```

```python
import sys
sys.path.insert(0, "dev")
from asmlib import Asm

KNAME = "standalone__mixer_s_mlp__sampling_kernel"
NB = 159
SCR = NB * 1024
CS3_OFF = 256
KC_OFF = 153 * 1024
NACT = 18
KE = 7
SL = 9216; NSL = 17
EX1 = 11
ROT3 = (0, 4, 10, 14)
FS2_OFF = 0x1000; ST_OFF = 0x10000; CSP_OFF = 0x28000
F1_OFF = 0x60000; F2_OFF = 0x80000; F3_OFF = 0xA0000
H_OFF = 0xE0000; X1_OFF = 0x200000; H3_OFF = 0x400000; P_OFF = 0xE00000; STAMP_OFF = 0x3000000
FAR = 0x1800000
FRAGSZ = 0x120000
X, W1, W2, W3, W4, OUT, WS, DBG, HS = (f"s[{b}:{b+3}]" for b in (20, 24, 28, 32, 36, 40, 44, 48, 52))
sTAG, sW, sX, sR, sMT, sNT, sM, sJ = (f"s{i}" for i in range(56, 64))
sE = "s3"
sC = [f"s{84+i}" for i in range(5)]
sTAGX = "s80"; sTO = "s89"; sTAG8 = "s82"; sWV = "s81"; sWK = "s83"
vLANE, vG, vJ = "v1", "v2", "v3"
vLB = ["v4", "v5", "v6"]
vL16 = "v4"; vFLG = "v8"; vSTAMP = "v9"; vCTR = "v10"; vSCR = "v11"
T0 = 12
AF0 = 24; NAF = 6
ACC0 = 48
BF0 = 112
DUMMY = "v7"

def vr(b, n=4): return f"v[{b}:{b+n-1}]"
MFMA = "v_mfma_f32_16x16x32_bf16"

def kprime(k, j):
    if k >= 16: return 16 + ((k - 16) ^ (j >> 1))
    d, p = (k >> 2) ^ j, k & 3
    return p if d == 0 else 4 + 3 * p + (d - 1)

class Gen:
    def __init__(self, stop=99, stamps=False, local_plain=False, exp=""):
        self.exp = exp.split(",")
        self.psleep = 0
        for e in self.exp:
            if e.startswith("ps"): self.psleep = int(e[2:])
        self.ld_local = "nt" if "ldnt" in self.exp else ("" if "ldplain" in self.exp else "sc1")
        self.a = Asm(); self.stop = stop; self.stamps = stamps; self.nst = 0
        self.af = 0
        self.st_local = "" if local_plain else "sc1"
    def reset(self, nst=None):
        self.a.vm = []; self.a.lg = []
        if nst is not None: self.nst = nst
    def stamp(self):
        if not self.stamps: return
        a = self.a
        a.wait_lg()
        a(("s_memtime" if "cyc" in self.exp else "s_memrealtime") + " s[90:91]\ns_waitcnt lgkmcnt(0)")
        a(f"v_writelane_b32 {vSTAMP}, s90, {self.nst}")
        self.nst += 1
    def next_af(self):
        b = AF0 + 4 * (self.af % NAF); self.af += 1
        return b
    def lb(self, kb):
        off = kb * 1024
        return vLB[off >> 16], off & 0xffff
    def read_blk(self, n, tag, dst=None):
        b = self.next_af() if dst is None else dst
        v, off = self.lb(n % NB)
        self.a(f"ds_read_b128 {vr(b)}, {v} offset:{off}", tag)
        return b
    def read_tr(self, vbase, off, tag, dst=None):
        b = self.next_af() if dst is None else dst
        self.a(f"ds_read_b64_tr_b16 {vr(b,2)}, {vbase} offset:{off}", tag)
        self.a(f"ds_read_b64_tr_b16 {vr(b+2,2)}, {vbase} offset:{off+2048}", tag)
        return b
    def poll(self, soff, vflag, mask=None, sleep=None):
        a = self.a
        t = f"v{T0}"
        if sleep is None: sleep = self.psleep
        L = a.label("Lpoll"); L2 = a.label("Lpoll")
        a(f"s_mov_b32 {sTO}, 0\ns_branch {L2}")
        a(f"{L}:")
        if sleep: a(f"s_sleep {sleep}")
        a(f"{L2}:")
        a(f"buffer_load_dword {t}, {vflag}, {WS}, {soff} offen sc1")
        a(f"s_add_u32 {sTO}, {sTO}, 1\ns_cmp_gt_u32 {sTO}, 100000\ns_cbranch_scc1 L_end")
        a.wait_vm()
        a(f"v_cmp_ne_u32 vcc, {sTAG}, {t}")
        if mask is not None:
            a(f"s_and_b32 vcc_lo, vcc_lo, {mask}\ns_cbranch_scc1 {L}")
        else:
            a(f"s_cbranch_vccnz {L}")
    def poll_one(self, soff, vflag, val):
        a = self.a
        L = a.label("Lp1"); L2 = a.label("Lp1"); L3 = a.label("Lp1")
        vm = list(a.vm)
        a(f"s_cmp_lg_u32 {sW}, 0\ns_cbranch_scc1 {L}")
        self.poll(soff, vflag)
        a(f"v_mov_b32 v{T0}, {val}\ns_mov_b64 exec, 1")
        a(f"ds_write_b32 {vSCR}, v{T0} offset:32", "sig")
        a("s_mov_b64 exec, -1")
        a.wait_lg()
        a(f"s_branch {L3}")
        a(f"{L}:")
        a(f"s_mov_b32 {sTO}, 0")
        a(f"{L2}:")
        a(f"s_sleep 2\nds_read_b32 v{T0}, {vSCR} offset:32", "ctr")
        a(f"s_add_u32 {sTO}, {sTO}, 1\ns_cmp_gt_u32 {sTO}, 1000000\ns_cbranch_scc1 L_end")
        a.wait_lg()
        a(f"v_readfirstlane_b32 s64, v{T0}")
        a(f"s_cmp_lt_u32 s64, {val}\ns_cbranch_scc1 {L2}")
        a(f"{L3}:")
        a.vm = vm
    def set_flag(self, soff, mods, tags=None):
        a = self.a
        for i in range(4): a(f"v_mov_b32 v{T0+i}, {sTAG if mods == 'sc1' else sTAGX}")
        if mods in ("far", "both"): a(f"s_add_u32 s65, {soff}, {FAR}")
        a.wait_vm(tags)
        a("s_mov_b64 exec, 0xff")
        if mods == "sc1": a(f"buffer_store_dwordx4 {vr(T0)}, {vL16}, {WS}, {soff} offen sc1", "flag")
        if mods in ("near", "both") and not ("far" in self.exp and mods == "both"): a(f"buffer_store_dwordx4 {vr(T0)}, {vL16}, {WS}, {soff} offen", "flag")
        if mods in ("far", "both"): a(f"buffer_store_dwordx4 {vr(T0)}, {vL16}, {WS}, s65 offen sc1", "flag")
        a("s_mov_b64 exec, -1")
    def poll2(self, soff, vflag, same_die, mask=None, hook=None):
        a = self.a
        t = f"v{T0}"
        L = a.label("Lpoll"); L2 = a.label("Lpoll"); L3 = a.label("Lpoll")
        a(f"s_mov_b32 {sTO}, 0\ns_branch {L2}")
        a(f"{L}:")
        if self.psleep: a(f"s_sleep {self.psleep}")
        a(f"{L2}:")
        a(f"s_and_b32 s65, {sTO}, 7\ns_cmp_eq_u32 s65, 7\ns_cselect_b32 s67, {FAR}, 0\ns_add_u32 s65, {soff}, s67")
        a(f"buffer_load_dword {t}, {vflag}, {WS}, s65 offen sc1")
        a(f"s_add_u32 {sTO}, {sTO}, 1\ns_cmp_gt_u32 {sTO}, 100000\ns_cbranch_scc1 L_end")
        a.wait_vm()
        if hook:
            a(f"s_cmp_lg_u32 {sTO}, 5\ns_cbranch_scc1 {L3}")
            a(f"v_mov_b32 v0, {t}")
            hook()
            a(f"v_mov_b32 {t}, v0")
            a(f"{L3}:")
        if same_die: a(f"s_cmp_eq_u32 s67, 0\ns_cselect_b32 s65, {sTAGX}, {sTAG}\ns_cselect_b32 s66, 1, 16")
        else: a(f"s_mov_b32 s65, {sTAG}\ns_mov_b32 s66, 16")
        a(f"v_subrev_u32 {t}, s65, {t}")
        a(f"v_cmp_le_u32 vcc, s66, {t}")
        if mask is not None: a(f"s_and_b32 vcc_lo, vcc_lo, {mask}\ns_cbranch_scc1 {L}")
        else: a(f"s_cbranch_vccnz {L}")
        a.vm = ["flag"] if hook else []
    def signal(self, val):
        a = self.a
        a(f"v_mov_b32 v0, {val}")
        a(f"ds_write_b32 {vCTR}, v0", "sig")
    def wait_ctr(self, grp, val, one=False, sleep=1, tmp=None):
        a = self.a
        L = a.label("Lw"); L2 = a.label("Lw")
        a(f"s_mov_b32 {sTO}, 0\ns_branch {L2}")
        a(f"{L}:")
        if sleep: a(f"s_sleep {sleep}")
        a(f"{L2}:")
        t = T0 if tmp is None else tmp
        if one:
            a(f"v_xor_b32 v{t+1}, {16 if one is True else one}, {vCTR}")
            a(f"ds_read_b32 v{t}, v{t+1}", "ctr")
        else:
            a(f"ds_read_b128 {vr(t)}, {vSCR} offset:{16*grp}", "ctr")
        a(f"s_add_u32 {sTO}, {sTO}, 1\ns_cmp_gt_u32 {sTO}, 1000000\ns_cbranch_scc1 L_end")
        a.wait_lg()
        if not one:
            a(f"v_min_u32 v{t}, v{t}, v{t+1}\nv_min3_u32 v{t}, v{t}, v{t+2}, v{t+3}")
        a(f"v_readfirstlane_b32 s64, v{t}")
        a(f"s_cmp_lt_u32 s64, {val}\ns_cbranch_scc1 {L}")
    def xlane_sum(self, v, t):
        a = self.a
        a(f"v_mov_b32 {t}, {v}\nv_permlane16_swap_b32 {v}, {t}\nv_add_f32 {v}, {v}, {t}")
        a(f"v_mov_b32 {t}, {v}\nv_permlane32_swap_b32 {v}, {t}\nv_add_f32 {v}, {v}, {t}")
    def bf16r(self, v):
        self.a(f"v_cvt_pk_bf16_f32 {v}, {v}, {v}\nv_lshlrev_b32 {v}, 16, {v}")
    def ln_consts(self, vS, vQ, K, t):
        a = self.a
        vNM, vSD, vC1, vC2 = K
        a(f"v_mul_f32 {vS}, 0x3ae38e39, {vS}")
        a(f"v_mul_f32 {t}, {vS}, {vS}")
        a(f"v_mov_b32 {vC1}, 0x3ae38e39")
        a(f"v_fma_f32 {vQ}, {vQ}, {vC1}, -{t}")
        a(f"v_max_f32 {vQ}, 0, {vQ}")
        self.bf16r(vQ)
        a(f"v_add_f32 {vQ}, 0x3727c5ac, {vQ}")
        self.bf16r(vQ)
        a(f"v_sqrt_f32 {vSD}, {vQ}")
        self.bf16r(vSD)
        self.bf16r(vS)
        a(f"v_sub_f32 {vNM}, 0, {vS}")
        a(f"v_rcp_f32 {t}, {vSD}")
        a(f"v_mul_f32 {vC1}, 0xc0135761, {t}")
        a(f"v_mul_f32 {vC2}, {t}, {t}")
        a(f"v_mul_f32 {vC2}, {vC2}, {t}")
        a(f"v_mul_f32 {vC2}, 0xbdd2d3e8, {vC2}")
    def gelu_ops(self, acc, cs, K, t):
        vNM, vSD, vC1, vC2 = K
        return [f"v_fma_f32 {acc}, {cs}, {vNM}, {acc}",
                f"v_mul_f32 {t}, {acc}, {acc}",
                f"v_fma_f32 {t}, {t}, {vC2}, {vC1}",
                f"v_mul_f32 {t}, {t}, {acc}",
                f"v_exp_f32 {t}, {t}",
                f"v_fma_f32 {t}, {t}, {vSD}, {vSD}",
                f"v_rcp_f32 {t}, {t}",
                f"v_mul_f32 {acc}, {acc}, {t}"]
    def gelu4(self, acc0, cs0, K, t0):
        seqs = [self.gelu_ops(f"v{acc0+i}", f"v{cs0+i}", K, f"v{t0+i}") for i in range(4)]
        for k in range(8):
            for s in seqs: self.a(s[k])
    def gelu_pk(self, groups, t0):
        a = self.a
        P = [(acc + 2 * h, cs + 2 * h, K, t0 + 4 * g + 2 * h) for g, (acc, cs, K) in enumerate(groups) for h in range(2)]
        for x, c, K, t in P: a(f"v_pk_fma_f32 {vr(x,2)}, {vr(c,2)}, {vr(K,2)}, {vr(x,2)} op_sel_hi:[1,0,1]")
        for x, c, K, t in P: a(f"v_pk_mul_f32 {vr(t,2)}, {vr(x,2)}, {vr(x,2)}")
        for x, c, K, t in P: a(f"v_pk_fma_f32 {vr(t,2)}, {vr(t,2)}, {vr(K+2,2)}, {vr(K+2,2)} op_sel:[0,1,0] op_sel_hi:[1,1,0]")
        for x, c, K, t in P: a(f"v_pk_mul_f32 {vr(t,2)}, {vr(t,2)}, {vr(x,2)}")
        for x, c, K, t in P: a(f"v_exp_f32 v{t}, v{t}\nv_exp_f32 v{t+1}, v{t+1}")
        for x, c, K, t in P: a(f"v_pk_fma_f32 {vr(t,2)}, {vr(t,2)}, {vr(K,2)}, {vr(K,2)} op_sel:[0,1,1] op_sel_hi:[1,1,1]")
        for x, c, K, t in P: a(f"v_rcp_f32 v{t}, v{t}\nv_rcp_f32 v{t+1}, v{t+1}")
        for x, c, K, t in P: a(f"v_pk_mul_f32 {vr(x,2)}, {vr(x,2)}, {vr(t,2)}")
    def srd(self, name, ptr, nbytes):
        b = int(name[2:name.index(":")]); a = self.a
        a(f"s_mov_b32 s{b}, s{ptr}\ns_mov_b32 s{b+1}, s{ptr+1}\ns_mov_b32 s{b+2}, {nbytes}\ns_mov_b32 s{b+3}, 0x20000")
    def modn(self, s, n):
        self.a(f"s_sub_u32 s65, {s}, {n}\ns_min_u32 {s}, {s}, s65")
    def tr_bases(self, dst, base):
        a = self.a; t0, t1 = f"v{T0}", f"v{T0+1}"
        a(f"v_lshrrev_b32 {t0}, 2, {vLANE}")
        a(f"v_bfe_u32 {t1}, {vLANE}, 3, 2")
        a(f"v_lshlrev_b32 {t0}, 7, {t0}\nv_and_b32 {dst[0]}, 3, {vLANE}\nv_lshl_add_u32 {t0}, {dst[0]}, 3, {t0}")
        a(f"v_add_u32 {t0}, {base}, {t0}")
        for u in range(4):
            a(f"v_xor_b32 {dst[u]}, {u}, {t1}\nv_lshl_add_u32 {dst[u]}, {dst[u]}, 5, {t0}")
    def common_late(self, barrier=True):
        a = self.a
        for i in range(5): a(f"s_mov_b32 {sC[i]}, {4096*i}")
        self.srd(W2, 8, 663552)
        self.srd(OUT, 14, 1179648); self.srd(DBG, 16, 256); self.srd(WS, 18, 0x10000000)
        a(f"s_add_u32 s52, s18, {H_OFF}\ns_addc_u32 s53, s19, 0\ns_mov_b32 s54, {FRAGSZ+FAR}\ns_mov_b32 s55, 0x20000")
        if "tlb" in self.exp:
            L = a.label("Ltlb")
            a(f"s_cmp_lg_u32 {sWV}, 2\ns_cbranch_scc1 {L}")
            a(f"v_mov_b32 v{T0}, 0\ns_mov_b64 exec, 1")
            def touch(srd, so): a(f"buffer_load_dword {DUMMY}, v{T0}, {srd}, {so} offen", "_untracked")
            a(f"s_mov_b32 s64, {ST_OFF}"); touch(WS, "s64")
            a(f"s_mov_b32 s64, {X1_OFF}"); touch(WS, "s64")
            touch(W2, 0)
            a(f"s_mul_i32 s64, {sM}, {8*147456}\ns_add_u32 s64, s64, {H3_OFF}"); touch(WS, "s64")
            a(f"s_add_u32 s64, s64, {8*147456-4}"); touch(WS, "s64")
            a(f"s_mul_i32 s64, {sR}, {9*32*1024}\ns_add_u32 s64, s64, {P_OFF}"); touch(WS, "s64")
            a(f"s_add_u32 s64, s64, {9*32*1024-4}"); touch(WS, "s64")
            for q in range(3):
                a(f"s_mov_b32 s64, {q*0x200000}"); touch(W3, "s64")
            a(f"s_mov_b32 s64, {5308416-4}"); touch(W3, "s64")
            a(f"s_mul_i32 s64, {sX}, 663552"); touch(W4, "s64")
            a(f"s_add_u32 s64, s64, {663552-4}"); touch(W4, "s64")
            touch(OUT, 0)
            a("s_mov_b64 exec, -1")
            a(f"{L}:")
        a(f"v_add_u32 {vLB[1]}, 0x10000, {vLB[0]}\nv_add_u32 {vLB[2]}, 0x20000, {vLB[0]}")
        a(f"v_min_u32 {vFLG}, 17, {vLANE}\nv_lshlrev_b32 {vFLG}, 7, {vFLG}")
        a(f"v_mov_b32 {vSCR}, {SCR}\ns_lshl_b32 s64, {sWV}, 2\nv_add_u32 {vCTR}, s64, {vSCR}")
        a(f"v_mov_b32 v{T0}, 0\nds_write_b32 {vCTR}, v{T0}\nds_write_b32 {vSCR}, v{T0} offset:32\nds_write_b32 {vSCR}, v{T0} offset:36")
        a.wait_lg()
        a("s_waitcnt lgkmcnt(0)")
        a(f"s_add_u32 {sE}, {sE}, 1\ns_and_b32 {sTAG8}, {sE}, 0xff\ns_mul_i32 {sTAG}, {sE}, 0x9e3779b1\ns_xor_b32 {sTAG}, {sTAG}, 0x5bd1e995")
        def fs(off):
            L = a.label("Lfs")
            a(f"s_cmp_lg_u32 {sWV}, 3\ns_cbranch_scc1 {L}")
            a(f"s_getreg_b32 s65, hwreg(HW_REG_XCC_ID)\ns_and_b32 s65, s65, 15\ns_add_u32 s65, s65, {sTAG}")
            a(f"s_lshl_b32 s64, {sX}, 5\ns_add_u32 s64, s64, {sR}\ns_lshl_b32 s64, s64, 7\ns_add_u32 s64, s64, {off}")
            a(f"v_mov_b32 v{T0}, {sTAG}\nv_mov_b32 v{T0+1}, s65\nv_mov_b32 v{T0+2}, {sTAG}\nv_mov_b32 v{T0+3}, s65\ns_mov_b64 exec, 0xff")
            a(f"buffer_store_dwordx4 {vr(T0)}, {vL16}, {WS}, s64 offen sc1", "_untracked")
            a("s_mov_b64 exec, -1")
            a(f"{L}:")
        self.fs = fs
        a(f"s_getreg_b32 s65, hwreg(HW_REG_XCC_ID)\ns_and_b32 s65, s65, 15\ns_add_u32 {sTAGX}, s65, {sTAG}")
        if "far" in self.exp: a(f"s_and_b32 s65, s2, 15\ns_add_u32 {sTAGX}, s65, {sTAG}")
        if barrier: a("s_barrier")

    def build(self):
        a = self.a
        a("s_cmp_ge_u32 s2, 256\ns_cbranch_scc1 L_end")
        a("s_load_dwordx16 s[4:19], s[0:1], 0")
        a("s_getpc_b64 s[66:67]\nL_pc:")
        a(f"v_and_b32 {vLANE}, 63, v0\nv_lshrrev_b32 {vG}, 6, v0")
        a(f"s_and_b32 {sX}, s2, 7\ns_lshr_b32 {sR}, s2, 3")
        a(f"v_readfirstlane_b32 {sWV}, {vG}")
        a(f"s_lshl_b32 s64, {sR}, 11\nv_lshlrev_b32 v{T0}, 2, v0\nv_add_u32 v{T0}, s64, v{T0}")
        a(f"v_min_u32 v{T0}, L_code_end-L_pc-4, v{T0}")
        a(f"global_load_dword {DUMMY}, v{T0}, s[66:67]", "code")
        a(f"v_lshlrev_b32 {vL16}, 4, {vLANE}\nv_lshrrev_b32 {vG}, 4, {vLANE}\nv_and_b32 {vJ}, 15, {vLANE}")
        a(f"s_and_b32 {sW}, {sWV}, 3\ns_lshl_b32 {sWK}, {sW}, 10")
        a(f"v_mov_b32 {vSTAMP}, 0")
        a(f"s_lshr_b32 {sM}, {sR}, 2\ns_and_b32 {sJ}, {sR}, 3")
        a(f"s_cmp_ge_u32 {sR}, 9\ns_cselect_b32 {sMT}, 1, 0\ns_mul_i32 s64, {sMT}, 9\ns_sub_u32 {sNT}, {sR}, s64")
        a(f"s_cmp_ge_u32 {sR}, {NACT}\ns_cbranch_scc1 L_repack")
        a(f"s_cmp_ge_u32 {sWV}, 4\ns_cbranch_scc1 L_h_act")
        self.c_phaseA()
        a("s_branch L_c_mlp")
        a("L_h_act:")
        self.reset(0); a.vm = ["code"]
        self.h_phaseA()
        a("s_branch L_h_mlp")
        a("L_repack:")
        self.reset(0); a.vm = ["code"]
        self.repack()
        a("L_split:")
        a(f"s_cmp_ge_u32 {sWV}, 4\ns_cbranch_scc1 L_h_mlp")
        a("L_c_mlp:")
        a("s_waitcnt lgkmcnt(0)")
        self.reset(24); a.vm = ["old"] * 4
        if self.stop > 2: self.c_mlp()
        a("s_branch L_fin")
        a("L_h_mlp:")
        a("s_waitcnt lgkmcnt(0)")
        self.reset(24); a.vm = ["old"] * 4
        self.h_mlp()
        a("L_fin:")
        self.reset(63)
        if self.stamps:
            self.stamp()
            a(f"s_lshl_b32 s64, s2, 3\ns_add_u32 s64, s64, {sWV}\ns_lshl_b32 s64, s64, 8\ns_add_u32 s64, s64, {STAMP_OFF}")
            a(f"v_lshlrev_b32 v{T0}, 2, {vLANE}")
            a(f"buffer_store_dword {vSTAMP}, v{T0}, {WS}, s64 offen")
        a("L_end:\ns_endpgm")
        a.flush_deferred()
        a("L_code_end:")
        return self.wrap(a.text())

    def kernarg_wait(self):
        a = self.a
        a("s_waitcnt lgkmcnt(0)")
        a(f"s_load_dword {sE}, s[18:19], 0")

    STEPS = (((0,), (0, 1)), ((1,), (2, 3)), ((2, 3), (4, 5)), ((4, 5, 6), (6, 7)), ((7, 8), (8, 9, 10)), ((), (11, 12, 13, 14, 15, 16, 17)))
    def ctr_issue(self, grp, dst):
        self.a(f"ds_read_b128 {vr(dst)}, {vSCR} offset:{16*grp}", f"ctrp{dst}")
    def ctr_check(self, grp, dst, val, tmp=None):
        a = self.a
        a.wait_lg(f"ctrp{dst}")
        a(f"v_min_u32 v{dst}, v{dst}, v{dst+1}\nv_min3_u32 v{dst}, v{dst}, v{dst+2}, v{dst+3}")
        a(f"v_readfirstlane_b32 s64, v{dst}")
        a(f"s_cmp_ge_u32 s64, {val}")
        a.slow(lambda: self.wait_ctr(grp, val, tmp=tmp))
    def c_phaseA(self):
        a = self.a
        def XF(t, s): return BF0 + 72 * t + 4 * s
        HF = BF0
        t0, t1, t2 = f"v{T0}", f"v{T0+1}", f"v{T0+2}"
        CT = T0 + 8
        ACC = ACC0; CS = ACC0 + 16; SUM = ACC0 + 24; GR = ACC0 + 28; OB = ACC0 + 32; XR = ACC0 + 36; KR = ACC0 + 44; PK = ACC0 + 16
        vXB = [[f"v{ACC0+52+2*t+q}" for q in range(2)] for t in range(2)]
        vT = [[f"v{ACC0+56+2*f+h}" for h in range(2)] for f in range(2)]
        vBP = [f"v{ACC0+60}", f"v{ACC0+61}"]
        vXR = [f"v{T0+4+i}" for i in range(4)]
        a(f"s_lshl_b32 s69, {sX}, 3\ns_lshl_b32 s64, {sMT}, 2\ns_add_u32 s69, s69, s64\ns_add_u32 s69, s69, {sW}")
        a(f"v_lshlrev_b32 {t0}, 6, {vLANE}")
        a(f"s_lshl_b32 s64, {sR}, 2\ns_add_u32 s64, s64, {sW}\ns_lshl_b32 s70, s64, 12\ns_add_u32 s70, s70, {3*32*1152}")
        self.kernarg_wait()
        self.srd(W1, 6, 663552)
        self.stamp()
        a(f"buffer_load_dword {DUMMY}, {t0}, {W1}, s70 offen", "pf")
        if "wstlb" in self.exp:
            a(f"v_mov_b32 {t1}, 256")
            a(f"global_load_dword {DUMMY}, {t1}, s[18:19]", "pf")
        self.srd(X, 4, 1179648); self.srd(W3, 10, 5308416); self.srd(W4, 12, 5308416)
        self.common_late()
        for i in range(4): a(f"v_mov_b32 v{OB+i}, 0x3f803f80")
        a(f"s_and_b32 s68, {sW}, 1\ns_lshr_b32 s67, {sW}, 1")
        a(f"v_lshlrev_b32 {t0}, 7, {vJ}\nv_lshrrev_b32 {t1}, 1, {vJ}")
        for t in range(2):
            a(f"s_xor_b32 s64, {sW}, {t}\ns_lshl_b32 s64, s64, 11\ns_add_u32 s64, s64, {72*1024}")
            for par in range(2):
                a(f"v_add_u32 {t2}, {4*par}, {vG}\nv_xor_b32 {t2}, {t2}, {t1}\nv_lshl_add_u32 {t2}, {t2}, 4, {t0}\nv_add_u32 {vXB[t][par]}, s64, {t2}")
        a(f"v_lshrrev_b32 {t0}, 2, {vLANE}\nv_lshlrev_b32 {t0}, 7, {t0}\nv_and_b32 {t1}, 3, {vLANE}\nv_lshl_add_u32 {t0}, {t1}, 3, {t0}\nv_bfe_u32 {t1}, {vLANE}, 3, 2")
        for f in range(2):
            a(f"s_xor_b32 s64, s67, {f}\ns_lshl_b32 s65, s68, 1\ns_add_u32 s64, s64, s65")
            a(f"v_xor_b32 {t2}, s64, {t1}\nv_lshl_add_u32 {vT[f][0]}, {t2}, 5, {t0}\nv_add_u32 {vT[f][1]}, {9*4096}, {vT[f][0]}")
        a(f"s_lshl_b32 s64, {sW}, 11\ns_lshl_b32 s65, {sNT}, 13\ns_add_u32 s64, s64, s65\ns_add_u32 s64, s64, {72*1024}")
        a(f"v_lshlrev_b32 {t0}, 7, {vJ}\nv_add_u32 {t0}, s64, {t0}\nv_and_b32 {t1}, 1, {vG}\nv_lshl_add_u32 {t0}, {t1}, 3, {t0}")
        a(f"v_lshrrev_b32 {t1}, 1, {vJ}\nv_lshrrev_b32 {t2}, 1, {vG}\nv_xor_b32 {t1}, {t1}, {t2}")
        for u in range(4): a(f"v_xor_b32 {t2}, {2*u}, {t1}\nv_lshl_add_u32 {vXR[u]}, {t2}, 4, {t0}")
        a(f"s_mul_i32 s64, s69, 18\ns_lshl_b32 s65, {sNT}, 1\ns_add_u32 s64, s64, s65\ns_lshl_b32 s77, s64, 10")
        a(f"s_lshl_b32 s64, s68, 10\ns_add_u32 s72, s77, s64")
        a(f"s_mul_i32 s64, s68, {2*18432}\ns_sub_u32 s73, s72, s64\ns_add_u32 s73, s73, 18432")
        a(f"s_lshr_b32 s64, s69, 1\ns_lshl_b32 s76, s64, 12")
        a(f"s_mul_i32 s64, s68, 9\ns_add_u32 s64, s64, {sNT}\ns_lshl_b32 s64, s64, 7\ns_add_u32 s75, s64, s76")
        a(f"s_lshl_b32 s64, {sNT}, 1\ns_add_u32 s64, s64, s68\ns_lshl_b32 s64, s64, 7\ns_add_u32 s71, s64, s76\ns_add_u32 s71, s71, {F1_OFF}")
        a(f"s_mul_i32 s74, s69, 18432")
        MS = [[f"s[{92+4*u+2*t}:{93+4*u+2*t}]" for t in range(2)] for u in range(2)]
        MO = [["s[100:101]", "s[78:79]"], ["s[0:1]", "vcc"]]
        for u in range(2):
            a(f"s_lshl_b32 s64, {sNT}, 2\ns_lshl_b32 s65, s68, 1\ns_add_u32 s64, s64, s65\ns_add_u32 s64, s64, {u}\ns_mul_i32 s64, s64, 7282\ns_lshr_b32 s64, s64, 16")
            a(f"s_lshr_b32 s65, s64, 1\ns_add_u32 s65, s65, 1\ns_sub_u32 s66, 0, s65\ns_bitcmp1_b32 s64, 0\ns_cselect_b32 s65, s66, s65")
            a(f"v_subrev_u32 {t0}, s65, {vJ}")
            a(f"v_and_b32 {t1}, 15, {t0}\nv_lshl_add_u32 {t1}, {vG}, 4, {t1}\nv_lshlrev_b32 {vBP[u]}, 2, {t1}")
            a(f"v_cmp_gt_u32 {MS[u][0]}, 16, {t0}")
            for t in range(2):
                a(f"s_xor_b32 s64, s68, {t}\ns_lshl_b32 s64, s64, 4\nv_add_u32 {t1}, s64, {t0}")
                dst = MS[u][1] if t == 0 else ("s[100:101]" if u == 0 else "s[78:79]")
                a(f"v_cmp_gt_u32 {dst}, 32, {t1}")
        VAL = [[MS[0][1], "s[100:101]"], [MS[1][1], "s[78:79]"]]
        def xread(t, k):
            off = 8192 * (k >> 1)
            if off < 65536: a(f"ds_read_b128 {vr(XF(t,k))}, {vXB[t][k&1]} offset:{off}", f"x{t}_{k}")
            else:
                a(f"v_add_u32 v0, {off}, {vXB[t][k&1]}")
                a(f"ds_read_b128 {vr(XF(t,k))}, v0", f"x{t}_{k}")
        order = [(s, f) for s in range(18) for f in range(2)]
        step_of = {s: i for i, (xl, kk) in enumerate(self.STEPS) for s in kk}
        first_n = {i: 2 * kk[0] for i, (xl, kk) in enumerate(self.STEPS)}
        fr = {}; st = {"done": -1, "nxt": 0}
        xq = []; statq = []
        LOOK = 5
        def xr():
            t, k = xq.pop(0); xread(t, k)
            if t == 0: statq.append(k)
        def half(h):
            n = st["nxt"]; s, f = order[n]
            if h == 0:
                i = step_of[s]
                if i > st["done"]:
                    if i == 0: self.wait_ctr(1, 1, sleep=0, tmp=CT); self.stamp()
                    else: self.ctr_check(1, CT, i + 1, tmp=CT)
                    st["done"] = i
                    xq.extend((t, 2 * L + q) for L in self.STEPS[i][0] for q in range(2) for t in range(2))
                while xq and xq[0][1] <= s: xr()
                fr[n] = self.next_af()
            a(f"ds_read_b64_tr_b16 {vr(fr[n]+2*h,2)}, {vT[f][0 if s < 9 else 1]} offset:{(s%9)*4096+2048*h}", f"f{n}")
            if h == 1:
                st["nxt"] += 1
                i = step_of[s]
                if i + 1 < len(self.STEPS) and n == first_n[i + 1] - 2: self.ctr_issue(1, CT)
        for n in range(4): half(0); half(1)
        vS, vQ = f"v{SUM}", f"v{GR}"
        q = Asm(); self.a = q
        q(f"v_and_b32 {t0}, 3, {vJ}")
        for r in range(1, 4):
            q(f"v_cmp_eq_u32 vcc, {r}, {t0}")
            q(f"v_cndmask_b32 {vQ}, {vQ}, v{GR+r}, vcc")
        q(f"v_lshrrev_b32 {t0}, 2, {vJ}\nv_cmp_eq_u32 vcc, {t0}, {vG}")
        q(f"v_cndmask_b32 {vQ}, 0, {vQ}, vcc")
        self.xlane_sum(vQ, t0)
        self.ln_consts(vS, vQ, [f"v{KR+i}" for i in range(4)], t0)
        q(f"s_lshl_b32 s65, {sW}, 8\ns_add_u32 s65, s65, {KC_OFF}\nv_lshl_add_u32 {vXR[0]}, {vJ}, 4, s65\nv_xor_b32 {vXR[1]}, 256, {vXR[0]}")
        q(f"ds_write_b128 {vXR[0]}, {vr(KR)}")
        q(f"s_lshl_b32 s65, {sW}, 6\nv_lshl_add_u32 {vXR[2]}, {vG}, 4, {vSCR}\nv_add_u32 {vXR[2]}, s65, {vXR[2]}\nv_xor_b32 {vXR[3]}, 128, {vXR[2]}")
        self.a = a
        fill = [i.text for i in q.ins]
        nstat = 0; ready = None
        def slot():
            if xq:
                xr()
                if xq: xr()
            elif ready is not None and fill: a(fill.pop(0), "kw")
        for n, (s, f) in enumerate(order):
            a.wait_lg([f"f{n}", f"x0_{s}", f"x1_{s}"])
            go = st["nxt"] < len(order)
            for t in range(2):
                a(f"{MFMA} {vr(ACC+8*f+4*t)}, {vr(fr[n])}, {vr(XF(t,s))}, {'0' if s == 0 else vr(ACC+8*f+4*t)}")
                if go: half(t)
                else: slot()
                if t == 0: slot()
            if f == 0:
                a(f"{MFMA} {vr(CS)}, {vr(fr[n])}, {vr(OB)}, {'0' if s == 0 else vr(CS)}")
                slot()
            for _ in range(2):
                if len(statq) > (1 if xq else 0):
                    k = statq.pop(0)
                    a.wait_lg(f"x0_{k}")
                    a(f"{MFMA} {vr(SUM)}, {vr(OB)}, {vr(XF(0,k))}, {'0' if k == 0 else vr(SUM)}")
                    slot(); slot()
                    a(f"{MFMA} {vr(GR)}, {vr(XF(0,k))}, {vr(XF(0,k))}, {'0' if k == 0 else vr(GR)}")
                    slot()
                    nstat += 1
            if st["done"] >= 4 and not xq and "xr" not in st:
                for uu in range(4): a(f"ds_read_b64 {vr(XR+2*uu,2)}, {vXR[uu]}", "xr")
                st["xr"] = n
            if "xr" in st and n == st["xr"] + 1:
                a.wait_lg("xr"); self.signal(1)
            if nstat == 18 and ready is None:
                ready = n
                self.stamp()
        while fill: a(fill.pop(0), "kw")
        a(f"ds_write_b128 {vXR[2]}, {vr(CS)} offset:{CS3_OFF}", "csw")
        self.signal(2)
        self.stamp()
        TB = XF(0, 0)
        self.gelu_pk([(ACC, CS, KR)], TB)
        self.wait_ctr(0, 2, sleep=0)
        a(f"ds_read_b128 {vr(KR+4)}, {vXR[1]}", "rk")
        a(f"ds_read_b128 {vr(CS+4)}, {vXR[3]} offset:{CS3_OFF}", "rk")
        a.wait_lg()
        self.signal(3)
        self.gelu_pk([(ACC + 4, CS, KR + 4), (ACC + 8, CS + 4, KR), (ACC + 12, CS + 4, KR + 4)], TB)
        P = TB + 20; R = TB + 28; O = KR
        for f in range(2):
            for t in range(2):
                for d in range(2): a(f"v_cvt_pk_bf16_f32 v{P+4*f+2*t+d}, v{ACC+8*f+4*t+2*d}, v{ACC+8*f+4*t+2*d+1}")
        L = a.label("Lsw")
        a(f"s_cmp_eq_u32 s67, 0\ns_cbranch_scc1 {L}")
        for e in range(4): a(f"v_swap_b32 v{P+e}, v{P+4+e}")
        a(f"{L}:")
        for u in range(2):
            for e in range(4): a(f"ds_bpermute_b32 v{R+4*u+e}, {vBP[u]}, v{P+4*u+e}", "bp")
        a.wait_lg()
        for t in range(2):
            for u in range(2):
                for d in range(2):
                    o = O + 4 * t + 2 * u + d
                    a(f"v_cndmask_b32 v{o}, v{R+4*u+2*(1-t)+d}, v{R+4*u+2*t+d}, {MS[u][0]}")
                    a(f"v_cndmask_b32 v{o}, 0, v{o}, {VAL[u][t]}")
            a(f"buffer_store_dwordx4 {vr(O+4*t)}, {vL16}, {HS}, {'s72' if t == 0 else 's73'} offen", "hst")
        self.stamp()
        vT2 = [[f"v{ACC0+52+2*u+h}" for h in range(2)] for u in range(4)]; vSH = f"v{ACC0+60}"
        a(f"v_lshrrev_b32 {t0}, 2, {vLANE}\nv_lshlrev_b32 {t0}, 7, {t0}\nv_and_b32 {t1}, 3, {vLANE}\nv_lshl_add_u32 {t0}, {t1}, 3, {t0}\nv_bfe_u32 {t1}, {vLANE}, 3, 2\nv_add_u32 {t0}, {72*1024}, {t0}")
        for u in range(4): a(f"v_xor_b32 {t2}, {u}, {t1}\nv_lshl_add_u32 {vT2[u][0]}, {t2}, 5, {t0}\nv_add_u32 {vT2[u][1]}, {9*4096}, {vT2[u][0]}")
        a(f"v_add_u32 {vSH}, s74, {vL16}")
        self.set_flag("s71", "near")
        a(f"s_add_u32 s72, s72, {FAR}\ns_add_u32 s73, s73, {FAR}")
        a("s_mov_b32 s70, 0")
        def far_st(tag):
            for t in range(2): a(f"buffer_store_dwordx4 {vr(O+4*t)}, {vL16}, {HS}, {'s72' if t == 0 else 's73'} offen sc1", tag)
        def far_copy():
            far_st("hfar")
            self.set_flag("s71", "far")
            a("s_mov_b32 s70, 1")
        self.stamp()
        order = [(s, u) for s in range(18) for u in range(4)]
        pool = [BF0 + 72 + 4 * i for i in range(18)] + [AF0 + 4 * i for i in range(6)]
        fr = {}; nx = [0]
        def rd2():
            n = nx[0]; s, u = order[n]
            fr[n] = self.read_tr(vT2[u][0 if s < 9 else 1], (s % 9) * 4096, f"f{n}", dst=pool.pop(0)); nx[0] += 1
        self.wait_ctr(1, 7, sleep=0)
        while pool: rd2()
        a(f"s_add_u32 s64, s76, {F1_OFF}")
        self.poll2("s64", vFLG, True, hook=far_copy)
        a(f"v_add_u32 {vSH}, s67, {vSH}")
        self.stamp()
        for s in range(18):
            a(f"buffer_load_dwordx4 {vr(HF+4*s)}, {vSH}, {HS}, {sC[s>>2]} offen offset:{(s&3)*1024} sc1", f"h{s}")
        far_st("hfar")
        self.stamp()
        for n, (s, u) in enumerate(order):
            if u == 0: a.wait_vm(f"h{s}")
            a.wait_lg(f"f{n}")
            a(f"{MFMA} {vr(ACC+4*u)}, {vr(fr[n])}, {vr(HF+4*s)}, {'0' if s == 0 else vr(ACC+4*u)}")
            pool.append(fr[n])
            if nx[0] < len(order): rd2()
        self.signal(4)
        self.stamp()
        vS, vQ = f"v{SUM}", f"v{SUM+1}"
        a(f"v_mov_b32 {vS}, 0\nv_mov_b32 {vQ}, 0")
        a(f"s_add_u32 s64, s77, {X1_OFF}")
        for d in range(8):
            t3 = f"v{T0+3}"
            a(f"v_cvt_pk_bf16_f32 {t0}, v{ACC+2*d}, v{ACC+2*d+1}")
            a(f"v_lshlrev_b32 {t1}, 16, {t0}\nv_and_b32 {t0}, 0xffff0000, {t0}")
            a(f"v_lshlrev_b32 {t2}, 16, v{XR+d}\nv_and_b32 {t3}, 0xffff0000, v{XR+d}")
            a(f"v_add_f32 {t1}, {t1}, {t2}\nv_add_f32 {t0}, {t0}, {t3}")
            a(f"v_cvt_pk_bf16_f32 v{PK+d}, {t1}, {t0}")
            if d & 3 == 3: a(f"buffer_store_dwordx4 {vr(PK+d-3)}, {vL16}, {WS}, s64 offen offset:{1024*(d>>2)} sc1", "x1st")
        for d in range(8):
            a(f"v_dot2_f32_bf16 {vS}, v{PK+d}, v{OB}, {vS}")
            a(f"v_dot2_f32_bf16 {vQ}, v{PK+d}, v{PK+d}, {vQ}")
        self.xlane_sum(vS, t0); self.xlane_sum(vQ, t0)
        a(f"s_lshr_b32 s64, s69, 1\ns_mul_i32 s64, s64, 12\ns_add_u32 s64, s64, {sNT}\ns_lshl_b32 s64, s64, 8")
        a(f"s_and_b32 s65, s69, 1\ns_lshl_b32 s65, s65, 7\ns_add_u32 s64, s64, s65\ns_add_u32 s64, s64, {ST_OFF}")
        a(f"v_lshlrev_b32 {t0}, 3, {vJ}")
        a("s_mov_b64 exec, 0xffff")
        a(f"buffer_store_dwordx2 {vr(SUM,2)}, {t0}, {WS}, s64 offen sc1", "x1st")
        a("s_mov_b64 exec, -1")
        self.stamp()
        a(f"s_add_u32 s64, s75, {F2_OFF}")
        self.set_flag("s64", "sc1")
        self.set_flag("s71", "far", "none")
        self.signal(5)
        self.stamp()

    def h_phaseA(self):
        a = self.a
        vD1, vD2, vDX, vDX2 = "v48", "v49", "v50", "v51"
        vXB = [f"v{52+e}" for e in range(4)]; OB = 56; SUM = 60; GR = 64; KR = 68; XH = 112
        t0, t1, t2 = f"v{T0}", f"v{T0+1}", f"v{T0+2}"
        ks = 32 * 1152
        a(f"s_lshl_b32 s69, {sX}, 3\ns_lshl_b32 s64, {sMT}, 2\ns_add_u32 s69, s69, s64\ns_add_u32 s69, s69, {sW}\ns_mul_i32 s71, s69, 18432")
        a(f"v_lshrrev_b32 {t0}, 3, {vLANE}\nv_lshrrev_b32 {t1}, 4, {vLANE}\nv_and_b32 {t2}, 7, {vLANE}\nv_xor_b32 {t1}, {t1}, {t2}")
        a(f"v_mul_u32_u24 {vDX}, 1152, {t0}\nv_lshl_add_u32 {vDX}, {t1}, 4, {vDX}")
        a(f"v_xor_b32 {vDX2}, 64, {vDX}\nv_add_u32 {vDX2}, {8*1152}, {vDX2}")
        a(f"s_lshl_b32 s64, {sW}, 3\nv_add_u32 {t0}, s64, {t0}")
        a(f"v_and_b32 {t1}, 6, {t0}\nv_xor_b32 {t1}, {t1}, {t2}\nv_lshlrev_b32 {t1}, 4, {t1}")
        a(f"v_mul_u32_u24 {vD2}, 1152, {t0}\nv_add_u32 {vD2}, {vD2}, {t1}")
        a(f"v_and_b32 {t2}, 12, {t0}\nv_lshlrev_b32 {t2}, 1, {t2}\nv_and_b32 {vD1}, 3, {t0}\nv_add_u32 {t2}, {t2}, {vD1}")
        a(f"v_lshrrev_b32 {t0}, 4, {t0}\nv_lshl_add_u32 {t0}, {t0}, 2, {t2}")
        a(f"v_mul_u32_u24 {vD1}, 1152, {t0}\nv_add_u32 {vD1}, {vD1}, {t1}")
        a(f"s_lshl_b32 s79, {sNT}, 7\ns_mov_b32 s70, s79\ns_lshl_b32 s72, {sW}, 11\ns_add_u32 s72, s72, {72*1024}")
        self.kernarg_wait()
        self.srd(X, 4, 1179648); self.srd(W1, 6, 663552)
        self.stamp()
        NS = len(self.STEPS)
        for i, (xl, kk) in enumerate(self.STEPS):
            for L in xl:
                a(f"s_add_u32 m0, s72, {8192*L}")
                a(f"buffer_load_dwordx4 {vDX}, {X}, s71 offen lds", f"ld{i}")
                a(f"s_add_u32 m0, s72, {8192*L+1024}")
                a(f"buffer_load_dwordx4 {vDX2}, {X}, s71 offen lds", f"ld{i}")
                a(f"s_add_u32 s71, s71, 128")
            for s in kk:
                a(f"s_add_u32 m0, {sWK}, {4096*s}")
                a(f"buffer_load_dwordx4 {vD1}, {W1}, s70 offen lds", f"ld{i}")
                a(f"s_add_u32 s70, s70, {ks}")
            if i == 0:
                self.srd(W3, 10, 5308416); self.srd(W4, 12, 5308416)
                self.common_late()
            if i >= 1:
                a.wait_vm(f"ld{i-1}"); self.signal(i)
            if i < 2: self.stamp()
        a.wait_vm(f"ld{NS-1}"); self.signal(NS)
        self.stamp()
        self.wait_ctr(0, 1, sleep=1)
        a(f"s_mov_b32 s70, s79")
        for s in range(18):
            a(f"s_add_u32 m0, {sWK}, {72*1024+4096*s}")
            a(f"buffer_load_dwordx4 {vD2}, {W2}, s70 offen lds", "w2")
            a(f"s_add_u32 s70, s70, {ks}")
        a.wait_vm("w2")
        self.signal(7)
        self.stamp()

    def repack(self):
        a = self.a
        a(f"s_sub_u32 s67, {sR}, {NACT}\ns_lshl_b32 s68, s67, 3\ns_add_u32 s68, s68, {sWV}")
        a(f"s_lshl_b32 s69, {sWV}, 13")
        vR, vCK = "v48", "v49"
        a(f"v_lshrrev_b32 {vR}, 3, {vLANE}")
        a(f"v_and_b32 v{T0}, 6, {vR}\nv_and_b32 {vCK}, 7, {vLANE}\nv_xor_b32 {vCK}, {vCK}, v{T0}\nv_lshlrev_b32 {vCK}, 4, {vCK}")
        a(f"s_lshl_b32 s70, s68, 10\ns_and_b32 s71, s70, 0x7fff\ns_add_u32 s71, s71, {112*1024}\ns_mul_i32 s72, {sX}, 147456")
        self.kernarg_wait()
        self.srd(X, 4, 1179648); self.srd(W1, 6, 663552); self.srd(W2, 8, 663552)
        self.stamp()
        DUM = vr(252)
        a(f"s_add_u32 s64, s70, s72")
        a(f"buffer_load_dwordx4 {DUM}, {vL16}, {X}, s64 offen", "pf")
        a(f"s_add_u32 s64, s71, s72")
        a(f"buffer_load_dwordx4 {DUM}, {vL16}, {X}, s64 offen", "pf")
        a(f"s_add_u32 s64, s70, {11*32*1152}")
        for i in range(3):
            a(f"buffer_load_dwordx4 {DUM}, {vL16}, {W1}, s64 offen", "pf")
            a(f"s_add_u32 s64, s64, {112*1024}")
        self.srd(W3, 10, 5308416); self.srd(W4, 12, 5308416)
        self.common_late()
        a.wait_vm()
        a(f"v_lshlrev_b32 v{T0}, 6, {vLANE}\ns_lshl_b32 s64, s68, 12\ns_add_u32 s65, s64, s72\ns_add_u32 s65, s65, {H_OFF}")
        a(f"s_lshl_b32 s66, {sX}, 14\ns_add_u32 s66, s66, s64\ns_add_u32 s66, s66, {F1_OFF-36*4096}")
        a(f"s_cmp_lt_u32 s68, 36\ns_cselect_b32 s65, s65, s66\ns_cmp_ge_u32 s68, 40\ns_cselect_b32 s65, 0, s65")
        a(f"buffer_load_dword {DUMMY}, v{T0}, {WS}, s65 offen sc1", "pf")
        for i in range(6):
            a(f"buffer_load_dwordx4 {DUM}, {vL16}, {W2}, s70 offen", "pf")
            a(f"s_add_u32 s70, s70, {112*1024}")
        if "xtlb" in self.exp:
            Lt = a.label("Ltl")
            a(f"s_cmp_lg_u32 {sWV}, 7\ns_cbranch_scc1 {Lt}")
            a(f"v_lshlrev_b32 v{T0}, 20, {vLANE}\ns_mov_b64 exec, 0x0fffffff")
            a(f"s_cmp_lg_u32 s67, 13\ns_cbranch_scc1 {Lt}a")
            a(f"buffer_load_dword {DUMMY}, v{T0}, {WS}, 0 offen sc1", "_untracked")
            a(f"{Lt}a:")
            a(f"s_cmp_lg_u32 s67, 12\ns_cbranch_scc1 {Lt}b")
            a(f"buffer_load_dword {DUMMY}, v{T0}, {OUT}, 0 offen sc1", "_untracked")
            a(f"buffer_load_dword {DUMMY}, v{T0}, {W4}, 0 offen", "_untracked")
            a(f"{Lt}b:")
            a("s_mov_b64 exec, -1")
            a(f"{Lt}:")
        a("s_barrier")
        Lno = a.label("Lnj")
        a(f"s_mul_i32 s64, {sWV}, 14\ns_add_u32 s64, s64, s67\ns_cmp_ge_u32 s64, 81\ns_cbranch_scc1 {Lno}")
        vm0 = list(a.vm)
        a(f"s_mul_i32 s70, s64, 7282\ns_lshr_b32 s70, s70, 16\ns_mul_i32 s65, s70, 9\ns_sub_u32 s71, s64, s65")
        a(f"s_mul_i32 s66, s70, {64*9216}\ns_mul_i32 s64, {sX}, 1152\ns_add_u32 s66, s66, s64\ns_lshl_b32 s64, s71, 7\ns_add_u32 s66, s66, s64")
        a(f"v_mul_u32_u24 v{T0}, 9216, {vR}\nv_add_u32 v{T0}, v{T0}, {vCK}")
        for i in range(8):
            a(f"s_add_u32 m0, s69, {i*1024}")
            a(f"buffer_load_dwordx4 v{T0}, {W3}, s66 offen nt lds", "job")
            a(f"s_add_u32 s66, s66, {8*9216}")
        vT = [f"v{52+i}" for i in range(4)]
        self.tr_bases(vT, "s69")
        for i in range(4): a(f"v_mov_b32 v{136+i}, 0x3f803f80")
        a(f"s_mul_i32 s64, {sX}, 9\ns_add_u32 s64, s64, s70\ns_mul_i32 s64, s64, 2304\ns_lshl_b32 s65, s71, 8\ns_add_u32 s64, s64, s65\ns_add_u32 s72, s64, {CSP_OFF}")
        a(f"v_mov_b32 v{T0+4}, {sTAG8}\ns_mov_b32 s73, 0xff")
        a.wait_vm("job")
        self.stamp()
        for kk in range(2):
            for uu in range(4): self.read_tr(vT[uu], kk * 4096, f"r{kk}{uu}", dst=56 + 16 * kk + 4 * uu)
        for kk in range(2):
            for uu in range(4):
                a.wait_lg(f"r{kk}{uu}")
                a(f"{MFMA} {vr(140+4*uu)}, {vr(56+16*kk+4*uu)}, {vr(136)}, {'0' if kk == 0 else vr(140+4*uu)}")
        for uu in range(1, 4):
            a(f"v_cmp_eq_u32 vcc, {uu}, {vJ}")
            for e in range(4): a(f"v_cndmask_b32 v{140+e}, v{140+e}, v{140+4*uu+e}, vcc")
        for e in range(4): a(f"v_bfi_b32 v{140+e}, s73, v{T0+4}, v{140+e}")
        a(f"v_lshlrev_b32 v{T0}, 4, {vG}\nv_lshl_add_u32 v{T0}, {vJ}, 6, v{T0}")
        a("s_mov_b32 exec_lo, 0x000f000f\ns_mov_b32 exec_hi, 0x000f000f")
        a(f"buffer_store_dwordx4 {vr(140)}, v{T0}, {WS}, s72 offen sc1", "st")
        a("s_mov_b64 exec, -1")
        a(f"{Lno}:")
        a.vm = vm0; a.lg = []
        self.nst = 2
        self.signal(10)
        L4 = a.label("Lp4")
        a(f"s_cmp_ge_u32 {sWV}, 4\ns_cbranch_scc1 {L4}")
        self.wait_ctr(1, 13, sleep=4)
        a(f"s_lshl_b32 s64, s67, 2\ns_add_u32 s64, s64, {sW}\ns_lshl_b32 s64, s64, 10\ns_mul_i32 s65, {sX}, 663552\ns_add_u32 s66, s64, s65")
        for i in range(12):
            if i == 11: a(f"s_and_b32 s64, s64, 0x7fff\ns_add_u32 s66, s64, s65\ns_add_u32 s66, s66, {616*1024}")
            a(f"buffer_load_dwordx4 {vr(252)}, {vL16}, {W4}, s66 offen", "_untracked")
            a(f"s_add_u32 s66, s66, {56*1024}")
        a(f"{L4}:")
        self.stamp()

    def load_stats(self, tt, R):
        a = self.a
        va, vb = f"v{R+6}", f"v{R+7}"
        a(f"v_lshl_add_u32 {va}, {vG}, 5, {vJ}\nv_lshlrev_b32 {va}, 3, {va}\nv_mov_b32 {vb}, 0x40000000")
        a(f"v_cmp_eq_u32 vcc, 0, {vG}\nv_cndmask_b32 {vb}, {vb}, {va}, vcc")
        a(f"s_lshl_b32 s64, {sM}, 2\ns_add_u32 s64, s64, {sW}\ns_mul_i32 s64, s64, 3072\ns_add_u32 s64, s64, {ST_OFF}")
        for q in range(3):
            a(f"buffer_load_dwordx2 {vr(R+2*q,2)}, {va if q < 2 else vb}, {WS}, s64 offen offset:{1024*q+128*tt} sc1", "st")
    def finish_stats(self, K, R):
        a = self.a
        a.wait_vm("st")
        for c in range(2):
            a(f"v_add_f32 v{R+c}, v{R+c}, v{R+2+c}\nv_add_f32 v{R+c}, v{R+c}, v{R+4+c}")
            self.xlane_sum(f"v{R+c}", f"v{T0}")
        self.ln_consts(f"v{R}", f"v{R+1}", K, f"v{T0}")
    def h3_base(self, dst):
        self.a(f"s_lshl_b32 s64, {sM}, 3\ns_lshl_b32 s65, {sW}, 1\ns_add_u32 s64, s64, s65\ns_lshl_b32 s64, s64, 3\ns_add_u32 s64, s64, {sX}")
        self.a(f"s_mul_i32 s64, s64, 18432\ns_add_u32 {dst}, s64, {H3_OFF}")
    def f3_base(self, dst):
        self.a(f"s_lshl_b32 s64, {sM}, 3\ns_add_u32 s64, s64, {sX}\ns_lshl_b32 s64, s64, 2\ns_add_u32 s64, s64, {sW}\ns_lshl_b32 s64, s64, 10\ns_add_u32 {dst}, s64, {F3_OFF}")

    def gelu_tile(self, acc, CSB, K, dst, vo, vo8, sPair, sSingle, sFlag, between=None):
        a = self.a
        t1 = f"v{T0+1}"
        a(f"v_lshl_add_u32 v0, {vG}, 4, {vSCR}")
        for u in range(2): a(f"ds_read_b128 {vr(CSB+4*u)}, v0 offset:{CS3_OFF+64*u}", f"cs{u}")
        for u in range(9):
            a.wait_lg(f"cs{u}")
            self.gelu4(acc(u), CSB + 4 * (u & 1), K, T0)
            if u + 2 < 9:
                a(f"v_lshl_add_u32 v0, {vG}, 4, {vSCR}")
                a(f"ds_read_b128 {vr(CSB+4*(u&1))}, v0 offset:{CS3_OFF+64*(u+2)}", f"cs{u+2}")
            p = u >> 1
            for d in range(2): a(f"v_cvt_pk_bf16_f32 v{dst(p)+2*(u&1)+d}, v{acc(u)+2*d}, v{acc(u)+2*d+1}")
            if u & 1: a(f"buffer_store_dwordx4 {vr(dst(p))}, {vo}, {WS}, {sPair} offen offset:{1024*p} sc1", f"h3_{p>>1}")
            if u == 8: a(f"buffer_store_dwordx2 {vr(dst(4),2)}, {vo8}, {WS}, {sSingle} offen sc1", "h3_1")
            if between: between(u)
            if u == 8: self.set_flag(sFlag, "both", "h3_0")
    def c_mlp(self):
        a = self.a
        t0, t1 = f"v{T0}", f"v{T0+1}"
        vX2, vH2, vF3, vEX = (f"v{T0+4+i}" for i in range(4))
        vA = ["v5", "v6", "v8"]
        CT = T0
        ACC = 40
        vL8 = [vX2, DUMMY]
        def B(k, tt): return BF0 + 8 * k + 4 * tt
        self.fs(FS2_OFF)
        a(f"v_add_u32 {vX2}, 18432, {vL16}\nv_add_u32 {vH2}, 147456, {vL16}")
        a(f"v_min_u32 {vF3}, 7, {vLANE}\nv_lshlrev_b32 {vF3}, 7, {vF3}")
        a(f"s_mul_i32 s64, {sW}, {13*1024}\ns_add_u32 s64, s64, {EX1*SL}\nv_add_u32 {vEX}, s64, {vL16}")
        a(f"s_lshl_b32 s64, {sM}, 3\ns_lshl_b32 s65, {sW}, 1\ns_add_u32 s64, s64, s65\ns_mul_i32 s64, s64, 18432\ns_add_u32 s68, s64, {X1_OFF}")
        self.rot3("s69"); a("s_lshl_b32 s69, s69, 10")
        self.h3_base("s70")
        for d in range(4): a(f"s_xor_b32 s64, {sJ}, {d}\ns_lshl_b32 s64, s64, 12\ns_add_u32 s{71+d}, s64, s70")
        for e in range(2): a(f"s_lshr_b32 s64, {sJ}, 1\ns_xor_b32 s64, s64, {e}\ns_add_u32 s64, s64, 16\ns_lshl_b32 s64, s64, 10\ns_add_u32 s{75+e}, s64, s70")
        self.f3_base("s77")
        a(f"s_lshl_b32 s64, {sM}, 2\ns_add_u32 s64, s64, {sW}\ns_lshl_b32 s64, s64, 12\ns_add_u32 s78, s64, {F2_OFF}")
        a(f"v_lshrrev_b32 {t0}, 2, {vLANE}\nv_mul_u32_u24 {vA[0]}, 288, {t0}\nv_and_b32 {t0}, 3, {vLANE}\nv_lshl_add_u32 {vA[0]}, {t0}, 3, {vA[0]}")
        a(f"v_add_u32 {vA[1]}, {6*SL}, {vA[0]}")
        self.stamp()
        self.wait_ctr(1, 13, sleep=2)
        self.poll("s78", vFLG)
        a(f"v_add_u32 {vA[2]}, {12*SL}, {vA[0]}")
        self.stamp()
        def x1load(s):
            a(f"s_add_u32 s64, s68, s69")
            a(f"buffer_load_dwordx4 {vr(B(s,0))}, {vL16}, {WS}, s64 offen sc1", f"b{s}")
            a(f"buffer_load_dwordx4 {vr(B(s,1))}, {vX2}, {WS}, s64 offen sc1", f"b{s}")
            a(f"s_add_u32 s69, s69, 1024\ns_sub_u32 s65, s69, 18432\ns_min_u32 s69, s69, s65")
        XA = 7
        for s in range(XA): x1load(s)
        self.signal(11)
        self.stamp()
        LOOK = 6
        base_pool = [20, 24, 28, 32, 36]
        def rd(addr, tag, dst):
            v, off = addr
            a(f"ds_read_b64_tr_b16 {vr(dst,2)}, {v} offset:{off}", tag)
            a(f"ds_read_b64_tr_b16 {vr(dst+2,2)}, {v} offset:{off+4608}", tag)
        def stream(items, hooks_issue, hooks_after, pool):
            fr = {}; nxt = [0]
            def can(i): return bool(nxt[0] < len(items) and nxt[0] <= i + LOOK and pool)
            def half(h):
                n = nxt[0]
                if h == 0:
                    if n in hooks_issue: hooks_issue[n]()
                    fr[n] = pool.pop(0)
                v, off = items[n][0]
                a(f"ds_read_b64_tr_b16 {vr(fr[n]+2*h,2)}, {v} offset:{off+4608*h}", f"f{n}")
                if h == 1: nxt[0] += 1
            while can(-1): half(0); half(1)
            for i, (n, mm, pre) in enumerate(items):
                if pre: a.wait_vm(pre)
                a.wait_lg(f"f{i}")
                go = can(i)
                for q, (acc, breg, first) in enumerate(mm):
                    a(f"{MFMA} {vr(acc)}, {vr(fr[i])}, {vr(breg)}, {'0' if first else vr(acc)}")
                    if go: half(q)
                pool.append(fr[i])
                if i in hooks_after:
                    for h in hooks_after[i]: h(pool)
                if nxt[0] <= i + 1 or (len(pool) > 1 and can(i) and (i & 1)):
                    if can(i): half(0); half(1)
        def hook(d, i, f): d.setdefault(i, []).append(f)
        def slot_addr(bases, f, extra):
            sl = f % NSL
            return bases[sl // 6], (sl % 6) * SL + extra
        items = [(slot_addr(vA, s, 32 * u), [(ACC + 8 * u + 4 * tt, B(s, tt), s == 0) for tt in range(2)], f"b{s}" if u == 0 else None)
                 for s in range(18) for u in range(9)]
        hi = {}; ha = {}
        for ks_, val in ((12, 14), (16, 15)):
            hi[9 * ks_ - 5] = lambda: self.ctr_issue(1, CT)
            hi[9 * ks_] = (lambda val=val: self.ctr_check(1, CT, val))
        for s in range(18 - XA): hook(ha, 9 * s + 1, lambda pool, s=s: x1load(s + XA))
        hook(ha, 8, lambda pool: pool.extend([B(0, 0), B(0, 1)]))
        hook(ha, 9 * 5 - 1, lambda pool: self.signal(12))
        hook(ha, 9 * 9 - 1, lambda pool: self.signal(13))
        hook(ha, 9 * 13 - 1, lambda pool: self.signal(14))
        KB = B(5, 0); CSB = B(6, 0); TB = B(11, 0); S8 = B(12, 0)
        def consts(pool):
            a(f"s_lshl_b32 s64, {sW}, 9\ns_add_u32 s64, s64, {KC_OFF}\nv_lshl_add_u32 v0, {vJ}, 4, s64")
            for tt in range(2): a(f"ds_read_b128 {vr(KB+4*tt)}, v0 offset:{256*tt}", "kc")
        def csums(pool, u):
            if u == 0: a(f"v_lshl_add_u32 {vEX}, {vG}, 4, {vSCR}")
            a(f"ds_read_b128 {vr(CSB+4*u)}, {vEX} offset:{CS3_OFF+64*u}", "kc")
        hook(ha, 9 * 16 + 2, consts)
        for u in range(9): hook(ha, 9 * 16 + 4 + u, lambda pool, u=u: csums(pool, u))
        stream(items, hi, ha, list(base_pool))
        self.signal(15)
        self.stamp()
        a(f"s_and_b32 s64, {sJ}, 1\ns_lshl_b32 s64, s64, 9\ns_add_u32 s67, s64, s75")
        a(f"v_lshlrev_b32 {vL8[0]}, 3, {vLANE}\nv_add_u32 {vL8[1]}, 147456, {vL8[0]}")
        a(f"s_lshl_b32 s64, {sJ}, 8\ns_add_u32 s79, s64, s77")
        a.wait_lg()
        for u in range(9):
            self.gelu_pk([(ACC + 8 * u + 4 * tt, CSB + 4 * u, KB + 4 * tt) for tt in range(2)], TB)
            p = u >> 1
            for tt in range(2):
                dst = B(p, tt) + 2 * (u & 1) if u < 8 else S8 + 2 * tt
                b = ACC + 8 * u + 4 * tt
                for d in range(2): a(f"v_cvt_pk_bf16_f32 v{dst+d}, v{b+2*d}, v{b+2*d+1}")
            for tt in range(2):
                if u & 1: a(f"buffer_store_dwordx4 {vr(B(p,tt))}, {vL16 if tt == 0 else vH2}, {WS}, s71 offen offset:{1024*p} sc1", f"h3_{p>>1}")
                if u == 8: a(f"buffer_store_dwordx2 {vr(S8+2*tt,2)}, {vL8[tt]}, {WS}, s67 offen sc1", "h3_1")
            if u == 6: self.set_flag("s79", "both", "h3_0")
        self.stamp()
        def h3load(k):
            if k < 16: d, p = 1 + (k - 4) % 3, (k - 4) // 3; so, io = f"s{71+d}", 1024 * p
            else:
                for tt in range(2):
                    for hf in range(2):
                        a(f"buffer_load_dwordx2 {vr(B(k,tt)+2*hf,2)}, {vL8[tt]}, {WS}, s{75+k-16} offen offset:{512*hf} sc1", f"g{k}")
                return
            a(f"buffer_load_dwordx4 {vr(B(k,0))}, {vL16}, {WS}, {so} offen offset:{io} sc1", f"g{k}")
            a(f"buffer_load_dwordx4 {vr(B(k,1))}, {vH2}, {WS}, {so} offen offset:{io} sc1", f"g{k}")
        vU = [f"v{B(14,0)+o}" for o in range(9)]
        for o in range(9):
            if o == 0: a("s_mov_b32 s92, 256")
            else: a(f"s_add_u32 s64, {sX}, {o}\ns_and_b32 s64, s64, 7\ns_lshl_b32 s{92+o}, s64, 5")
            a(f"v_add_u32 {vU[o]}, s{92+o}, {vA[0]}\nv_add_u32 {vU[o]}, {SL}, {vU[o]}")
        self.ctr_issue(1, B(13, 0))
        self.poll2("s77", vF3, False, mask=0x55)
        a(f"s_add_u32 s64, s79, 128")
        self.set_flag("s64", "both", "h3_1")
        for k in range(4, 10): h3load(k)
        self.ctr_check(1, B(13, 0), 17)
        self.stamp()
        items = [((vU[o], k * SL), [(ACC + 8 * o + 4 * tt, B(k, tt), k == 0) for tt in range(2)], f"g{k}" if o == 0 and k >= 4 else None)
                 for k in range(KE) for o in range(9)]
        def second(pool):
            lg = list(a.lg)
            self.poll2("s77", vF3, False)
            for k in (10, 11, 12, 13, 16): h3load(k)
            a.lg = lg
        stream(items, {}, {9: [lambda pool: self.signal(17)], 9 * 4 - 1: [second]}, list(base_pool) + [B(17, 0), B(17, 1)])
        self.signal(18)
        for k in (14, 15, 17): h3load(k)
        self.stamp()
        self.wait_ctr(1, 19)
        self.wait_ctr(0, 18)
        self.stamp()
        items = []; hi = {}; ha = {}
        a(f"s_lshl_b32 s64, {sW}, 11\nv_add_u32 {vEX}, s64, {vL16}")
        UB = [[f"v{B(2,0)+4*q+i}" for i in range(3)] for q in range(2)]
        C0 = B(3, 0)
        for o in range(9):
            acc = ACC + 8 * o
            ub = UB[o & 1]
            def setb(o=o, ub=ub):
                for i in range(3): a(f"v_add_u32 {ub[i]}, s{92+o}, {vA[i]}")
            hi[len(items)] = setb
            for k in [k for k in (4, 5, 6, 7, 8, 9, 10, 11, 12, 13, 16, 14, 15, 17) if k >= KE]:
                items.append((slot_addr(ub, 18 + k, 0), [(acc + 4 * tt, B(k, tt), False) for tt in range(2)], f"g{k}" if o == 0 else None))
            def dump(pool, o=o, acc=acc):
                if o >= 3:
                    a.wait_lg("pc")
                    a(f"v_readfirstlane_b32 s64, v{C0}")
                    a(f"s_cmp_ge_u32 s64, {20+o-3}")
                    a.slow(lambda o=o: self.wait_ctr(1, 20 + o - 3, one=True, tmp=C0))
                for tt in range(2): a(f"ds_write_b128 {vEX}, {vr(acc+4*tt)} offset:{(2+o%3)*SL+1024*tt}", "ex")
                self.signal(19 + o)
            if o >= 3:
                hook(ha, len(items) - 5, lambda pool: (a(f"v_xor_b32 v{C0+1}, 16, {vCTR}"), a(f"ds_read_b32 v{C0}, v{C0+1}", "pc")))
            hook(ha, len(items) - 1 + (2 if o < 8 else 0), dump)
        stream(items, hi, ha, list(base_pool) + [B(0, 0), B(0, 1)])
        self.stamp()
        L8 = a.label("Lu8")
        a(f"s_lshr_b32 s64, {sX}, 1\ns_cmp_lg_u32 s64, {sW}\ns_cbranch_scc1 {L8}")
        XRr = B(4, 0) - 4; G8 = B(5, 0); SUM8 = B(10, 0); vT8 = f"v{B(11,0)}"; vO = f"v{B(11,0)+1}"; U = B(12, 0)
        a(f"s_lshl_b32 s64, {sM}, 2\ns_add_u32 s64, s64, {sJ}\ns_mul_i32 s64, s64, {9*32*1024}\ns_add_u32 s69, s64, {P_OFF+8*32768}\ns_add_u32 s69, s69, {sWK}")
        g_issue, g_take = self.part_helpers(vT8, U)
        for i in range(8): g_issue(i, "s69", G8, "p8")
        a(f"s_mul_i32 s64, {sJ}, 9\ns_add_u32 s78, s64, 8\ns_lshl_b32 s64, {sM}, 3\ns_add_u32 s79, s64, {sX}")
        a(f"s_mul_i32 s64, s79, 18\ns_lshr_b32 s65, s78, 1\ns_add_u32 s64, s64, s65\ns_lshl_b32 s64, s64, 10\ns_and_b32 s65, s78, 1\ns_lshl_b32 s65, s65, 3\ns_add_u32 s64, s64, s65\ns_add_u32 s64, s64, {X1_OFF}")
        a(f"buffer_load_dwordx2 {vr(XRr+4,2)}, {vL16}, {WS}, s64 offen sc1", "xr")
        self.part_consts(vT8)
        a(f"v_mul_u32_u24 {vO}, 1152, {vJ}\nv_lshl_add_u32 {vO}, {vG}, 3, {vO}")
        a(f"s_bitcmp1_b32 {sX}, 0\ns_cselect_b64 s[98:99], -1, 0")
        for e in range(4): a(f"v_mov_b32 v{SUM8+e}, 0")
        for i in range(8): g_take(i, "s69", G8, "p8", SUM8, half="s[98:99]")
        a.wait_vm("xr")
        self.finish_out(SUM8, XRr + 4, vO, "s79", "s78")
        a(f"{L8}:")

    def rot3(self, dst):
        self.a(f"s_lshl_b32 {dst}, {sJ}, 2\ns_and_b32 s64, {sJ}, 2\ns_add_u32 {dst}, {dst}, s64")

    def h_mlp(self):
        a = self.a
        t0, t1, t2 = f"v{T0}", f"v{T0+1}", f"v{T0+2}"
        vH2, vEX, vT8 = (f"v{T0+5+i}" for i in range(3))
        vH8 = f"v{T0+8}"
        if self.stop <= 2:
            self.epoch_advance(); return
        a(f"v_add_u32 {vH2}, 147456, {vL16}\nv_lshlrev_b32 {vH8}, 3, {vLANE}\nv_add_u32 {vH8}, 147456, {vH8}")
        a(f"s_mul_i32 s64, {sW}, {13*1024}\ns_add_u32 s64, s64, {EX1*SL}\nv_add_u32 {vEX}, s64, {vL16}\nv_mov_b32 {vT8}, {sTAG8}")
        self.h3_base("s71"); self.f3_base("s72")
        a(f"s_lshr_b32 s64, {sJ}, 1\ns_add_u32 s64, s64, 16\ns_lshl_b32 s64, s64, 10\ns_add_u32 s68, s64, s71\ns_and_b32 s64, {sJ}, 1\ns_lshl_b32 s64, s64, 9\ns_add_u32 s68, s68, s64")
        a(f"s_lshl_b32 s64, {sJ}, 12\ns_add_u32 s71, s71, s64\ns_lshl_b32 s64, {sJ}, 8\ns_add_u32 s72, s72, s64")
        V3 = [f"v{200+i}" for i in range(5)]; V4 = [f"v{205+i}" for i in range(5)]; V4s = [f"v{210+i}" for i in range(5)]
        sP = [f"s{92+i}" for i in range(5)]
        for i in range(5):
            a(f"s_add_u32 s64, {sW}, {4*i}\ns_sub_u32 s65, s64, 9\ns_min_u32 s64, s64, s65\ns_lshl_b32 {sP[i]}, s64, 10\ns_lshl_b32 s64, s64, 6")
            a(f"v_add_u32 {t0}, s64, {vLANE}\nv_mul_u32_u24 {t1}, 3641, {t0}\nv_lshrrev_b32 {t1}, 16, {t1}")
            a(f"v_mul_u32_u24 {t2}, 18, {t1}\nv_sub_u32 {t0}, {t0}, {t2}\nv_lshlrev_b32 {t0}, 4, {t0}")
            a(f"v_mul_u32_u24 {V3[i]}, 9216, {t1}\nv_add_u32 {V3[i]}, {V3[i]}, {t0}")
            a(f"v_mul_u32_u24 {V4[i]}, 1152, {t1}\nv_add_u32 {V4[i]}, {V4[i]}, {t0}")
            a(f"v_lshrrev_b32 {t1}, 4, {t1}\nv_mul_u32_u24 {t1}, {128*1152}, {t1}\nv_add_u32 {V4s[i]}, {V4[i]}, {t1}")
        def pair(f, srd, V, sA, sB, tag):
            rA, rB = (f % NSL) * SL, ((f + 1) % NSL) * SL
            L = a.label("Lx")
            a(f"s_cmp_ge_u32 {sW}, 2\ns_cbranch_scc1 {L}")
            a(f"s_add_u32 m0, {sP[4]}, {rB}")
            a(f"buffer_load_dwordx4 {V[4]}, {srd}, {sB} offen lds", "_untracked")
            a(f"{L}:")
            for i in range(4):
                if i < 2: a(f"s_add_u32 m0, {sP[i]}, {rA}"); so = sA
                elif i == 3: a(f"s_add_u32 m0, {sP[i]}, {rB}"); so = sB
                else:
                    a(f"s_mov_b32 s64, {rB}\ns_cmp_eq_u32 {sW}, 0\ns_cselect_b32 s64, {rA}, s64\ns_cselect_b32 s66, {sA}, {sB}\ns_add_u32 m0, {sP[i]}, s64"); so = "s66"
                a(f"buffer_load_dwordx4 {V[i]}, {srd}, {so} offen lds", tag)
        k3 = 32 * 9216
        self.rot3("s69")
        a(f"s_mul_i32 s69, s69, {k3}\ns_lshl_b32 s64, {sX}, 2\ns_add_u32 s64, s64, {sJ}\ns_mul_i32 s70, s64, 288")
        def w3pair(s, tag):
            a(f"s_add_u32 s73, s69, s70\ns_add_u32 s74, s73, {k3}")
            pair(s, W3, V3, "s73", "s74", tag)
            a(f"s_add_u32 s69, s69, {2*k3}\ns_sub_u32 s65, s69, {18*k3}\ns_min_u32 s69, s69, s65")
        a(f"s_mul_i32 s64, {sX}, {576*1152}\ns_mul_i32 s65, {sJ}, 288\ns_add_u32 s101, s64, s65")
        for d in range(4): a(f"s_xor_b32 s64, {sJ}, {d}\ns_mul_i32 s64, s64, {144*1152}\ns_add_u32 s{97+d}, s64, s101")
        def w4src(k, dst):
            if k < 4: d, p = 0, k
            elif k < 16: d, p = 1 + (k - 4) % 3, (k - 4) // 3
            else:
                a(f"s_lshr_b32 s64, {sJ}, 1\ns_xor_b32 s64, s64, {k-16}\ns_mul_i32 s64, s64, {288*1152}\ns_add_u32 s64, s64, s101\ns_add_u32 {dst}, s64, {128*1152}")
                return
            a(f"s_add_u32 {dst}, s{97+d}, {32*p*1152}")
        def w4pair(k, tag):
            w4src(k, "s73"); w4src(k + 1, "s74")
            pair(18 + k, W4, V4 if k < 16 else V4s, "s73", "s74", tag)
        a(f"v_and_b32 {t0}, 3, {vLANE}\nv_lshlrev_b32 {t0}, 7, {t0}")
        self.stamp()
        self.wait_ctr(1, 7, sleep=2); self.wait_ctr(0, 3, sleep=2)
        self.stamp()
        for s in range(0, 8, 2): w3pair(s, f"d{s//4}")
        self.wait_ctr(0, 5, sleep=2)
        self.stamp()
        for s in (8, 10): w3pair(s, "d2")
        Le = a.label("Learly")
        a(f"s_cmp_lt_u32 {sR}, {NACT}\ns_cbranch_scc1 {Le}")
        for s in (12, 14): w3pair(s, "_untracked")
        a(f"{Le}:")
        a(f"v_and_b32 {t0}, 1, {vLANE}\nv_lshlrev_b32 {t0}, 7, {t0}")
        a(f"buffer_load_dword v248, {t0}, {WS}, s72 offen sc1", "pf")
        a.wait_vm("d2"); self.signal(13)
        self.stamp()
        CP = 100
        a(f"s_lshl_b32 s64, {sW}, 6\nv_add_u32 {t1}, s64, {vLANE}\nv_min_u32 {t1}, 143, {t1}\nv_lshlrev_b32 v{CP+9}, 2, {t1}")
        L = a.label("Lcs")
        a(f"s_mov_b32 {sTO}, 0")
        a(f"{L}:")
        a(f"s_mul_i32 s64, {sX}, {9*2304}\ns_mul_i32 s65, {sJ}, 576\ns_add_u32 s64, s64, s65\ns_add_u32 s64, s64, {CSP_OFF}")
        for k in range(9):
            a(f"buffer_load_dword v{CP+k}, v{CP+9}, {WS}, s64 offen sc1", "cp")
            a(f"s_add_u32 s64, s64, 2304")
        a(f"s_add_u32 {sTO}, {sTO}, 1\ns_cmp_gt_u32 {sTO}, 100000\ns_cbranch_scc1 L_end")
        a.wait_vm()
        a(f"v_xor_b32 {t0}, v{CP}, {vT8}")
        for k in range(1, 9): a(f"v_bitop3_b32 {t0}, {t0}, v{CP+k}, {vT8} bitop3:0xf6")
        a(f"v_and_b32 {t0}, 0xff, {t0}\nv_cmp_ne_u32 vcc, 0, {t0}")
        a(f"s_cbranch_vccnz {L}")
        for k in range(1, 9): a(f"v_add_f32 v{CP}, v{CP}, v{CP+k}")
        a(f"v_add_u32 {t1}, {vSCR}, v{CP+9}")
        a(f"ds_write_b32 {t1}, v{CP} offset:{CS3_OFF}", "csw")
        self.wait_ctr(0, 11, sleep=2)
        for tt in range(2): self.load_stats(tt, 100 + 8 * tt)
        for tt in range(2): self.finish_stats([f"v{48+4*tt+i}" for i in range(4)], 100 + 8 * tt)
        a(f"s_lshl_b32 s64, {sW}, 9\ns_add_u32 s64, s64, {KC_OFF}\nv_lshl_add_u32 {t1}, {vJ}, 4, s64")
        for tt in range(2): a(f"ds_write_b128 {t1}, {vr(48+4*tt)} offset:{256*tt}", "kc")
        self.wait_ctr(0, 12, sleep=3)
        Le = a.label("Llate")
        a(f"s_cmp_ge_u32 {sR}, {NACT}\ns_cbranch_scc1 {Le}")
        for s in (12, 14): w3pair(s, "_untracked")
        a("s_waitcnt vmcnt(0)")
        a(f"{Le}:")
        self.signal(14)
        self.stamp()
        self.wait_ctr(0, 13, sleep=3)
        w3pair(16, "e0")
        a.wait_vm("e0"); self.signal(15)
        self.wait_ctr(0, 14, sleep=3)
        for k in (0, 2, 4, 6): w4pair(k, "e1")
        for k in (8, 10): w4pair(k, "e2")
        a.wait_vm("e1"); self.signal(17)
        self.epoch_advance()
        self.stamp()
        self.wait_ctr(0, 15, sleep=3)
        for k in (12, 14): w4pair(k, "e3")
        self.wait_ctr(0, 17, sleep=3)
        w4pair(16, "e3")
        a(f"s_lshl_b32 s64, {sM}, 2\ns_add_u32 s64, s64, {sJ}\ns_mul_i32 s64, s64, {9*32*1024}\ns_add_u32 s73, s64, {P_OFF}")
        a(f"s_lshl_b32 s64, {sW}, 11\nv_add_u32 {vEX}, s64, {vL16}")
        a(f"s_lshl_b32 s65, {sX}, 12\ns_add_u32 s74, {sWK}, s65\ns_add_u32 s74, s74, s73")
        self.part_consts(vT8)
        a("s_mov_b32 s75, 0x1fff\ns_mov_b32 s92, 0x03ffffff\ns_mov_b32 s93, 0x0c000000\ns_mov_b32 s94, 0x4b400000")
        a.wait_vm("e3"); self.signal(19)
        self.stamp()
        XRr = 100
        a(f"s_mul_i32 s64, {sJ}, 9\ns_add_u32 s76, s64, {sX}")
        a(f"s_lshl_b32 s64, {sM}, 3\ns_lshl_b32 s65, {sW}, 1\ns_add_u32 s77, s64, s65")
        a(f"s_mul_i32 s64, s77, 18\ns_lshr_b32 s65, s76, 1\ns_add_u32 s64, s64, s65\ns_lshl_b32 s64, s64, 10\ns_and_b32 s65, s76, 1\ns_lshl_b32 s65, s65, 3\ns_add_u32 s64, s64, s65\ns_add_u32 s64, s64, {X1_OFF}")
        a(f"v_add_u32 {t1}, 18432, {vL16}")
        a(f"buffer_load_dwordx2 {vr(XRr,2)}, {vL16}, {WS}, s64 offen sc1", "xr")
        a(f"buffer_load_dwordx2 {vr(XRr+2,2)}, {t1}, {WS}, s64 offen sc1", "xr")
        vO = "v106"
        a(f"v_mul_u32_u24 {vO}, 1152, {vJ}\nv_lshl_add_u32 {vO}, {vG}, 3, {vO}")
        a(f"s_lshl_b32 s64, {sX}, 15\ns_add_u32 s68, s64, s73\ns_add_u32 s68, s68, {sWK}")
        a(f"s_add_u32 s69, s73, {8*32768}\ns_add_u32 s69, s69, {sWK}")
        DB = 108; GR = 128; G8 = 160; SUMR = 56; SUM8 = 64; PKD = 72; U = 80
        for e in range(16): a(f"v_mov_b32 v{SUMR+e}, 0")
        g_issue, g_take = self.part_helpers(vT8, U)
        if "hprio" in self.exp: a("s_setprio 3")
        for o in range(9):
            self.wait_ctr(0, 19 + o, one=True, sleep=1)
            d = DB + 8 * (o & 1)
            for tt in range(2): a(f"ds_read_b128 {vr(d+4*tt)}, {vEX} offset:{(2+o%3)*SL+1024*tt}", "dp")
            if o == 8: break
            if o == 0: a(f"s_add_u32 s66, s74, {8*32768}")
            else: a(f"s_add_u32 s64, {sX}, {o}\ns_and_b32 s64, s64, 7\ns_lshl_b32 s64, s64, 15\ns_add_u32 s66, s64, s74")
            a.wait_lg()
            self.signal(20 + o)
            p = PKD + 4 * (o & 1)
            a(f"v_max3_f32 {t0}, |v{d}|, |v{d+1}|, |v{d+2}|\nv_max3_f32 {t1}, |v{d+3}|, |v{d+4}|, |v{d+5}|")
            a(f"v_max3_f32 {t0}, {t0}, |v{d+6}|, |v{d+7}|\nv_max_f32 {t0}, {t0}, {t1}")
            a(f"v_and_b32 {t0}, 0x7f800000, {t0}\nv_max_u32 {t0}, {12<<23}, {t0}\nv_sub_u32 {t1}, {(264<<23)|0x7ff000}, {t0}")
            for e in range(8): a(f"v_fma_f32 v{d+e}, v{d+e}, {t1}, s94")
            for i in range(4):
                sh = 3 - 2 * i
                a(f"v_lshlrev_b32 v{d+2*i+1}, 13, v{d+2*i+1}\nv_bfi_b32 v{d+2*i}, s75, v{d+2*i}, v{d+2*i+1}")
                a((f"v_lshlrev_b32 {t2}, {sh}, {t0}" if sh > 0 else f"v_lshrrev_b32 {t2}, {-sh}, {t0}") + f"\nv_bfi_b32 {t2}, s93, {t2}, {vT8}")
                a(f"v_bfi_b32 v{p+i}, s92, v{d+2*i}, {t2}")
            a(f"buffer_store_dwordx4 {vr(p)}, {vL16}, {WS}, s66 offen sc1", "pst")
            if o >= 4: g_issue(o - 3, "s68", GR, "pg")
            if o == 7:
                self.stamp()
                for i in (1, 2, 3): g_take(i, "s68", GR, "pg", SUMR)
                g_issue(5, "s68", GR, "pg")
                g_take(4, "s68", GR, "pg", SUMR)
                g_issue(6, "s68", GR, "pg")
        g_issue(7, "s68", GR, "pg")
        a.wait_lg()
        for e in range(8): a(f"v_add_f32 v{SUMR+e}, v{SUMR+e}, v{DB+e}")
        for i in (5, 6, 7): g_take(i, "s68", GR, "pg", SUMR)
        self.stamp()
        for tt in range(2):
            a(f"s_add_u32 s79, s77, {tt}")
            self.finish_out(SUMR + 4 * tt, XRr + 2 * tt, vO, "s79", "s76")

    def part_consts(self, vT8):
        a = self.a
        a(f"s_lshl_b32 s64, {sE}, 28\nv_mov_b32 {vT8}, s64")
        a("s_mov_b32 s95, 0x01800000\ns_mov_b32 s96, 0x07800000\ns_mov_b32 s97, 0x1f800000")
    def part_helpers(self, vT8, U):
        a = self.a
        t0, t1 = f"v{T0}", f"v{T0+1}"
        def g_issue(i, base, R, tag):
            a(f"s_sub_u32 s64, {sX}, {i}\ns_and_b32 s64, s64, 7\ns_lshl_b32 s64, s64, 12\ns_add_u32 s64, s64, {base}")
            a(f"buffer_load_dwordx4 {vr(R+4*i)}, {vL16}, {WS}, s64 offen sc1", f"{tag}{i}")
        def g_take(i, base, R, tag, S, half=None):
            r = R + 4 * i
            a.wait_vm(f"{tag}{i}")
            def check():
                a(f"v_xor_b32 {t0}, v{r}, {vT8}")
                for e in range(1, 4): a(f"v_bitop3_b32 {t0}, {t0}, v{r+e}, {vT8} bitop3:0xf6")
                a(f"v_cmp_gt_u32 vcc, 0x10000000, {t0}")
                a("s_cmp_eq_u64 vcc, -1")
            check()
            def retry():
                L = a.label("Lg")
                a(f"s_mov_b32 {sTO}, 0")
                a(f"{L}:")
                a(f"s_add_u32 {sTO}, {sTO}, 1\ns_cmp_gt_u32 {sTO}, 100000\ns_cbranch_scc1 L_end")
                g_issue(i, base, R, tag)
                a.wait_vm()
                check()
                a(f"s_cbranch_scc0 {L}")
            a.slow(retry)
            a(f"v_lshrrev_b32 {t0}, 3, v{r}\nv_lshrrev_b32 {t1}, 1, v{r+1}\nv_bfi_b32 {t0}, s95, {t0}, {t1}")
            a(f"v_lshlrev_b32 {t1}, 1, v{r+2}\nv_bfi_b32 {t0}, s96, {t0}, {t1}\nv_lshlrev_b32 {t1}, 3, v{r+3}\nv_bfi_b32 {t0}, s97, {t0}, {t1}")
            a(f"v_and_b32 {t0}, 0x7f800000, {t0}\nv_add_u32 {t0}, {(0x800 - (11 << 23)) & 0xffffffff}, {t0}")
            n = 8
            if half:
                for e in range(2): a(f"v_cndmask_b32 v{r+e}, v{r+e}, v{r+2+e}, {half}")
                n = 4
            for e in range(n): a(f"v_bfe_i32 v{U+e}, v{r+(e>>1)}, {13*(e&1)}, 13")
            for e in range(n): a(f"v_cvt_f32_i32 v{U+e}, v{U+e}")
            for e in range(n): a(f"v_fma_f32 v{S+e}, v{U+e}, {t0}, v{S+e}")
        return g_issue, g_take
    def finish_out(self, S, XR, vO, sTile, sU):
        a = self.a
        t0, t1, t2, t3 = (f"v{T0+i}" for i in range(4))
        for d in range(2):
            a(f"v_cvt_pk_bf16_f32 {t0}, v{S+2*d}, v{S+2*d+1}")
            a(f"v_lshlrev_b32 {t1}, 16, {t0}\nv_and_b32 {t0}, 0xffff0000, {t0}")
            a(f"v_lshlrev_b32 {t2}, 16, v{XR+d}\nv_and_b32 {t3}, 0xffff0000, v{XR+d}")
            a(f"v_add_f32 {t1}, {t1}, {t2}\nv_add_f32 {t0}, {t0}, {t3}")
            a(f"v_cvt_pk_bf16_f32 v{S+d}, {t1}, {t0}")
        a(f"s_mul_i32 s64, {sTile}, 18432\ns_lshl_b32 s65, {sU}, 5\ns_add_u32 s64, s64, s65")
        a(f"buffer_store_dwordx2 {vr(S,2)}, {vO}, {OUT}, s64 offen", "out")
    def epoch_advance(self):
        a = self.a
        L = a.label("Lep"); L2 = a.label("Lep")
        a(f"s_cmp_lg_u32 s2, 255\ns_cbranch_scc1 {L}\ns_cmp_lg_u32 {sW}, 3\ns_cbranch_scc1 {L}")
        vm = list(a.vm)
        a(f"s_mov_b32 {sTO}, 0")
        a(f"{L2}:")
        a(f"v_lshlrev_b32 v247, 7, {vLANE}\ns_mov_b32 s64, {FS2_OFF}")
        for i in range(4):
            a(f"buffer_load_dword v{T0+i}, v247, {WS}, s64 offen sc1")
            a(f"s_add_u32 s64, s64, 8192")
        a(f"s_add_u32 {sTO}, {sTO}, 1\ns_cmp_gt_u32 {sTO}, 100000\ns_cbranch_scc1 L_end")
        a.wait_vm()
        a(f"v_xor_b32 v{T0}, {sTAG}, v{T0}\nv_xor_b32 v{T0+1}, {sTAG}, v{T0+1}\nv_xor_b32 v{T0+2}, {sTAG}, v{T0+2}\nv_xor_b32 v{T0+3}, {sTAG}, v{T0+3}")
        a(f"v_or3_b32 v{T0}, v{T0}, v{T0+1}, v{T0+2}\nv_or_b32 v{T0}, v{T0}, v{T0+3}\nv_cmp_ne_u32 vcc, 0, v{T0}")
        a(f"s_cbranch_vccnz {L2}")
        a(f"v_mov_b32 v{T0}, {sE}\nv_mov_b32 v{T0+1}, 0\ns_mov_b64 exec, 1")
        a(f"buffer_store_dword v{T0}, v{T0+1}, {WS}, 0 offen sc1", "_untracked")
        a("s_mov_b64 exec, -1")
        a(f"{L}:")
        a.vm = vm

    def wrap(self, body):
        hdr = open("standalone__mixer_s_mlp__sampling.s.ref").read().split("; Override")[0]
        s = hdr + "; @launch grid=(256,1,1) block=(512,1,1) lds=163840\n"
        s += '.amdgcn_target "amdgcn-amd-amdhsa--gfx950"\n.text\n'
        s += f".globl {KNAME}\n.p2align 8\n.type {KNAME},@function\n{KNAME}:\n"
        s += body
        s += f'.section .rodata,"a"\n.p2align 6\n.amdhsa_kernel {KNAME}\n'
        s += "  .amdhsa_next_free_vgpr 256\n  .amdhsa_next_free_sgpr 102\n  .amdhsa_accum_offset 256\n"
        s += "  .amdhsa_group_segment_fixed_size 0\n  .amdhsa_kernarg_size 64\n  .amdhsa_user_sgpr_count 2\n"
        s += "  .amdhsa_user_sgpr_kernarg_segment_ptr 1\n  .amdhsa_system_sgpr_workgroup_id_x 1\n"
        s += "  .amdhsa_float_denorm_mode_32 3\n.end_amdhsa_kernel\n"
        return s

if __name__ == "__main__":
    import argparse
    p = argparse.ArgumentParser()
    p.add_argument("-o", default="mk.s"); p.add_argument("--stop", type=int, default=99)
    p.add_argument("--stamps", action="store_true"); p.add_argument("--plain", action="store_true"); p.add_argument("--exp", default="")
    args = p.parse_args()
    open(args.o, "w").write(Gen(args.stop, args.stamps, args.plain, args.exp).build())
```

```python
import sys
sys.path.insert(0, "dev")
from asmlib import Asm

KNAME = "standalone__mixer_s_mlp__sampling_kernel"
NB = 159
SCR = NB * 1024
CS3_OFF = 256
KC_OFF = 153 * 1024
NACT = 18
KE = 7
SL = 9216; NSL = 17
EX1 = 11
ROT3 = (0, 4, 10, 14)
T4 = 3; INF = 2; W2G = 4; HS_ = 1; THR = 1; FL = 28; FB = 44; NSK = 4
FS2_OFF = 0x1000; ST_OFF = 0x10000; CSP_OFF = 0x28000
F1_OFF = 0x60000; F2_OFF = 0x80000; F3_OFF = 0xA0000
H_OFF = 0xE0000; X1_OFF = 0x200000; H3_OFF = 0x400000; P_OFF = 0xE00000; STAMP_OFF = 0x3000000
XG = 2304; XT = 9 * XG
FAR = 0x1800000
FRAGSZ = 0x120000
X, W1, W2, W3, W4, OUT, WS, DBG, HS = (f"s[{b}:{b+3}]" for b in (20, 24, 28, 32, 36, 40, 44, 48, 52))
sTAG, sW, sX, sR, sMT, sNT, sM, sJ = (f"s{i}" for i in range(56, 64))
sE = "s3"
sC = [f"s{84+i}" for i in range(5)]
sTAGX = "s80"; sTO = "s89"; sTAG8 = "s82"; sWV = "s81"; sWK = "s83"
vLANE, vG, vJ = "v1", "v2", "v3"
vLB = ["v4", "v5", "v6"]
vL16 = "v4"; vFLG = "v8"; vSTAMP = "v9"; vCTR = "v10"; vSCR = "v11"
T0 = 12
AF0 = 24; NAF = 6
ACC0 = 48
BF0 = 112
DUMMY = "v7"

def vr(b, n=4): return f"v[{b}:{b+n-1}]"
MFMA = "v_mfma_f32_16x16x32_bf16"

def kprime(k, j):
    if k >= 16: return 16 + ((k - 16) ^ (j >> 1))
    d, p = (k >> 2) ^ j, k & 3
    return p if d == 0 else 4 + 3 * p + (d - 1)

class Gen:
    def __init__(self, stop=99, stamps=False, local_plain=False, exp=""):
        self.exp = exp.split(",")
        self.psleep = 0
        for e in self.exp:
            if e.startswith("ps"): self.psleep = int(e[2:])
        self.ld_local = "nt" if "ldnt" in self.exp else ("" if "ldplain" in self.exp else "sc1")
        self.a = Asm(); self.stop = stop; self.stamps = stamps; self.nst = 0
        self.af = 0
        self.st_local = "" if local_plain else "sc1"
    def reset(self, nst=None):
        self.a.vm = []; self.a.lg = []
        if nst is not None: self.nst = nst
    def stamp(self):
        if not self.stamps: return
        a = self.a
        a.wait_lg()
        a(("s_memtime" if "cyc" in self.exp else "s_memrealtime") + " s[90:91]\ns_waitcnt lgkmcnt(0)")
        a(f"v_writelane_b32 {vSTAMP}, s90, {self.nst}")
        self.nst += 1
    def next_af(self):
        b = AF0 + 4 * (self.af % NAF); self.af += 1
        return b
    def lb(self, kb):
        off = kb * 1024
        return vLB[off >> 16], off & 0xffff
    def read_blk(self, n, tag, dst=None):
        b = self.next_af() if dst is None else dst
        v, off = self.lb(n % NB)
        self.a(f"ds_read_b128 {vr(b)}, {v} offset:{off}", tag)
        return b
    def read_tr(self, vbase, off, tag, dst=None):
        b = self.next_af() if dst is None else dst
        self.a(f"ds_read_b64_tr_b16 {vr(b,2)}, {vbase} offset:{off}", tag)
        self.a(f"ds_read_b64_tr_b16 {vr(b+2,2)}, {vbase} offset:{off+2048}", tag)
        return b
    def poll(self, soff, vflag, mask=None, sleep=None):
        a = self.a
        t = f"v{T0}"
        if sleep is None: sleep = self.psleep
        L = a.label("Lpoll"); L2 = a.label("Lpoll")
        a(f"s_mov_b32 {sTO}, 0\ns_branch {L2}")
        a(f"{L}:")
        if sleep: a(f"s_sleep {sleep}")
        a(f"{L2}:")
        a(f"buffer_load_dword {t}, {vflag}, {WS}, {soff} offen sc1")
        a(f"s_add_u32 {sTO}, {sTO}, 1\ns_cmp_gt_u32 {sTO}, 100000\ns_cbranch_scc1 L_end")
        a.wait_vm()
        a(f"v_cmp_ne_u32 vcc, {sTAG}, {t}")
        if mask is not None:
            a(f"s_and_b32 vcc_lo, vcc_lo, {mask}\ns_cbranch_scc1 {L}")
        else:
            a(f"s_cbranch_vccnz {L}")
    def poll_one(self, soff, vflag, val):
        a = self.a
        L = a.label("Lp1"); L2 = a.label("Lp1"); L3 = a.label("Lp1")
        vm = list(a.vm)
        a(f"s_cmp_lg_u32 {sW}, 0\ns_cbranch_scc1 {L}")
        self.poll(soff, vflag)
        a(f"v_mov_b32 v{T0}, {val}\ns_mov_b64 exec, 1")
        a(f"ds_write_b32 {vSCR}, v{T0} offset:32", "sig")
        a("s_mov_b64 exec, -1")
        a.wait_lg()
        a(f"s_branch {L3}")
        a(f"{L}:")
        a(f"s_mov_b32 {sTO}, 0")
        a(f"{L2}:")
        a(f"s_sleep 2\nds_read_b32 v{T0}, {vSCR} offset:32", "ctr")
        a(f"s_add_u32 {sTO}, {sTO}, 1\ns_cmp_gt_u32 {sTO}, 1000000\ns_cbranch_scc1 L_end")
        a.wait_lg()
        a(f"v_readfirstlane_b32 s64, v{T0}")
        a(f"s_cmp_lt_u32 s64, {val}\ns_cbranch_scc1 {L2}")
        a(f"{L3}:")
        a.vm = vm
    def set_flag(self, soff, mods, tags=None, T0=T0):
        a = self.a
        for i in range(4): a(f"v_mov_b32 v{T0+i}, {sTAG if mods == 'sc1' else sTAGX}")
        if mods in ("far", "both"): a(f"s_add_u32 s65, {soff}, {FAR}")
        a.wait_vm(tags)
        a("s_mov_b64 exec, 0xff")
        if mods == "sc1": a(f"buffer_store_dwordx4 {vr(T0)}, {vL16}, {WS}, {soff} offen sc1", "flag")
        if mods in ("near", "both") and not ("far" in self.exp and mods == "both"): a(f"buffer_store_dwordx4 {vr(T0)}, {vL16}, {WS}, {soff} offen", "flag")
        if mods in ("far", "both"): a(f"buffer_store_dwordx4 {vr(T0)}, {vL16}, {WS}, s65 offen sc1", "flag")
        a("s_mov_b64 exec, -1")
    def poll2(self, soff, vflag, same_die, mask=None, hook=None):
        a = self.a
        t = f"v{T0}"
        L = a.label("Lpoll"); L2 = a.label("Lpoll"); L3 = a.label("Lpoll")
        a(f"s_mov_b32 {sTO}, 0\ns_branch {L2}")
        a(f"{L}:")
        if self.psleep: a(f"s_sleep {self.psleep}")
        a(f"{L2}:")
        a(f"s_and_b32 s65, {sTO}, 7\ns_cmp_eq_u32 s65, 7\ns_cselect_b32 s67, {FAR}, 0\ns_add_u32 s65, {soff}, s67")
        a(f"buffer_load_dword {t}, {vflag}, {WS}, s65 offen sc1")
        a(f"s_add_u32 {sTO}, {sTO}, 1\ns_cmp_gt_u32 {sTO}, 100000\ns_cbranch_scc1 L_end")
        a.wait_vm()
        if hook:
            a(f"s_cmp_lg_u32 {sTO}, 5\ns_cbranch_scc1 {L3}")
            a(f"v_mov_b32 v0, {t}")
            hook()
            a(f"v_mov_b32 {t}, v0")
            a(f"{L3}:")
        if same_die: a(f"s_cmp_eq_u32 s67, 0\ns_cselect_b32 s65, {sTAGX}, {sTAG}\ns_cselect_b32 s66, 1, 16")
        else: a(f"s_mov_b32 s65, {sTAG}\ns_mov_b32 s66, 16")
        a(f"v_subrev_u32 {t}, s65, {t}")
        a(f"v_cmp_le_u32 vcc, s66, {t}")
        if mask is not None: a(f"s_and_b32 vcc_lo, vcc_lo, {mask}\ns_cbranch_scc1 {L}")
        else: a(f"s_cbranch_vccnz {L}")
        a.vm = ["flag"] if hook else []
    def signal(self, val):
        a = self.a
        a(f"v_mov_b32 v0, {val}")
        a(f"ds_write_b32 {vCTR}, v0", "sig")
    def dsignal(self, val, extra=0):
        a = self.a
        a(f"s_add_u32 m0, s50, {extra}\nv_mov_b32 v0, {4*val}\ns_mov_b64 exec, 1")
        a("global_load_lds_dword v0, s[48:49]", "dsig")
        a("s_mov_b64 exec, -1")
    def wait_ctr(self, grp, val, one=False, sleep=1, tmp=None):
        a = self.a
        L = a.label("Lw"); L2 = a.label("Lw")
        a(f"s_mov_b32 {sTO}, 0\ns_branch {L2}")
        a(f"{L}:")
        if sleep: a(f"s_sleep {sleep}")
        a(f"{L2}:")
        t = T0 if tmp is None else tmp
        if one:
            a(f"v_xor_b32 v{t+1}, {16 if one is True else one}, {vCTR}")
            a(f"ds_read_b32 v{t}, v{t+1}", "ctr")
        else:
            a(f"ds_read_b128 {vr(t)}, {vSCR} offset:{16*grp}", "ctr")
        a(f"s_add_u32 {sTO}, {sTO}, 1\ns_cmp_gt_u32 {sTO}, 1000000\ns_cbranch_scc1 L_end")
        a.wait_lg()
        if not one:
            a(f"v_min_u32 v{t}, v{t}, v{t+1}\nv_min3_u32 v{t}, v{t}, v{t+2}, v{t+3}")
        a(f"v_readfirstlane_b32 s64, v{t}")
        a(f"s_cmp_lt_u32 s64, {val}\ns_cbranch_scc1 {L}")
    def wait_word(self, off, val):
        a = self.a
        L = a.label("Lw")
        a(f"s_mov_b32 {sTO}, 0")
        a(f"{L}:")
        a(f"ds_read_b32 v{T0}, {vSCR} offset:{off}", "ctr")
        a(f"s_add_u32 {sTO}, {sTO}, 1\ns_cmp_gt_u32 {sTO}, 1000000\ns_cbranch_scc1 L_end")
        a.wait_lg()
        a(f"v_readfirstlane_b32 s64, v{T0}")
        a(f"s_cmp_lt_u32 s64, {val}\ns_cbranch_scc1 {L}")
    def xlane_sum(self, v, t):
        a = self.a
        a(f"v_mov_b32 {t}, {v}\nv_permlane16_swap_b32 {v}, {t}\nv_add_f32 {v}, {v}, {t}")
        a(f"v_mov_b32 {t}, {v}\nv_permlane32_swap_b32 {v}, {t}\nv_add_f32 {v}, {v}, {t}")
    def bf16r(self, v):
        self.a(f"v_cvt_pk_bf16_f32 {v}, {v}, {v}\nv_lshlrev_b32 {v}, 16, {v}")
    def ln_consts(self, vS, vQ, K, t):
        a = self.a
        vNM, vSD, vC1, vC2 = K
        a(f"v_mul_f32 {vS}, 0x3ae38e39, {vS}")
        a(f"v_mul_f32 {t}, {vS}, {vS}")
        a(f"v_mov_b32 {vC1}, 0x3ae38e39")
        a(f"v_fma_f32 {vQ}, {vQ}, {vC1}, -{t}")
        a(f"v_max_f32 {vQ}, 0, {vQ}")
        self.bf16r(vQ)
        a(f"v_add_f32 {vQ}, 0x3727c5ac, {vQ}")
        self.bf16r(vQ)
        a(f"v_sqrt_f32 {vSD}, {vQ}")
        self.bf16r(vSD)
        self.bf16r(vS)
        a(f"v_sub_f32 {vNM}, 0, {vS}")
        a(f"v_rcp_f32 {t}, {vSD}")
        a(f"v_mul_f32 {vC1}, 0xc0135761, {t}")
        a(f"v_mul_f32 {vC2}, {t}, {t}")
        a(f"v_mul_f32 {vC2}, {vC2}, {t}")
        a(f"v_mul_f32 {vC2}, 0xbdd2d3e8, {vC2}")
    def gelu_ops(self, acc, cs, K, t):
        vNM, vSD, vC1, vC2 = K
        return [f"v_fma_f32 {acc}, {cs}, {vNM}, {acc}",
                f"v_mul_f32 {t}, {acc}, {acc}",
                f"v_fma_f32 {t}, {t}, {vC2}, {vC1}",
                f"v_mul_f32 {t}, {t}, {acc}",
                f"v_exp_f32 {t}, {t}",
                f"v_fma_f32 {t}, {t}, {vSD}, {vSD}",
                f"v_rcp_f32 {t}, {t}",
                f"v_mul_f32 {acc}, {acc}, {t}"]
    def gelu4(self, acc0, cs0, K, t0):
        seqs = [self.gelu_ops(f"v{acc0+i}", f"v{cs0+i}", K, f"v{t0+i}") for i in range(4)]
        for k in range(8):
            for s in seqs: self.a(s[k])
    def gelu_pk(self, groups, t0):
        a = self.a
        P = [(acc + 2 * h, cs + 2 * h, K, t0 + 4 * g + 2 * h) for g, (acc, cs, K) in enumerate(groups) for h in range(2)]
        for x, c, K, t in P: a(f"v_pk_fma_f32 {vr(x,2)}, {vr(c,2)}, {vr(K,2)}, {vr(x,2)} op_sel_hi:[1,0,1]")
        for x, c, K, t in P: a(f"v_pk_mul_f32 {vr(t,2)}, {vr(x,2)}, {vr(x,2)}")
        for x, c, K, t in P: a(f"v_pk_fma_f32 {vr(t,2)}, {vr(t,2)}, {vr(K+2,2)}, {vr(K+2,2)} op_sel:[0,1,0] op_sel_hi:[1,1,0]")
        for x, c, K, t in P: a(f"v_pk_mul_f32 {vr(t,2)}, {vr(t,2)}, {vr(x,2)}")
        for x, c, K, t in P: a(f"v_exp_f32 v{t}, v{t}\nv_exp_f32 v{t+1}, v{t+1}")
        for x, c, K, t in P: a(f"v_pk_fma_f32 {vr(t,2)}, {vr(t,2)}, {vr(K,2)}, {vr(K,2)} op_sel:[0,1,1] op_sel_hi:[1,1,1]")
        for x, c, K, t in P: a(f"v_rcp_f32 v{t}, v{t}\nv_rcp_f32 v{t+1}, v{t+1}")
        for x, c, K, t in P: a(f"v_pk_mul_f32 {vr(x,2)}, {vr(x,2)}, {vr(t,2)}")
    def srd(self, name, ptr, nbytes):
        b = int(name[2:name.index(":")]); a = self.a
        a(f"s_mov_b32 s{b}, s{ptr}\ns_mov_b32 s{b+1}, s{ptr+1}\ns_mov_b32 s{b+2}, {nbytes}\ns_mov_b32 s{b+3}, 0x20000")
    def modn(self, s, n):
        self.a(f"s_sub_u32 s65, {s}, {n}\ns_min_u32 {s}, {s}, s65")
    def tr_bases(self, dst, base):
        a = self.a; t0, t1 = f"v{T0}", f"v{T0+1}"
        a(f"v_lshrrev_b32 {t0}, 2, {vLANE}")
        a(f"v_bfe_u32 {t1}, {vLANE}, 3, 2")
        a(f"v_lshlrev_b32 {t0}, 7, {t0}\nv_and_b32 {dst[0]}, 3, {vLANE}\nv_lshl_add_u32 {t0}, {dst[0]}, 3, {t0}")
        a(f"v_add_u32 {t0}, {base}, {t0}")
        for u in range(4):
            a(f"v_xor_b32 {dst[u]}, {u}, {t1}\nv_lshl_add_u32 {dst[u]}, {dst[u]}, 5, {t0}")
    def common_late(self, barrier=True):
        a = self.a
        for i in range(5): a(f"s_mov_b32 {sC[i]}, {4096*i}")
        self.srd(W2, 8, 663552)
        self.srd(OUT, 14, 1179648); self.srd(WS, 18, 0x10000000)
        a(f"s_add_u32 s52, s18, {H_OFF}\ns_addc_u32 s53, s19, 0\ns_mov_b32 s54, {FRAGSZ+FAR}\ns_mov_b32 s55, 0x20000")
        if "tlb" in self.exp:
            L = a.label("Ltlb")
            a(f"s_cmp_lg_u32 {sWV}, 2\ns_cbranch_scc1 {L}")
            a(f"v_mov_b32 v{T0}, 0\ns_mov_b64 exec, 1")
            def touch(srd, so): a(f"buffer_load_dword {DUMMY}, v{T0}, {srd}, {so} offen", "_untracked")
            a(f"s_mov_b32 s64, {ST_OFF}"); touch(WS, "s64")
            a(f"s_mov_b32 s64, {X1_OFF}"); touch(WS, "s64")
            touch(W2, 0)
            a(f"s_mul_i32 s64, {sM}, {8*147456}\ns_add_u32 s64, s64, {H3_OFF}"); touch(WS, "s64")
            a(f"s_add_u32 s64, s64, {8*147456-4}"); touch(WS, "s64")
            a(f"s_mul_i32 s64, {sR}, {9*32*1024}\ns_add_u32 s64, s64, {P_OFF}"); touch(WS, "s64")
            a(f"s_add_u32 s64, s64, {9*32*1024-4}"); touch(WS, "s64")
            for q in range(3):
                a(f"s_mov_b32 s64, {q*0x200000}"); touch(W3, "s64")
            a(f"s_mov_b32 s64, {5308416-4}"); touch(W3, "s64")
            a(f"s_mul_i32 s64, {sX}, 663552"); touch(W4, "s64")
            a(f"s_add_u32 s64, s64, {663552-4}"); touch(W4, "s64")
            touch(OUT, 0)
            a("s_mov_b64 exec, -1")
            a(f"{L}:")
        a(f"v_add_u32 {vLB[1]}, 0x10000, {vLB[0]}\nv_add_u32 {vLB[2]}, 0x20000, {vLB[0]}")
        a(f"v_min_u32 {vFLG}, 17, {vLANE}\nv_lshlrev_b32 {vFLG}, 7, {vFLG}")
        a(f"v_mov_b32 {vSCR}, {SCR}\ns_lshl_b32 s64, {sWV}, 2\nv_add_u32 {vCTR}, s64, {vSCR}")
        a(f"v_mov_b32 v{T0}, 0\nds_write_b32 {vCTR}, v{T0}\nds_write_b32 {vSCR}, v{T0} offset:32\nds_write_b32 {vSCR}, v{T0} offset:36\nds_write_b32 {vCTR}, v{T0} offset:32")
        a.wait_lg()
        a("s_waitcnt lgkmcnt(0)")
        a(f"s_add_u32 {sE}, {sE}, 1\ns_and_b32 {sTAG8}, {sE}, 0xff\ns_mul_i32 {sTAG}, {sE}, 0x9e3779b1\ns_xor_b32 {sTAG}, {sTAG}, 0x5bd1e995")
        def fs(off):
            L = a.label("Lfs")
            a(f"s_cmp_lg_u32 {sWV}, 3\ns_cbranch_scc1 {L}")
            a(f"s_getreg_b32 s65, hwreg(HW_REG_XCC_ID)\ns_and_b32 s65, s65, 15\ns_add_u32 s65, s65, {sTAG}")
            a(f"s_lshl_b32 s64, {sX}, 5\ns_add_u32 s64, s64, {sR}\ns_lshl_b32 s64, s64, 7\ns_add_u32 s64, s64, {off}")
            a(f"v_mov_b32 v{T0}, {sTAG}\nv_mov_b32 v{T0+1}, s65\nv_mov_b32 v{T0+2}, {sTAG}\nv_mov_b32 v{T0+3}, s65\ns_mov_b64 exec, 0xff")
            a(f"buffer_store_dwordx4 {vr(T0)}, {vL16}, {WS}, s64 offen sc1", "_untracked")
            a("s_mov_b64 exec, -1")
            a(f"{L}:")
        self.fs = fs
        a(f"s_getreg_b32 s65, hwreg(HW_REG_XCC_ID)\ns_and_b32 s65, s65, 15\ns_add_u32 {sTAGX}, s65, {sTAG}")
        if "far" in self.exp: a(f"s_and_b32 s65, s2, 15\ns_add_u32 {sTAGX}, s65, {sTAG}")
        if barrier: a("s_barrier")

    def build(self):
        a = self.a
        a("s_cmp_ge_u32 s2, 256\ns_cbranch_scc1 L_end")
        a("s_load_dwordx16 s[4:19], s[0:1], 0")
        a("s_getpc_b64 s[66:67]\nL_pc:")
        a(f"v_and_b32 {vLANE}, 63, v0\nv_lshrrev_b32 {vG}, 6, v0")
        a(f"s_and_b32 {sX}, s2, 7\ns_lshr_b32 {sR}, s2, 3")
        a(f"v_readfirstlane_b32 {sWV}, {vG}")
        a(f"s_lshl_b32 s64, {sR}, 11\nv_lshlrev_b32 v{T0}, 2, v0\nv_add_u32 v{T0}, s64, v{T0}")
        a(f"v_min_u32 v{T0}, L_code_end-L_pc-4, v{T0}")
        a(f"global_load_dword {DUMMY}, v{T0}, s[66:67]", "code")
        a(f"v_lshlrev_b32 {vL16}, 4, {vLANE}\nv_lshrrev_b32 {vG}, 4, {vLANE}\nv_and_b32 {vJ}, 15, {vLANE}")
        a(f"s_and_b32 {sW}, {sWV}, 3\ns_lshl_b32 {sWK}, {sW}, 10")
        a(f"v_mov_b32 {vSTAMP}, 0")
        a(f"s_add_u32 s48, s66, L_tab-L_pc\ns_addc_u32 s49, s67, 0\ns_lshl_b32 s50, {sWV}, 2\ns_add_u32 s50, s50, {SCR}")
        a(f"s_lshr_b32 {sM}, {sR}, 2\ns_and_b32 {sJ}, {sR}, 3")
        a(f"s_cmp_ge_u32 {sR}, 9\ns_cselect_b32 {sMT}, 1, 0\ns_mul_i32 s64, {sMT}, 9\ns_sub_u32 {sNT}, {sR}, s64")
        a(f"s_cmp_ge_u32 {sR}, {NACT}\ns_cbranch_scc1 L_repack")
        a(f"s_cmp_ge_u32 {sWV}, 4\ns_cbranch_scc1 L_h_act")
        self.c_phaseA()
        a("s_branch L_c_mlp")
        a("L_h_act:")
        self.reset(0); a.vm = ["code"]
        self.h_phaseA()
        a("s_branch L_h_mlp")
        a("L_repack:")
        self.reset(0); a.vm = ["code"]
        self.repack()
        a("L_split:")
        a(f"s_cmp_ge_u32 {sWV}, 4\ns_cbranch_scc1 L_h_mlp")
        a("L_c_mlp:")
        a("s_waitcnt lgkmcnt(0)")
        self.reset(24); a.vm = ["old"] * 4
        if self.stop > 2: self.c_mlp()
        a("s_branch L_fin")
        a("L_h_mlp:")
        a("s_waitcnt lgkmcnt(0)")
        self.reset(24); a.vm = ["old"] * 4
        self.h_mlp()
        a("L_fin:")
        self.reset(63)
        if self.stamps:
            self.stamp()
            a(f"s_lshl_b32 s64, s2, 3\ns_add_u32 s64, s64, {sWV}\ns_lshl_b32 s64, s64, 8\ns_add_u32 s64, s64, {STAMP_OFF}")
            a(f"v_lshlrev_b32 v{T0}, 2, {vLANE}")
            a(f"buffer_store_dword {vSTAMP}, v{T0}, {WS}, s64 offen")
        a("L_end:\ns_endpgm")
        a.flush_deferred()
        a(".p2align 7\n.type L_tab,@object\nL_tab:")
        for i in range(0, 64, 8): a(".long " + ", ".join(str(i + k) for k in range(8)))
        a("L_code_end:")
        return self.wrap(a.text())

    def kernarg_wait(self):
        a = self.a
        a("s_waitcnt lgkmcnt(0)")
        a(f"s_load_dword {sE}, s[18:19], 0")

    STEPS = (((0,), (0, 1)), ((1,), (2, 3)), ((2, 3), (4, 5)), ((4, 5), (6, 7)), ((6, 7), (8, 9)), ((8,), (10, 11)), ((), (12, 13, 14)), ((), (15, 16, 17)))
    NEED = []
    for _xl, _kk in STEPS: NEED.append((NEED[-1] if NEED else 0) + 2 * len(_xl) + len(_kk))
    def ctr_issue(self, grp, dst):
        self.a(f"ds_read_b128 {vr(dst)}, {vSCR} offset:{16*grp}", f"ctrp{dst}")
    def ctr_check(self, grp, dst, val, tmp=None, sleep=1):
        a = self.a
        a.wait_lg(f"ctrp{dst}")
        a(f"v_min_u32 v{dst}, v{dst}, v{dst+1}\nv_min3_u32 v{dst}, v{dst}, v{dst+2}, v{dst+3}")
        a(f"v_readfirstlane_b32 s64, v{dst}")
        a(f"s_cmp_ge_u32 s64, {val}")
        a.slow(lambda: self.wait_ctr(grp, val, tmp=tmp, sleep=sleep))
    def c_phaseA(self):
        a = self.a
        def XF(t, s): return BF0 + 72 * t + 4 * s
        HF = BF0
        t0, t1, t2 = f"v{T0}", f"v{T0+1}", f"v{T0+2}"
        CT = T0 + 8
        ACC = ACC0; CS = ACC0 + 16; SUM = ACC0 + 24; GR = ACC0 + 28; OB = ACC0 + 32; XR = ACC0 + 36; KR = ACC0 + 44; PK = ACC0 + 16
        vXB = [[f"v{ACC0+52+2*t+q}" for q in range(2)] for t in range(2)]
        vT = [[f"v{ACC0+56+2*f+h}" for h in range(2)] for f in range(2)]
        vBP = [f"v{ACC0+60}", f"v{ACC0+61}"]
        vXR = [f"v{T0+4+i}" for i in range(4)]
        a(f"s_lshl_b32 s69, {sX}, 3\ns_lshl_b32 s64, {sMT}, 2\ns_add_u32 s69, s69, s64\ns_add_u32 s69, s69, {sW}")
        a(f"v_lshlrev_b32 {t0}, 6, {vLANE}")
        a(f"s_lshl_b32 s64, {sR}, 2\ns_add_u32 s64, s64, {sW}\ns_lshl_b32 s70, s64, 12\ns_add_u32 s70, s70, {3*32*1152}")
        self.kernarg_wait()
        self.srd(W1, 6, 663552)
        self.stamp()
        a(f"buffer_load_dword {DUMMY}, {t0}, {W1}, s70 offen", "pf")
        if "wstlb" in self.exp:
            a(f"v_mov_b32 {t1}, 256")
            a(f"global_load_dword {DUMMY}, {t1}, s[18:19]", "pf")
        self.srd(X, 4, 1179648); self.srd(W3, 10, 5308416); self.srd(W4, 12, 5308416)
        self.common_late()
        for i in range(4): a(f"v_mov_b32 v{OB+i}, 0x3f803f80")
        a(f"s_and_b32 s68, {sW}, 1\ns_lshr_b32 s67, {sW}, 1")
        a(f"v_lshlrev_b32 {t0}, 7, {vJ}\nv_lshrrev_b32 {t1}, 1, {vJ}")
        for t in range(2):
            a(f"s_xor_b32 s64, {sW}, {t}\ns_lshl_b32 s64, s64, 11\ns_add_u32 s64, s64, {72*1024}")
            for par in range(2):
                a(f"v_add_u32 {t2}, {4*par}, {vG}\nv_xor_b32 {t2}, {t2}, {t1}\nv_lshl_add_u32 {t2}, {t2}, 4, {t0}\nv_add_u32 {vXB[t][par]}, s64, {t2}")
        a(f"v_lshrrev_b32 {t0}, 2, {vLANE}\nv_lshlrev_b32 {t0}, 7, {t0}\nv_and_b32 {t1}, 3, {vLANE}\nv_lshl_add_u32 {t0}, {t1}, 3, {t0}\nv_bfe_u32 {t1}, {vLANE}, 3, 2")
        for f in range(2):
            a(f"s_xor_b32 s64, s67, {f}\ns_lshl_b32 s65, s68, 1\ns_add_u32 s64, s64, s65")
            a(f"v_xor_b32 {t2}, s64, {t1}\nv_lshl_add_u32 {vT[f][0]}, {t2}, 5, {t0}\nv_add_u32 {vT[f][1]}, {9*4096}, {vT[f][0]}")
        a(f"s_lshl_b32 s64, {sW}, 11\ns_lshl_b32 s65, {sNT}, 13\ns_add_u32 s64, s64, s65\ns_add_u32 s64, s64, {72*1024}")
        a(f"v_lshlrev_b32 {t0}, 7, {vJ}\nv_add_u32 {t0}, s64, {t0}\nv_and_b32 {t1}, 1, {vG}\nv_lshl_add_u32 {t0}, {t1}, 3, {t0}")
        a(f"v_lshrrev_b32 {t1}, 1, {vJ}\nv_lshrrev_b32 {t2}, 1, {vG}\nv_xor_b32 {t1}, {t1}, {t2}")
        for u in range(4): a(f"v_xor_b32 {t2}, {2*u}, {t1}\nv_lshl_add_u32 {vXR[u]}, {t2}, 4, {t0}")
        a(f"s_mul_i32 s64, s69, 18\ns_lshl_b32 s65, {sNT}, 1\ns_add_u32 s64, s64, s65\ns_lshl_b32 s77, s64, 10")
        a(f"s_lshl_b32 s64, s68, 10\ns_add_u32 s72, s77, s64")
        a(f"s_mul_i32 s64, s68, {2*18432}\ns_sub_u32 s73, s72, s64\ns_add_u32 s73, s73, 18432")
        a(f"s_lshr_b32 s64, s69, 1\ns_lshl_b32 s76, s64, 12")
        a(f"s_mul_i32 s64, s68, 9\ns_add_u32 s64, s64, {sNT}\ns_lshl_b32 s64, s64, 7\ns_add_u32 s75, s64, s76")
        a(f"s_lshl_b32 s64, {sNT}, 1\ns_add_u32 s64, s64, s68\ns_lshl_b32 s64, s64, 7\ns_add_u32 s71, s64, s76\ns_add_u32 s71, s71, {F1_OFF}")
        a(f"s_mul_i32 s74, s69, 18432")
        MS = [[f"s[{92+4*u+2*t}:{93+4*u+2*t}]" for t in range(2)] for u in range(2)]
        MO = [["s[100:101]", "s[78:79]"], ["s[0:1]", "vcc"]]
        for u in range(2):
            a(f"s_lshl_b32 s64, {sNT}, 2\ns_lshl_b32 s65, s68, 1\ns_add_u32 s64, s64, s65\ns_add_u32 s64, s64, {u}\ns_mul_i32 s64, s64, 7282\ns_lshr_b32 s64, s64, 16")
            a(f"s_lshr_b32 s65, s64, 1\ns_add_u32 s65, s65, 1\ns_sub_u32 s66, 0, s65\ns_bitcmp1_b32 s64, 0\ns_cselect_b32 s65, s66, s65")
            a(f"v_subrev_u32 {t0}, s65, {vJ}")
            a(f"v_and_b32 {t1}, 15, {t0}\nv_lshl_add_u32 {t1}, {vG}, 4, {t1}\nv_lshlrev_b32 {vBP[u]}, 2, {t1}")
            a(f"v_cmp_gt_u32 {MS[u][0]}, 16, {t0}")
            for t in range(2):
                a(f"s_xor_b32 s64, s68, {t}\ns_lshl_b32 s64, s64, 4\nv_add_u32 {t1}, s64, {t0}")
                dst = MS[u][1] if t == 0 else ("s[100:101]" if u == 0 else "s[78:79]")
                a(f"v_cmp_gt_u32 {dst}, 32, {t1}")
        VAL = [[MS[0][1], "s[100:101]"], [MS[1][1], "s[78:79]"]]
        def xread(t, k):
            off = 8192 * (k >> 1)
            if off < 65536: a(f"ds_read_b128 {vr(XF(t,k))}, {vXB[t][k&1]} offset:{off}", f"x{t}_{k}")
            else:
                a(f"v_add_u32 v0, {off}, {vXB[t][k&1]}")
                a(f"ds_read_b128 {vr(XF(t,k))}, v0", f"x{t}_{k}")
        order = [(s, f) for s in range(18) for f in range(2)]
        step_of = {s: i for i, (xl, kk) in enumerate(self.STEPS) for s in kk}
        first_n = {i: 2 * kk[0] for i, (xl, kk) in enumerate(self.STEPS)}
        fr = {}; st = {"done": -1, "nxt": 0}
        xq = []; statq = []
        LOOK = 5
        def xr():
            t, k = xq.pop(0); xread(t, k)
            if t == 0: statq.append(k)
        def half(h):
            n = st["nxt"]; s, f = order[n]
            if h == 0:
                i = step_of[s]
                if i > st["done"]:
                    if i == 0: self.wait_ctr(3, self.NEED[0], sleep=0, tmp=CT); self.stamp()
                    else: self.ctr_check(3, CT, self.NEED[i], tmp=CT, sleep=0)
                    st["done"] = i
                    xq.extend((t, 2 * L + q) for L in self.STEPS[i][0] for q in range(2) for t in range(2))
                while xq and xq[0][1] <= s: xr()
                fr[n] = self.next_af()
            a(f"ds_read_b64_tr_b16 {vr(fr[n]+2*h,2)}, {vT[f][0 if s < 9 else 1]} offset:{(s%9)*4096+2048*h}", f"f{n}")
            if h == 1:
                st["nxt"] += 1
                i = step_of[s]
                if i + 1 < len(self.STEPS) and n == first_n[i + 1] - 2: self.ctr_issue(3, CT)
        for n in range(4): half(0); half(1)
        vS, vQ = f"v{SUM}", f"v{GR}"
        q = Asm(); self.a = q
        q(f"v_and_b32 {t0}, 3, {vJ}")
        for r in range(1, 4):
            q(f"v_cmp_eq_u32 vcc, {r}, {t0}")
            q(f"v_cndmask_b32 {vQ}, {vQ}, v{GR+r}, vcc")
        q(f"v_lshrrev_b32 {t0}, 2, {vJ}\nv_cmp_eq_u32 vcc, {t0}, {vG}")
        q(f"v_cndmask_b32 {vQ}, 0, {vQ}, vcc")
        self.xlane_sum(vQ, t0)
        self.ln_consts(vS, vQ, [f"v{KR+i}" for i in range(4)], t0)
        q(f"s_lshl_b32 s65, {sW}, 8\ns_add_u32 s65, s65, {KC_OFF}\nv_lshl_add_u32 {vXR[0]}, {vJ}, 4, s65\nv_xor_b32 {vXR[1]}, 256, {vXR[0]}")
        q(f"s_lshl_b32 s65, {sW}, 6\nv_lshl_add_u32 {vXR[2]}, {vG}, 4, {vSCR}\nv_add_u32 {vXR[2]}, s65, {vXR[2]}\nv_xor_b32 {vXR[3]}, 128, {vXR[2]}")
        self.a = a
        fill = [i.text for i in q.ins]
        nstat = 0; ready = None
        def slot():
            if xq:
                xr()
                if xq: xr()
            elif ready is not None and fill: a(fill.pop(0), "kw")
        for n, (s, f) in enumerate(order):
            a.wait_lg([f"f{n}", f"x0_{s}", f"x1_{s}"])
            go = st["nxt"] < len(order)
            for t in range(2):
                a(f"{MFMA} {vr(ACC+8*f+4*t)}, {vr(fr[n])}, {vr(XF(t,s))}, {'0' if s == 0 else vr(ACC+8*f+4*t)}")
                if go: half(t)
                else: slot()
                if t == 0: slot()
            if f == 0:
                a(f"{MFMA} {vr(CS)}, {vr(fr[n])}, {vr(OB)}, {'0' if s == 0 else vr(CS)}")
                slot()
            for _ in range(2):
                if len(statq) > (1 if xq else 0):
                    k = statq.pop(0)
                    a.wait_lg(f"x0_{k}")
                    a(f"{MFMA} {vr(SUM)}, {vr(OB)}, {vr(XF(0,k))}, {'0' if k == 0 else vr(SUM)}")
                    slot(); slot()
                    a(f"{MFMA} {vr(GR)}, {vr(XF(0,k))}, {vr(XF(0,k))}, {'0' if k == 0 else vr(GR)}")
                    slot()
                    nstat += 1
            if st["done"] >= 5 and not xq and "xr" not in st:
                for uu in range(4): a(f"ds_read_b64 {vr(XR+2*uu,2)}, {vXR[uu]}", "xr")
                st["xr"] = n
            if "xr" in st and n == st["xr"] + 1:
                a.wait_lg("xr")
                if "w2late" not in self.exp: self.dsignal(1)
            if nstat == 18 and ready is None:
                ready = n
                self.stamp()
        while fill: a(fill.pop(0), "kw")
        a(f"ds_write_b128 {vXR[0]}, {vr(KR)}", "csw")
        a(f"ds_write_b128 {vXR[2]}, {vr(CS)} offset:{CS3_OFF}", "csw")
        if "w2late" not in self.exp: a.wait_vm("dsig")
        self.signal(2)
        self.stamp()
        TB = XF(0, 0)
        self.gelu_pk([(ACC, CS, KR)], TB)
        self.wait_ctr(0, 2, sleep=0)
        a(f"ds_read_b128 {vr(KR+4)}, {vXR[1]}", "rk")
        a(f"ds_read_b128 {vr(CS+4)}, {vXR[3]} offset:{CS3_OFF}", "rk")
        a.wait_lg()
        self.gelu_pk([(ACC + 4, CS, KR + 4), (ACC + 8, CS + 4, KR), (ACC + 12, CS + 4, KR + 4)], TB)
        P = TB + 20; R = TB + 28; O = KR
        for f in range(2):
            for t in range(2):
                for d in range(2): a(f"v_cvt_pk_bf16_f32 v{P+4*f+2*t+d}, v{ACC+8*f+4*t+2*d}, v{ACC+8*f+4*t+2*d+1}")
        L = a.label("Lsw")
        a(f"s_cmp_eq_u32 s67, 0\ns_cbranch_scc1 {L}")
        for e in range(4): a(f"v_swap_b32 v{P+e}, v{P+4+e}")
        a(f"{L}:")
        for u in range(2):
            for e in range(4): a(f"ds_bpermute_b32 v{R+4*u+e}, {vBP[u]}, v{P+4*u+e}", "bp")
        self.signal(3)
        a.wait_lg()
        for t in range(2):
            for u in range(2):
                for d in range(2):
                    o = O + 4 * t + 2 * u + d
                    a(f"v_cndmask_b32 v{o}, v{R+4*u+2*(1-t)+d}, v{R+4*u+2*t+d}, {MS[u][0]}")
                    a(f"v_cndmask_b32 v{o}, 0, v{o}, {VAL[u][t]}")
            a(f"buffer_store_dwordx4 {vr(O+4*t)}, {vL16}, {HS}, {'s72' if t == 0 else 's73'} offen", "hst")
        self.stamp()
        vT2 = [[f"v{ACC0+52+2*u+h}" for h in range(2)] for u in range(4)]; vSH = f"v{ACC0+60}"
        a(f"v_lshrrev_b32 {t0}, 2, {vLANE}\nv_lshlrev_b32 {t0}, 7, {t0}\nv_and_b32 {t1}, 3, {vLANE}\nv_lshl_add_u32 {t0}, {t1}, 3, {t0}\nv_bfe_u32 {t1}, {vLANE}, 3, 2\nv_add_u32 {t0}, {72*1024}, {t0}")
        for u in range(4): a(f"v_xor_b32 {t2}, {u}, {t1}\nv_lshl_add_u32 {vT2[u][0]}, {t2}, 5, {t0}\nv_add_u32 {vT2[u][1]}, {9*4096}, {vT2[u][0]}")
        a(f"v_add_u32 {vSH}, s74, {vL16}")
        self.set_flag("s71", "near")
        a(f"s_add_u32 s72, s72, {FAR}\ns_add_u32 s73, s73, {FAR}")
        a("s_mov_b32 s70, 0")
        def far_st(tag):
            for t in range(2): a(f"buffer_store_dwordx4 {vr(O+4*t)}, {vL16}, {HS}, {'s72' if t == 0 else 's73'} offen sc1", tag)
        def far_copy():
            far_st("hfar")
            self.set_flag("s71", "far")
            a("s_mov_b32 s70, 1")
        self.stamp()
        order = [(s, u) for s in range(18) for u in range(4)]
        pool = [BF0 + 72 + 4 * i for i in range(18)] + [AF0 + 4 * i for i in range(6)]
        fr = {}; nx = [0]
        def rd2():
            n = nx[0]; s, u = order[n]
            fr[n] = self.read_tr(vT2[u][0 if s < 9 else 1], (s % 9) * 4096, f"f{n}", dst=pool.pop(0)); nx[0] += 1
        self.wait_ctr(1, 7, sleep=0)
        while pool: rd2()
        a(f"s_add_u32 s64, s76, {F1_OFF}")
        self.poll2("s64", vFLG, True, hook=far_copy)
        a(f"v_add_u32 {vSH}, s67, {vSH}")
        self.stamp()
        for s in range(18):
            a(f"buffer_load_dwordx4 {vr(HF+4*s)}, {vSH}, {HS}, {sC[s>>2]} offen offset:{(s&3)*1024} sc1", f"h{s}")
        self.signal(4)
        self.stamp()
        for n, (s, u) in enumerate(order):
            if u == 0: a.wait_vm(f"h{s}")
            a.wait_lg(f"f{n}")
            a(f"{MFMA} {vr(ACC+4*u)}, {vr(fr[n])}, {vr(HF+4*s)}, {'0' if s == 0 else vr(ACC+4*u)}")
            pool.append(fr[n])
            if nx[0] < len(order): rd2()
        self.signal(5)
        self.stamp()
        vS, vQ = f"v{SUM}", f"v{SUM+1}"
        a(f"v_mov_b32 {vS}, 0\nv_mov_b32 {vQ}, 0")
        a(f"s_mul_i32 s64, s69, 9\ns_add_u32 s64, s64, {sNT}\ns_mul_i32 s64, s64, {XG}\ns_add_u32 s64, s64, {X1_OFF}")
        for d in range(8):
            t3 = f"v{T0+3}"
            a(f"v_cvt_pk_bf16_f32 {t0}, v{ACC+2*d}, v{ACC+2*d+1}")
            a(f"v_lshlrev_b32 {t1}, 16, {t0}\nv_and_b32 {t0}, 0xffff0000, {t0}")
            a(f"v_lshlrev_b32 {t2}, 16, v{XR+d}\nv_and_b32 {t3}, 0xffff0000, v{XR+d}")
            a(f"v_add_f32 {t1}, {t1}, {t2}\nv_add_f32 {t0}, {t0}, {t3}")
            a(f"v_cvt_pk_bf16_f32 v{PK+d}, {t1}, {t0}")
            if d & 3 == 3: a(f"buffer_store_dwordx4 {vr(PK+d-3)}, {vL16}, {WS}, s64 offen offset:{1024*(d>>2)} sc1", "x1st")
        a(f"v_bitop3_b32 v{T0+4}, v{PK}, v{PK+1}, {sTAG} bitop3:0x96")
        for h in range(1, 4): a(f"v_bitop3_b32 v{T0+4}, v{T0+4}, v{PK+2*h}, v{PK+2*h+1} bitop3:0x96")
        a(f"v_lshlrev_b32 {t0}, 2, {vLANE}")
        a(f"buffer_store_dword v{T0+4}, {t0}, {WS}, s64 offen offset:2048 sc1", "x1st")
        for d in range(8):
            a(f"v_dot2_f32_bf16 {vS}, v{PK+d}, v{OB}, {vS}")
            a(f"v_dot2_f32_bf16 {vQ}, v{PK+d}, v{PK+d}, {vQ}")
        self.xlane_sum(vS, t0); self.xlane_sum(vQ, t0)
        a(f"s_lshr_b32 s64, s69, 1\ns_mul_i32 s64, s64, 12\ns_add_u32 s64, s64, {sNT}\ns_lshl_b32 s64, s64, 8")
        a(f"s_and_b32 s65, s69, 1\ns_lshl_b32 s65, s65, 7\ns_add_u32 s64, s64, s65\ns_add_u32 s64, s64, {ST_OFF}")
        a(f"v_lshlrev_b32 {t0}, 3, {vJ}\nv_mov_b32 {t1}, {sTAG8}\ns_mov_b32 s65, 0xff")
        a(f"v_bfi_b32 {vS}, s65, {t1}, {vS}\nv_bfi_b32 {vQ}, s65, {t1}, {vQ}")
        a("s_mov_b64 exec, 0xffff")
        a(f"buffer_store_dwordx2 {vr(SUM,2)}, {t0}, {WS}, s64 offen sc1", "x1st")
        a("s_mov_b64 exec, -1")
        self.signal(6)
        self.stamp()
        far_st("hfar")
        a("s_mov_b32 s101, s71")

    def h_phaseA(self):
        a = self.a
        vD1, vD2, vDX, vDX2 = "v48", "v49", "v50", "v51"
        vXB = [f"v{52+e}" for e in range(4)]; OB = 56; SUM = 60; GR = 64; KR = 68; XH = 112
        t0, t1, t2 = f"v{T0}", f"v{T0+1}", f"v{T0+2}"
        ks = 32 * 1152
        a(f"s_lshl_b32 s69, {sX}, 3\ns_lshl_b32 s64, {sMT}, 2\ns_add_u32 s69, s69, s64\ns_add_u32 s69, s69, {sW}\ns_mul_i32 s71, s69, 18432")
        a(f"v_lshrrev_b32 {t0}, 3, {vLANE}\nv_lshrrev_b32 {t1}, 4, {vLANE}\nv_and_b32 {t2}, 7, {vLANE}\nv_xor_b32 {t1}, {t1}, {t2}")
        a(f"v_mul_u32_u24 {vDX}, 1152, {t0}\nv_lshl_add_u32 {vDX}, {t1}, 4, {vDX}")
        a(f"v_xor_b32 {vDX2}, 64, {vDX}\nv_add_u32 {vDX2}, {8*1152}, {vDX2}")
        a(f"s_lshl_b32 s64, {sW}, 3\nv_add_u32 {t0}, s64, {t0}")
        a(f"v_and_b32 {t1}, 6, {t0}\nv_xor_b32 {t1}, {t1}, {t2}\nv_lshlrev_b32 {t1}, 4, {t1}")
        a(f"v_mul_u32_u24 {vD2}, 1152, {t0}\nv_add_u32 {vD2}, {vD2}, {t1}")
        a(f"v_and_b32 {t2}, 12, {t0}\nv_lshlrev_b32 {t2}, 1, {t2}\nv_and_b32 {vD1}, 3, {t0}\nv_add_u32 {t2}, {t2}, {vD1}")
        a(f"v_lshrrev_b32 {t0}, 4, {t0}\nv_lshl_add_u32 {t0}, {t0}, 2, {t2}")
        a(f"v_mul_u32_u24 {vD1}, 1152, {t0}\nv_add_u32 {vD1}, {vD1}, {t1}")
        a(f"s_lshl_b32 s79, {sNT}, 7\ns_mov_b32 s70, s79\ns_lshl_b32 s72, {sW}, 11\ns_add_u32 s72, s72, {72*1024}")
        self.kernarg_wait()
        self.srd(X, 4, 1179648); self.srd(W1, 6, 663552)
        self.stamp()
        n = 0
        vPG = "v52"
        def after():
            nonlocal n
            n += 1
            if n == 4:
                self.srd(W3, 10, 5308416); self.srd(W4, 12, 5308416)
                self.common_late()
                self.stamp()
            if n in self.NEED: self.dsignal(n, 32)
        for i, (xl, kk) in enumerate(self.STEPS):
            for L in xl:
                a(f"s_add_u32 m0, s72, {8192*L}")
                a(f"buffer_load_dwordx4 {vDX}, {X}, s71 offen lds", "ld"); after()
                a(f"s_add_u32 m0, s72, {8192*L+1024}")
                a(f"buffer_load_dwordx4 {vDX2}, {X}, s71 offen lds", "ld"); after()
                a(f"s_add_u32 s71, s71, 128")
            for s in kk:
                a(f"s_add_u32 m0, {sWK}, {4096*s}")
                a(f"buffer_load_dwordx4 {vD1}, {W1}, s70 offen lds", "ld"); after()
                a(f"s_add_u32 s70, s70, {ks}")
        self.stamp()
        self.wait_ctr(0, 3 if "w2late" in self.exp else 1, sleep=1)
        a(f"s_mov_b32 s70, s79")
        for s in range(18):
            a(f"s_add_u32 m0, {sWK}, {72*1024+4096*s}")
            a(f"buffer_load_dwordx4 {vD2}, {W2}, s70 offen lds", "w2")
            a(f"s_add_u32 s70, s70, {ks}")
            if s % W2G == W2G - 1: a(f"s_waitcnt vmcnt({INF})")
        self.dsignal(7)
        self.stamp()

    def repack(self):
        a = self.a
        a(f"s_sub_u32 s67, {sR}, {NACT}\ns_lshl_b32 s68, s67, 3\ns_add_u32 s68, s68, {sWV}")
        a(f"s_lshl_b32 s69, {sWV}, 13")
        vR, vCK = "v48", "v49"
        a(f"v_lshrrev_b32 {vR}, 3, {vLANE}")
        a(f"v_and_b32 v{T0}, 6, {vR}\nv_and_b32 {vCK}, 7, {vLANE}\nv_xor_b32 {vCK}, {vCK}, v{T0}\nv_lshlrev_b32 {vCK}, 4, {vCK}")
        a(f"s_lshl_b32 s70, s68, 10\ns_and_b32 s71, s70, 0x7fff\ns_add_u32 s71, s71, {112*1024}\ns_mul_i32 s72, {sX}, 147456")
        self.kernarg_wait()
        self.srd(X, 4, 1179648); self.srd(W1, 6, 663552); self.srd(W2, 8, 663552)
        self.stamp()
        DUM = vr(252)
        a(f"s_add_u32 s64, s70, s72")
        a(f"buffer_load_dwordx4 {DUM}, {vL16}, {X}, s64 offen", "pf")
        a(f"s_add_u32 s64, s71, s72")
        a(f"buffer_load_dwordx4 {DUM}, {vL16}, {X}, s64 offen", "pf")
        a(f"s_add_u32 s64, s70, {11*32*1152}")
        for i in range(3):
            a(f"buffer_load_dwordx4 {DUM}, {vL16}, {W1}, s64 offen", "pf")
            a(f"s_add_u32 s64, s64, {112*1024}")
        self.srd(W3, 10, 5308416); self.srd(W4, 12, 5308416)
        self.common_late()
        a.wait_vm()
        Lt = a.label("Ltc")
        a(f"s_mul_i32 s73, {sWV}, 14\ns_add_u32 s73, s73, s67\ns_lshl_b32 s64, s73, 12\nv_lshlrev_b32 v{T0}, 6, {vLANE}")
        a(f"s_cmp_ge_u32 s73, 92\ns_cbranch_scc1 {Lt}")
        a(f"s_add_u32 s65, s64, s72\ns_add_u32 s65, s65, {H_OFF}")
        def sel(lo, expr, base):
            a(expr + f"\ns_add_u32 s66, s66, {(base - lo*4096) & 0xffffffff}\ns_cmp_ge_u32 s73, {lo}\ns_cselect_b32 s65, s66, s65")
        sel(36, f"s_lshl_b32 s66, {sX}, 14\ns_add_u32 s66, s66, s64", F1_OFF)
        a(f"s_sub_u32 s66, s73, 40\ns_lshl_b32 s66, s66, 15\ns_lshl_b32 s74, {sX}, 12\ns_add_u32 s66, s66, s74\ns_add_u32 s66, s66, {F3_OFF}\ns_cmp_ge_u32 s73, 40\ns_cselect_b32 s65, s66, s65")
        sel(48, f"s_mul_i32 s66, {sX}, {8*XT}\ns_add_u32 s66, s66, s64", X1_OFF)
        sel(89, f"s_mul_i32 s66, {sX}, 12288\ns_add_u32 s66, s66, s64", ST_OFF)
        a(f"buffer_load_dword {DUMMY}, v{T0}, {WS}, s65 offen sc1", "_untracked")
        a(f"{Lt}:")
        for i in range(6):
            a(f"buffer_load_dwordx4 {DUM}, {vL16}, {W2}, s70 offen", "pf")
            a(f"s_add_u32 s70, s70, {112*1024}")
        if "xtlb" in self.exp:
            Lt = a.label("Ltl")
            a(f"s_cmp_lg_u32 {sWV}, 7\ns_cbranch_scc1 {Lt}")
            a(f"v_lshlrev_b32 v{T0}, 20, {vLANE}\ns_mov_b64 exec, 0x0fffffff")
            a(f"s_cmp_lg_u32 s67, 13\ns_cbranch_scc1 {Lt}a")
            a(f"buffer_load_dword {DUMMY}, v{T0}, {WS}, 0 offen sc1", "_untracked")
            a(f"{Lt}a:")
            a(f"s_cmp_lg_u32 s67, 12\ns_cbranch_scc1 {Lt}b")
            a(f"buffer_load_dword {DUMMY}, v{T0}, {OUT}, 0 offen sc1", "_untracked")
            a(f"buffer_load_dword {DUMMY}, v{T0}, {W4}, 0 offen", "_untracked")
            a(f"{Lt}b:")
            a("s_mov_b64 exec, -1")
            a(f"{Lt}:")
        a("s_barrier")
        Lno = a.label("Lnj")
        a(f"s_mul_i32 s64, {sWV}, 14\ns_add_u32 s64, s64, s67\ns_cmp_ge_u32 s64, 81\ns_cbranch_scc1 {Lno}")
        vm0 = list(a.vm)
        a(f"s_mul_i32 s70, s64, 7282\ns_lshr_b32 s70, s70, 16\ns_mul_i32 s65, s70, 9\ns_sub_u32 s71, s64, s65")
        a(f"s_mul_i32 s66, s70, {64*9216}\ns_mul_i32 s64, {sX}, 1152\ns_add_u32 s66, s66, s64\ns_lshl_b32 s64, s71, 7\ns_add_u32 s66, s66, s64")
        a(f"v_mul_u32_u24 v{T0}, 9216, {vR}\nv_add_u32 v{T0}, v{T0}, {vCK}")
        for i in range(8):
            a(f"s_add_u32 m0, s69, {i*1024}")
            a(f"buffer_load_dwordx4 v{T0}, {W3}, s66 offen nt lds", "job")
            a(f"s_add_u32 s66, s66, {8*9216}")
        vT = [f"v{52+i}" for i in range(4)]
        self.tr_bases(vT, "s69")
        for i in range(4): a(f"v_mov_b32 v{136+i}, 0x3f803f80")
        a(f"s_mul_i32 s64, {sX}, 9\ns_add_u32 s64, s64, s70\ns_mul_i32 s64, s64, 2304\ns_lshl_b32 s65, s71, 8\ns_add_u32 s64, s64, s65\ns_add_u32 s72, s64, {CSP_OFF}")
        a(f"v_mov_b32 v{T0+4}, {sTAG8}\ns_mov_b32 s73, 0xff")
        a.wait_vm("job")
        self.stamp()
        for kk in range(2):
            for uu in range(4): self.read_tr(vT[uu], kk * 4096, f"r{kk}{uu}", dst=56 + 16 * kk + 4 * uu)
        for kk in range(2):
            for uu in range(4):
                a.wait_lg(f"r{kk}{uu}")
                a(f"{MFMA} {vr(140+4*uu)}, {vr(56+16*kk+4*uu)}, {vr(136)}, {'0' if kk == 0 else vr(140+4*uu)}")
        for uu in range(1, 4):
            a(f"v_cmp_eq_u32 vcc, {uu}, {vJ}")
            for e in range(4): a(f"v_cndmask_b32 v{140+e}, v{140+e}, v{140+4*uu+e}, vcc")
        for e in range(4): a(f"v_bfi_b32 v{140+e}, s73, v{T0+4}, v{140+e}")
        a(f"v_lshlrev_b32 v{T0}, 4, {vG}\nv_lshl_add_u32 v{T0}, {vJ}, 6, v{T0}")
        a("s_mov_b32 exec_lo, 0x000f000f\ns_mov_b32 exec_hi, 0x000f000f")
        a(f"buffer_store_dwordx4 {vr(140)}, v{T0}, {WS}, s72 offen sc1", "st")
        a("s_mov_b64 exec, -1")
        a(f"{Lno}:")
        a.vm = vm0; a.lg = []
        self.nst = 2
        a("s_mov_b32 s101, 0")
        self.signal(10)
        self.stamp()

    def load_stats(self, R, vT8):
        a = self.a
        va, vb = f"v{R+12}", f"v{R+13}"; t0 = f"v{T0}"
        a(f"v_lshl_add_u32 {va}, {vG}, 5, {vJ}\nv_lshlrev_b32 {va}, 3, {va}\nv_lshlrev_b32 {vb}, 3, {vJ}")
        a(f"s_lshl_b32 s64, {sM}, 2\ns_add_u32 s64, s64, {sW}\ns_mul_i32 s64, s64, 3072\ns_add_u32 s64, s64, {ST_OFF}")
        L = a.label("Lst")
        a(f"s_mov_b32 {sTO}, 0")
        a(f"{L}:")
        for tt in range(2):
            for q in range(3):
                a(f"buffer_load_dwordx2 {vr(R+6*tt+2*q,2)}, {va if q < 2 else vb}, {WS}, s64 offen offset:{1024*q+128*tt} sc1", "st")
        a(f"s_add_u32 {sTO}, {sTO}, 1\ns_cmp_gt_u32 {sTO}, 100000\ns_cbranch_scc1 L_end")
        a.wait_vm()
        a(f"v_xor_b32 {t0}, v{R}, {vT8}")
        for e in range(1, 12): a(f"v_bitop3_b32 {t0}, {t0}, v{R+e}, {vT8} bitop3:0xf6")
        a(f"v_and_b32 {t0}, 0xff, {t0}\nv_cmp_ne_u32 vcc, 0, {t0}")
        a(f"s_cbranch_vccnz {L}")
    def finish_stats(self, K, R):
        a = self.a
        for c in range(2):
            a(f"v_add_f32 v{R+c}, v{R+c}, v{R+2+c}")
            self.xlane_sum(f"v{R+c}", f"v{T0}")
            a(f"v_add_f32 v{R+c}, v{R+c}, v{R+4+c}")
        self.ln_consts(f"v{R}", f"v{R+1}", K, f"v{T0}")
    def h3_base(self, dst):
        self.a(f"s_lshl_b32 s64, {sM}, 3\ns_lshl_b32 s65, {sW}, 1\ns_add_u32 s64, s64, s65\ns_lshl_b32 s64, s64, 3\ns_add_u32 s64, s64, {sX}")
        self.a(f"s_mul_i32 s64, s64, 18432\ns_add_u32 {dst}, s64, {H3_OFF}")
    def f3_base(self, dst):
        self.a(f"s_lshl_b32 s64, {sM}, 3\ns_add_u32 s64, s64, {sX}\ns_lshl_b32 s64, s64, 2\ns_add_u32 s64, s64, {sW}\ns_lshl_b32 s64, s64, 10\ns_add_u32 {dst}, s64, {F3_OFF}")

    def gelu_tile(self, acc, CSB, K, dst, vo, vo8, sPair, sSingle, sFlag, between=None):
        a = self.a
        t1 = f"v{T0+1}"
        a(f"v_lshl_add_u32 v0, {vG}, 4, {vSCR}")
        for u in range(2): a(f"ds_read_b128 {vr(CSB+4*u)}, v0 offset:{CS3_OFF+64*u}", f"cs{u}")
        for u in range(9):
            a.wait_lg(f"cs{u}")
            self.gelu4(acc(u), CSB + 4 * (u & 1), K, T0)
            if u + 2 < 9:
                a(f"v_lshl_add_u32 v0, {vG}, 4, {vSCR}")
                a(f"ds_read_b128 {vr(CSB+4*(u&1))}, v0 offset:{CS3_OFF+64*(u+2)}", f"cs{u+2}")
            p = u >> 1
            for d in range(2): a(f"v_cvt_pk_bf16_f32 v{dst(p)+2*(u&1)+d}, v{acc(u)+2*d}, v{acc(u)+2*d+1}")
            if u & 1: a(f"buffer_store_dwordx4 {vr(dst(p))}, {vo}, {WS}, {sPair} offen offset:{1024*p} sc1", f"h3_{p>>1}")
            if u == 8: a(f"buffer_store_dwordx2 {vr(dst(4),2)}, {vo8}, {WS}, {sSingle} offen sc1", "h3_1")
            if between: between(u)
            if u == 8: self.set_flag(sFlag, "both", "h3_0")
    def c_mlp(self):
        a = self.a
        t0, t1 = f"v{T0}", f"v{T0+1}"
        vX2, vH2, vF3, vEX = (f"v{T0+4+i}" for i in range(4))
        vA = ["v5", "v6", "v8"]
        CT = T0
        ACC = 40
        vL8 = [vX2, DUMMY]
        def B(k, tt): return BF0 + 8 * k + 4 * tt
        a(f"v_add_u32 {vX2}, {XT}, {vL16}\nv_add_u32 {vH2}, 147456, {vL16}")
        a(f"v_min_u32 {vF3}, 7, {vLANE}\nv_lshlrev_b32 {vF3}, 7, {vF3}")
        a(f"s_mul_i32 s64, {sW}, {13*1024}\ns_add_u32 s64, s64, {EX1*SL}\nv_add_u32 {vEX}, s64, {vL16}")
        a(f"s_lshl_b32 s64, {sM}, 3\ns_lshl_b32 s65, {sW}, 1\ns_add_u32 s64, s64, s65\ns_mul_i32 s64, s64, {XT}\ns_add_u32 s68, s64, {X1_OFF}")
        self.rot3("s69"); a("s_lshl_b32 s69, s69, 10")
        self.h3_base("s70")
        for d in range(4): a(f"s_xor_b32 s64, {sJ}, {d}\ns_lshl_b32 s64, s64, 12\ns_add_u32 s{71+d}, s64, s70")
        for e in range(2): a(f"s_lshr_b32 s64, {sJ}, 1\ns_xor_b32 s64, s64, {e}\ns_add_u32 s64, s64, 16\ns_lshl_b32 s64, s64, 10\ns_add_u32 s{75+e}, s64, s70")
        self.f3_base("s77")
        a(f"s_lshl_b32 s64, {sM}, 2\ns_add_u32 s64, s64, {sW}\ns_mul_i32 s64, s64, 3072\ns_add_u32 s78, s64, {ST_OFF}")
        a(f"v_lshrrev_b32 {t0}, 2, {vLANE}\nv_mul_u32_u24 {vA[0]}, 288, {t0}\nv_and_b32 {t0}, 3, {vLANE}\nv_lshl_add_u32 {vA[0]}, {t0}, 3, {vA[0]}")
        a(f"v_add_u32 {vA[1]}, {6*SL}, {vA[0]}")
        a(f"s_lshl_b32 s64, s69, 0\ns_lshr_b32 s64, s64, 3\nv_add_u32 {vFLG}, s64, {vFLG}\nv_subrev_u32 {t0}, {18*128}, {vFLG}\nv_min_u32 {vFLG}, {vFLG}, {t0}")
        a(f"s_lshr_b32 s66, s69, 11")
        for g in range(9):
            a(f"s_mul_i32 s64, s66, {XG}\ns_add_u32 s{92+g}, s64, s68\ns_add_u32 s66, s66, 1"); self.modn("s66", 9)
        a(f"v_lshlrev_b32 {DUMMY}, 2, {vLANE}\nv_add_u32 {vEX}, {XT}, {DUMMY}")
        CKR = [B(9, 0), B(11, 0), B(13, 0), B(15, 0), B(17, 0), B(1, 0), B(2, 0), B(3, 0), B(4, 0)]
        def hint(mask):
            L = a.label("Lpoll"); L2 = a.label("Lpoll")
            a(f"s_mov_b32 {sTO}, 0\ns_branch {L2}")
            a(f"{L}:")
            a(f"s_sleep {HS_}")
            a(f"{L2}:")
            a(f"buffer_load_ubyte {t0}, {vFLG}, {WS}, s78 offen sc1")
            a(f"s_add_u32 {sTO}, {sTO}, 1\ns_cmp_gt_u32 {sTO}, 100000\ns_cbranch_scc1 L_end")
            a.wait_vm()
            a(f"v_cmp_ne_u32 vcc, {sTAG8}, {t0}")
            if mask == 0xf:
                Lf = a.label("Lff")
                a(f"s_cmp_eq_u32 s101, 0\ns_cbranch_scc1 {Lf}")
                self.set_flag("s101", "far", "none")
                a(f"s_mov_b32 s101, 0")
                a(f"{Lf}:")
                a.vm = []
            a(f"s_and_b32 s66, vcc_lo, 0x3ffff\ns_and_b32 vcc_lo, vcc_lo, {mask}\ns_cbranch_scc1 {L}")
        def grp_ops(g, tag):
            o = []
            for tt in range(2): o.append((f"buffer_load_dword v{CKR[g]+tt}, {DUMMY if tt == 0 else vEX}, {WS}, s{92+g} offen offset:2048 sc1", tag))
            for q in range(2):
                for tt in range(2): o.append((f"buffer_load_dwordx4 {vr(B(2*g+q,tt))}, {vL16 if tt == 0 else vX2}, {WS}, s{92+g} offen offset:{1024*q} sc1", tag))
            return o
        def chk_ops(g):
            o = []
            for tt in range(2):
                t = f"v{CKR[g]+tt}"
                for q in range(2):
                    b = B(2 * g + q, tt)
                    o += [f"v_bitop3_b32 {t}, {t}, v{b}, v{b+1} bitop3:0x96", f"v_bitop3_b32 {t}, {t}, v{b+2}, v{b+3} bitop3:0x96"]
            o += [f"v_bitop3_b32 v{CKR[g]}, v{CKR[g]}, v{CKR[g]+1}, {sTAG} bitop3:0x7e", f"v_cmp_eq_u32 vcc, 0, v{CKR[g]}"]
            return o
        def chk_branch(g):
            a("s_cmp_eq_u64 vcc, -1")
            def retry():
                L = a.label("Lxr")
                a(f"s_mov_b32 {sTO}, 0")
                a(f"{L}:")
                a(f"s_add_u32 {sTO}, {sTO}, 1\ns_cmp_gt_u32 {sTO}, 100000\ns_cbranch_scc1 L_end")
                for o in grp_ops(g, "r"): a(*o)
                a.wait_vm()
                for o in chk_ops(g): a(o)
                a(f"s_cmp_eq_u64 vcc, -1\ns_cbranch_scc0 {L}")
            a.slow(retry)
        self.stamp()
        self.wait_ctr(1, 12, sleep=2)
        hint(0xf)
        self.stamp()
        for g in range(2):
            for o in grp_ops(g, f"b{g}"): a(*o)
        self.fs(FS2_OFF)
        Lh = a.label("Lh2")
        vm = list(a.vm)
        a(f"s_cmp_eq_u32 s66, 0\ns_cbranch_scc1 {Lh}")
        hint(0x3ffff)
        a(f"{Lh}:")
        a.vm = vm
        a(f"v_add_u32 {vA[2]}, {12*SL}, {vA[0]}")
        for g in range(2, 4):
            for o in grp_ops(g, f"b{g}"): a(*o)
        a.wait_vm("b0")
        for o in chk_ops(0): a(o)
        chk_branch(0)
        self.signal(11)
        self.stamp()
        LOOK = 6
        base_pool = [20, 24, 28, 32, 36]
        def rd(addr, tag, dst):
            v, off = addr
            a(f"ds_read_b64_tr_b16 {vr(dst,2)}, {v} offset:{off}", tag)
            a(f"ds_read_b64_tr_b16 {vr(dst+2,2)}, {v} offset:{off+4608}", tag)
        def stream(items, hooks_issue, hooks_after, pool, mid={}):
            fr = {}; nxt = [0]
            def can(i): return bool(nxt[0] < len(items) and nxt[0] <= i + LOOK and pool)
            def half(h):
                n = nxt[0]
                if h == 0:
                    if n in hooks_issue: hooks_issue[n]()
                    fr[n] = pool.pop(0)
                v, off = items[n][0]
                a(f"ds_read_b64_tr_b16 {vr(fr[n]+2*h,2)}, {v} offset:{off+4608*h}", f"f{n}")
                if h == 1: nxt[0] += 1
            while can(-1): half(0); half(1)
            for i, (n, mm, pre) in enumerate(items):
                if pre: a.wait_vm(pre)
                a.wait_lg(f"f{i}")
                go = can(i)
                for q, (acc, breg, first) in enumerate(mm):
                    a(f"{MFMA} {vr(acc)}, {vr(fr[i])}, {vr(breg)}, {'0' if first else vr(acc)}")
                    if go: half(q)
                    if q == 0 and i in mid: mid[i]()
                pool.append(fr[i])
                if i in hooks_after:
                    for h in hooks_after[i]: h(pool)
                if nxt[0] <= i + 1 or (len(pool) > 1 and can(i) and (i & 1)):
                    if can(i): half(0); half(1)
        def hook(d, i, f): d.setdefault(i, []).append(f)
        def slot_addr(bases, f, extra):
            sl = f % NSL
            return bases[sl // 6], (sl % 6) * SL + extra
        items = [(slot_addr(vA, s, 32 * u), [(ACC + 8 * u + 4 * tt, B(s, tt), s == 0) for tt in range(2)], None)
                 for s in range(18) for u in range(9)]
        hi = {}; ha = {}
        CT = B(5, 0)
        mid = {}
        for g in range(9):
            i0 = 18 * g
            if g + 4 < 9:
                for n, o in enumerate(grp_ops(g + 4, f"b{g+4}")): mid[i0 + n] = (lambda o=o: a(*o))
            if g + 1 < 9:
                hook(ha, i0 + 6, lambda pool, g=g: a.wait_vm(f"b{g+1}"))
                for n, o in enumerate(chk_ops(g + 1)): mid[i0 + 7 + n] = (lambda o=o: a(o))
                mid[i0 + 17] = (lambda g=g: chk_branch(g + 1))
        for ks_, val in ((8, 13), (12, 14), (16, 15)):
            hi[9 * ks_ - 5] = lambda: self.ctr_issue(1, CT)
            hi[9 * ks_] = (lambda val=val: self.ctr_check(1, CT, val, tmp=CT))
        hook(ha, 8, lambda pool: pool.extend([B(0, 0), B(0, 1)]))
        hook(ha, 9 * 5 - 1, lambda pool: self.signal(12))
        hook(ha, 9 * 9 - 1, lambda pool: self.signal(13))
        hook(ha, 9 * 13 - 1, lambda pool: self.signal(14))
        KB = B(5, 0); CSB = B(6, 0); TB = B(11, 0); S8 = B(12, 0)
        def consts(pool):
            a(f"s_lshl_b32 s64, {sW}, 9\ns_add_u32 s64, s64, {KC_OFF}\nv_lshl_add_u32 v0, {vJ}, 4, s64")
            for tt in range(2): a(f"ds_read_b128 {vr(KB+4*tt)}, v0 offset:{256*tt}", "kc")
        def csums(pool, u):
            if u == 0: a(f"v_lshl_add_u32 v{T0+2}, {vG}, 4, {vSCR}")
            a(f"ds_read_b128 {vr(CSB+4*u)}, v{T0+2} offset:{CS3_OFF+64*u}", "kc")
        if "p1" in self.exp:
            for k_ in (1, 3, 5, 7, 9, 11, 13, 15): hook(ha, 9 * k_ + 3, lambda pool: self.stamp())
        hook(ha, 9 * 16 + 2, consts)
        for u in range(9): hook(ha, 9 * 16 + 4 + u, lambda pool, u=u: csums(pool, u))
        stream(items, hi, ha, list(base_pool), mid)
        self.signal(15)
        self.stamp()
        a(f"s_and_b32 s64, {sJ}, 1\ns_lshl_b32 s64, s64, 9\ns_add_u32 s67, s64, s75")
        a(f"v_lshlrev_b32 {vL8[0]}, 3, {vLANE}\nv_add_u32 {vL8[1]}, 147456, {vL8[0]}")
        a(f"s_lshl_b32 s64, {sJ}, 8\ns_add_u32 s79, s64, s77")
        def h3ops(k):
            if k < 16:
                d, p = 1 + (k - 4) % 3, (k - 4) // 3
                return [(f"buffer_load_dwordx4 {vr(B(k,tt))}, {vL16 if tt == 0 else vH2}, {WS}, s{71+d} offen offset:{1024*p} sc1", f"g{k}") for tt in range(2)]
            return [(f"buffer_load_dwordx2 {vr(B(k,tt)+2*hf,2)}, {vL8[tt]}, {WS}, s{75+k-16} offen offset:{512*hf} sc1", f"g{k}") for tt in range(2) for hf in range(2)]
        def ap_issue(): a(f"buffer_load_dword {vEX}, {vF3}, {WS}, s77 offen sc1", "ap")
        def ap_check(mask):
            a.wait_vm("ap")
            a(f"v_subrev_u32 {vEX}, {sTAG}, {vEX}")
            a(f"v_cmp_le_u32 vcc, 16, {vEX}")
            a(f"s_and_b32 s64, vcc_lo, {mask}\ns_cmp_eq_u32 s64, 0")
            a.slow(lambda: self.poll2("s77", vF3, False, mask=mask))
        a.wait_lg()
        for u in range(9):
            self.gelu_pk([(ACC + 8 * u + 4 * tt, CSB + 4 * u, KB + 4 * tt) for tt in range(2)], TB)
            p = u >> 1
            for tt in range(2):
                dst = B(p, tt) + 2 * (u & 1) if u < 8 else S8 + 2 * tt
                b = ACC + 8 * u + 4 * tt
                for d in range(2): a(f"v_cvt_pk_bf16_f32 v{dst+d}, v{b+2*d}, v{b+2*d+1}")
            if u == 7: ap_issue()
            for tt in range(2):
                if u & 1: a(f"buffer_store_dwordx4 {vr(B(p,tt))}, {vL16 if tt == 0 else vH2}, {WS}, s71 offen offset:{1024*p} sc1", f"h3_{p>>1}")
                if u == 8: a(f"buffer_store_dwordx2 {vr(S8+2*tt,2)}, {vL8[tt]}, {WS}, s67 offen sc1", "h3_1")
            if u == 6: self.set_flag("s79", "both", "h3_0")
            if u == 7:
                self.ctr_issue(1, B(13, 0))
                for o in range(9):
                    if o == 0: a("s_mov_b32 s92, 256")
                    else: a(f"s_add_u32 s64, {sX}, {o}\ns_and_b32 s64, s64, 7\ns_lshl_b32 s{92+o}, s64, 5")
        self.stamp()
        ap_check(0x55)
        self.ctr_check(1, B(13, 0), 17, tmp=B(13, 0))
        items = []; hi = {}; ha = {}; mid = {}
        def base1(reg, o): hi[len(items)] = (lambda: a(f"v_add_u32 {reg}, s{92+o}, {vA[0]}"))
        for o in range(9):
            reg = f"v{B(17,1)+(o&1)}"; base1(reg, o)
            for k in range(4): items.append(((reg, (1 + k) * SL), [(ACC + 8 * o + 4 * tt, B(k, tt), k == 0) for tt in range(2)], None))
        hook(ha, FL, lambda pool: (a(f"s_add_u32 s64, s79, 128"), self.set_flag("s64", "both", "h3_1", T0=B(17, 0))))
        n = 0
        for k in range(4, 10):
            for o_ in h3ops(k): mid[n] = (lambda o_=o_: a(*o_)); n += 1
        mid[FB] = ap_issue
        hook(ha, FB + 7, lambda pool: ap_check(0xff))
        n = FB + 8
        for k in range(10, 18):
            for o_ in h3ops(k): mid[n] = (lambda o_=o_: a(*o_)); n += 1
        hook(ha, 35, lambda pool: (self.signal(17), pool.extend([B(0, 0), B(0, 1)])))
        UB = [[f"v{B(2,0)+4*q+i}" for i in range(3)] for q in range(2)]
        C0 = B(3, 0); CT4 = B(1, 0); CT5 = B(1, 1)
        for o in range(9):
            reg = f"v{T0+2+(o&1)}"
            hi[len(items)] = (lambda reg=reg, o=o: a(f"v_add_u32 {reg}, s{92+o}, {vA[0]}\nv_add_u32 {reg}, {5*SL}, {reg}"))
            for k in range(4, KE): items.append(((reg, (k - 4) * SL), [(ACC + 8 * o + 4 * tt, B(k, tt), False) for tt in range(2)], f"g{k}" if o == 0 else None))
        n0 = len(items)
        hook(ha, n0 - 14, lambda pool: self.ctr_issue(1, CT4))
        hook(ha, n0 - 8, lambda pool: self.ctr_check(1, CT4, 18, tmp=CT4))
        for o in range(NSK):
            reg = f"v{T0+2+((o+1)&1)}"
            hi[len(items)] = (lambda reg=reg, o=o: a(f"v_add_u32 {reg}, s{92+o}, {vA[1]}"))
            for k in (7, 8, 9): items.append(((reg, (k + 1 - 6) * SL), [(ACC + 8 * o + 4 * tt, B(k, tt), False) for tt in range(2)], f"g{k}" if o == 0 else None))
        n1 = len(items)
        hook(ha, n1 - 8, lambda pool: self.ctr_issue(1, CT4))
        hook(ha, n1 - 2, lambda pool: self.ctr_check(1, CT4, 19, tmp=CT4))
        hook(ha, n1 - 1, lambda pool: self.ctr_issue(0, CT5))
        hook(ha, n1 + 5, lambda pool: (self.ctr_check(0, CT5, 17, tmp=CT5), a(f"s_lshl_b32 s64, {sW}, 11\nv_add_u32 {vEX}, s64, {vL16}\nv_xor_b32 v{C0+1}, 16, {vCTR}")))
        if self.stamps: hook(ha, n1 - 1, lambda pool: self.stamp())
        for o in range(9):
            acc = ACC + 8 * o
            ub = UB[o & 1]
            def setb(o=o, ub=ub):
                for i in range(3): a(f"v_add_u32 {ub[i]}, s{92+o}, {vA[i]}")
            hi[len(items)] = setb
            for k in range(10 if o < NSK else KE, 18):
                items.append((slot_addr(ub, 18 + k, 0), [(acc + 4 * tt, B(k, tt), False) for tt in range(2)], f"g{k}" if o == 0 else None))
            n = len(items) - (0 if o < 8 else 2)
            if o >= 3:
                mid[n - 3] = (lambda: a(f"ds_read_b32 v{C0}, v{C0+1}", "pc"))
                def chk(pool, o=o):
                    a.wait_lg("pc")
                    a(f"v_readfirstlane_b32 s64, v{C0}")
                    a(f"s_cmp_ge_u32 s64, {20+o-3}")
                    a.slow(lambda o=o: self.wait_ctr(1, 20 + o - 3, one=True, tmp=C0))
                hook(ha, n, chk)
            if o < 8:
                for tt in range(2): mid[n + 1 + tt] = (lambda o=o, acc=acc, tt=tt: a(f"ds_write_b128 {vEX}, {vr(acc+4*tt)} offset:{(2+o%3)*SL+1024*tt}", "ex"))
                mid[n + 3] = (lambda o=o: a(f"v_mov_b32 v0, {19+o}"))
                mid[n + 4] = (lambda: a(f"ds_write_b32 {vCTR}, v0", "sig"))
            else:
                def dump(pool, o=o, acc=acc):
                    for tt in range(2): a(f"ds_write_b128 {vEX}, {vr(acc+4*tt)} offset:{(2+o%3)*SL+1024*tt}", "ex")
                    self.signal(19 + o)
                hook(ha, len(items) - 1, dump)
        XRr = ACC + 32 - 4; G8 = ACC; SUM8 = B(10, 0); vT8 = f"v{B(11,0)}"; vO = f"v{B(11,0)+1}"; U = B(12, 0)
        g_issue, g_take = self.part_helpers(vT8, U)
        def early8(pool):
            Le = a.label("Ls_e8")
            a(f"s_lshr_b32 s64, {sX}, 1\ns_cmp_lg_u32 s64, {sW}\ns_cbranch_scc1 {Le}")
            a(f"s_lshl_b32 s64, {sM}, 2\ns_add_u32 s64, s64, {sJ}\ns_mul_i32 s64, s64, {9*32*1024}\ns_add_u32 s69, s64, {P_OFF+8*32768}\ns_add_u32 s69, s69, {sWK}")
            for i in range(8): g_issue(i, "s69", G8, "p8")
            a(f"s_mul_i32 s64, {sJ}, 9\ns_add_u32 s78, s64, 8\ns_lshl_b32 s64, {sM}, 3\ns_add_u32 s79, s64, {sX}")
            a(f"s_mul_i32 s64, s79, 9\ns_lshr_b32 s65, s78, 2\ns_add_u32 s64, s64, s65\ns_mul_i32 s64, s64, {XG}\ns_and_b32 s65, s78, 2\ns_lshl_b32 s65, s65, 9\ns_add_u32 s64, s64, s65\ns_and_b32 s65, s78, 1\ns_lshl_b32 s65, s65, 3\ns_add_u32 s64, s64, s65\ns_add_u32 s64, s64, {X1_OFF}")
            a(f"buffer_load_dwordx2 {vr(XRr+4,2)}, {vL16}, {WS}, s64 offen sc1", "xr")
            a(f"{Le}:")
        hook(ha, len(items) - 14, early8)
        stream(items, hi, ha, list(base_pool), mid)
        self.stamp()
        L8 = a.label("Lu8")
        a(f"s_lshr_b32 s64, {sX}, 1\ns_cmp_lg_u32 s64, {sW}\ns_cbranch_scc1 {L8}")
        self.part_consts(vT8)
        a(f"v_mul_u32_u24 {vO}, 1152, {vJ}\nv_lshl_add_u32 {vO}, {vG}, 3, {vO}")
        a(f"s_bitcmp1_b32 {sX}, 0\ns_cselect_b64 s[98:99], -1, 0")
        for e in range(4): a(f"v_mov_b32 v{SUM8+e}, 0")
        for i in range(8): g_take(i, "s69", G8, "p8", SUM8, half="s[98:99]")
        a.wait_vm("xr")
        self.finish_out(SUM8, XRr + 4, vO, "s79", "s78")
        a(f"{L8}:")

    def rot3(self, dst):
        self.a(f"s_lshl_b32 {dst}, {sJ}, 2\ns_and_b32 s64, {sJ}, 2\ns_add_u32 {dst}, {dst}, s64")

    def h_mlp(self):
        a = self.a
        t0, t1, t2 = f"v{T0}", f"v{T0+1}", f"v{T0+2}"
        vH2, vEX, vT8 = (f"v{T0+5+i}" for i in range(3))
        vH8 = f"v{T0+8}"
        if self.stop <= 2:
            self.epoch_advance(); return
        a(f"v_add_u32 {vH2}, 147456, {vL16}\nv_lshlrev_b32 {vH8}, 3, {vLANE}\nv_add_u32 {vH8}, 147456, {vH8}")
        a(f"s_mul_i32 s64, {sW}, {13*1024}\ns_add_u32 s64, s64, {EX1*SL}\nv_add_u32 {vEX}, s64, {vL16}\nv_mov_b32 {vT8}, {sTAG8}")
        self.h3_base("s71"); self.f3_base("s72")
        a(f"s_lshr_b32 s64, {sJ}, 1\ns_add_u32 s64, s64, 16\ns_lshl_b32 s64, s64, 10\ns_add_u32 s68, s64, s71\ns_and_b32 s64, {sJ}, 1\ns_lshl_b32 s64, s64, 9\ns_add_u32 s68, s68, s64")
        a(f"s_lshl_b32 s64, {sJ}, 12\ns_add_u32 s71, s71, s64\ns_lshl_b32 s64, {sJ}, 8\ns_add_u32 s72, s72, s64")
        V3 = [f"v{200+i}" for i in range(5)]; V4 = [f"v{205+i}" for i in range(5)]; V4s = [f"v{210+i}" for i in range(5)]
        sP = [f"s{92+i}" for i in range(5)]
        for i in range(5):
            a(f"s_add_u32 s64, {sW}, {4*i}\ns_sub_u32 s65, s64, 9\ns_min_u32 s64, s64, s65\ns_lshl_b32 {sP[i]}, s64, 10\ns_lshl_b32 s64, s64, 6")
            a(f"v_add_u32 {t0}, s64, {vLANE}\nv_mul_u32_u24 {t1}, 3641, {t0}\nv_lshrrev_b32 {t1}, 16, {t1}")
            a(f"v_mul_u32_u24 {t2}, 18, {t1}\nv_sub_u32 {t0}, {t0}, {t2}\nv_lshlrev_b32 {t0}, 4, {t0}")
            a(f"v_mul_u32_u24 {V3[i]}, 9216, {t1}\nv_add_u32 {V3[i]}, {V3[i]}, {t0}")
            a(f"v_mul_u32_u24 {V4[i]}, 1152, {t1}\nv_add_u32 {V4[i]}, {V4[i]}, {t0}")
            a(f"v_lshrrev_b32 {t1}, 4, {t1}\nv_mul_u32_u24 {t1}, {128*1152}, {t1}\nv_add_u32 {V4s[i]}, {V4[i]}, {t1}")
        thr = [None]
        def pair(f, srd, V, sA, sB, tag):
            rA, rB = (f % NSL) * SL, ((f + 1) % NSL) * SL
            L = a.label("Lx")
            a(f"s_cmp_ge_u32 {sW}, 2\ns_cbranch_scc1 {L}")
            a(f"s_add_u32 m0, {sP[4]}, {rB}")
            a(f"buffer_load_dwordx4 {V[4]}, {srd}, {sB} offen lds", "_untracked")
            a(f"{L}:")
            for i in range(4):
                if i < 2: a(f"s_add_u32 m0, {sP[i]}, {rA}"); so = sA
                elif i == 3: a(f"s_add_u32 m0, {sP[i]}, {rB}"); so = sB
                else:
                    a(f"s_mov_b32 s64, {rB}\ns_cmp_eq_u32 {sW}, 0\ns_cselect_b32 s64, {rA}, s64\ns_cselect_b32 s66, {sA}, {sB}\ns_add_u32 m0, {sP[i]}, s64"); so = "s66"
                a(f"buffer_load_dwordx4 {V[i]}, {srd}, {so} offen lds", tag)
                if thr[0] is not None:
                    a(f"s_waitcnt vmcnt({thr[0]})"); a.vm = a.vm[max(0, len(a.vm)-thr[0]):] if thr[0] else []
        k3 = 32 * 9216
        self.rot3("s69")
        a(f"s_mul_i32 s69, s69, {k3}\ns_lshl_b32 s64, {sX}, 2\ns_add_u32 s64, s64, {sJ}\ns_mul_i32 s70, s64, 288")
        def w3pair(s, tag):
            a(f"s_add_u32 s73, s69, s70\ns_add_u32 s74, s73, {k3}")
            pair(s, W3, V3, "s73", "s74", tag)
            a(f"s_add_u32 s69, s69, {2*k3}\ns_sub_u32 s65, s69, {18*k3}\ns_min_u32 s69, s69, s65")
        a(f"s_mul_i32 s64, {sX}, {576*1152}\ns_mul_i32 s65, {sJ}, 288\ns_add_u32 s101, s64, s65")
        for d in range(4): a(f"s_xor_b32 s64, {sJ}, {d}\ns_mul_i32 s64, s64, {144*1152}\ns_add_u32 s{97+d}, s64, s101")
        def w4src(k, dst):
            if k < 4: d, p = 0, k
            elif k < 16: d, p = 1 + (k - 4) % 3, (k - 4) // 3
            else:
                a(f"s_lshr_b32 s64, {sJ}, 1\ns_xor_b32 s64, s64, {k-16}\ns_mul_i32 s64, s64, {288*1152}\ns_add_u32 s64, s64, s101\ns_add_u32 {dst}, s64, {128*1152}")
                return
            a(f"s_add_u32 {dst}, s{97+d}, {32*p*1152}")
        def w4pair(k, tag):
            w4src(k, "s73"); w4src(k + 1, "s74")
            pair(18 + k, W4, V4 if k < 16 else V4s, "s73", "s74", tag)
        a(f"v_and_b32 {t0}, 3, {vLANE}\nv_lshlrev_b32 {t0}, 7, {t0}")
        self.stamp()
        Le = a.label("Learly"); Lj = a.label("Learly")
        a(f"s_cmp_lt_u32 {sR}, {NACT}\ns_cbranch_scc1 {Le}")
        self.wait_ctr(1, 7, sleep=2); self.wait_ctr(0, 6, sleep=2)
        for s in range(0, 16, 2): w3pair(s, "d0")
        self.dsignal(12)
        a(f"s_sub_u32 s64, {sR}, {NACT}\ns_lshl_b32 s64, s64, 2\ns_add_u32 s64, s64, {sW}\ns_mul_i32 s65, {sX}, 663552\nv_lshlrev_b32 {t0}, 6, {vLANE}")
        for i in range(3):
            a(f"s_min_u32 s66, s64, 161\ns_lshl_b32 s66, s66, 12\ns_add_u32 s66, s66, s65")
            a(f"buffer_load_dword {DUMMY}, {t0}, {W4}, s66 offen", "pf4")
            a(f"s_add_u32 s64, s64, 56")
        a(f"s_branch {Lj}")
        a(f"{Le}:")
        a.vm = []
        self.wait_ctr(0, 3, sleep=2)
        thr[0] = THR
        for s in range(0, 8, 2): w3pair(s, "d0")
        a("s_waitcnt vmcnt(0)")
        self.signal(12)
        self.wait_ctr(0, 6, sleep=2)
        for s in (8, 10): w3pair(s, "d0")
        thr[0] = None
        a(f"{Lj}:")
        a("s_waitcnt vmcnt(0)"); a.vm = []
        self.signal(13)
        self.stamp()
        self.wait_ctr(0, 11, sleep=3)
        Le = a.label("Llate")
        a(f"s_cmp_ge_u32 {sR}, {NACT}\ns_cbranch_scc1 {Le}")
        for s in (12, 14): w3pair(s, "_untracked")
        a("s_waitcnt vmcnt(0)")
        a(f"{Le}:")
        self.signal(14)
        self.stamp()
        self.load_stats(100, vT8)
        for tt in range(2): self.finish_stats([f"v{48+4*tt+i}" for i in range(4)], 100 + 6 * tt)
        a(f"s_lshl_b32 s64, {sW}, 9\ns_add_u32 s64, s64, {KC_OFF}\nv_lshl_add_u32 {t1}, {vJ}, 4, s64")
        for tt in range(2): a(f"ds_write_b128 {t1}, {vr(48+4*tt)} offset:{256*tt}", "kc")
        CP = 100
        a(f"s_lshl_b32 s64, {sW}, 6\nv_add_u32 {t1}, s64, {vLANE}\nv_min_u32 {t1}, 143, {t1}\nv_lshlrev_b32 v{CP+9}, 2, {t1}")
        L = a.label("Lcs")
        a(f"s_mov_b32 {sTO}, 0")
        a(f"{L}:")
        a(f"s_mul_i32 s64, {sX}, {9*2304}\ns_mul_i32 s65, {sJ}, 576\ns_add_u32 s64, s64, s65\ns_add_u32 s64, s64, {CSP_OFF}")
        for k in range(9):
            a(f"buffer_load_dword v{CP+k}, v{CP+9}, {WS}, s64 offen sc1", "cp")
            a(f"s_add_u32 s64, s64, 2304")
        a(f"s_add_u32 {sTO}, {sTO}, 1\ns_cmp_gt_u32 {sTO}, 100000\ns_cbranch_scc1 L_end")
        a.wait_vm()
        a(f"v_xor_b32 {t0}, v{CP}, {vT8}")
        for k in range(1, 9): a(f"v_bitop3_b32 {t0}, {t0}, v{CP+k}, {vT8} bitop3:0xf6")
        a(f"v_and_b32 {t0}, 0xff, {t0}\nv_cmp_ne_u32 vcc, 0, {t0}")
        a(f"s_cbranch_vccnz {L}")
        for k in range(1, 9): a(f"v_add_f32 v{CP}, v{CP}, v{CP+k}")
        a(f"v_add_u32 {t1}, {vSCR}, v{CP+9}")
        a(f"ds_write_b32 {t1}, v{CP} offset:{CS3_OFF}", "csw")
        self.wait_ctr(0, 12, sleep=3)
        w3pair(16, "e0")
        a.wait_vm("e0"); self.signal(15)
        self.wait_ctr(0, 14, sleep=3)
        thr[0] = T4
        for k in (0, 2, 4, 6): w4pair(k, "e1")
        self.dsignal(17)
        for k in (8, 10): w4pair(k, "e2")
        self.epoch_advance()
        self.stamp()
        self.wait_ctr(0, 15, sleep=3)
        thr[0] = 2
        for k in (12, 14): w4pair(k, "e3")
        thr[0] = None
        a.wait_vm(); self.signal(18)
        self.wait_ctr(0, 17, sleep=3)
        w4pair(16, "e3")
        a(f"s_lshl_b32 s64, {sM}, 2\ns_add_u32 s64, s64, {sJ}\ns_mul_i32 s64, s64, {9*32*1024}\ns_add_u32 s73, s64, {P_OFF}")
        a(f"s_lshl_b32 s64, {sW}, 11\nv_add_u32 {vEX}, s64, {vL16}")
        a(f"s_lshl_b32 s65, {sX}, 12\ns_add_u32 s74, {sWK}, s65\ns_add_u32 s74, s74, s73")
        self.part_consts(vT8)
        a("s_mov_b32 s75, 0x1fff\ns_mov_b32 s92, 0x03ffffff\ns_mov_b32 s93, 0x0c000000\ns_mov_b32 s94, 0x4b400000")
        a.wait_vm("e3"); self.signal(19)
        self.stamp()
        XRr = 100
        a(f"s_mul_i32 s64, {sJ}, 9\ns_add_u32 s76, s64, {sX}")
        a(f"s_lshl_b32 s64, {sM}, 3\ns_lshl_b32 s65, {sW}, 1\ns_add_u32 s77, s64, s65")
        a(f"s_mul_i32 s64, s77, 9\ns_lshr_b32 s65, s76, 2\ns_add_u32 s64, s64, s65\ns_mul_i32 s64, s64, {XG}\ns_and_b32 s65, s76, 2\ns_lshl_b32 s65, s65, 9\ns_add_u32 s64, s64, s65\ns_and_b32 s65, s76, 1\ns_lshl_b32 s65, s65, 3\ns_add_u32 s64, s64, s65\ns_add_u32 s64, s64, {X1_OFF}")
        a(f"v_add_u32 {t1}, {XT}, {vL16}")
        a(f"buffer_load_dwordx2 {vr(XRr,2)}, {vL16}, {WS}, s64 offen sc1", "xr")
        a(f"buffer_load_dwordx2 {vr(XRr+2,2)}, {t1}, {WS}, s64 offen sc1", "xr")
        vO = "v106"
        a(f"v_mul_u32_u24 {vO}, 1152, {vJ}\nv_lshl_add_u32 {vO}, {vG}, 3, {vO}")
        a(f"s_lshl_b32 s64, {sX}, 15\ns_add_u32 s68, s64, s73\ns_add_u32 s68, s68, {sWK}")
        a(f"s_add_u32 s69, s73, {8*32768}\ns_add_u32 s69, s69, {sWK}")
        DB = 108; GR = 128; G8 = 160; SUMR = 56; SUM8 = 64; PKD = 72; U = 80
        for e in range(16): a(f"v_mov_b32 v{SUMR+e}, 0")
        g_issue, g_take = self.part_helpers(vT8, U)
        if "hprio" in self.exp: a("s_setprio 3")
        for o in range(9):
            self.wait_ctr(0, 19 + o, one=True, sleep=1)
            d = DB + 8 * (o & 1)
            for tt in range(2): a(f"ds_read_b128 {vr(d+4*tt)}, {vEX} offset:{(2+o%3)*SL+1024*tt}", "dp")
            if o == 8: break
            if o == 0: a(f"s_add_u32 s66, s74, {8*32768}")
            else: a(f"s_add_u32 s64, {sX}, {o}\ns_and_b32 s64, s64, 7\ns_lshl_b32 s64, s64, 15\ns_add_u32 s66, s64, s74")
            a.wait_lg()
            self.signal(20 + o)
            p = PKD + 4 * (o & 1)
            a(f"v_max3_f32 {t0}, |v{d}|, |v{d+1}|, |v{d+2}|\nv_max3_f32 {t1}, |v{d+3}|, |v{d+4}|, |v{d+5}|")
            a(f"v_max3_f32 {t0}, {t0}, |v{d+6}|, |v{d+7}|\nv_max_f32 {t0}, {t0}, {t1}")
            a(f"v_and_b32 {t0}, 0x7f800000, {t0}\nv_max_u32 {t0}, {12<<23}, {t0}\nv_sub_u32 {t1}, {(264<<23)|0x7ff000}, {t0}")
            for e in range(8): a(f"v_fma_f32 v{d+e}, v{d+e}, {t1}, s94")
            for i in range(4):
                sh = 3 - 2 * i
                a(f"v_lshlrev_b32 v{d+2*i+1}, 13, v{d+2*i+1}\nv_bfi_b32 v{d+2*i}, s75, v{d+2*i}, v{d+2*i+1}")
                a((f"v_lshlrev_b32 {t2}, {sh}, {t0}" if sh > 0 else f"v_lshrrev_b32 {t2}, {-sh}, {t0}") + f"\nv_bfi_b32 {t2}, s93, {t2}, {vT8}")
                a(f"v_bfi_b32 v{p+i}, s92, v{d+2*i}, {t2}")
            a(f"buffer_store_dwordx4 {vr(p)}, {vL16}, {WS}, s66 offen sc1", "pst")
            if o >= 4: g_issue(o - 3, "s68", GR, "pg")
            if o == 7:
                self.stamp()
                for i in (1, 2, 3): g_take(i, "s68", GR, "pg", SUMR)
                g_issue(5, "s68", GR, "pg")
                g_take(4, "s68", GR, "pg", SUMR)
                g_issue(6, "s68", GR, "pg")
        g_issue(7, "s68", GR, "pg")
        a.wait_lg()
        for e in range(8): a(f"v_add_f32 v{SUMR+e}, v{SUMR+e}, v{DB+e}")
        for i in (5, 6, 7): g_take(i, "s68", GR, "pg", SUMR)
        self.stamp()
        for tt in range(2):
            a(f"s_add_u32 s79, s77, {tt}")
            self.finish_out(SUMR + 4 * tt, XRr + 2 * tt, vO, "s79", "s76")

    def part_consts(self, vT8):
        a = self.a
        a(f"s_lshl_b32 s64, {sE}, 28\nv_mov_b32 {vT8}, s64")
        a("s_mov_b32 s95, 0x01800000\ns_mov_b32 s96, 0x07800000\ns_mov_b32 s97, 0x1f800000")
    def part_helpers(self, vT8, U):
        a = self.a
        t0, t1 = f"v{T0}", f"v{T0+1}"
        def g_issue(i, base, R, tag):
            a(f"s_sub_u32 s64, {sX}, {i}\ns_and_b32 s64, s64, 7\ns_lshl_b32 s64, s64, 12\ns_add_u32 s64, s64, {base}")
            a(f"buffer_load_dwordx4 {vr(R+4*i)}, {vL16}, {WS}, s64 offen sc1", f"{tag}{i}")
        def g_take(i, base, R, tag, S, half=None):
            r = R + 4 * i
            a.wait_vm(f"{tag}{i}")
            def check():
                a(f"v_xor_b32 {t0}, v{r}, {vT8}")
                for e in range(1, 4): a(f"v_bitop3_b32 {t0}, {t0}, v{r+e}, {vT8} bitop3:0xf6")
                a(f"v_cmp_gt_u32 vcc, 0x10000000, {t0}")
                a("s_cmp_eq_u64 vcc, -1")
            check()
            def retry():
                L = a.label("Lg")
                a(f"s_mov_b32 {sTO}, 0")
                a(f"{L}:")
                a(f"s_add_u32 {sTO}, {sTO}, 1\ns_cmp_gt_u32 {sTO}, 100000\ns_cbranch_scc1 L_end")
                g_issue(i, base, R, tag)
                a.wait_vm()
                check()
                a(f"s_cbranch_scc0 {L}")
            a.slow(retry)
            a(f"v_lshrrev_b32 {t0}, 3, v{r}\nv_lshrrev_b32 {t1}, 1, v{r+1}\nv_bfi_b32 {t0}, s95, {t0}, {t1}")
            a(f"v_lshlrev_b32 {t1}, 1, v{r+2}\nv_bfi_b32 {t0}, s96, {t0}, {t1}\nv_lshlrev_b32 {t1}, 3, v{r+3}\nv_bfi_b32 {t0}, s97, {t0}, {t1}")
            a(f"v_and_b32 {t0}, 0x7f800000, {t0}\nv_add_u32 {t0}, {(0x800 - (11 << 23)) & 0xffffffff}, {t0}")
            n = 8
            if half:
                for e in range(2): a(f"v_cndmask_b32 v{r+e}, v{r+e}, v{r+2+e}, {half}")
                n = 4
            for e in range(n): a(f"v_bfe_i32 v{U+e}, v{r+(e>>1)}, {13*(e&1)}, 13")
            for e in range(n): a(f"v_cvt_f32_i32 v{U+e}, v{U+e}")
            for e in range(n): a(f"v_fma_f32 v{S+e}, v{U+e}, {t0}, v{S+e}")
        return g_issue, g_take
    def finish_out(self, S, XR, vO, sTile, sU):
        a = self.a
        t0, t1, t2, t3 = (f"v{T0+i}" for i in range(4))
        for d in range(2):
            a(f"v_cvt_pk_bf16_f32 {t0}, v{S+2*d}, v{S+2*d+1}")
            a(f"v_lshlrev_b32 {t1}, 16, {t0}\nv_and_b32 {t0}, 0xffff0000, {t0}")
            a(f"v_lshlrev_b32 {t2}, 16, v{XR+d}\nv_and_b32 {t3}, 0xffff0000, v{XR+d}")
            a(f"v_add_f32 {t1}, {t1}, {t2}\nv_add_f32 {t0}, {t0}, {t3}")
            a(f"v_cvt_pk_bf16_f32 v{S+d}, {t1}, {t0}")
        a(f"s_mul_i32 s64, {sTile}, 18432\ns_lshl_b32 s65, {sU}, 5\ns_add_u32 s64, s64, s65")
        a(f"buffer_store_dwordx2 {vr(S,2)}, {vO}, {OUT}, s64 offen", "out")
    def epoch_advance(self):
        a = self.a
        L = a.label("Lep"); L2 = a.label("Lep")
        a(f"s_cmp_lg_u32 s2, 255\ns_cbranch_scc1 {L}\ns_cmp_lg_u32 {sW}, 3\ns_cbranch_scc1 {L}")
        vm = list(a.vm)
        a(f"s_mov_b32 {sTO}, 0")
        a(f"{L2}:")
        a(f"v_lshlrev_b32 v247, 7, {vLANE}\ns_mov_b32 s64, {FS2_OFF}")
        for i in range(4):
            a(f"buffer_load_dword v{T0+i}, v247, {WS}, s64 offen sc1")
            a(f"s_add_u32 s64, s64, 8192")
        a(f"s_add_u32 {sTO}, {sTO}, 1\ns_cmp_gt_u32 {sTO}, 100000\ns_cbranch_scc1 L_end")
        a.wait_vm()
        a(f"v_xor_b32 v{T0}, {sTAG}, v{T0}\nv_xor_b32 v{T0+1}, {sTAG}, v{T0+1}\nv_xor_b32 v{T0+2}, {sTAG}, v{T0+2}\nv_xor_b32 v{T0+3}, {sTAG}, v{T0+3}")
        a(f"v_or3_b32 v{T0}, v{T0}, v{T0+1}, v{T0+2}\nv_or_b32 v{T0}, v{T0}, v{T0+3}\nv_cmp_ne_u32 vcc, 0, v{T0}")
        a(f"s_cbranch_vccnz {L2}")
        a(f"v_mov_b32 v{T0}, {sE}\nv_mov_b32 v{T0+1}, 0\ns_mov_b64 exec, 1")
        a(f"buffer_store_dword v{T0}, v{T0+1}, {WS}, 0 offen sc1", "_untracked")
        a("s_mov_b64 exec, -1")
        a(f"{L}:")
        a.vm = vm

    def wrap(self, body):
        hdr = open("standalone__mixer_s_mlp__sampling.s.ref").read().split("; Override")[0]
        s = hdr + "; @launch grid=(256,1,1) block=(512,1,1) lds=163840\n"
        s += '.amdgcn_target "amdgcn-amd-amdhsa--gfx950"\n.text\n'
        s += f".globl {KNAME}\n.p2align 8\n.type {KNAME},@function\n{KNAME}:\n"
        s += body
        s += f'.section .rodata,"a"\n.p2align 6\n.amdhsa_kernel {KNAME}\n'
        s += "  .amdhsa_next_free_vgpr 256\n  .amdhsa_next_free_sgpr 102\n  .amdhsa_accum_offset 256\n"
        s += "  .amdhsa_group_segment_fixed_size 0\n  .amdhsa_kernarg_size 64\n  .amdhsa_user_sgpr_count 2\n"
        s += "  .amdhsa_user_sgpr_kernarg_segment_ptr 1\n  .amdhsa_system_sgpr_workgroup_id_x 1\n"
        s += "  .amdhsa_float_denorm_mode_32 3\n.end_amdhsa_kernel\n"
        return s

if __name__ == "__main__":
    import argparse
    p = argparse.ArgumentParser()
    p.add_argument("-o", default="mk.s"); p.add_argument("--stop", type=int, default=99)
    p.add_argument("--stamps", action="store_true"); p.add_argument("--plain", action="store_true"); p.add_argument("--exp", default="")
    p.add_argument("--thr", type=int, default=1); p.add_argument("--fl", type=int, default=28); p.add_argument("--fb", type=int, default=44); p.add_argument("--nsk", type=int, default=4); p.add_argument("--hs", type=int, default=1); p.add_argument("--inf", type=int, default=2); p.add_argument("--w2g", type=int, default=4); p.add_argument("--t4", type=int, default=3)
    args = p.parse_args()
    THR = args.thr; FL = args.fl; FB = args.fb; NSK = args.nsk; HS_ = args.hs; INF = args.inf; W2G = args.w2g; T4 = args.t4
    open(args.o, "w").write(Gen(args.stop, args.stamps, args.plain, args.exp).build())
```

```python
import sys
sys.path.insert(0, "dev")
from asmlib import Asm

KNAME = "standalone__mixer_s_mlp__sampling_kernel"
NB = 159
SCR = NB * 1024
CS3_OFF = 256
KC_OFF = 153 * 1024
NACT = 18
KE = 7
SL = 9216; NSL = 17
EX1 = 11
ROT3 = (0, 4, 10, 14)
T4 = 3; INF = 2; W2G = 4; HS_ = 1; F0 = 6; HP = 0; THR = 1; FL = 16; FB = 44; NSK = 4
FS2_OFF = 0x1000; ST_OFF = 0x10000; CSP_OFF = 0x28000
F1_OFF = 0x60000; F2_OFF = 0x80000; F3_OFF = 0xA0000
H_OFF = 0xE0000; X1_OFF = 0x200000; H3_OFF = 0x400000; P_OFF = 0xE00000; STAMP_OFF = 0x3000000
XG = 2304; XT = 9 * XG
FAR = 0x1800000
FRAGSZ = 0x120000
X, W1, W2, W3, W4, OUT, WS, DBG, HS = (f"s[{b}:{b+3}]" for b in (20, 24, 28, 32, 36, 40, 44, 48, 52))
sTAG, sW, sX, sR, sMT, sNT, sM, sJ = (f"s{i}" for i in range(56, 64))
sE = "s3"
sC = [f"s{84+i}" for i in range(5)]
sTAGX = "s80"; sTO = "s89"; sTAG8 = "s82"; sWV = "s81"; sWK = "s83"
vLANE, vG, vJ = "v1", "v2", "v3"
vLB = ["v4", "v5", "v6"]
vL16 = "v4"; vFLG = "v8"; vSTAMP = "v9"; vCTR = "v10"; vSCR = "v11"
T0 = 12
AF0 = 24; NAF = 6
ACC0 = 48
BF0 = 112
DUMMY = "v7"

def vr(b, n=4): return f"v[{b}:{b+n-1}]"
MFMA = "v_mfma_f32_16x16x32_bf16"

def kprime(k, j):
    if k >= 16: return 16 + ((k - 16) ^ (j >> 1))
    d, p = (k >> 2) ^ j, k & 3
    return p if d == 0 else 4 + 3 * p + (d - 1)

class Gen:
    def __init__(self, stop=99, stamps=False, local_plain=False, exp=""):
        self.exp = exp.split(",")
        self.psleep = 0
        for e in self.exp:
            if e.startswith("ps"): self.psleep = int(e[2:])
        self.ld_local = "nt" if "ldnt" in self.exp else ("" if "ldplain" in self.exp else "sc1")
        self.a = Asm(); self.stop = stop; self.stamps = stamps; self.nst = 0
        self.af = 0
        self.st_local = "" if local_plain else "sc1"
    def reset(self, nst=None):
        self.a.vm = []; self.a.lg = []
        if nst is not None: self.nst = nst
    def stamp(self):
        if not self.stamps: return
        a = self.a
        a.wait_lg()
        a(("s_memtime" if "cyc" in self.exp else "s_memrealtime") + " s[90:91]\ns_waitcnt lgkmcnt(0)")
        a(f"v_writelane_b32 {vSTAMP}, s90, {self.nst}")
        self.nst += 1
    def next_af(self):
        b = AF0 + 4 * (self.af % NAF); self.af += 1
        return b
    def lb(self, kb):
        off = kb * 1024
        return vLB[off >> 16], off & 0xffff
    def read_blk(self, n, tag, dst=None):
        b = self.next_af() if dst is None else dst
        v, off = self.lb(n % NB)
        self.a(f"ds_read_b128 {vr(b)}, {v} offset:{off}", tag)
        return b
    def read_tr(self, vbase, off, tag, dst=None):
        b = self.next_af() if dst is None else dst
        self.a(f"ds_read_b64_tr_b16 {vr(b,2)}, {vbase} offset:{off}", tag)
        self.a(f"ds_read_b64_tr_b16 {vr(b+2,2)}, {vbase} offset:{off+2048}", tag)
        return b
    def poll(self, soff, vflag, mask=None, sleep=None):
        a = self.a
        t = f"v{T0}"
        if sleep is None: sleep = self.psleep
        L = a.label("Lpoll"); L2 = a.label("Lpoll")
        a(f"s_mov_b32 {sTO}, 0\ns_branch {L2}")
        a(f"{L}:")
        if sleep: a(f"s_sleep {sleep}")
        a(f"{L2}:")
        a(f"buffer_load_dword {t}, {vflag}, {WS}, {soff} offen sc1")
        a(f"s_add_u32 {sTO}, {sTO}, 1\ns_cmp_gt_u32 {sTO}, 100000\ns_cbranch_scc1 L_end")
        a.wait_vm()
        a(f"v_cmp_ne_u32 vcc, {sTAG}, {t}")
        if mask is not None:
            a(f"s_and_b32 vcc_lo, vcc_lo, {mask}\ns_cbranch_scc1 {L}")
        else:
            a(f"s_cbranch_vccnz {L}")
    def poll_one(self, soff, vflag, val):
        a = self.a
        L = a.label("Lp1"); L2 = a.label("Lp1"); L3 = a.label("Lp1")
        vm = list(a.vm)
        a(f"s_cmp_lg_u32 {sW}, 0\ns_cbranch_scc1 {L}")
        self.poll(soff, vflag)
        a(f"v_mov_b32 v{T0}, {val}\ns_mov_b64 exec, 1")
        a(f"ds_write_b32 {vSCR}, v{T0} offset:32", "sig")
        a("s_mov_b64 exec, -1")
        a.wait_lg()
        a(f"s_branch {L3}")
        a(f"{L}:")
        a(f"s_mov_b32 {sTO}, 0")
        a(f"{L2}:")
        a(f"s_sleep 2\nds_read_b32 v{T0}, {vSCR} offset:32", "ctr")
        a(f"s_add_u32 {sTO}, {sTO}, 1\ns_cmp_gt_u32 {sTO}, 1000000\ns_cbranch_scc1 L_end")
        a.wait_lg()
        a(f"v_readfirstlane_b32 s64, v{T0}")
        a(f"s_cmp_lt_u32 s64, {val}\ns_cbranch_scc1 {L2}")
        a(f"{L3}:")
        a.vm = vm
    def set_flag(self, soff, mods, tags=None, T0=T0):
        a = self.a
        for i in range(4): a(f"v_mov_b32 v{T0+i}, {sTAG if mods == 'sc1' else sTAGX}")
        if mods in ("far", "both"): a(f"s_add_u32 s65, {soff}, {FAR}")
        a.wait_vm(tags)
        a("s_mov_b64 exec, 0xff")
        if mods == "sc1": a(f"buffer_store_dwordx4 {vr(T0)}, {vL16}, {WS}, {soff} offen sc1", "flag")
        if mods in ("near", "both") and not ("far" in self.exp and mods == "both"): a(f"buffer_store_dwordx4 {vr(T0)}, {vL16}, {WS}, {soff} offen", "flag")
        if mods in ("far", "both"): a(f"buffer_store_dwordx4 {vr(T0)}, {vL16}, {WS}, s65 offen sc1", "flag")
        a("s_mov_b64 exec, -1")
    def poll2(self, soff, vflag, same_die, mask=None, hook=None):
        a = self.a
        t = f"v{T0}"
        L = a.label("Lpoll"); L2 = a.label("Lpoll"); L3 = a.label("Lpoll")
        a(f"s_mov_b32 {sTO}, 0\ns_branch {L2}")
        a(f"{L}:")
        if self.psleep: a(f"s_sleep {self.psleep}")
        a(f"{L2}:")
        a(f"s_and_b32 s65, {sTO}, 7\ns_cmp_eq_u32 s65, 7\ns_cselect_b32 s67, {FAR}, 0\ns_add_u32 s65, {soff}, s67")
        a(f"buffer_load_dword {t}, {vflag}, {WS}, s65 offen sc1")
        a(f"s_add_u32 {sTO}, {sTO}, 1\ns_cmp_gt_u32 {sTO}, 100000\ns_cbranch_scc1 L_end")
        a.wait_vm()
        if hook:
            a(f"s_cmp_lg_u32 {sTO}, 5\ns_cbranch_scc1 {L3}")
            a(f"v_mov_b32 v0, {t}")
            hook()
            a(f"v_mov_b32 {t}, v0")
            a(f"{L3}:")
        if same_die: a(f"s_cmp_eq_u32 s67, 0\ns_cselect_b32 s65, {sTAGX}, {sTAG}\ns_cselect_b32 s66, 1, 16")
        else: a(f"s_mov_b32 s65, {sTAG}\ns_mov_b32 s66, 16")
        a(f"v_subrev_u32 {t}, s65, {t}")
        a(f"v_cmp_le_u32 vcc, s66, {t}")
        if mask is not None: a(f"s_and_b32 vcc_lo, vcc_lo, {mask}\ns_cbranch_scc1 {L}")
        else: a(f"s_cbranch_vccnz {L}")
        a.vm = ["flag"] if hook else []
    def signal(self, val):
        a = self.a
        a(f"v_mov_b32 v0, {val}")
        a(f"ds_write_b32 {vCTR}, v0", "sig")
    def dsignal(self, val, extra=0):
        a = self.a
        a(f"s_add_u32 m0, s50, {extra}\nv_mov_b32 v0, {4*val}\ns_mov_b64 exec, 1")
        a("global_load_lds_dword v0, s[48:49]", "dsig")
        a("s_mov_b64 exec, -1")
    def wait_ctr(self, grp, val, one=False, sleep=1, tmp=None):
        a = self.a
        L = a.label("Lw"); L2 = a.label("Lw")
        a(f"s_mov_b32 {sTO}, 0\ns_branch {L2}")
        a(f"{L}:")
        if sleep: a(f"s_sleep {sleep}")
        a(f"{L2}:")
        t = T0 if tmp is None else tmp
        if one:
            a(f"v_xor_b32 v{t+1}, {16 if one is True else one}, {vCTR}")
            a(f"ds_read_b32 v{t}, v{t+1}", "ctr")
        else:
            a(f"ds_read_b128 {vr(t)}, {vSCR} offset:{16*grp}", "ctr")
        a(f"s_add_u32 {sTO}, {sTO}, 1\ns_cmp_gt_u32 {sTO}, 1000000\ns_cbranch_scc1 L_end")
        a.wait_lg()
        if not one:
            a(f"v_min_u32 v{t}, v{t}, v{t+1}\nv_min3_u32 v{t}, v{t}, v{t+2}, v{t+3}")
        a(f"v_readfirstlane_b32 s64, v{t}")
        a(f"s_cmp_lt_u32 s64, {val}\ns_cbranch_scc1 {L}")
    def wait_word(self, off, val):
        a = self.a
        L = a.label("Lw")
        a(f"s_mov_b32 {sTO}, 0")
        a(f"{L}:")
        a(f"ds_read_b32 v{T0}, {vSCR} offset:{off}", "ctr")
        a(f"s_add_u32 {sTO}, {sTO}, 1\ns_cmp_gt_u32 {sTO}, 1000000\ns_cbranch_scc1 L_end")
        a.wait_lg()
        a(f"v_readfirstlane_b32 s64, v{T0}")
        a(f"s_cmp_lt_u32 s64, {val}\ns_cbranch_scc1 {L}")
    def xlane_sum(self, v, t):
        a = self.a
        a(f"v_mov_b32 {t}, {v}\nv_permlane16_swap_b32 {v}, {t}\nv_add_f32 {v}, {v}, {t}")
        a(f"v_mov_b32 {t}, {v}\nv_permlane32_swap_b32 {v}, {t}\nv_add_f32 {v}, {v}, {t}")
    def bf16r(self, v):
        self.a(f"v_cvt_pk_bf16_f32 {v}, {v}, {v}\nv_lshlrev_b32 {v}, 16, {v}")
    def ln_consts(self, vS, vQ, K, t):
        a = self.a
        vNM, vSD, vC1, vC2 = K
        a(f"v_mul_f32 {vS}, 0x3ae38e39, {vS}")
        a(f"v_mul_f32 {t}, {vS}, {vS}")
        a(f"v_mov_b32 {vC1}, 0x3ae38e39")
        a(f"v_fma_f32 {vQ}, {vQ}, {vC1}, -{t}")
        a(f"v_max_f32 {vQ}, 0, {vQ}")
        self.bf16r(vQ)
        a(f"v_add_f32 {vQ}, 0x3727c5ac, {vQ}")
        self.bf16r(vQ)
        a(f"v_sqrt_f32 {vSD}, {vQ}")
        self.bf16r(vSD)
        self.bf16r(vS)
        a(f"v_sub_f32 {vNM}, 0, {vS}")
        a(f"v_rcp_f32 {t}, {vSD}")
        a(f"v_mul_f32 {vC1}, 0xc0135761, {t}")
        a(f"v_mul_f32 {vC2}, {t}, {t}")
        a(f"v_mul_f32 {vC2}, {vC2}, {t}")
        a(f"v_mul_f32 {vC2}, 0xbdd2d3e8, {vC2}")
    def gelu_ops(self, acc, cs, K, t):
        vNM, vSD, vC1, vC2 = K
        return [f"v_fma_f32 {acc}, {cs}, {vNM}, {acc}",
                f"v_mul_f32 {t}, {acc}, {acc}",
                f"v_fma_f32 {t}, {t}, {vC2}, {vC1}",
                f"v_mul_f32 {t}, {t}, {acc}",
                f"v_exp_f32 {t}, {t}",
                f"v_fma_f32 {t}, {t}, {vSD}, {vSD}",
                f"v_rcp_f32 {t}, {t}",
                f"v_mul_f32 {acc}, {acc}, {t}"]
    def gelu4(self, acc0, cs0, K, t0):
        seqs = [self.gelu_ops(f"v{acc0+i}", f"v{cs0+i}", K, f"v{t0+i}") for i in range(4)]
        for k in range(8):
            for s in seqs: self.a(s[k])
    def gelu_pk(self, groups, t0):
        a = self.a
        P = [(acc + 2 * h, cs + 2 * h, K, t0 + 4 * g + 2 * h) for g, (acc, cs, K) in enumerate(groups) for h in range(2)]
        for x, c, K, t in P: a(f"v_pk_fma_f32 {vr(x,2)}, {vr(c,2)}, {vr(K,2)}, {vr(x,2)} op_sel_hi:[1,0,1]")
        for x, c, K, t in P: a(f"v_pk_mul_f32 {vr(t,2)}, {vr(x,2)}, {vr(x,2)}")
        for x, c, K, t in P: a(f"v_pk_fma_f32 {vr(t,2)}, {vr(t,2)}, {vr(K+2,2)}, {vr(K+2,2)} op_sel:[0,1,0] op_sel_hi:[1,1,0]")
        for x, c, K, t in P: a(f"v_pk_mul_f32 {vr(t,2)}, {vr(t,2)}, {vr(x,2)}")
        for x, c, K, t in P: a(f"v_exp_f32 v{t}, v{t}\nv_exp_f32 v{t+1}, v{t+1}")
        for x, c, K, t in P: a(f"v_pk_fma_f32 {vr(t,2)}, {vr(t,2)}, {vr(K,2)}, {vr(K,2)} op_sel:[0,1,1] op_sel_hi:[1,1,1]")
        for x, c, K, t in P: a(f"v_rcp_f32 v{t}, v{t}\nv_rcp_f32 v{t+1}, v{t+1}")
        for x, c, K, t in P: a(f"v_pk_mul_f32 {vr(x,2)}, {vr(x,2)}, {vr(t,2)}")
    def srd(self, name, ptr, nbytes):
        b = int(name[2:name.index(":")]); a = self.a
        a(f"s_mov_b32 s{b}, s{ptr}\ns_mov_b32 s{b+1}, s{ptr+1}\ns_mov_b32 s{b+2}, {nbytes}\ns_mov_b32 s{b+3}, 0x20000")
    def modn(self, s, n):
        self.a(f"s_sub_u32 s65, {s}, {n}\ns_min_u32 {s}, {s}, s65")
    def tr_bases(self, dst, base):
        a = self.a; t0, t1 = f"v{T0}", f"v{T0+1}"
        a(f"v_lshrrev_b32 {t0}, 2, {vLANE}")
        a(f"v_bfe_u32 {t1}, {vLANE}, 3, 2")
        a(f"v_lshlrev_b32 {t0}, 7, {t0}\nv_and_b32 {dst[0]}, 3, {vLANE}\nv_lshl_add_u32 {t0}, {dst[0]}, 3, {t0}")
        a(f"v_add_u32 {t0}, {base}, {t0}")
        for u in range(4):
            a(f"v_xor_b32 {dst[u]}, {u}, {t1}\nv_lshl_add_u32 {dst[u]}, {dst[u]}, 5, {t0}")
    def common_late(self, barrier=True):
        a = self.a
        for i in range(5): a(f"s_mov_b32 {sC[i]}, {4096*i}")
        self.srd(W2, 8, 663552)
        self.srd(OUT, 14, 1179648); self.srd(WS, 18, 0x10000000)
        a(f"s_add_u32 s52, s18, {H_OFF}\ns_addc_u32 s53, s19, 0\ns_mov_b32 s54, {FRAGSZ+FAR}\ns_mov_b32 s55, 0x20000")
        if "tlb" in self.exp:
            L = a.label("Ltlb")
            a(f"s_cmp_lg_u32 {sWV}, 2\ns_cbranch_scc1 {L}")
            a(f"v_mov_b32 v{T0}, 0\ns_mov_b64 exec, 1")
            def touch(srd, so): a(f"buffer_load_dword {DUMMY}, v{T0}, {srd}, {so} offen", "_untracked")
            a(f"s_mov_b32 s64, {ST_OFF}"); touch(WS, "s64")
            a(f"s_mov_b32 s64, {X1_OFF}"); touch(WS, "s64")
            touch(W2, 0)
            a(f"s_mul_i32 s64, {sM}, {8*147456}\ns_add_u32 s64, s64, {H3_OFF}"); touch(WS, "s64")
            a(f"s_add_u32 s64, s64, {8*147456-4}"); touch(WS, "s64")
            a(f"s_mul_i32 s64, {sR}, {9*32*1024}\ns_add_u32 s64, s64, {P_OFF}"); touch(WS, "s64")
            a(f"s_add_u32 s64, s64, {9*32*1024-4}"); touch(WS, "s64")
            for q in range(3):
                a(f"s_mov_b32 s64, {q*0x200000}"); touch(W3, "s64")
            a(f"s_mov_b32 s64, {5308416-4}"); touch(W3, "s64")
            a(f"s_mul_i32 s64, {sX}, 663552"); touch(W4, "s64")
            a(f"s_add_u32 s64, s64, {663552-4}"); touch(W4, "s64")
            touch(OUT, 0)
            a("s_mov_b64 exec, -1")
            a(f"{L}:")
        a(f"v_add_u32 {vLB[1]}, 0x10000, {vLB[0]}\nv_add_u32 {vLB[2]}, 0x20000, {vLB[0]}")
        a(f"v_min_u32 {vFLG}, 17, {vLANE}\nv_lshlrev_b32 {vFLG}, 7, {vFLG}")
        a(f"v_mov_b32 {vSCR}, {SCR}\ns_lshl_b32 s64, {sWV}, 2\nv_add_u32 {vCTR}, s64, {vSCR}")
        a(f"v_mov_b32 v{T0}, 0\nds_write_b32 {vCTR}, v{T0}\nds_write_b32 {vSCR}, v{T0} offset:32\nds_write_b32 {vSCR}, v{T0} offset:36\nds_write_b32 {vCTR}, v{T0} offset:32")
        a.wait_lg()
        a("s_waitcnt lgkmcnt(0)")
        a(f"s_add_u32 {sE}, {sE}, 0x10000001\ns_and_b32 {sTAG8}, {sE}, 0xff\ns_mul_i32 {sTAG}, {sE}, 0x9e3779b1\ns_xor_b32 {sTAG}, {sTAG}, 0x5bd1e995")
        def fs(off):
            L = a.label("Lfs")
            a(f"s_cmp_lg_u32 {sWV}, 3\ns_cbranch_scc1 {L}")
            a(f"s_getreg_b32 s65, hwreg(HW_REG_XCC_ID)\ns_and_b32 s65, s65, 15\ns_add_u32 s65, s65, {sTAG}")
            a(f"s_lshl_b32 s64, {sX}, 5\ns_add_u32 s64, s64, {sR}\ns_lshl_b32 s64, s64, 7\ns_add_u32 s64, s64, {off}")
            a(f"v_mov_b32 v{T0}, {sTAG}\nv_mov_b32 v{T0+1}, s65\nv_mov_b32 v{T0+2}, {sTAG}\nv_mov_b32 v{T0+3}, s65\ns_mov_b64 exec, 0xff")
            a(f"buffer_store_dwordx4 {vr(T0)}, {vL16}, {WS}, s64 offen sc1", "_untracked")
            a("s_mov_b64 exec, -1")
            a(f"{L}:")
        self.fs = fs
        a(f"s_getreg_b32 s65, hwreg(HW_REG_XCC_ID)\ns_and_b32 s65, s65, 15\ns_add_u32 {sTAGX}, s65, {sTAG}")
        if "far" in self.exp: a(f"s_and_b32 s65, s2, 15\ns_add_u32 {sTAGX}, s65, {sTAG}")
        if barrier: a("s_barrier")

    def build(self):
        a = self.a
        a("s_cmp_ge_u32 s2, 256\ns_cbranch_scc1 L_end")
        a("s_load_dwordx16 s[4:19], s[0:1], 0")
        if "dbg" in self.exp: a("s_memrealtime s[86:87]\ns_load_dwordx2 s[90:91], s[0:1], 48\ns_waitcnt lgkmcnt(0)\ns_mov_b32 s51, s86")
        a("s_getpc_b64 s[66:67]\nL_pc:")
        a(f"v_and_b32 {vLANE}, 63, v0\nv_lshrrev_b32 {vG}, 6, v0")
        a(f"s_and_b32 {sX}, s2, 7\ns_lshr_b32 {sR}, s2, 3")
        a(f"v_readfirstlane_b32 {sWV}, {vG}")
        a(f"s_lshl_b32 s64, {sR}, 11\nv_lshlrev_b32 v{T0}, 2, v0\nv_add_u32 v{T0}, s64, v{T0}")
        a(f"v_min_u32 v{T0}, L_code_end-L_pc-4, v{T0}")
        a(f"global_load_dword {DUMMY}, v{T0}, s[66:67]", "code")
        a(f"v_lshlrev_b32 {vL16}, 4, {vLANE}\nv_lshrrev_b32 {vG}, 4, {vLANE}\nv_and_b32 {vJ}, 15, {vLANE}")
        a(f"s_and_b32 {sW}, {sWV}, 3\ns_lshl_b32 {sWK}, {sW}, 10")
        a(f"v_mov_b32 {vSTAMP}, 0")
        a(f"s_add_u32 s48, s66, L_tab-L_pc\ns_addc_u32 s49, s67, 0\ns_lshl_b32 s50, {sWV}, 2\ns_add_u32 s50, s50, {SCR}")
        a(f"s_lshr_b32 {sM}, {sR}, 2\ns_and_b32 {sJ}, {sR}, 3")
        a(f"s_cmp_ge_u32 {sR}, 9\ns_cselect_b32 {sMT}, 1, 0\ns_mul_i32 s64, {sMT}, 9\ns_sub_u32 {sNT}, {sR}, s64")
        a(f"s_cmp_ge_u32 {sR}, {NACT}\ns_cbranch_scc1 L_repack")
        a(f"s_cmp_ge_u32 {sWV}, 4\ns_cbranch_scc1 L_h_act")
        self.c_phaseA()
        a("s_branch L_c_mlp")
        a("L_h_act:")
        self.reset(0); a.vm = ["code"]
        self.h_phaseA()
        a("s_branch L_h_mlp")
        a("L_repack:")
        self.reset(0); a.vm = ["code"]
        self.repack()
        a("L_split:")
        a(f"s_cmp_ge_u32 {sWV}, 4\ns_cbranch_scc1 L_h_mlp")
        a("L_c_mlp:")
        a("s_waitcnt lgkmcnt(0)")
        self.reset(24); a.vm = ["old"] * 4
        if self.stop > 2: self.c_mlp()
        a("s_branch L_fin")
        a("L_h_mlp:")
        a("s_waitcnt lgkmcnt(0)")
        self.reset(24); a.vm = ["old"] * 4
        self.h_mlp()
        a("L_fin:")
        self.reset(63)
        if "dbg" in self.exp:
            a("s_memrealtime s[64:65]\ns_waitcnt lgkmcnt(0)\ns_not_b32 s66, s51\nv_mov_b32 v12, s66\nv_mov_b32 v13, s64\nv_mov_b32 v14, 0\nv_mov_b32 v15, s51\ns_mov_b64 exec, 1")
            a("global_atomic_umax v14, v12, s[90:91]\nglobal_atomic_umax v14, v13, s[90:91] offset:4\nglobal_atomic_umax v14, v15, s[90:91] offset:8")
        if self.stamps:
            self.stamp()
            a(f"s_lshl_b32 s64, s2, 3\ns_add_u32 s64, s64, {sWV}\ns_lshl_b32 s64, s64, 8\ns_add_u32 s64, s64, {STAMP_OFF}")
            a(f"v_lshlrev_b32 v{T0}, 2, {vLANE}")
            a(f"buffer_store_dword {vSTAMP}, v{T0}, {WS}, s64 offen")
        a("L_end:\ns_endpgm")
        a.flush_deferred()
        a(".p2align 7\n.type L_tab,@object\nL_tab:")
        for i in range(0, 64, 8): a(".long " + ", ".join(str(i + k) for k in range(8)))
        a("L_code_end:")
        return self.wrap(a.text())

    def kernarg_wait(self):
        a = self.a
        a("s_waitcnt lgkmcnt(0)")
        a(f"s_load_dword {sE}, s[18:19], 0")

    STEPS = (((0,), (0, 1)), ((1,), (2, 3)), ((2, 3), (4, 5)), ((4, 5), (6, 7)), ((6, 7), (8, 9)), ((8,), (10, 11)), ((), (12, 13, 14)), ((), (15, 16, 17)))
    NEED = []
    for _xl, _kk in STEPS: NEED.append((NEED[-1] if NEED else 0) + 2 * len(_xl) + len(_kk))
    def ctr_issue(self, grp, dst):
        self.a(f"ds_read_b128 {vr(dst)}, {vSCR} offset:{16*grp}", f"ctrp{dst}")
    def ctr_check(self, grp, dst, val, tmp=None, sleep=1):
        a = self.a
        a.wait_lg(f"ctrp{dst}")
        a(f"v_min_u32 v{dst}, v{dst}, v{dst+1}\nv_min3_u32 v{dst}, v{dst}, v{dst+2}, v{dst+3}")
        a(f"v_readfirstlane_b32 s64, v{dst}")
        a(f"s_cmp_ge_u32 s64, {val}")
        a.slow(lambda: self.wait_ctr(grp, val, tmp=tmp, sleep=sleep))
    def c_phaseA(self):
        a = self.a
        def XF(t, s): return BF0 + 72 * t + 4 * s
        HF = BF0
        t0, t1, t2 = f"v{T0}", f"v{T0+1}", f"v{T0+2}"
        CT = T0 + 8
        ACC = ACC0; CS = ACC0 + 16; SUM = ACC0 + 24; GR = ACC0 + 28; OB = ACC0 + 32; XR = ACC0 + 36; KR = ACC0 + 44; PK = ACC0 + 16
        vXB = [[f"v{ACC0+52+2*t+q}" for q in range(2)] for t in range(2)]
        vT = [[f"v{ACC0+56+2*f+h}" for h in range(2)] for f in range(2)]
        vBP = [f"v{ACC0+60}", f"v{ACC0+61}"]
        vXR = [f"v{T0+4+i}" for i in range(4)]
        a(f"s_lshl_b32 s69, {sX}, 3\ns_lshl_b32 s64, {sMT}, 2\ns_add_u32 s69, s69, s64\ns_add_u32 s69, s69, {sW}")
        a(f"v_lshlrev_b32 {t0}, 6, {vLANE}")
        a(f"s_lshl_b32 s64, {sR}, 2\ns_add_u32 s64, s64, {sW}\ns_lshl_b32 s70, s64, 12\ns_add_u32 s70, s70, {3*32*1152}")
        self.kernarg_wait()
        self.srd(W1, 6, 663552)
        self.stamp()
        a(f"buffer_load_dword {DUMMY}, {t0}, {W1}, s70 offen", "pf")
        if "wstlb" in self.exp:
            a(f"v_mov_b32 {t1}, 256")
            a(f"global_load_dword {DUMMY}, {t1}, s[18:19]", "pf")
        self.srd(X, 4, 1179648); self.srd(W3, 10, 5308416); self.srd(W4, 12, 5308416)
        self.common_late()
        for i in range(4): a(f"v_mov_b32 v{OB+i}, 0x3f803f80")
        a(f"s_and_b32 s68, {sW}, 1\ns_lshr_b32 s67, {sW}, 1")
        a(f"v_lshlrev_b32 {t0}, 7, {vJ}\nv_lshrrev_b32 {t1}, 1, {vJ}")
        for t in range(2):
            a(f"s_xor_b32 s64, {sW}, {t}\ns_lshl_b32 s64, s64, 11\ns_add_u32 s64, s64, {72*1024}")
            for par in range(2):
                a(f"v_add_u32 {t2}, {4*par}, {vG}\nv_xor_b32 {t2}, {t2}, {t1}\nv_lshl_add_u32 {t2}, {t2}, 4, {t0}\nv_add_u32 {vXB[t][par]}, s64, {t2}")
        a(f"v_lshrrev_b32 {t0}, 2, {vLANE}\nv_lshlrev_b32 {t0}, 7, {t0}\nv_and_b32 {t1}, 3, {vLANE}\nv_lshl_add_u32 {t0}, {t1}, 3, {t0}\nv_bfe_u32 {t1}, {vLANE}, 3, 2")
        for f in range(2):
            a(f"s_xor_b32 s64, s67, {f}\ns_lshl_b32 s65, s68, 1\ns_add_u32 s64, s64, s65")
            a(f"v_xor_b32 {t2}, s64, {t1}\nv_lshl_add_u32 {vT[f][0]}, {t2}, 5, {t0}\nv_add_u32 {vT[f][1]}, {9*4096}, {vT[f][0]}")
        a(f"s_lshl_b32 s64, {sW}, 11\ns_lshl_b32 s65, {sNT}, 13\ns_add_u32 s64, s64, s65\ns_add_u32 s64, s64, {72*1024}")
        a(f"v_lshlrev_b32 {t0}, 7, {vJ}\nv_add_u32 {t0}, s64, {t0}\nv_and_b32 {t1}, 1, {vG}\nv_lshl_add_u32 {t0}, {t1}, 3, {t0}")
        a(f"v_lshrrev_b32 {t1}, 1, {vJ}\nv_lshrrev_b32 {t2}, 1, {vG}\nv_xor_b32 {t1}, {t1}, {t2}")
        for u in range(4): a(f"v_xor_b32 {t2}, {2*u}, {t1}\nv_lshl_add_u32 {vXR[u]}, {t2}, 4, {t0}")
        a(f"s_mul_i32 s64, s69, 18\ns_lshl_b32 s65, {sNT}, 1\ns_add_u32 s64, s64, s65\ns_lshl_b32 s77, s64, 10")
        a(f"s_lshl_b32 s64, s68, 10\ns_add_u32 s72, s77, s64")
        a(f"s_mul_i32 s64, s68, {2*18432}\ns_sub_u32 s73, s72, s64\ns_add_u32 s73, s73, 18432")
        a(f"s_lshr_b32 s64, s69, 1\ns_lshl_b32 s76, s64, 12")
        a(f"s_mul_i32 s64, s68, 9\ns_add_u32 s64, s64, {sNT}\ns_lshl_b32 s64, s64, 7\ns_add_u32 s75, s64, s76")
        a(f"s_lshl_b32 s64, {sNT}, 1\ns_add_u32 s64, s64, s68\ns_lshl_b32 s64, s64, 7\ns_add_u32 s71, s64, s76\ns_add_u32 s71, s71, {F1_OFF}")
        a(f"s_mul_i32 s74, s69, 18432")
        MS = [[f"s[{92+4*u+2*t}:{93+4*u+2*t}]" for t in range(2)] for u in range(2)]
        MO = [["s[100:101]", "s[78:79]"], ["s[0:1]", "vcc"]]
        for u in range(2):
            a(f"s_lshl_b32 s64, {sNT}, 2\ns_lshl_b32 s65, s68, 1\ns_add_u32 s64, s64, s65\ns_add_u32 s64, s64, {u}\ns_mul_i32 s64, s64, 7282\ns_lshr_b32 s64, s64, 16")
            a(f"s_lshr_b32 s65, s64, 1\ns_add_u32 s65, s65, 1\ns_sub_u32 s66, 0, s65\ns_bitcmp1_b32 s64, 0\ns_cselect_b32 s65, s66, s65")
            a(f"v_subrev_u32 {t0}, s65, {vJ}")
            a(f"v_and_b32 {t1}, 15, {t0}\nv_lshl_add_u32 {t1}, {vG}, 4, {t1}\nv_lshlrev_b32 {vBP[u]}, 2, {t1}")
            a(f"v_cmp_gt_u32 {MS[u][0]}, 16, {t0}")
            for t in range(2):
                a(f"s_xor_b32 s64, s68, {t}\ns_lshl_b32 s64, s64, 4\nv_add_u32 {t1}, s64, {t0}")
                dst = MS[u][1] if t == 0 else ("s[100:101]" if u == 0 else "s[78:79]")
                a(f"v_cmp_gt_u32 {dst}, 32, {t1}")
        VAL = [[MS[0][1], "s[100:101]"], [MS[1][1], "s[78:79]"]]
        def xread(t, k):
            off = 8192 * (k >> 1)
            if off < 65536: a(f"ds_read_b128 {vr(XF(t,k))}, {vXB[t][k&1]} offset:{off}", f"x{t}_{k}")
            else:
                a(f"v_add_u32 v0, {off}, {vXB[t][k&1]}")
                a(f"ds_read_b128 {vr(XF(t,k))}, v0", f"x{t}_{k}")
        order = [(s, f) for s in range(18) for f in range(2)]
        step_of = {s: i for i, (xl, kk) in enumerate(self.STEPS) for s in kk}
        first_n = {i: 2 * kk[0] for i, (xl, kk) in enumerate(self.STEPS)}
        fr = {}; st = {"done": -1, "nxt": 0}
        xq = []; statq = []
        LOOK = 5
        def xr():
            t, k = xq.pop(0); xread(t, k)
            if t == 0: statq.append(k)
        def half(h):
            n = st["nxt"]; s, f = order[n]
            if h == 0:
                i = step_of[s]
                if i > st["done"]:
                    if i == 0: self.wait_ctr(3, self.NEED[0], sleep=0, tmp=CT); self.stamp()
                    else: self.ctr_check(3, CT, self.NEED[i], tmp=CT, sleep=0)
                    st["done"] = i
                    xq.extend((t, 2 * L + q) for L in self.STEPS[i][0] for q in range(2) for t in range(2))
                while xq and xq[0][1] <= s: xr()
                fr[n] = self.next_af()
            a(f"ds_read_b64_tr_b16 {vr(fr[n]+2*h,2)}, {vT[f][0 if s < 9 else 1]} offset:{(s%9)*4096+2048*h}", f"f{n}")
            if h == 1:
                st["nxt"] += 1
                i = step_of[s]
                if i + 1 < len(self.STEPS) and n == first_n[i + 1] - 2: self.ctr_issue(3, CT)
        for n in range(4): half(0); half(1)
        vS, vQ = f"v{SUM}", f"v{GR}"
        q = Asm(); self.a = q
        q(f"v_and_b32 {t0}, 3, {vJ}")
        for r in range(1, 4):
            q(f"v_cmp_eq_u32 vcc, {r}, {t0}")
            q(f"v_cndmask_b32 {vQ}, {vQ}, v{GR+r}, vcc")
        q(f"v_lshrrev_b32 {t0}, 2, {vJ}\nv_cmp_eq_u32 vcc, {t0}, {vG}")
        q(f"v_cndmask_b32 {vQ}, 0, {vQ}, vcc")
        self.xlane_sum(vQ, t0)
        self.ln_consts(vS, vQ, [f"v{KR+i}" for i in range(4)], t0)
        q(f"s_lshl_b32 s65, {sW}, 8\ns_add_u32 s65, s65, {KC_OFF}\nv_lshl_add_u32 {vXR[0]}, {vJ}, 4, s65\nv_xor_b32 {vXR[1]}, 256, {vXR[0]}")
        q(f"s_lshl_b32 s65, {sW}, 6\nv_lshl_add_u32 {vXR[2]}, {vG}, 4, {vSCR}\nv_add_u32 {vXR[2]}, s65, {vXR[2]}\nv_xor_b32 {vXR[3]}, 128, {vXR[2]}")
        self.a = a
        fill = [i.text for i in q.ins]
        nstat = 0; ready = None
        def slot():
            if xq:
                xr()
                if xq: xr()
            elif ready is not None and fill: a(fill.pop(0), "kw")
        for n, (s, f) in enumerate(order):
            a.wait_lg([f"f{n}", f"x0_{s}", f"x1_{s}"])
            go = st["nxt"] < len(order)
            for t in range(2):
                a(f"{MFMA} {vr(ACC+8*f+4*t)}, {vr(fr[n])}, {vr(XF(t,s))}, {'0' if s == 0 else vr(ACC+8*f+4*t)}")
                if go: half(t)
                else: slot()
                if t == 0: slot()
            if f == 0:
                a(f"{MFMA} {vr(CS)}, {vr(fr[n])}, {vr(OB)}, {'0' if s == 0 else vr(CS)}")
                slot()
            for _ in range(2):
                if len(statq) > (1 if xq else 0):
                    k = statq.pop(0)
                    a.wait_lg(f"x0_{k}")
                    a(f"{MFMA} {vr(SUM)}, {vr(OB)}, {vr(XF(0,k))}, {'0' if k == 0 else vr(SUM)}")
                    slot(); slot()
                    a(f"{MFMA} {vr(GR)}, {vr(XF(0,k))}, {vr(XF(0,k))}, {'0' if k == 0 else vr(GR)}")
                    slot()
                    nstat += 1
            if st["done"] >= 5 and not xq and "xr" not in st:
                for uu in range(4): a(f"ds_read_b64 {vr(XR+2*uu,2)}, {vXR[uu]}", "xr")
                st["xr"] = n
            if "xr" in st and n == st["xr"] + 1:
                a.wait_lg("xr")
                if "w2late" not in self.exp: self.dsignal(1)
            if nstat == 18 and ready is None:
                ready = n
                self.stamp()
        while fill: a(fill.pop(0), "kw")
        a(f"ds_write_b128 {vXR[0]}, {vr(KR)}", "csw")
        a(f"ds_write_b128 {vXR[2]}, {vr(CS)} offset:{CS3_OFF}", "csw")
        if "w2late" not in self.exp: a.wait_vm("dsig")
        self.signal(2)
        self.stamp()
        TB = XF(0, 0)
        self.gelu_pk([(ACC, CS, KR)], TB)
        self.wait_ctr(0, 2, sleep=0)
        a(f"ds_read_b128 {vr(KR+4)}, {vXR[1]}", "rk")
        a(f"ds_read_b128 {vr(CS+4)}, {vXR[3]} offset:{CS3_OFF}", "rk")
        a.wait_lg()
        self.gelu_pk([(ACC + 4, CS, KR + 4), (ACC + 8, CS + 4, KR), (ACC + 12, CS + 4, KR + 4)], TB)
        P = TB + 20; R = TB + 28; O = KR
        for f in range(2):
            for t in range(2):
                for d in range(2): a(f"v_cvt_pk_bf16_f32 v{P+4*f+2*t+d}, v{ACC+8*f+4*t+2*d}, v{ACC+8*f+4*t+2*d+1}")
        L = a.label("Lsw")
        a(f"s_cmp_eq_u32 s67, 0\ns_cbranch_scc1 {L}")
        for e in range(4): a(f"v_swap_b32 v{P+e}, v{P+4+e}")
        a(f"{L}:")
        for u in range(2):
            for e in range(4): a(f"ds_bpermute_b32 v{R+4*u+e}, {vBP[u]}, v{P+4*u+e}", "bp")
        self.signal(3)
        a.wait_lg()
        for t in range(2):
            for u in range(2):
                for d in range(2):
                    o = O + 4 * t + 2 * u + d
                    a(f"v_cndmask_b32 v{o}, v{R+4*u+2*(1-t)+d}, v{R+4*u+2*t+d}, {MS[u][0]}")
                    a(f"v_cndmask_b32 v{o}, 0, v{o}, {VAL[u][t]}")
            a(f"buffer_store_dwordx4 {vr(O+4*t)}, {vL16}, {HS}, {'s72' if t == 0 else 's73'} offen", "hst")
        self.stamp()
        vT2 = [[f"v{ACC0+52+2*u+h}" for h in range(2)] for u in range(4)]; vSH = f"v{ACC0+60}"
        a(f"v_lshrrev_b32 {t0}, 2, {vLANE}\nv_lshlrev_b32 {t0}, 7, {t0}\nv_and_b32 {t1}, 3, {vLANE}\nv_lshl_add_u32 {t0}, {t1}, 3, {t0}\nv_bfe_u32 {t1}, {vLANE}, 3, 2\nv_add_u32 {t0}, {72*1024}, {t0}")
        for u in range(4): a(f"v_xor_b32 {t2}, {u}, {t1}\nv_lshl_add_u32 {vT2[u][0]}, {t2}, 5, {t0}\nv_add_u32 {vT2[u][1]}, {9*4096}, {vT2[u][0]}")
        a(f"v_add_u32 {vSH}, s74, {vL16}")
        self.set_flag("s71", "near")
        a(f"s_add_u32 s72, s72, {FAR}\ns_add_u32 s73, s73, {FAR}")
        a("s_mov_b32 s70, 0")
        def far_st(tag):
            for t in range(2): a(f"buffer_store_dwordx4 {vr(O+4*t)}, {vL16}, {HS}, {'s72' if t == 0 else 's73'} offen sc1", tag)
        def far_copy():
            far_st("hfar")
            self.set_flag("s71", "far")
            a("s_mov_b32 s70, 1")
        self.stamp()
        order = [(s, u) for s in range(18) for u in range(4)]
        pool = [BF0 + 72 + 4 * i for i in range(18)] + [AF0 + 4 * i for i in range(6)]
        fr = {}; nx = [0]
        def rd2():
            n = nx[0]; s, u = order[n]
            fr[n] = self.read_tr(vT2[u][0 if s < 9 else 1], (s % 9) * 4096, f"f{n}", dst=pool.pop(0)); nx[0] += 1
        self.wait_ctr(1, 7, sleep=0)
        while pool: rd2()
        a(f"s_add_u32 s64, s76, {F1_OFF}")
        self.poll2("s64", vFLG, True, hook=far_copy)
        a(f"v_add_u32 {vSH}, s67, {vSH}")
        self.stamp()
        for s in range(18):
            a(f"buffer_load_dwordx4 {vr(HF+4*s)}, {vSH}, {HS}, {sC[s>>2]} offen offset:{(s&3)*1024} sc1", f"h{s}")
        self.signal(4)
        self.stamp()
        for n, (s, u) in enumerate(order):
            if u == 0: a.wait_vm(f"h{s}")
            a.wait_lg(f"f{n}")
            a(f"{MFMA} {vr(ACC+4*u)}, {vr(fr[n])}, {vr(HF+4*s)}, {'0' if s == 0 else vr(ACC+4*u)}")
            pool.append(fr[n])
            if nx[0] < len(order): rd2()
        self.signal(5)
        self.stamp()
        vS, vQ = f"v{SUM}", f"v{SUM+1}"
        a(f"v_mov_b32 {vS}, 0\nv_mov_b32 {vQ}, 0")
        a(f"s_mul_i32 s64, s69, 9\ns_add_u32 s64, s64, {sNT}\ns_mul_i32 s64, s64, {XG}\ns_add_u32 s64, s64, {X1_OFF}")
        for d in range(8):
            t3 = f"v{T0+3}"
            a(f"v_cvt_pk_bf16_f32 {t0}, v{ACC+2*d}, v{ACC+2*d+1}")
            a(f"v_lshlrev_b32 {t1}, 16, {t0}\nv_and_b32 {t0}, 0xffff0000, {t0}")
            a(f"v_lshlrev_b32 {t2}, 16, v{XR+d}\nv_and_b32 {t3}, 0xffff0000, v{XR+d}")
            a(f"v_add_f32 {t1}, {t1}, {t2}\nv_add_f32 {t0}, {t0}, {t3}")
            a(f"v_cvt_pk_bf16_f32 v{PK+d}, {t1}, {t0}")
            if d & 3 == 3: a(f"buffer_store_dwordx4 {vr(PK+d-3)}, {vL16}, {WS}, s64 offen offset:{1024*(d>>2)} sc1", "x1st")
        a(f"v_bitop3_b32 v{T0+4}, v{PK}, v{PK+1}, {sTAG} bitop3:0x96")
        for h in range(1, 4): a(f"v_bitop3_b32 v{T0+4}, v{T0+4}, v{PK+2*h}, v{PK+2*h+1} bitop3:0x96")
        a(f"v_lshlrev_b32 {t0}, 2, {vLANE}")
        a(f"buffer_store_dword v{T0+4}, {t0}, {WS}, s64 offen offset:2048 sc1", "x1st")
        for d in range(8):
            a(f"v_dot2_f32_bf16 {vS}, v{PK+d}, v{OB}, {vS}")
            a(f"v_dot2_f32_bf16 {vQ}, v{PK+d}, v{PK+d}, {vQ}")
        self.xlane_sum(vS, t0); self.xlane_sum(vQ, t0)
        a(f"s_lshr_b32 s64, s69, 1\ns_mul_i32 s64, s64, 12\ns_add_u32 s64, s64, {sNT}\ns_lshl_b32 s64, s64, 8")
        a(f"s_and_b32 s65, s69, 1\ns_lshl_b32 s65, s65, 7\ns_add_u32 s64, s64, s65\ns_add_u32 s64, s64, {ST_OFF}")
        a(f"v_lshlrev_b32 {t0}, 3, {vJ}\nv_mov_b32 {t1}, {sTAG8}\ns_mov_b32 s65, 0xff")
        a(f"v_bfi_b32 {vS}, s65, {t1}, {vS}\nv_bfi_b32 {vQ}, s65, {t1}, {vQ}")
        a("s_mov_b64 exec, 0xffff")
        a(f"buffer_store_dwordx2 {vr(SUM,2)}, {t0}, {WS}, s64 offen sc1", "x1st")
        a("s_mov_b64 exec, -1")
        self.signal(6)
        self.stamp()
        far_st("hfar")
        a("s_mov_b32 s101, s71")

    def h_phaseA(self):
        a = self.a
        vD1, vD2, vDX, vDX2 = "v48", "v49", "v50", "v51"
        vXB = [f"v{52+e}" for e in range(4)]; OB = 56; SUM = 60; GR = 64; KR = 68; XH = 112
        t0, t1, t2 = f"v{T0}", f"v{T0+1}", f"v{T0+2}"
        ks = 32 * 1152
        a(f"s_lshl_b32 s69, {sX}, 3\ns_lshl_b32 s64, {sMT}, 2\ns_add_u32 s69, s69, s64\ns_add_u32 s69, s69, {sW}\ns_mul_i32 s71, s69, 18432")
        a(f"v_lshrrev_b32 {t0}, 3, {vLANE}\nv_lshrrev_b32 {t1}, 4, {vLANE}\nv_and_b32 {t2}, 7, {vLANE}\nv_xor_b32 {t1}, {t1}, {t2}")
        a(f"v_mul_u32_u24 {vDX}, 1152, {t0}\nv_lshl_add_u32 {vDX}, {t1}, 4, {vDX}")
        a(f"v_xor_b32 {vDX2}, 64, {vDX}\nv_add_u32 {vDX2}, {8*1152}, {vDX2}")
        a(f"s_lshl_b32 s64, {sW}, 3\nv_add_u32 {t0}, s64, {t0}")
        a(f"v_and_b32 {t1}, 6, {t0}\nv_xor_b32 {t1}, {t1}, {t2}\nv_lshlrev_b32 {t1}, 4, {t1}")
        a(f"v_mul_u32_u24 {vD2}, 1152, {t0}\nv_add_u32 {vD2}, {vD2}, {t1}")
        a(f"v_and_b32 {t2}, 12, {t0}\nv_lshlrev_b32 {t2}, 1, {t2}\nv_and_b32 {vD1}, 3, {t0}\nv_add_u32 {t2}, {t2}, {vD1}")
        a(f"v_lshrrev_b32 {t0}, 4, {t0}\nv_lshl_add_u32 {t0}, {t0}, 2, {t2}")
        a(f"v_mul_u32_u24 {vD1}, 1152, {t0}\nv_add_u32 {vD1}, {vD1}, {t1}")
        a(f"s_lshl_b32 s79, {sNT}, 7\ns_mov_b32 s70, s79\ns_lshl_b32 s72, {sW}, 11\ns_add_u32 s72, s72, {72*1024}")
        self.kernarg_wait()
        self.srd(X, 4, 1179648); self.srd(W1, 6, 663552)
        self.stamp()
        n = 0
        vPG = "v52"
        def after():
            nonlocal n
            n += 1
            if n == 4:
                self.srd(W3, 10, 5308416); self.srd(W4, 12, 5308416)
                self.common_late()
                self.stamp()
            if n in self.NEED: self.dsignal(n, 32)
        for i, (xl, kk) in enumerate(self.STEPS):
            for L in xl:
                a(f"s_add_u32 m0, s72, {8192*L}")
                a(f"buffer_load_dwordx4 {vDX}, {X}, s71 offen lds", "ld"); after()
                a(f"s_add_u32 m0, s72, {8192*L+1024}")
                a(f"buffer_load_dwordx4 {vDX2}, {X}, s71 offen lds", "ld"); after()
                a(f"s_add_u32 s71, s71, 128")
            for s in kk:
                a(f"s_add_u32 m0, {sWK}, {4096*s}")
                a(f"buffer_load_dwordx4 {vD1}, {W1}, s70 offen lds", "ld"); after()
                a(f"s_add_u32 s70, s70, {ks}")
        self.stamp()
        self.wait_ctr(0, 3 if "w2late" in self.exp else 1, sleep=1)
        a(f"s_mov_b32 s70, s79")
        for s in range(18):
            a(f"s_add_u32 m0, {sWK}, {72*1024+4096*s}")
            a(f"buffer_load_dwordx4 {vD2}, {W2}, s70 offen lds", "w2")
            a(f"s_add_u32 s70, s70, {ks}")
            if s % W2G == W2G - 1: a(f"s_waitcnt vmcnt({INF})")
        self.dsignal(7)
        self.stamp()

    def repack(self):
        a = self.a
        a(f"s_sub_u32 s67, {sR}, {NACT}\ns_lshl_b32 s68, s67, 3\ns_add_u32 s68, s68, {sWV}")
        a(f"s_lshl_b32 s69, {sWV}, 13")
        vR, vCK = "v48", "v49"
        a(f"v_lshrrev_b32 {vR}, 3, {vLANE}")
        a(f"v_and_b32 v{T0}, 6, {vR}\nv_and_b32 {vCK}, 7, {vLANE}\nv_xor_b32 {vCK}, {vCK}, v{T0}\nv_lshlrev_b32 {vCK}, 4, {vCK}")
        a(f"s_lshl_b32 s70, s68, 10\ns_and_b32 s71, s70, 0x7fff\ns_add_u32 s71, s71, {112*1024}\ns_mul_i32 s72, {sX}, 147456")
        self.kernarg_wait()
        self.srd(X, 4, 1179648); self.srd(W1, 6, 663552); self.srd(W2, 8, 663552)
        self.stamp()
        DUM = vr(252)
        a(f"s_add_u32 s64, s70, s72")
        a(f"buffer_load_dwordx4 {DUM}, {vL16}, {X}, s64 offen", "pf")
        a(f"s_add_u32 s64, s71, s72")
        a(f"buffer_load_dwordx4 {DUM}, {vL16}, {X}, s64 offen", "pf")
        a(f"s_add_u32 s64, s70, {11*32*1152}")
        for i in range(3):
            a(f"buffer_load_dwordx4 {DUM}, {vL16}, {W1}, s64 offen", "pf")
            a(f"s_add_u32 s64, s64, {112*1024}")
        self.srd(W3, 10, 5308416); self.srd(W4, 12, 5308416)
        self.common_late()
        a.wait_vm()
        Lt = a.label("Ltc")
        a(f"s_mul_i32 s73, {sWV}, 14\ns_add_u32 s73, s73, s67\ns_lshl_b32 s64, s73, 12\nv_lshlrev_b32 v{T0}, 6, {vLANE}")
        a(f"s_cmp_ge_u32 s73, 92\ns_cbranch_scc1 {Lt}")
        a(f"s_add_u32 s65, s64, s72\ns_add_u32 s65, s65, {H_OFF}")
        def sel(lo, expr, base):
            a(expr + f"\ns_add_u32 s66, s66, {(base - lo*4096) & 0xffffffff}\ns_cmp_ge_u32 s73, {lo}\ns_cselect_b32 s65, s66, s65")
        sel(36, f"s_lshl_b32 s66, {sX}, 14\ns_add_u32 s66, s66, s64", F1_OFF)
        a(f"s_sub_u32 s66, s73, 40\ns_lshl_b32 s66, s66, 15\ns_lshl_b32 s74, {sX}, 12\ns_add_u32 s66, s66, s74\ns_add_u32 s66, s66, {F3_OFF}\ns_cmp_ge_u32 s73, 40\ns_cselect_b32 s65, s66, s65")
        sel(48, f"s_mul_i32 s66, {sX}, {8*XT}\ns_add_u32 s66, s66, s64", X1_OFF)
        sel(89, f"s_mul_i32 s66, {sX}, 12288\ns_add_u32 s66, s66, s64", ST_OFF)
        a(f"buffer_load_dword {DUMMY}, v{T0}, {WS}, s65 offen sc1", "_untracked")
        a(f"{Lt}:")
        for i in range(6):
            a(f"buffer_load_dwordx4 {DUM}, {vL16}, {W2}, s70 offen", "pf")
            a(f"s_add_u32 s70, s70, {112*1024}")
        if "xtlb" in self.exp:
            Lt = a.label("Ltl")
            a(f"s_cmp_lg_u32 {sWV}, 7\ns_cbranch_scc1 {Lt}")
            a(f"v_lshlrev_b32 v{T0}, 20, {vLANE}\ns_mov_b64 exec, 0x0fffffff")
            a(f"s_cmp_lg_u32 s67, 13\ns_cbranch_scc1 {Lt}a")
            a(f"buffer_load_dword {DUMMY}, v{T0}, {WS}, 0 offen sc1", "_untracked")
            a(f"{Lt}a:")
            a(f"s_cmp_lg_u32 s67, 12\ns_cbranch_scc1 {Lt}b")
            a(f"buffer_load_dword {DUMMY}, v{T0}, {OUT}, 0 offen sc1", "_untracked")
            a(f"buffer_load_dword {DUMMY}, v{T0}, {W4}, 0 offen", "_untracked")
            a(f"{Lt}b:")
            a("s_mov_b64 exec, -1")
            a(f"{Lt}:")
        a("s_barrier")
        Lno = a.label("Lnj")
        a(f"s_mul_i32 s64, {sWV}, 14\ns_add_u32 s64, s64, s67\ns_cmp_ge_u32 s64, 81\ns_cbranch_scc1 {Lno}")
        vm0 = list(a.vm)
        a(f"s_mul_i32 s70, s64, 7282\ns_lshr_b32 s70, s70, 16\ns_mul_i32 s65, s70, 9\ns_sub_u32 s71, s64, s65")
        a(f"s_mul_i32 s66, s70, {64*9216}\ns_mul_i32 s64, {sX}, 1152\ns_add_u32 s66, s66, s64\ns_lshl_b32 s64, s71, 7\ns_add_u32 s66, s66, s64")
        a(f"v_mul_u32_u24 v{T0}, 9216, {vR}\nv_add_u32 v{T0}, v{T0}, {vCK}")
        for i in range(8):
            a(f"s_add_u32 m0, s69, {i*1024}")
            a(f"buffer_load_dwordx4 v{T0}, {W3}, s66 offen nt lds", "job")
            a(f"s_add_u32 s66, s66, {8*9216}")
        vT = [f"v{52+i}" for i in range(4)]
        self.tr_bases(vT, "s69")
        for i in range(4): a(f"v_mov_b32 v{136+i}, 0x3f803f80")
        a(f"s_mul_i32 s64, {sX}, 9\ns_add_u32 s64, s64, s70\ns_mul_i32 s64, s64, 2304\ns_lshl_b32 s65, s71, 8\ns_add_u32 s64, s64, s65\ns_add_u32 s72, s64, {CSP_OFF}")
        a(f"v_mov_b32 v{T0+4}, {sTAG8}\ns_mov_b32 s73, 0xff")
        a.wait_vm("job")
        self.stamp()
        for kk in range(2):
            for uu in range(4): self.read_tr(vT[uu], kk * 4096, f"r{kk}{uu}", dst=56 + 16 * kk + 4 * uu)
        for kk in range(2):
            for uu in range(4):
                a.wait_lg(f"r{kk}{uu}")
                a(f"{MFMA} {vr(140+4*uu)}, {vr(56+16*kk+4*uu)}, {vr(136)}, {'0' if kk == 0 else vr(140+4*uu)}")
        for uu in range(1, 4):
            a(f"v_cmp_eq_u32 vcc, {uu}, {vJ}")
            for e in range(4): a(f"v_cndmask_b32 v{140+e}, v{140+e}, v{140+4*uu+e}, vcc")
        for e in range(4): a(f"v_bfi_b32 v{140+e}, s73, v{T0+4}, v{140+e}")
        a(f"v_lshlrev_b32 v{T0}, 4, {vG}\nv_lshl_add_u32 v{T0}, {vJ}, 6, v{T0}")
        a("s_mov_b32 exec_lo, 0x000f000f\ns_mov_b32 exec_hi, 0x000f000f")
        a(f"buffer_store_dwordx4 {vr(140)}, v{T0}, {WS}, s72 offen sc1", "st")
        a("s_mov_b64 exec, -1")
        if "pfearly" in self.exp:
            a(f"s_branch {Lno}x")
            a(f"{Lno}:")
            a(f"s_sub_u32 s64, s64, 81\ns_mul_i32 s65, {sX}, 663552\nv_lshlrev_b32 v{T0}, 7, {vLANE}")
            for i in range(3):
                a(f"s_min_u32 s66, s64, 80\ns_lshl_b32 s66, s66, 13\ns_add_u32 s66, s66, s65")
                a(f"buffer_load_dword {DUMMY}, v{T0}, {W4}, s66 offen", "_untracked")
                a(f"s_add_u32 s64, s64, 31")
            a(f"{Lno}x:")
        else: a(f"{Lno}:")
        a.vm = vm0; a.lg = []
        self.nst = 2
        a("s_mov_b32 s101, 0")
        self.signal(10)
        self.stamp()

    def load_stats(self, R, vT8):
        a = self.a
        va, vb = f"v{R+12}", f"v{R+13}"; t0 = f"v{T0}"
        a(f"v_lshl_add_u32 {va}, {vG}, 5, {vJ}\nv_lshlrev_b32 {va}, 3, {va}\nv_lshlrev_b32 {vb}, 3, {vJ}")
        a(f"s_lshl_b32 s64, {sM}, 2\ns_add_u32 s64, s64, {sW}\ns_mul_i32 s64, s64, 3072\ns_add_u32 s64, s64, {ST_OFF}")
        L = a.label("Lst")
        a(f"s_mov_b32 {sTO}, 0")
        a(f"{L}:")
        for tt in range(2):
            for q in range(3):
                a(f"buffer_load_dwordx2 {vr(R+6*tt+2*q,2)}, {va if q < 2 else vb}, {WS}, s64 offen offset:{1024*q+128*tt} sc1", "st")
        a(f"s_add_u32 {sTO}, {sTO}, 1\ns_cmp_gt_u32 {sTO}, 100000\ns_cbranch_scc1 L_end")
        a.wait_vm()
        a(f"v_xor_b32 {t0}, v{R}, {vT8}")
        for e in range(1, 12): a(f"v_bitop3_b32 {t0}, {t0}, v{R+e}, {vT8} bitop3:0xf6")
        a(f"v_and_b32 {t0}, 0xff, {t0}\nv_cmp_ne_u32 vcc, 0, {t0}")
        a(f"s_cbranch_vccnz {L}")
    def finish_stats(self, K, R):
        a = self.a
        for c in range(2):
            a(f"v_add_f32 v{R+c}, v{R+c}, v{R+2+c}")
            self.xlane_sum(f"v{R+c}", f"v{T0}")
            a(f"v_add_f32 v{R+c}, v{R+c}, v{R+4+c}")
        self.ln_consts(f"v{R}", f"v{R+1}", K, f"v{T0}")
    def h3_base(self, dst):
        self.a(f"s_lshl_b32 s64, {sM}, 3\ns_lshl_b32 s65, {sW}, 1\ns_add_u32 s64, s64, s65\ns_lshl_b32 s64, s64, 3\ns_add_u32 s64, s64, {sX}")
        self.a(f"s_mul_i32 s64, s64, 18432\ns_add_u32 {dst}, s64, {H3_OFF}")
    def f3_base(self, dst):
        self.a(f"s_lshl_b32 s64, {sM}, 3\ns_add_u32 s64, s64, {sX}\ns_lshl_b32 s64, s64, 2\ns_add_u32 s64, s64, {sW}\ns_lshl_b32 s64, s64, 10\ns_add_u32 {dst}, s64, {F3_OFF}")

    def gelu_tile(self, acc, CSB, K, dst, vo, vo8, sPair, sSingle, sFlag, between=None):
        a = self.a
        t1 = f"v{T0+1}"
        a(f"v_lshl_add_u32 v0, {vG}, 4, {vSCR}")
        for u in range(2): a(f"ds_read_b128 {vr(CSB+4*u)}, v0 offset:{CS3_OFF+64*u}", f"cs{u}")
        for u in range(9):
            a.wait_lg(f"cs{u}")
            self.gelu4(acc(u), CSB + 4 * (u & 1), K, T0)
            if u + 2 < 9:
                a(f"v_lshl_add_u32 v0, {vG}, 4, {vSCR}")
                a(f"ds_read_b128 {vr(CSB+4*(u&1))}, v0 offset:{CS3_OFF+64*(u+2)}", f"cs{u+2}")
            p = u >> 1
            for d in range(2): a(f"v_cvt_pk_bf16_f32 v{dst(p)+2*(u&1)+d}, v{acc(u)+2*d}, v{acc(u)+2*d+1}")
            if u & 1: a(f"buffer_store_dwordx4 {vr(dst(p))}, {vo}, {WS}, {sPair} offen offset:{1024*p} sc1", f"h3_{p>>1}")
            if u == 8: a(f"buffer_store_dwordx2 {vr(dst(4),2)}, {vo8}, {WS}, {sSingle} offen sc1", "h3_1")
            if between: between(u)
            if u == 8: self.set_flag(sFlag, "both", "h3_0")
    def c_mlp(self):
        a = self.a
        t0, t1 = f"v{T0}", f"v{T0+1}"
        vX2, vH2, vF3, vEX = (f"v{T0+4+i}" for i in range(4))
        vA = ["v5", "v6", "v8"]
        CT = T0
        ACC = 40
        vL8 = [vX2, DUMMY]
        def B(k, tt): return BF0 + 8 * k + 4 * tt
        a(f"v_add_u32 {vX2}, {XT}, {vL16}\nv_add_u32 {vH2}, 147456, {vL16}")
        a(f"v_min_u32 {vF3}, 7, {vLANE}\nv_lshlrev_b32 {vF3}, 7, {vF3}")
        a(f"s_mul_i32 s64, {sW}, {13*1024}\ns_add_u32 s64, s64, {EX1*SL}\nv_add_u32 {vEX}, s64, {vL16}")
        a(f"s_lshl_b32 s64, {sM}, 3\ns_lshl_b32 s65, {sW}, 1\ns_add_u32 s64, s64, s65\ns_mul_i32 s64, s64, {XT}\ns_add_u32 s68, s64, {X1_OFF}")
        self.rot3("s69"); a("s_lshl_b32 s69, s69, 10")
        self.h3_base("s70")
        for d in range(4): a(f"s_xor_b32 s64, {sJ}, {d}\ns_lshl_b32 s64, s64, 12\ns_add_u32 s{71+d}, s64, s70")
        for e in range(2): a(f"s_lshr_b32 s64, {sJ}, 1\ns_xor_b32 s64, s64, {e}\ns_add_u32 s64, s64, 16\ns_lshl_b32 s64, s64, 10\ns_add_u32 s{75+e}, s64, s70")
        self.f3_base("s77")
        a(f"s_lshl_b32 s64, {sM}, 2\ns_add_u32 s64, s64, {sW}\ns_mul_i32 s64, s64, 3072\ns_add_u32 s78, s64, {ST_OFF}")
        a(f"v_lshrrev_b32 {t0}, 2, {vLANE}\nv_mul_u32_u24 {vA[0]}, 288, {t0}\nv_and_b32 {t0}, 3, {vLANE}\nv_lshl_add_u32 {vA[0]}, {t0}, 3, {vA[0]}")
        a(f"v_add_u32 {vA[1]}, {6*SL}, {vA[0]}")
        a(f"s_lshl_b32 s64, s69, 0\ns_lshr_b32 s64, s64, 3\nv_add_u32 {vFLG}, s64, {vFLG}\nv_subrev_u32 {t0}, {18*128}, {vFLG}\nv_min_u32 {vFLG}, {vFLG}, {t0}")
        a(f"s_lshr_b32 s66, s69, 11")
        for g in range(9):
            a(f"s_mul_i32 s64, s66, {XG}\ns_add_u32 s{92+g}, s64, s68\ns_add_u32 s66, s66, 1"); self.modn("s66", 9)
        a(f"v_lshlrev_b32 {DUMMY}, 2, {vLANE}\nv_add_u32 {vEX}, {XT}, {DUMMY}")
        CKR = [B(9, 0), B(11, 0), B(13, 0), B(15, 0), B(17, 0), B(1, 0), B(2, 0), B(3, 0), B(4, 0)]
        def hint(mask):
            L = a.label("Lpoll"); L2 = a.label("Lpoll")
            a(f"s_mov_b32 {sTO}, 0\ns_branch {L2}")
            a(f"{L}:")
            a(f"s_sleep {HS_}")
            a(f"{L2}:")
            a(f"buffer_load_ubyte {t0}, {vFLG}, {WS}, s78 offen sc1")
            a(f"s_add_u32 {sTO}, {sTO}, 1\ns_cmp_gt_u32 {sTO}, 100000\ns_cbranch_scc1 L_end")
            a.wait_vm()
            a(f"v_cmp_ne_u32 vcc, {sTAG8}, {t0}")
            if mask == 0xf:
                Lf = a.label("Lff")
                a(f"s_cmp_eq_u32 s101, 0\ns_cbranch_scc1 {Lf}")
                self.set_flag("s101", "far", "none")
                a(f"s_mov_b32 s101, 0")
                a(f"{Lf}:")
                a.vm = []
            a(f"s_and_b32 s66, vcc_lo, 0x3ffff\ns_and_b32 vcc_lo, vcc_lo, {mask}\ns_cbranch_scc1 {L}")
        def grp_ops(g, tag):
            o = []
            for tt in range(2): o.append((f"buffer_load_dword v{CKR[g]+tt}, {DUMMY if tt == 0 else vEX}, {WS}, s{92+g} offen offset:2048 sc1", tag))
            for q in range(2):
                for tt in range(2): o.append((f"buffer_load_dwordx4 {vr(B(2*g+q,tt))}, {vL16 if tt == 0 else vX2}, {WS}, s{92+g} offen offset:{1024*q} sc1", tag))
            return o
        def chk_ops(g):
            o = []
            for tt in range(2):
                t = f"v{CKR[g]+tt}"
                for q in range(2):
                    b = B(2 * g + q, tt)
                    o += [f"v_bitop3_b32 {t}, {t}, v{b}, v{b+1} bitop3:0x96", f"v_bitop3_b32 {t}, {t}, v{b+2}, v{b+3} bitop3:0x96"]
            o += [f"v_bitop3_b32 v{CKR[g]}, v{CKR[g]}, v{CKR[g]+1}, {sTAG} bitop3:0x7e", f"v_cmp_eq_u32 vcc, 0, v{CKR[g]}"]
            return o
        def chk_branch(g):
            a("s_cmp_eq_u64 vcc, -1")
            def retry():
                L = a.label("Lxr")
                a(f"s_mov_b32 {sTO}, 0")
                a(f"{L}:")
                a(f"s_add_u32 {sTO}, {sTO}, 1\ns_cmp_gt_u32 {sTO}, 100000\ns_cbranch_scc1 L_end")
                for o in grp_ops(g, "r"): a(*o)
                a.wait_vm()
                for o in chk_ops(g): a(o)
                a(f"s_cmp_eq_u64 vcc, -1\ns_cbranch_scc0 {L}")
            a.slow(retry)
        self.stamp()
        self.wait_ctr(1, 12, sleep=2)
        hint(0xf)
        self.stamp()
        for g in range(2):
            for o in grp_ops(g, f"b{g}"): a(*o)
        self.fs(FS2_OFF)
        Lh = a.label("Lh2")
        vm = list(a.vm)
        a(f"s_cmp_eq_u32 s66, 0\ns_cbranch_scc1 {Lh}")
        hint(0x3ffff)
        a(f"{Lh}:")
        a.vm = vm
        a(f"v_add_u32 {vA[2]}, {12*SL}, {vA[0]}")
        for g in range(2, 4):
            for o in grp_ops(g, f"b{g}"): a(*o)
        a.wait_vm("b0")
        for o in chk_ops(0): a(o)
        chk_branch(0)
        self.signal(11)
        self.stamp()
        LOOK = 6
        base_pool = [20, 24, 28, 32, 36]
        def rd(addr, tag, dst):
            v, off = addr
            a(f"ds_read_b64_tr_b16 {vr(dst,2)}, {v} offset:{off}", tag)
            a(f"ds_read_b64_tr_b16 {vr(dst+2,2)}, {v} offset:{off+4608}", tag)
        def stream(items, hooks_issue, hooks_after, pool, mid={}):
            fr = {}; nxt = [0]
            def can(i): return bool(nxt[0] < len(items) and nxt[0] <= i + LOOK and pool)
            def half(h):
                n = nxt[0]
                if h == 0:
                    if n in hooks_issue: hooks_issue[n]()
                    fr[n] = pool.pop(0)
                v, off = items[n][0]
                a(f"ds_read_b64_tr_b16 {vr(fr[n]+2*h,2)}, {v} offset:{off+4608*h}", f"f{n}")
                if h == 1: nxt[0] += 1
            while can(-1): half(0); half(1)
            for i, (n, mm, pre) in enumerate(items):
                if pre: a.wait_vm(pre)
                a.wait_lg(f"f{i}")
                go = can(i)
                for q, (acc, breg, first) in enumerate(mm):
                    a(f"{MFMA} {vr(acc)}, {vr(fr[i])}, {vr(breg)}, {'0' if first else vr(acc)}")
                    if go: half(q)
                    if q == 0 and i in mid: mid[i]()
                pool.append(fr[i])
                if i in hooks_after:
                    for h in hooks_after[i]: h(pool)
                if nxt[0] <= i + 1 or (len(pool) > 1 and can(i) and (i & 1)):
                    if can(i): half(0); half(1)
        def hook(d, i, f): d.setdefault(i, []).append(f)
        def slot_addr(bases, f, extra):
            sl = f % NSL
            return bases[sl // 6], (sl % 6) * SL + extra
        items = [(slot_addr(vA, s, 32 * u), [(ACC + 8 * u + 4 * tt, B(s, tt), s == 0) for tt in range(2)], None)
                 for s in range(18) for u in range(9)]
        hi = {}; ha = {}
        CT = B(5, 0)
        mid = {}
        for g in range(9):
            i0 = 18 * g
            if g + 4 < 9:
                for n, o in enumerate(grp_ops(g + 4, f"b{g+4}")): mid[i0 + n] = (lambda o=o: a(*o))
            if g + 1 < 9:
                hook(ha, i0 + 6, lambda pool, g=g: a.wait_vm(f"b{g+1}"))
                for n, o in enumerate(chk_ops(g + 1)): mid[i0 + 7 + n] = (lambda o=o: a(o))
                mid[i0 + 17] = (lambda g=g: chk_branch(g + 1))
        for ks_, val in ((8, 13), (12, 14), (16, 15)):
            hi[9 * ks_ - 5] = lambda: self.ctr_issue(1, CT)
            hi[9 * ks_] = (lambda val=val: self.ctr_check(1, CT, val, tmp=CT))
        hook(ha, 8, lambda pool: pool.extend([B(0, 0), B(0, 1)]))
        hook(ha, 9 * 5 - 1, lambda pool: self.signal(12))
        hook(ha, 9 * 9 - 1, lambda pool: self.signal(13))
        hook(ha, 9 * 13 - 1, lambda pool: self.signal(14))
        KB = B(5, 0); CSB = B(6, 0); TB = B(11, 0); S8 = B(12, 0)
        def consts(pool):
            a(f"s_lshl_b32 s64, {sW}, 9\ns_add_u32 s64, s64, {KC_OFF}\nv_lshl_add_u32 v0, {vJ}, 4, s64")
            for tt in range(2): a(f"ds_read_b128 {vr(KB+4*tt)}, v0 offset:{256*tt}", "kc")
        def csums(pool, u):
            if u == 0: a(f"v_lshl_add_u32 v{T0+2}, {vG}, 4, {vSCR}")
            a(f"ds_read_b128 {vr(CSB+4*u)}, v{T0+2} offset:{CS3_OFF+64*u}", "kc")
        if "p1" in self.exp:
            for k_ in (1, 3, 5, 7, 9, 11, 13, 15): hook(ha, 9 * k_ + 3, lambda pool: self.stamp())
        hook(ha, 9 * 16 + 2, consts)
        for u in range(9): hook(ha, 9 * 16 + 4 + u, lambda pool, u=u: csums(pool, u))
        stream(items, hi, ha, list(base_pool), mid)
        self.signal(15)
        self.stamp()
        a(f"s_and_b32 s64, {sJ}, 1\ns_lshl_b32 s64, s64, 9\ns_add_u32 s67, s64, s75")
        a(f"v_lshlrev_b32 {vL8[0]}, 3, {vLANE}\nv_add_u32 {vL8[1]}, 147456, {vL8[0]}")
        a(f"s_lshl_b32 s64, {sJ}, 8\ns_add_u32 s79, s64, s77")
        def h3ops(k):
            if k < 16:
                d, p = 1 + (k - 4) % 3, (k - 4) // 3
                return [(f"buffer_load_dwordx4 {vr(B(k,tt))}, {vL16 if tt == 0 else vH2}, {WS}, s{71+d} offen offset:{1024*p} sc1", f"g{k}") for tt in range(2)]
            return [(f"buffer_load_dwordx2 {vr(B(k,tt)+2*hf,2)}, {vL8[tt]}, {WS}, s{75+k-16} offen offset:{512*hf} sc1", f"g{k}") for tt in range(2) for hf in range(2)]
        def ap_issue(): a(f"buffer_load_dword {vEX}, {vF3}, {WS}, s77 offen sc1", "ap")
        def ap_check(mask):
            a.wait_vm("ap")
            a(f"v_subrev_u32 {vEX}, {sTAG}, {vEX}")
            a(f"v_cmp_le_u32 vcc, 16, {vEX}")
            a(f"s_and_b32 s64, vcc_lo, {mask}\ns_cmp_eq_u32 s64, 0")
            a.slow(lambda: self.poll2("s77", vF3, False, mask=mask))
        a.wait_lg()
        for u in range(9):
            self.gelu_pk([(ACC + 8 * u + 4 * tt, CSB + 4 * u, KB + 4 * tt) for tt in range(2)], TB)
            p = u >> 1
            for tt in range(2):
                dst = B(p, tt) + 2 * (u & 1) if u < 8 else S8 + 2 * tt
                b = ACC + 8 * u + 4 * tt
                for d in range(2): a(f"v_cvt_pk_bf16_f32 v{dst+d}, v{b+2*d}, v{b+2*d+1}")
            for tt in range(2):
                if u & 1: a(f"buffer_store_dwordx4 {vr(B(p,tt))}, {vL16 if tt == 0 else vH2}, {WS}, s71 offen offset:{1024*p} sc1", f"h3_{p>>1}")
                if u == 8: a(f"buffer_store_dwordx2 {vr(S8+2*tt,2)}, {vL8[tt]}, {WS}, s67 offen sc1", "h3_1")
            if u == 6: self.set_flag("s79", "both", "h3_0")
            if u == 7:
                self.ctr_issue(1, B(13, 0))
                for o in range(9):
                    if o == 0: a("s_mov_b32 s92, 256")
                    else: a(f"s_add_u32 s64, {sX}, {o}\ns_and_b32 s64, s64, 7\ns_lshl_b32 s{92+o}, s64, 5")
        self.stamp()
        self.ctr_check(1, B(13, 0), 17, tmp=B(13, 0))
        items = []; hi = {}; ha = {}; mid = {}
        def base1(reg, o): hi[len(items)] = (lambda: a(f"v_add_u32 {reg}, s{92+o}, {vA[0]}"))
        for o in range(9):
            reg = f"v{B(17,1)+(o&1)}"; base1(reg, o)
            for k in range(4): items.append(((reg, (1 + k) * SL), [(ACC + 8 * o + 4 * tt, B(k, tt), k == 0) for tt in range(2)], None))
        hook(ha, FL, lambda pool: (a(f"s_add_u32 s64, s79, 128"), self.set_flag("s64", "both", "h3_1", T0=B(17, 0))))
        mid[F0] = ap_issue
        hook(ha, FL - 1, lambda pool: ap_check(0x55))
        n = FL + 1
        for k in range(4, 10):
            for o_ in h3ops(k): mid[n] = (lambda o_=o_: a(*o_)); n += 1
        mid[FB] = ap_issue
        hook(ha, FB + 7, lambda pool: ap_check(0xff))
        n = FB + 8
        for k in range(10, 18):
            for o_ in h3ops(k): mid[n] = (lambda o_=o_: a(*o_)); n += 1
        hook(ha, 35, lambda pool: (self.signal(17), pool.extend([B(0, 0), B(0, 1)])))
        UB = [[f"v{B(2,0)+4*q+i}" for i in range(3)] for q in range(2)]
        C0 = B(3, 0); CT4 = B(1, 0); CT5 = B(1, 1)
        for o in range(9):
            reg = f"v{T0+2+(o&1)}"
            hi[len(items)] = (lambda reg=reg, o=o: a(f"v_add_u32 {reg}, s{92+o}, {vA[0]}\nv_add_u32 {reg}, {5*SL}, {reg}"))
            for k in range(4, KE): items.append(((reg, (k - 4) * SL), [(ACC + 8 * o + 4 * tt, B(k, tt), False) for tt in range(2)], f"g{k}" if o == 0 else None))
        n0 = len(items)
        hook(ha, n0 - 14, lambda pool: self.ctr_issue(1, CT4))
        hook(ha, n0 - 8, lambda pool: self.ctr_check(1, CT4, 18, tmp=CT4))
        for o in range(NSK):
            reg = f"v{T0+2+((o+1)&1)}"
            hi[len(items)] = (lambda reg=reg, o=o: a(f"v_add_u32 {reg}, s{92+o}, {vA[1]}"))
            for k in (7, 8, 9): items.append(((reg, (k + 1 - 6) * SL), [(ACC + 8 * o + 4 * tt, B(k, tt), False) for tt in range(2)], f"g{k}" if o == 0 else None))
        n1 = len(items)
        hook(ha, n1 - 8, lambda pool: self.ctr_issue(1, CT4))
        hook(ha, n1 - 2, lambda pool: self.ctr_check(1, CT4, 19, tmp=CT4))
        hook(ha, n1 - 1, lambda pool: self.ctr_issue(0, CT5))
        hook(ha, n1 + 5, lambda pool: (self.ctr_check(0, CT5, 17, tmp=CT5), a(f"s_lshl_b32 s64, {sW}, 11\nv_add_u32 {vEX}, s64, {vL16}\nv_xor_b32 v{C0+1}, 16, {vCTR}")))
        if self.stamps: hook(ha, n1 - 1, lambda pool: self.stamp())
        for o in range(9):
            acc = ACC + 8 * o
            ub = UB[o & 1]
            def setb(o=o, ub=ub):
                for i in range(3): a(f"v_add_u32 {ub[i]}, s{92+o}, {vA[i]}")
            hi[len(items)] = setb
            for k in range(10 if o < NSK else KE, 18):
                items.append((slot_addr(ub, 18 + k, 0), [(acc + 4 * tt, B(k, tt), False) for tt in range(2)], f"g{k}" if o == 0 else None))
            n = len(items) - (0 if o < 8 else 2)
            if o >= 3:
                mid[n - 3] = (lambda: a(f"ds_read_b32 v{C0}, v{C0+1}", "pc"))
                def chk(pool, o=o):
                    a.wait_lg("pc")
                    a(f"v_readfirstlane_b32 s64, v{C0}")
                    a(f"s_cmp_ge_u32 s64, {20+o-3}")
                    a.slow(lambda o=o: self.wait_ctr(1, 20 + o - 3, one=True, tmp=C0))
                hook(ha, n, chk)
            if o < 8:
                for tt in range(2): mid[n + 1 + tt] = (lambda o=o, acc=acc, tt=tt: a(f"ds_write_b128 {vEX}, {vr(acc+4*tt)} offset:{(2+o%3)*SL+1024*tt}", "ex"))
                mid[n + 3] = (lambda o=o: a(f"v_mov_b32 v0, {19+o}"))
                mid[n + 4] = (lambda: a(f"ds_write_b32 {vCTR}, v0", "sig"))
            else:
                def dump(pool, o=o, acc=acc):
                    for tt in range(2): a(f"ds_write_b128 {vEX}, {vr(acc+4*tt)} offset:{(2+o%3)*SL+1024*tt}", "ex")
                    self.signal(19 + o)
                hook(ha, len(items) - 1, dump)
        XRr = ACC + 32 - 4; G8 = ACC; SUM8 = B(10, 0); vT8 = f"v{B(11,0)}"; vO = f"v{B(11,0)+1}"; U = B(12, 0)
        g_issue, g_take = self.part_helpers(vT8, U)
        def early8(pool):
            Le = a.label("Ls_e8")
            a(f"s_lshr_b32 s64, {sX}, 1\ns_cmp_lg_u32 s64, {sW}\ns_cbranch_scc1 {Le}")
            a(f"s_lshl_b32 s64, {sM}, 2\ns_add_u32 s64, s64, {sJ}\ns_mul_i32 s64, s64, {9*32*1024}\ns_add_u32 s69, s64, {P_OFF+8*32768}\ns_add_u32 s69, s69, {sWK}")
            for i in range(8): g_issue(i, "s69", G8, "p8")
            a(f"s_mul_i32 s64, {sJ}, 9\ns_add_u32 s78, s64, 8\ns_lshl_b32 s64, {sM}, 3\ns_add_u32 s79, s64, {sX}")
            a(f"s_mul_i32 s64, s79, 9\ns_lshr_b32 s65, s78, 2\ns_add_u32 s64, s64, s65\ns_mul_i32 s64, s64, {XG}\ns_and_b32 s65, s78, 2\ns_lshl_b32 s65, s65, 9\ns_add_u32 s64, s64, s65\ns_and_b32 s65, s78, 1\ns_lshl_b32 s65, s65, 3\ns_add_u32 s64, s64, s65\ns_add_u32 s64, s64, {X1_OFF}")
            a(f"buffer_load_dwordx2 {vr(XRr+4,2)}, {vL16}, {WS}, s64 offen sc1", "xr")
            a(f"{Le}:")
        hook(ha, len(items) - 14, early8)
        if "g4" in self.exp:
            for i_ in (0, 12, FL - 1, FL, 35, 39, FB + 6, FB + 7, n0 - 9, n0 - 1, n1 - 3, n1 + 7, n1 + 15, n1 + 31, n1 + 53, n1 + 75): hook(ha, i_, lambda pool: self.stamp())
        stream(items, hi, ha, list(base_pool), mid)
        self.stamp()
        L8 = a.label("Lu8")
        a(f"s_lshr_b32 s64, {sX}, 1\ns_cmp_lg_u32 s64, {sW}\ns_cbranch_scc1 {L8}")
        self.part_consts(vT8)
        a(f"v_mul_u32_u24 {vO}, 1152, {vJ}\nv_lshl_add_u32 {vO}, {vG}, 3, {vO}")
        a(f"s_bitcmp1_b32 {sX}, 0\ns_cselect_b64 s[98:99], -1, 0")
        for e in range(4): a(f"v_mov_b32 v{SUM8+e}, 0")
        for i in range(8): g_take(i, "s69", G8, "p8", SUM8, half="s[98:99]")
        a.wait_vm("xr")
        self.finish_out(SUM8, XRr + 4, vO, "s79", "s78")
        a(f"{L8}:")

    def rot3(self, dst):
        self.a(f"s_lshl_b32 {dst}, {sJ}, 2\ns_and_b32 s64, {sJ}, 2\ns_add_u32 {dst}, {dst}, s64")

    def h_mlp(self):
        a = self.a
        t0, t1, t2 = f"v{T0}", f"v{T0+1}", f"v{T0+2}"
        vH2, vEX, vT8 = (f"v{T0+5+i}" for i in range(3))
        vH8 = f"v{T0+8}"
        if self.stop <= 2:
            self.epoch_advance(); return
        a(f"v_add_u32 {vH2}, 147456, {vL16}\nv_lshlrev_b32 {vH8}, 3, {vLANE}\nv_add_u32 {vH8}, 147456, {vH8}")
        a(f"s_mul_i32 s64, {sW}, {13*1024}\ns_add_u32 s64, s64, {EX1*SL}\nv_add_u32 {vEX}, s64, {vL16}\nv_mov_b32 {vT8}, {sTAG8}")
        self.h3_base("s71"); self.f3_base("s72")
        a(f"s_lshr_b32 s64, {sJ}, 1\ns_add_u32 s64, s64, 16\ns_lshl_b32 s64, s64, 10\ns_add_u32 s68, s64, s71\ns_and_b32 s64, {sJ}, 1\ns_lshl_b32 s64, s64, 9\ns_add_u32 s68, s68, s64")
        a(f"s_lshl_b32 s64, {sJ}, 12\ns_add_u32 s71, s71, s64\ns_lshl_b32 s64, {sJ}, 8\ns_add_u32 s72, s72, s64")
        V3 = [f"v{200+i}" for i in range(5)]; V4 = [f"v{205+i}" for i in range(5)]; V4s = [f"v{210+i}" for i in range(5)]
        sP = [f"s{92+i}" for i in range(5)]
        for i in range(5):
            a(f"s_add_u32 s64, {sW}, {4*i}\ns_sub_u32 s65, s64, 9\ns_min_u32 s64, s64, s65\ns_lshl_b32 {sP[i]}, s64, 10\ns_lshl_b32 s64, s64, 6")
            a(f"v_add_u32 {t0}, s64, {vLANE}\nv_mul_u32_u24 {t1}, 3641, {t0}\nv_lshrrev_b32 {t1}, 16, {t1}")
            a(f"v_mul_u32_u24 {t2}, 18, {t1}\nv_sub_u32 {t0}, {t0}, {t2}\nv_lshlrev_b32 {t0}, 4, {t0}")
            a(f"v_mul_u32_u24 {V3[i]}, 9216, {t1}\nv_add_u32 {V3[i]}, {V3[i]}, {t0}")
            a(f"v_mul_u32_u24 {V4[i]}, 1152, {t1}\nv_add_u32 {V4[i]}, {V4[i]}, {t0}")
            a(f"v_lshrrev_b32 {t1}, 4, {t1}\nv_mul_u32_u24 {t1}, {128*1152}, {t1}\nv_add_u32 {V4s[i]}, {V4[i]}, {t1}")
        thr = [None]
        def pair(f, srd, V, sA, sB, tag):
            rA, rB = (f % NSL) * SL, ((f + 1) % NSL) * SL
            L = a.label("Lx")
            a(f"s_cmp_ge_u32 {sW}, 2\ns_cbranch_scc1 {L}")
            a(f"s_add_u32 m0, {sP[4]}, {rB}")
            a(f"buffer_load_dwordx4 {V[4]}, {srd}, {sB} offen lds", "_untracked")
            a(f"{L}:")
            for i in range(4):
                if i < 2: a(f"s_add_u32 m0, {sP[i]}, {rA}"); so = sA
                elif i == 3: a(f"s_add_u32 m0, {sP[i]}, {rB}"); so = sB
                else:
                    a(f"s_mov_b32 s64, {rB}\ns_cmp_eq_u32 {sW}, 0\ns_cselect_b32 s64, {rA}, s64\ns_cselect_b32 s66, {sA}, {sB}\ns_add_u32 m0, {sP[i]}, s64"); so = "s66"
                a(f"buffer_load_dwordx4 {V[i]}, {srd}, {so} offen lds", tag)
                if thr[0] is not None:
                    a(f"s_waitcnt vmcnt({thr[0]})"); a.vm = a.vm[max(0, len(a.vm)-thr[0]):] if thr[0] else []
        k3 = 32 * 9216
        self.rot3("s69")
        a(f"s_mul_i32 s69, s69, {k3}\ns_lshl_b32 s64, {sX}, 2\ns_add_u32 s64, s64, {sJ}\ns_mul_i32 s70, s64, 288")
        def w3pair(s, tag):
            a(f"s_add_u32 s73, s69, s70\ns_add_u32 s74, s73, {k3}")
            pair(s, W3, V3, "s73", "s74", tag)
            a(f"s_add_u32 s69, s69, {2*k3}\ns_sub_u32 s65, s69, {18*k3}\ns_min_u32 s69, s69, s65")
        a(f"s_mul_i32 s64, {sX}, {576*1152}\ns_mul_i32 s65, {sJ}, 288\ns_add_u32 s101, s64, s65")
        for d in range(4): a(f"s_xor_b32 s64, {sJ}, {d}\ns_mul_i32 s64, s64, {144*1152}\ns_add_u32 s{97+d}, s64, s101")
        def w4src(k, dst):
            if k < 4: d, p = 0, k
            elif k < 16: d, p = 1 + (k - 4) % 3, (k - 4) // 3
            else:
                a(f"s_lshr_b32 s64, {sJ}, 1\ns_xor_b32 s64, s64, {k-16}\ns_mul_i32 s64, s64, {288*1152}\ns_add_u32 s64, s64, s101\ns_add_u32 {dst}, s64, {128*1152}")
                return
            a(f"s_add_u32 {dst}, s{97+d}, {32*p*1152}")
        def w4pair(k, tag):
            w4src(k, "s73"); w4src(k + 1, "s74")
            pair(18 + k, W4, V4 if k < 16 else V4s, "s73", "s74", tag)
        a(f"v_and_b32 {t0}, 3, {vLANE}\nv_lshlrev_b32 {t0}, 7, {t0}")
        self.stamp()
        Le = a.label("Learly"); Lj = a.label("Learly")
        a(f"s_cmp_lt_u32 {sR}, {NACT}\ns_cbranch_scc1 {Le}")
        self.wait_ctr(1, 7, sleep=2); self.wait_ctr(0, 6, sleep=2)
        for s in range(0, 16, 2): w3pair(s, "d0")
        self.dsignal(12)
        a(f"s_sub_u32 s64, {sR}, {NACT}\ns_lshl_b32 s64, s64, 2\ns_add_u32 s64, s64, {sW}\ns_mul_i32 s65, {sX}, 663552")
        if "pfearly" in self.exp: pass
        elif "pf128" in self.exp:
            a(f"v_lshlrev_b32 {t0}, 7, {vLANE}")
            for i in range(2):
                a(f"s_min_u32 s66, s64, 80\ns_lshl_b32 s66, s66, 13\ns_add_u32 s66, s66, s65")
                a(f"buffer_load_dword {DUMMY}, {t0}, {W4}, s66 offen", "_untracked")
                a(f"s_add_u32 s64, s64, 56")
        elif "pfx4" in self.exp:
            for i in range(12):
                a(f"s_min_u32 s66, s64, 647\ns_lshl_b32 s66, s66, 10\ns_add_u32 s66, s66, s65")
                a(f"buffer_load_dwordx4 {vr(252)}, {vL16}, {W4}, s66 offen {'nt' if 'pfnt' in self.exp else ''}", "_untracked")
                a(f"s_add_u32 s64, s64, 56")
        else:
            a(f"v_lshlrev_b32 {t0}, 6, {vLANE}")
            for i in range(3):
                a(f"s_min_u32 s66, s64, 161\ns_lshl_b32 s66, s66, 12\ns_add_u32 s66, s66, s65")
                a(f"buffer_load_dword {DUMMY}, {t0}, {W4}, s66 offen {'nt' if 'pfnt' in self.exp else ''}", "_untracked")
                a(f"s_add_u32 s64, s64, 56")
        a(f"s_branch {Lj}")
        a(f"{Le}:")
        a.vm = []
        self.wait_ctr(0, 3, sleep=2)
        thr[0] = THR
        for s in range(0, 8, 2): w3pair(s, "d0")
        a("s_waitcnt vmcnt(0)")
        self.signal(12)
        self.wait_ctr(0, 6, sleep=2)
        for s in (8, 10): w3pair(s, "d0")
        thr[0] = None
        a(f"{Lj}:")
        a("s_waitcnt vmcnt(0)"); a.vm = []
        self.signal(13)
        self.stamp()
        self.wait_ctr(0, 11, sleep=3)
        Le = a.label("Llate")
        a(f"s_cmp_ge_u32 {sR}, {NACT}\ns_cbranch_scc1 {Le}")
        for s in (12, 14): w3pair(s, "_untracked")
        a("s_waitcnt vmcnt(0)")
        a(f"s_branch {Le}b")
        a(f"{Le}:")
        a(f"{Le}b:")
        self.signal(14)
        self.stamp()
        self.load_stats(100, vT8)
        for tt in range(2): self.finish_stats([f"v{48+4*tt+i}" for i in range(4)], 100 + 6 * tt)
        a(f"s_lshl_b32 s64, {sW}, 9\ns_add_u32 s64, s64, {KC_OFF}\nv_lshl_add_u32 {t1}, {vJ}, 4, s64")
        for tt in range(2): a(f"ds_write_b128 {t1}, {vr(48+4*tt)} offset:{256*tt}", "kc")
        CP = 100
        a(f"s_lshl_b32 s64, {sW}, 6\nv_add_u32 {t1}, s64, {vLANE}\nv_min_u32 {t1}, 143, {t1}\nv_lshlrev_b32 v{CP+9}, 2, {t1}")
        L = a.label("Lcs")
        a(f"s_mov_b32 {sTO}, 0")
        a(f"{L}:")
        a(f"s_mul_i32 s64, {sX}, {9*2304}\ns_mul_i32 s65, {sJ}, 576\ns_add_u32 s64, s64, s65\ns_add_u32 s64, s64, {CSP_OFF}")
        for k in range(9):
            a(f"buffer_load_dword v{CP+k}, v{CP+9}, {WS}, s64 offen sc1", "cp")
            a(f"s_add_u32 s64, s64, 2304")
        a(f"s_add_u32 {sTO}, {sTO}, 1\ns_cmp_gt_u32 {sTO}, 100000\ns_cbranch_scc1 L_end")
        a.wait_vm()
        a(f"v_xor_b32 {t0}, v{CP}, {vT8}")
        for k in range(1, 9): a(f"v_bitop3_b32 {t0}, {t0}, v{CP+k}, {vT8} bitop3:0xf6")
        a(f"v_and_b32 {t0}, 0xff, {t0}\nv_cmp_ne_u32 vcc, 0, {t0}")
        a(f"s_cbranch_vccnz {L}")
        for k in range(1, 9): a(f"v_add_f32 v{CP}, v{CP}, v{CP+k}")
        a(f"v_add_u32 {t1}, {vSCR}, v{CP+9}")
        a(f"ds_write_b32 {t1}, v{CP} offset:{CS3_OFF}", "csw")
        self.wait_ctr(0, 12, sleep=3)
        w3pair(16, "e0")
        a.wait_vm("e0"); self.signal(15)
        self.wait_ctr(0, 14, sleep=3)
        thr[0] = T4
        for k in (0, 2, 4, 6): w4pair(k, "e1")
        self.dsignal(17)
        for k in (8, 10): w4pair(k, "e2")
        self.epoch_advance()
        self.stamp()
        self.wait_ctr(0, 15, sleep=3)
        thr[0] = 2
        for k in (12, 14): w4pair(k, "e3")
        thr[0] = None
        a.wait_vm(); self.signal(18)
        self.wait_ctr(0, 17, sleep=3)
        w4pair(16, "e3")
        a(f"s_lshl_b32 s64, {sM}, 2\ns_add_u32 s64, s64, {sJ}\ns_mul_i32 s64, s64, {9*32*1024}\ns_add_u32 s73, s64, {P_OFF}")
        a(f"s_lshl_b32 s64, {sW}, 11\nv_add_u32 {vEX}, s64, {vL16}")
        a(f"s_lshl_b32 s65, {sX}, 12\ns_add_u32 s74, {sWK}, s65\ns_add_u32 s74, s74, s73")
        self.part_consts(vT8)
        a("s_mov_b32 s75, 0x1fff\ns_mov_b32 s92, 0x03ffffff\ns_mov_b32 s93, 0x0c000000\ns_mov_b32 s94, 0x4b400000")
        a.wait_vm("e3"); self.signal(19)
        self.stamp()
        XRr = 100
        a(f"s_mul_i32 s64, {sJ}, 9\ns_add_u32 s76, s64, {sX}")
        a(f"s_lshl_b32 s64, {sM}, 3\ns_lshl_b32 s65, {sW}, 1\ns_add_u32 s77, s64, s65")
        a(f"s_mul_i32 s64, s77, 9\ns_lshr_b32 s65, s76, 2\ns_add_u32 s64, s64, s65\ns_mul_i32 s64, s64, {XG}\ns_and_b32 s65, s76, 2\ns_lshl_b32 s65, s65, 9\ns_add_u32 s64, s64, s65\ns_and_b32 s65, s76, 1\ns_lshl_b32 s65, s65, 3\ns_add_u32 s64, s64, s65\ns_add_u32 s64, s64, {X1_OFF}")
        a(f"v_add_u32 {t1}, {XT}, {vL16}")
        a(f"buffer_load_dwordx2 {vr(XRr,2)}, {vL16}, {WS}, s64 offen sc1", "xr")
        a(f"buffer_load_dwordx2 {vr(XRr+2,2)}, {t1}, {WS}, s64 offen sc1", "xr")
        vO = "v106"
        a(f"v_mul_u32_u24 {vO}, 1152, {vJ}\nv_lshl_add_u32 {vO}, {vG}, 3, {vO}")
        a(f"s_lshl_b32 s64, {sX}, 15\ns_add_u32 s68, s64, s73\ns_add_u32 s68, s68, {sWK}")
        a(f"s_add_u32 s69, s73, {8*32768}\ns_add_u32 s69, s69, {sWK}")
        DB = 108; GR = 128; G8 = 160; SUMR = 56; SUM8 = 64; PKD = 72; U = 80
        for e in range(16): a(f"v_mov_b32 v{SUMR+e}, 0")
        g_issue, g_take = self.part_helpers(vT8, U)
        if "ptouch" in self.exp:
            a(f"v_lshlrev_b32 {t1}, 6, {vJ}")
            a("s_mov_b64 exec, 0xffff")
            for o in range(4, 8):
                a(f"s_add_u32 s64, {sX}, {o}\ns_and_b32 s64, s64, 7\ns_lshl_b32 s64, s64, 15\ns_add_u32 s66, s64, s74")
                a(f"buffer_load_dword {DUMMY}, {t1}, {WS}, s66 offen sc1", "pt")
            a("s_mov_b64 exec, -1")
        for o in range(9):
            if o == HP: a("s_setprio 3")
            self.wait_ctr(0, 19 + o, one=True, sleep=1)
            d = DB + 8 * (o & 1)
            for tt in range(2): a(f"ds_read_b128 {vr(d+4*tt)}, {vEX} offset:{(2+o%3)*SL+1024*tt}", "dp")
            if o == 8: break
            if o == 0: a(f"s_add_u32 s66, s74, {8*32768}")
            else: a(f"s_add_u32 s64, {sX}, {o}\ns_and_b32 s64, s64, 7\ns_lshl_b32 s64, s64, 15\ns_add_u32 s66, s64, s74")
            a.wait_lg()
            self.signal(20 + o)
            p = PKD + 4 * (o & 1)
            a(f"v_max3_f32 {t0}, |v{d}|, |v{d+1}|, |v{d+2}|\nv_max3_f32 {t1}, |v{d+3}|, |v{d+4}|, |v{d+5}|")
            a(f"v_max3_f32 {t0}, {t0}, |v{d+6}|, |v{d+7}|\nv_max_f32 {t0}, {t0}, {t1}")
            a(f"v_and_b32 {t0}, 0x7f800000, {t0}\nv_max_u32 {t0}, {12<<23}, {t0}\nv_sub_u32 {t1}, {(264<<23)|0x7ff000}, {t0}")
            for e in range(8): a(f"v_fma_f32 v{d+e}, v{d+e}, {t1}, s94")
            for i in range(4):
                sh = 3 - 2 * i
                a(f"v_lshlrev_b32 v{d+2*i+1}, 13, v{d+2*i+1}\nv_bfi_b32 v{d+2*i}, s75, v{d+2*i}, v{d+2*i+1}")
                a((f"v_lshlrev_b32 {t2}, {sh}, {t0}" if sh > 0 else f"v_lshrrev_b32 {t2}, {-sh}, {t0}") + f"\nv_bfi_b32 {t2}, s93, {t2}, {vT8}")
                a(f"v_bfi_b32 v{p+i}, s92, v{d+2*i}, {t2}")
            a(f"buffer_store_dwordx4 {vr(p)}, {vL16}, {WS}, s66 offen sc1", "pst")
            if "glate" in self.exp:
                if o == 7:
                    self.stamp()
                    for i in (1, 2, 3): g_issue(i, "s68", GR, "pg")
                    for i in (1, 2): g_take(i, "s68", GR, "pg", SUMR)
                    g_issue(4, "s68", GR, "pg")
                    g_take(3, "s68", GR, "pg", SUMR)
                continue
            if o >= 4: g_issue(o - 3, "s68", GR, "pg")
            if o == 7:
                self.stamp()
                for i in (1, 2, 3): g_take(i, "s68", GR, "pg", SUMR)
                g_issue(5, "s68", GR, "pg")
                g_take(4, "s68", GR, "pg", SUMR)
                g_issue(6, "s68", GR, "pg")
        if "glate" in self.exp:
            g_issue(5, "s68", GR, "pg")
            a.wait_lg()
            for e in range(8): a(f"v_add_f32 v{SUMR+e}, v{SUMR+e}, v{DB+e}")
            g_take(4, "s68", GR, "pg", SUMR)
            g_issue(6, "s68", GR, "pg")
            g_take(5, "s68", GR, "pg", SUMR)
            g_issue(7, "s68", GR, "pg")
            for i in (6, 7): g_take(i, "s68", GR, "pg", SUMR)
        else:
            g_issue(7, "s68", GR, "pg")
            a.wait_lg()
            for e in range(8): a(f"v_add_f32 v{SUMR+e}, v{SUMR+e}, v{DB+e}")
            for i in (5, 6, 7): g_take(i, "s68", GR, "pg", SUMR)
        self.stamp()
        for tt in range(2):
            a(f"s_add_u32 s79, s77, {tt}")
            self.finish_out(SUMR + 4 * tt, XRr + 2 * tt, vO, "s79", "s76")

    def part_consts(self, vT8):
        a = self.a
        a(f"s_and_b32 s64, {sE}, 0xf0000000\nv_mov_b32 {vT8}, s64")
        a("s_mov_b32 s95, 0x01800000\ns_mov_b32 s96, 0x07800000\ns_mov_b32 s97, 0x1f800000")
    def part_helpers(self, vT8, U):
        a = self.a
        t0, t1 = f"v{T0}", f"v{T0+1}"
        def g_issue(i, base, R, tag):
            a(f"s_sub_u32 s64, {sX}, {i}\ns_and_b32 s64, s64, 7\ns_lshl_b32 s64, s64, 12\ns_add_u32 s64, s64, {base}")
            a(f"buffer_load_dwordx4 {vr(R+4*i)}, {vL16}, {WS}, s64 offen sc1", f"{tag}{i}")
        def g_take(i, base, R, tag, S, half=None):
            r = R + 4 * i
            a.wait_vm(f"{tag}{i}")
            def check():
                a(f"v_xor_b32 {t0}, v{r}, {vT8}")
                for e in range(1, 4): a(f"v_bitop3_b32 {t0}, {t0}, v{r+e}, {vT8} bitop3:0xf6")
                a(f"v_cmp_gt_u32 vcc, 0x10000000, {t0}")
                a("s_cmp_eq_u64 vcc, -1")
            check()
            def retry():
                L = a.label("Lg")
                a(f"s_mov_b32 {sTO}, 0")
                a(f"{L}:")
                a(f"s_add_u32 {sTO}, {sTO}, 1\ns_cmp_gt_u32 {sTO}, 100000\ns_cbranch_scc1 L_end")
                g_issue(i, base, R, tag)
                a.wait_vm()
                check()
                a(f"s_cbranch_scc0 {L}")
            a.slow(retry)
            a(f"v_lshrrev_b32 {t0}, 3, v{r}\nv_lshrrev_b32 {t1}, 1, v{r+1}\nv_bfi_b32 {t0}, s95, {t0}, {t1}")
            a(f"v_lshlrev_b32 {t1}, 1, v{r+2}\nv_bfi_b32 {t0}, s96, {t0}, {t1}\nv_lshlrev_b32 {t1}, 3, v{r+3}\nv_bfi_b32 {t0}, s97, {t0}, {t1}")
            a(f"v_and_b32 {t0}, 0x7f800000, {t0}\nv_add_u32 {t0}, {(0x800 - (11 << 23)) & 0xffffffff}, {t0}")
            n = 8
            if half:
                for e in range(2): a(f"v_cndmask_b32 v{r+e}, v{r+e}, v{r+2+e}, {half}")
                n = 4
            for e in range(n): a(f"v_bfe_i32 v{U+e}, v{r+(e>>1)}, {13*(e&1)}, 13")
            for e in range(n): a(f"v_cvt_f32_i32 v{U+e}, v{U+e}")
            for e in range(n): a(f"v_fma_f32 v{S+e}, v{U+e}, {t0}, v{S+e}")
        return g_issue, g_take
    def finish_out(self, S, XR, vO, sTile, sU):
        a = self.a
        t0, t1, t2, t3 = (f"v{T0+i}" for i in range(4))
        for d in range(2):
            a(f"v_cvt_pk_bf16_f32 {t0}, v{S+2*d}, v{S+2*d+1}")
            a(f"v_lshlrev_b32 {t1}, 16, {t0}\nv_and_b32 {t0}, 0xffff0000, {t0}")
            a(f"v_lshlrev_b32 {t2}, 16, v{XR+d}\nv_and_b32 {t3}, 0xffff0000, v{XR+d}")
            a(f"v_add_f32 {t1}, {t1}, {t2}\nv_add_f32 {t0}, {t0}, {t3}")
            a(f"v_cvt_pk_bf16_f32 v{S+d}, {t1}, {t0}")
        a(f"s_mul_i32 s64, {sTile}, 18432\ns_lshl_b32 s65, {sU}, 5\ns_add_u32 s64, s64, s65")
        a(f"buffer_store_dwordx2 {vr(S,2)}, {vO}, {OUT}, s64 offen", "out")
    def epoch_advance(self):
        a = self.a
        L = a.label("Lep"); L2 = a.label("Lep")
        a(f"s_cmp_lg_u32 s2, 255\ns_cbranch_scc1 {L}\ns_cmp_lg_u32 {sW}, 3\ns_cbranch_scc1 {L}")
        vm = list(a.vm)
        a(f"s_mov_b32 {sTO}, 0")
        a(f"{L2}:")
        a(f"v_lshlrev_b32 v247, 7, {vLANE}\ns_mov_b32 s64, {FS2_OFF}")
        for i in range(4):
            a(f"buffer_load_dword v{T0+i}, v247, {WS}, s64 offen sc1")
            a(f"s_add_u32 s64, s64, 8192")
        a(f"s_add_u32 {sTO}, {sTO}, 1\ns_cmp_gt_u32 {sTO}, 100000\ns_cbranch_scc1 L_end")
        a.wait_vm()
        a(f"v_xor_b32 v{T0}, {sTAG}, v{T0}\nv_xor_b32 v{T0+1}, {sTAG}, v{T0+1}\nv_xor_b32 v{T0+2}, {sTAG}, v{T0+2}\nv_xor_b32 v{T0+3}, {sTAG}, v{T0+3}")
        a(f"v_or3_b32 v{T0}, v{T0}, v{T0+1}, v{T0+2}\nv_or_b32 v{T0}, v{T0}, v{T0+3}\nv_cmp_ne_u32 vcc, 0, v{T0}")
        a(f"s_cbranch_vccnz {L2}")
        a(f"v_mov_b32 v{T0}, {sE}\nv_mov_b32 v{T0+1}, 0\ns_mov_b64 exec, 1")
        a(f"buffer_store_dword v{T0}, v{T0+1}, {WS}, 0 offen sc1", "_untracked")
        a("s_mov_b64 exec, -1")
        a(f"{L}:")
        a.vm = vm

    def wrap(self, body):
        hdr = open("standalone__mixer_s_mlp__sampling.s.ref").read().split("; Override")[0]
        s = hdr + "; @launch grid=(256,1,1) block=(512,1,1) lds=163840\n"
        s += '.amdgcn_target "amdgcn-amd-amdhsa--gfx950"\n.text\n'
        s += f".globl {KNAME}\n.p2align 8\n.type {KNAME},@function\n{KNAME}:\n"
        s += body
        s += f'.section .rodata,"a"\n.p2align 6\n.amdhsa_kernel {KNAME}\n'
        s += "  .amdhsa_next_free_vgpr 256\n  .amdhsa_next_free_sgpr 102\n  .amdhsa_accum_offset 256\n"
        s += "  .amdhsa_group_segment_fixed_size 0\n  .amdhsa_kernarg_size 64\n  .amdhsa_user_sgpr_count 2\n"
        s += "  .amdhsa_user_sgpr_kernarg_segment_ptr 1\n  .amdhsa_system_sgpr_workgroup_id_x 1\n"
        s += "  .amdhsa_float_denorm_mode_32 3\n.end_amdhsa_kernel\n"
        return s

if __name__ == "__main__":
    import argparse
    p = argparse.ArgumentParser()
    p.add_argument("-o", default="mk.s"); p.add_argument("--stop", type=int, default=99)
    p.add_argument("--stamps", action="store_true"); p.add_argument("--plain", action="store_true"); p.add_argument("--exp", default="")
    p.add_argument("--thr", type=int, default=1); p.add_argument("--fl", type=int, default=16); p.add_argument("--f0", type=int, default=6); p.add_argument("--hp", type=int, default=0); p.add_argument("--fb", type=int, default=44); p.add_argument("--nsk", type=int, default=4); p.add_argument("--hs", type=int, default=1); p.add_argument("--inf", type=int, default=2); p.add_argument("--w2g", type=int, default=99); p.add_argument("--t4", type=int, default=8)
    args = p.parse_args()
    THR = args.thr; FL = args.fl; F0 = args.f0; HP = args.hp; FB = args.fb; NSK = args.nsk; HS_ = args.hs; INF = args.inf; W2G = args.w2g; T4 = args.t4
    open(args.o, "w").write(Gen(args.stop, args.stamps, args.plain, args.exp).build())
```

```python
import sys
sys.path.insert(0, "dev")
from asmlib import Asm

KNAME = "standalone__mixer_s_mlp__sampling_kernel"
NB = 159
SCR = NB * 1024
CS3_OFF = 256
KC_OFF = 153 * 1024
NACT = 18
KE = 7
SL = 9216; NSL = 17
EX1 = 11
ROT3 = (0, 4, 10, 14)
T4 = 3; INF = 2; W2G = 4; HS_ = 1; NPRE = 16; F0 = 6; HP = 0; THR = 1; FL = 16; FB = 44; NSK = 4
FS2_OFF = 0x1000; ST_OFF = 0x10000; CSP_OFF = 0x28000
F1_OFF = 0x60000; F2_OFF = 0x80000; F3_OFF = 0xA0000
H_OFF = 0xE0000; X1_OFF = 0x200000; H3_OFF = 0x400000; P_OFF = 0xE00000; STAMP_OFF = 0x3000000
XG = 2304; XT = 9 * XG
FAR = 0x1800000
FRAGSZ = 0x120000
X, W1, W2, W3, W4, OUT, WS, DBG, HS = (f"s[{b}:{b+3}]" for b in (20, 24, 28, 32, 36, 40, 44, 48, 52))
sTAG, sW, sX, sR, sMT, sNT, sM, sJ = (f"s{i}" for i in range(56, 64))
sE = "s3"
sC = [f"s{84+i}" for i in range(5)]
sTAGX = "s80"; sTO = "s89"; sTAG8 = "s82"; sWV = "s81"; sWK = "s83"
vLANE, vG, vJ = "v1", "v2", "v3"
vLB = ["v4", "v5", "v6"]
vL16 = "v4"; vFLG = "v8"; vSTAMP = "v9"; vCTR = "v10"; vSCR = "v11"
T0 = 12
AF0 = 24; NAF = 6
ACC0 = 48
BF0 = 112
DUMMY = "v7"

def vr(b, n=4): return f"v[{b}:{b+n-1}]"
MFMA = "v_mfma_f32_16x16x32_bf16"

def kprime(k, j):
    if k >= 16: return 16 + ((k - 16) ^ (j >> 1))
    d, p = (k >> 2) ^ j, k & 3
    return p if d == 0 else 4 + 3 * p + (d - 1)

class Gen:
    def __init__(self, stop=99, stamps=False, local_plain=False, exp=""):
        self.exp = exp.split(",")
        self.psleep = 0
        for e in self.exp:
            if e.startswith("ps"): self.psleep = int(e[2:])
        self.ld_local = "nt" if "ldnt" in self.exp else ("" if "ldplain" in self.exp else "sc1")
        self.a = Asm(); self.stop = stop; self.stamps = stamps; self.nst = 0
        self.af = 0
        self.st_local = "" if local_plain else "sc1"
    def reset(self, nst=None):
        self.a.vm = []; self.a.lg = []
        if nst is not None: self.nst = nst
    def stamp(self):
        if not self.stamps: return
        a = self.a
        a.wait_lg()
        a(("s_memtime" if "cyc" in self.exp else "s_memrealtime") + " s[90:91]\ns_waitcnt lgkmcnt(0)")
        a(f"v_writelane_b32 {vSTAMP}, s90, {self.nst}")
        self.nst += 1
    def next_af(self):
        b = AF0 + 4 * (self.af % NAF); self.af += 1
        return b
    def lb(self, kb):
        off = kb * 1024
        return vLB[off >> 16], off & 0xffff
    def read_blk(self, n, tag, dst=None):
        b = self.next_af() if dst is None else dst
        v, off = self.lb(n % NB)
        self.a(f"ds_read_b128 {vr(b)}, {v} offset:{off}", tag)
        return b
    def read_tr(self, vbase, off, tag, dst=None):
        b = self.next_af() if dst is None else dst
        self.a(f"ds_read_b64_tr_b16 {vr(b,2)}, {vbase} offset:{off}", tag)
        self.a(f"ds_read_b64_tr_b16 {vr(b+2,2)}, {vbase} offset:{off+2048}", tag)
        return b
    def poll(self, soff, vflag, mask=None, sleep=None):
        a = self.a
        t = f"v{T0}"
        if sleep is None: sleep = self.psleep
        L = a.label("Lpoll"); L2 = a.label("Lpoll")
        a(f"s_mov_b32 {sTO}, 0\ns_branch {L2}")
        a(f"{L}:")
        if sleep: a(f"s_sleep {sleep}")
        a(f"{L2}:")
        a(f"buffer_load_dword {t}, {vflag}, {WS}, {soff} offen sc1")
        a(f"s_add_u32 {sTO}, {sTO}, 1\ns_cmp_gt_u32 {sTO}, 100000\ns_cbranch_scc1 L_end")
        a.wait_vm()
        a(f"v_cmp_ne_u32 vcc, {sTAG}, {t}")
        if mask is not None:
            a(f"s_and_b32 vcc_lo, vcc_lo, {mask}\ns_cbranch_scc1 {L}")
        else:
            a(f"s_cbranch_vccnz {L}")
    def poll_one(self, soff, vflag, val):
        a = self.a
        L = a.label("Lp1"); L2 = a.label("Lp1"); L3 = a.label("Lp1")
        vm = list(a.vm)
        a(f"s_cmp_lg_u32 {sW}, 0\ns_cbranch_scc1 {L}")
        self.poll(soff, vflag)
        a(f"v_mov_b32 v{T0}, {val}\ns_mov_b64 exec, 1")
        a(f"ds_write_b32 {vSCR}, v{T0} offset:32", "sig")
        a("s_mov_b64 exec, -1")
        a.wait_lg()
        a(f"s_branch {L3}")
        a(f"{L}:")
        a(f"s_mov_b32 {sTO}, 0")
        a(f"{L2}:")
        a(f"s_sleep 2\nds_read_b32 v{T0}, {vSCR} offset:32", "ctr")
        a(f"s_add_u32 {sTO}, {sTO}, 1\ns_cmp_gt_u32 {sTO}, 1000000\ns_cbranch_scc1 L_end")
        a.wait_lg()
        a(f"v_readfirstlane_b32 s64, v{T0}")
        a(f"s_cmp_lt_u32 s64, {val}\ns_cbranch_scc1 {L2}")
        a(f"{L3}:")
        a.vm = vm
    def set_flag(self, soff, mods, tags=None, T0=T0):
        a = self.a
        for i in range(4): a(f"v_mov_b32 v{T0+i}, {sTAG if mods == 'sc1' else sTAGX}")
        if mods in ("far", "both"): a(f"s_add_u32 s65, {soff}, {FAR}")
        a.wait_vm(tags)
        a("s_mov_b64 exec, 0xff")
        if mods == "sc1": a(f"buffer_store_dwordx4 {vr(T0)}, {vL16}, {WS}, {soff} offen sc1", "flag")
        if mods in ("near", "both") and not ("far" in self.exp and mods == "both"): a(f"buffer_store_dwordx4 {vr(T0)}, {vL16}, {WS}, {soff} offen", "flag")
        if mods in ("far", "both"): a(f"buffer_store_dwordx4 {vr(T0)}, {vL16}, {WS}, s65 offen sc1", "flag")
        a("s_mov_b64 exec, -1")
    def poll2(self, soff, vflag, same_die, mask=None, hook=None):
        a = self.a
        t = f"v{T0}"
        L = a.label("Lpoll"); L2 = a.label("Lpoll"); L3 = a.label("Lpoll")
        a(f"s_mov_b32 {sTO}, 0\ns_branch {L2}")
        a(f"{L}:")
        if self.psleep: a(f"s_sleep {self.psleep}")
        a(f"{L2}:")
        a(f"s_and_b32 s65, {sTO}, 7\ns_cmp_eq_u32 s65, 7\ns_cselect_b32 s67, {FAR}, 0\ns_add_u32 s65, {soff}, s67")
        a(f"buffer_load_dword {t}, {vflag}, {WS}, s65 offen sc1")
        a(f"s_add_u32 {sTO}, {sTO}, 1\ns_cmp_gt_u32 {sTO}, 100000\ns_cbranch_scc1 L_end")
        a.wait_vm()
        if hook:
            a(f"s_cmp_lg_u32 {sTO}, 5\ns_cbranch_scc1 {L3}")
            a(f"v_mov_b32 v0, {t}")
            hook()
            a(f"v_mov_b32 {t}, v0")
            a(f"{L3}:")
        if same_die: a(f"s_cmp_eq_u32 s67, 0\ns_cselect_b32 s65, {sTAGX}, {sTAG}\ns_cselect_b32 s66, 1, 16")
        else: a(f"s_mov_b32 s65, {sTAG}\ns_mov_b32 s66, 16")
        a(f"v_subrev_u32 {t}, s65, {t}")
        a(f"v_cmp_le_u32 vcc, s66, {t}")
        if mask is not None: a(f"s_and_b32 vcc_lo, vcc_lo, {mask}\ns_cbranch_scc1 {L}")
        else: a(f"s_cbranch_vccnz {L}")
        a.vm = ["flag"] if hook else []
    def signal(self, val):
        a = self.a
        a(f"v_mov_b32 v0, {val}")
        a(f"ds_write_b32 {vCTR}, v0", "sig")
    def dsignal(self, val, extra=0):
        a = self.a
        a(f"s_add_u32 m0, s50, {extra}\nv_mov_b32 v0, {4*val}\ns_mov_b64 exec, 1")
        a("global_load_lds_dword v0, s[48:49]", "dsig")
        a("s_mov_b64 exec, -1")
    def wait_ctr(self, grp, val, one=False, sleep=1, tmp=None):
        a = self.a
        L = a.label("Lw"); L2 = a.label("Lw")
        a(f"s_mov_b32 {sTO}, 0\ns_branch {L2}")
        a(f"{L}:")
        if sleep: a(f"s_sleep {sleep}")
        a(f"{L2}:")
        t = T0 if tmp is None else tmp
        if one:
            a(f"v_xor_b32 v{t+1}, {16 if one is True else one}, {vCTR}")
            a(f"ds_read_b32 v{t}, v{t+1}", "ctr")
        else:
            a(f"ds_read_b128 {vr(t)}, {vSCR} offset:{16*grp}", "ctr")
        a(f"s_add_u32 {sTO}, {sTO}, 1\ns_cmp_gt_u32 {sTO}, 1000000\ns_cbranch_scc1 L_end")
        a.wait_lg()
        if not one:
            a(f"v_min_u32 v{t}, v{t}, v{t+1}\nv_min3_u32 v{t}, v{t}, v{t+2}, v{t+3}")
        a(f"v_readfirstlane_b32 s64, v{t}")
        a(f"s_cmp_lt_u32 s64, {val}\ns_cbranch_scc1 {L}")
    def wait_word(self, off, val):
        a = self.a
        L = a.label("Lw")
        a(f"s_mov_b32 {sTO}, 0")
        a(f"{L}:")
        a(f"ds_read_b32 v{T0}, {vSCR} offset:{off}", "ctr")
        a(f"s_add_u32 {sTO}, {sTO}, 1\ns_cmp_gt_u32 {sTO}, 1000000\ns_cbranch_scc1 L_end")
        a.wait_lg()
        a(f"v_readfirstlane_b32 s64, v{T0}")
        a(f"s_cmp_lt_u32 s64, {val}\ns_cbranch_scc1 {L}")
    def xlane_sum(self, v, t):
        a = self.a
        a(f"v_mov_b32 {t}, {v}\nv_permlane16_swap_b32 {v}, {t}\nv_add_f32 {v}, {v}, {t}")
        a(f"v_mov_b32 {t}, {v}\nv_permlane32_swap_b32 {v}, {t}\nv_add_f32 {v}, {v}, {t}")
    def bf16r(self, v):
        self.a(f"v_cvt_pk_bf16_f32 {v}, {v}, {v}\nv_lshlrev_b32 {v}, 16, {v}")
    def ln_consts(self, vS, vQ, K, t):
        a = self.a
        vNM, vSD, vC1, vC2 = K
        a(f"v_mul_f32 {vS}, 0x3ae38e39, {vS}")
        a(f"v_mul_f32 {t}, {vS}, {vS}")
        a(f"v_mov_b32 {vC1}, 0x3ae38e39")
        a(f"v_fma_f32 {vQ}, {vQ}, {vC1}, -{t}")
        a(f"v_max_f32 {vQ}, 0, {vQ}")
        self.bf16r(vQ)
        a(f"v_add_f32 {vQ}, 0x3727c5ac, {vQ}")
        self.bf16r(vQ)
        a(f"v_sqrt_f32 {vSD}, {vQ}")
        self.bf16r(vSD)
        self.bf16r(vS)
        a(f"v_sub_f32 {vNM}, 0, {vS}")
        a(f"v_rcp_f32 {t}, {vSD}")
        a(f"v_mul_f32 {vC1}, 0xc0135761, {t}")
        a(f"v_mul_f32 {vC2}, {t}, {t}")
        a(f"v_mul_f32 {vC2}, {vC2}, {t}")
        a(f"v_mul_f32 {vC2}, 0xbdd2d3e8, {vC2}")
    def gelu_ops(self, acc, cs, K, t):
        vNM, vSD, vC1, vC2 = K
        return [f"v_fma_f32 {acc}, {cs}, {vNM}, {acc}",
                f"v_mul_f32 {t}, {acc}, {acc}",
                f"v_fma_f32 {t}, {t}, {vC2}, {vC1}",
                f"v_mul_f32 {t}, {t}, {acc}",
                f"v_exp_f32 {t}, {t}",
                f"v_fma_f32 {t}, {t}, {vSD}, {vSD}",
                f"v_rcp_f32 {t}, {t}",
                f"v_mul_f32 {acc}, {acc}, {t}"]
    def gelu4(self, acc0, cs0, K, t0):
        seqs = [self.gelu_ops(f"v{acc0+i}", f"v{cs0+i}", K, f"v{t0+i}") for i in range(4)]
        for k in range(8):
            for s in seqs: self.a(s[k])
    def gelu_pk(self, groups, t0):
        a = self.a
        P = [(acc + 2 * h, cs + 2 * h, K, t0 + 4 * g + 2 * h) for g, (acc, cs, K) in enumerate(groups) for h in range(2)]
        for x, c, K, t in P: a(f"v_pk_fma_f32 {vr(x,2)}, {vr(c,2)}, {vr(K,2)}, {vr(x,2)} op_sel_hi:[1,0,1]")
        for x, c, K, t in P: a(f"v_pk_mul_f32 {vr(t,2)}, {vr(x,2)}, {vr(x,2)}")
        for x, c, K, t in P: a(f"v_pk_fma_f32 {vr(t,2)}, {vr(t,2)}, {vr(K+2,2)}, {vr(K+2,2)} op_sel:[0,1,0] op_sel_hi:[1,1,0]")
        for x, c, K, t in P: a(f"v_pk_mul_f32 {vr(t,2)}, {vr(t,2)}, {vr(x,2)}")
        for x, c, K, t in P: a(f"v_exp_f32 v{t}, v{t}\nv_exp_f32 v{t+1}, v{t+1}")
        for x, c, K, t in P: a(f"v_pk_fma_f32 {vr(t,2)}, {vr(t,2)}, {vr(K,2)}, {vr(K,2)} op_sel:[0,1,1] op_sel_hi:[1,1,1]")
        for x, c, K, t in P: a(f"v_rcp_f32 v{t}, v{t}\nv_rcp_f32 v{t+1}, v{t+1}")
        for x, c, K, t in P: a(f"v_pk_mul_f32 {vr(x,2)}, {vr(x,2)}, {vr(t,2)}")
    def srd(self, name, ptr, nbytes):
        b = int(name[2:name.index(":")]); a = self.a
        a(f"s_mov_b32 s{b}, s{ptr}\ns_mov_b32 s{b+1}, s{ptr+1}\ns_mov_b32 s{b+2}, {nbytes}\ns_mov_b32 s{b+3}, 0x20000")
    def modn(self, s, n):
        self.a(f"s_sub_u32 s65, {s}, {n}\ns_min_u32 {s}, {s}, s65")
    def tr_bases(self, dst, base):
        a = self.a; t0, t1 = f"v{T0}", f"v{T0+1}"
        a(f"v_lshrrev_b32 {t0}, 2, {vLANE}")
        a(f"v_bfe_u32 {t1}, {vLANE}, 3, 2")
        a(f"v_lshlrev_b32 {t0}, 7, {t0}\nv_and_b32 {dst[0]}, 3, {vLANE}\nv_lshl_add_u32 {t0}, {dst[0]}, 3, {t0}")
        a(f"v_add_u32 {t0}, {base}, {t0}")
        for u in range(4):
            a(f"v_xor_b32 {dst[u]}, {u}, {t1}\nv_lshl_add_u32 {dst[u]}, {dst[u]}, 5, {t0}")
    def common_late(self, barrier=True):
        a = self.a
        for i in range(5): a(f"s_mov_b32 {sC[i]}, {4096*i}")
        self.srd(W2, 8, 663552)
        self.srd(OUT, 14, 1179648); self.srd(WS, 18, 0x10000000)
        a(f"s_add_u32 s52, s18, {H_OFF}\ns_addc_u32 s53, s19, 0\ns_mov_b32 s54, {FRAGSZ+FAR}\ns_mov_b32 s55, 0x20000")
        if "tlb" in self.exp:
            L = a.label("Ltlb")
            a(f"s_cmp_lg_u32 {sWV}, 2\ns_cbranch_scc1 {L}")
            a(f"v_mov_b32 v{T0}, 0\ns_mov_b64 exec, 1")
            def touch(srd, so): a(f"buffer_load_dword {DUMMY}, v{T0}, {srd}, {so} offen", "_untracked")
            a(f"s_mov_b32 s64, {ST_OFF}"); touch(WS, "s64")
            a(f"s_mov_b32 s64, {X1_OFF}"); touch(WS, "s64")
            touch(W2, 0)
            a(f"s_mul_i32 s64, {sM}, {8*147456}\ns_add_u32 s64, s64, {H3_OFF}"); touch(WS, "s64")
            a(f"s_add_u32 s64, s64, {8*147456-4}"); touch(WS, "s64")
            a(f"s_mul_i32 s64, {sR}, {9*32*1024}\ns_add_u32 s64, s64, {P_OFF}"); touch(WS, "s64")
            a(f"s_add_u32 s64, s64, {9*32*1024-4}"); touch(WS, "s64")
            for q in range(3):
                a(f"s_mov_b32 s64, {q*0x200000}"); touch(W3, "s64")
            a(f"s_mov_b32 s64, {5308416-4}"); touch(W3, "s64")
            a(f"s_mul_i32 s64, {sX}, 663552"); touch(W4, "s64")
            a(f"s_add_u32 s64, s64, {663552-4}"); touch(W4, "s64")
            touch(OUT, 0)
            a("s_mov_b64 exec, -1")
            a(f"{L}:")
        a(f"v_add_u32 {vLB[1]}, 0x10000, {vLB[0]}\nv_add_u32 {vLB[2]}, 0x20000, {vLB[0]}")
        a(f"v_min_u32 {vFLG}, 17, {vLANE}\nv_lshlrev_b32 {vFLG}, 7, {vFLG}")
        a.wait_lg()
        a("s_waitcnt lgkmcnt(0)")
        a(f"s_add_u32 {sE}, {sE}, 0x10000001\ns_and_b32 {sTAG8}, {sE}, 0xff\ns_mul_i32 {sTAG}, {sE}, 0x9e3779b1\ns_xor_b32 {sTAG}, {sTAG}, 0x5bd1e995")
        def fs(off):
            L = a.label("Lfs")
            a(f"s_cmp_lg_u32 {sWV}, 3\ns_cbranch_scc1 {L}")
            a(f"s_getreg_b32 s65, hwreg(HW_REG_XCC_ID)\ns_and_b32 s65, s65, 15\ns_add_u32 s65, s65, {sTAG}")
            a(f"s_lshl_b32 s64, {sX}, 5\ns_add_u32 s64, s64, {sR}\ns_lshl_b32 s64, s64, 7\ns_add_u32 s64, s64, {off}")
            a(f"v_mov_b32 v{T0}, {sTAG}\nv_mov_b32 v{T0+1}, s65\nv_mov_b32 v{T0+2}, {sTAG}\nv_mov_b32 v{T0+3}, s65\ns_mov_b64 exec, 0xff")
            a(f"buffer_store_dwordx4 {vr(T0)}, {vL16}, {WS}, s64 offen sc1", "_untracked")
            a("s_mov_b64 exec, -1")
            a(f"{L}:")
        self.fs = fs
        a(f"s_getreg_b32 s65, hwreg(HW_REG_XCC_ID)\ns_and_b32 s65, s65, 15\ns_add_u32 {sTAGX}, s65, {sTAG}")
        if "far" in self.exp: a(f"s_and_b32 s65, s2, 15\ns_add_u32 {sTAGX}, s65, {sTAG}")

    def build(self):
        a = self.a
        a("s_cmp_ge_u32 s2, 256\ns_cbranch_scc1 L_end")
        a("s_load_dwordx16 s[4:19], s[0:1], 0")
        if "dbg" in self.exp: a("s_memrealtime s[86:87]\ns_load_dwordx2 s[90:91], s[0:1], 48\ns_waitcnt lgkmcnt(0)\ns_mov_b32 s51, s86")
        a("s_getpc_b64 s[66:67]\nL_pc:")
        a(f"v_and_b32 {vLANE}, 63, v0\nv_lshrrev_b32 {vG}, 6, v0")
        a(f"s_and_b32 {sX}, s2, 7\ns_lshr_b32 {sR}, s2, 3")
        a(f"v_readfirstlane_b32 {sWV}, {vG}")
        a(f"s_lshl_b32 s64, {sR}, 11\nv_lshlrev_b32 v{T0}, 2, v0\nv_add_u32 v{T0}, s64, v{T0}")
        a(f"v_min_u32 v{T0}, L_code_end-L_pc-4, v{T0}")
        a(f"global_load_dword {DUMMY}, v{T0}, s[66:67]", "code")
        a(f"v_lshlrev_b32 {vL16}, 4, {vLANE}\nv_lshrrev_b32 {vG}, 4, {vLANE}\nv_and_b32 {vJ}, 15, {vLANE}")
        a(f"s_and_b32 {sW}, {sWV}, 3\ns_lshl_b32 {sWK}, {sW}, 10")
        a(f"v_mov_b32 {vSTAMP}, 0")
        a(f"s_add_u32 s48, s66, L_tab-L_pc\ns_addc_u32 s49, s67, 0\ns_lshl_b32 s50, {sWV}, 2\ns_add_u32 s50, s50, {SCR}")
        a(f"v_mov_b32 {vSCR}, {SCR}\nv_mov_b32 {vCTR}, s50\nds_write_b32 {vCTR}, {vSTAMP}\nds_write_b32 {vCTR}, {vSTAMP} offset:32")
        a.lg = []
        a(f"s_lshr_b32 {sM}, {sR}, 2\ns_and_b32 {sJ}, {sR}, 3")
        a(f"s_cmp_ge_u32 {sR}, 9\ns_cselect_b32 {sMT}, 1, 0\ns_mul_i32 s64, {sMT}, 9\ns_sub_u32 {sNT}, {sR}, s64")
        a(f"s_cmp_ge_u32 {sR}, {NACT}\ns_cbranch_scc1 L_repack")
        a(f"s_cmp_ge_u32 {sWV}, 4\ns_cbranch_scc1 L_h_act")
        self.c_phaseA()
        a("s_branch L_c_mlp")
        a("L_h_act:")
        self.reset(0); a.vm = ["code"]
        self.h_phaseA()
        a("s_branch L_h_mlp")
        a("L_repack:")
        self.reset(0); a.vm = ["code"]
        self.repack()
        a("L_split:")
        a(f"s_cmp_ge_u32 {sWV}, 4\ns_cbranch_scc1 L_h_mlp")
        a("L_c_mlp:")
        a("s_waitcnt lgkmcnt(0)")
        self.reset(24); a.vm = ["old"] * 4
        if self.stop > 2: self.c_mlp()
        a("s_branch L_fin")
        a("L_h_mlp:")
        a("s_waitcnt lgkmcnt(0)")
        self.reset(24); a.vm = ["old"] * 4
        self.h_mlp()
        a("L_fin:")
        self.reset(63)
        if "dbg" in self.exp:
            a("s_memrealtime s[64:65]\ns_waitcnt lgkmcnt(0)\ns_not_b32 s66, s51\nv_mov_b32 v12, s66\nv_mov_b32 v13, s64\nv_mov_b32 v14, 0\nv_mov_b32 v15, s51\ns_mov_b64 exec, 1")
            a("global_atomic_umax v14, v12, s[90:91]\nglobal_atomic_umax v14, v13, s[90:91] offset:4\nglobal_atomic_umax v14, v15, s[90:91] offset:8")
        if self.stamps:
            self.stamp()
            a(f"s_lshl_b32 s64, s2, 3\ns_add_u32 s64, s64, {sWV}\ns_lshl_b32 s64, s64, 8\ns_add_u32 s64, s64, {STAMP_OFF}")
            a(f"v_lshlrev_b32 v{T0}, 2, {vLANE}")
            a(f"buffer_store_dword {vSTAMP}, v{T0}, {WS}, s64 offen")
        a("L_end:\ns_endpgm")
        a.flush_deferred()
        a(".p2align 7\n.type L_tab,@object\nL_tab:")
        for i in range(0, 64, 8): a(".long " + ", ".join(str(i + k) for k in range(8)))
        a("L_code_end:")
        return self.wrap(a.text())

    def kernarg_wait(self):
        a = self.a
        a("s_waitcnt lgkmcnt(0)")
        a(f"s_load_dword {sE}, s[18:19], 0")
        a("s_barrier")

    STEPS = (((0,), (0, 1)), ((1,), (2, 3)), ((2, 3), (4, 5)), ((4, 5), (6, 7)), ((6, 7), (8, 9)), ((8,), (10, 11)), ((), (12, 13, 14)), ((), (15, 16, 17)))
    NEED = []
    for _xl, _kk in STEPS: NEED.append((NEED[-1] if NEED else 0) + 2 * len(_xl) + len(_kk))
    def ctr_issue(self, grp, dst):
        self.a(f"ds_read_b128 {vr(dst)}, {vSCR} offset:{16*grp}", f"ctrp{dst}")
    def ctr_check(self, grp, dst, val, tmp=None, sleep=1):
        a = self.a
        a.wait_lg(f"ctrp{dst}")
        a(f"v_min_u32 v{dst}, v{dst}, v{dst+1}\nv_min3_u32 v{dst}, v{dst}, v{dst+2}, v{dst+3}")
        a(f"v_readfirstlane_b32 s64, v{dst}")
        a(f"s_cmp_ge_u32 s64, {val}")
        a.slow(lambda: self.wait_ctr(grp, val, tmp=tmp, sleep=sleep))
    def c_phaseA(self):
        a = self.a
        def XF(t, s): return BF0 + 72 * t + 4 * s
        HF = BF0
        t0, t1, t2 = f"v{T0}", f"v{T0+1}", f"v{T0+2}"
        CT = T0 + 8
        ACC = ACC0; CS = ACC0 + 16; SUM = ACC0 + 24; GR = ACC0 + 28; OB = ACC0 + 32; XR = ACC0 + 36; KR = ACC0 + 44; PK = ACC0 + 16
        vXB = [[f"v{ACC0+52+2*t+q}" for q in range(2)] for t in range(2)]
        vT = [[f"v{ACC0+56+2*f+h}" for h in range(2)] for f in range(2)]
        vBP = [f"v{ACC0+60}", f"v{ACC0+61}"]
        vXR = [f"v{T0+4+i}" for i in range(4)]
        a(f"s_lshl_b32 s69, {sX}, 3\ns_lshl_b32 s64, {sMT}, 2\ns_add_u32 s69, s69, s64\ns_add_u32 s69, s69, {sW}")
        a(f"v_lshlrev_b32 {t0}, 6, {vLANE}")
        a(f"s_lshl_b32 s64, {sR}, 2\ns_add_u32 s64, s64, {sW}\ns_lshl_b32 s70, s64, 12\ns_add_u32 s70, s70, {3*32*1152}")
        self.kernarg_wait()
        self.srd(W1, 6, 663552)
        self.stamp()
        a(f"buffer_load_dword {DUMMY}, {t0}, {W1}, s70 offen", "pf")
        if "wstlb" in self.exp:
            a(f"v_mov_b32 {t1}, 256")
            a(f"global_load_dword {DUMMY}, {t1}, s[18:19]", "pf")
        self.srd(X, 4, 1179648); self.srd(W3, 10, 5308416); self.srd(W4, 12, 5308416)
        self.common_late()
        for i in range(4): a(f"v_mov_b32 v{OB+i}, 0x3f803f80")
        a(f"s_and_b32 s68, {sW}, 1\ns_lshr_b32 s67, {sW}, 1")
        a(f"v_lshlrev_b32 {t0}, 7, {vJ}\nv_lshrrev_b32 {t1}, 1, {vJ}")
        for t in range(2):
            a(f"s_xor_b32 s64, {sW}, {t}\ns_lshl_b32 s64, s64, 11\ns_add_u32 s64, s64, {72*1024}")
            for par in range(2):
                a(f"v_add_u32 {t2}, {4*par}, {vG}\nv_xor_b32 {t2}, {t2}, {t1}\nv_lshl_add_u32 {t2}, {t2}, 4, {t0}\nv_add_u32 {vXB[t][par]}, s64, {t2}")
        a(f"v_lshrrev_b32 {t0}, 2, {vLANE}\nv_lshlrev_b32 {t0}, 7, {t0}\nv_and_b32 {t1}, 3, {vLANE}\nv_lshl_add_u32 {t0}, {t1}, 3, {t0}\nv_bfe_u32 {t1}, {vLANE}, 3, 2")
        for f in range(2):
            a(f"s_xor_b32 s64, s67, {f}\ns_lshl_b32 s65, s68, 1\ns_add_u32 s64, s64, s65")
            a(f"v_xor_b32 {t2}, s64, {t1}\nv_lshl_add_u32 {vT[f][0]}, {t2}, 5, {t0}\nv_add_u32 {vT[f][1]}, {9*4096}, {vT[f][0]}")
        a(f"s_lshl_b32 s64, {sW}, 11\ns_lshl_b32 s65, {sNT}, 13\ns_add_u32 s64, s64, s65\ns_add_u32 s64, s64, {72*1024}")
        a(f"v_lshlrev_b32 {t0}, 7, {vJ}\nv_add_u32 {t0}, s64, {t0}\nv_and_b32 {t1}, 1, {vG}\nv_lshl_add_u32 {t0}, {t1}, 3, {t0}")
        a(f"v_lshrrev_b32 {t1}, 1, {vJ}\nv_lshrrev_b32 {t2}, 1, {vG}\nv_xor_b32 {t1}, {t1}, {t2}")
        for u in range(4): a(f"v_xor_b32 {t2}, {2*u}, {t1}\nv_lshl_add_u32 {vXR[u]}, {t2}, 4, {t0}")
        a(f"s_mul_i32 s64, s69, 18\ns_lshl_b32 s65, {sNT}, 1\ns_add_u32 s64, s64, s65\ns_lshl_b32 s77, s64, 10")
        a(f"s_lshl_b32 s64, s68, 10\ns_add_u32 s72, s77, s64")
        a(f"s_mul_i32 s64, s68, {2*18432}\ns_sub_u32 s73, s72, s64\ns_add_u32 s73, s73, 18432")
        a(f"s_lshr_b32 s64, s69, 1\ns_lshl_b32 s76, s64, 12")
        a(f"s_mul_i32 s64, s68, 9\ns_add_u32 s64, s64, {sNT}\ns_lshl_b32 s64, s64, 7\ns_add_u32 s75, s64, s76")
        a(f"s_lshl_b32 s64, {sNT}, 1\ns_add_u32 s64, s64, s68\ns_lshl_b32 s64, s64, 7\ns_add_u32 s71, s64, s76\ns_add_u32 s71, s71, {F1_OFF}")
        a(f"s_mul_i32 s74, s69, 18432")
        MS = [[f"s[{92+4*u+2*t}:{93+4*u+2*t}]" for t in range(2)] for u in range(2)]
        MO = [["s[100:101]", "s[78:79]"], ["s[0:1]", "vcc"]]
        for u in range(2):
            a(f"s_lshl_b32 s64, {sNT}, 2\ns_lshl_b32 s65, s68, 1\ns_add_u32 s64, s64, s65\ns_add_u32 s64, s64, {u}\ns_mul_i32 s64, s64, 7282\ns_lshr_b32 s64, s64, 16")
            a(f"s_lshr_b32 s65, s64, 1\ns_add_u32 s65, s65, 1\ns_sub_u32 s66, 0, s65\ns_bitcmp1_b32 s64, 0\ns_cselect_b32 s65, s66, s65")
            a(f"v_subrev_u32 {t0}, s65, {vJ}")
            a(f"v_and_b32 {t1}, 15, {t0}\nv_lshl_add_u32 {t1}, {vG}, 4, {t1}\nv_lshlrev_b32 {vBP[u]}, 2, {t1}")
            a(f"v_cmp_gt_u32 {MS[u][0]}, 16, {t0}")
            for t in range(2):
                a(f"s_xor_b32 s64, s68, {t}\ns_lshl_b32 s64, s64, 4\nv_add_u32 {t1}, s64, {t0}")
                dst = MS[u][1] if t == 0 else ("s[100:101]" if u == 0 else "s[78:79]")
                a(f"v_cmp_gt_u32 {dst}, 32, {t1}")
        VAL = [[MS[0][1], "s[100:101]"], [MS[1][1], "s[78:79]"]]
        def xread(t, k):
            off = 8192 * (k >> 1)
            if off < 65536: a(f"ds_read_b128 {vr(XF(t,k))}, {vXB[t][k&1]} offset:{off}", f"x{t}_{k}")
            else:
                a(f"v_add_u32 v0, {off}, {vXB[t][k&1]}")
                a(f"ds_read_b128 {vr(XF(t,k))}, v0", f"x{t}_{k}")
        order = [(s, f) for s in range(18) for f in range(2)]
        step_of = {s: i for i, (xl, kk) in enumerate(self.STEPS) for s in kk}
        first_n = {i: 2 * kk[0] for i, (xl, kk) in enumerate(self.STEPS)}
        fr = {}; st = {"done": -1, "nxt": 0}
        xq = []; statq = []
        LOOK = 5
        def xr():
            t, k = xq.pop(0); xread(t, k)
            if t == 0: statq.append(k)
        def half(h):
            n = st["nxt"]; s, f = order[n]
            if h == 0:
                i = step_of[s]
                if i > st["done"]:
                    if i == 0: self.wait_ctr(3, self.NEED[0], sleep=0, tmp=CT); self.stamp()
                    else: self.ctr_check(3, CT, self.NEED[i], tmp=CT, sleep=0)
                    st["done"] = i
                    xq.extend((t, 2 * L + q) for L in self.STEPS[i][0] for q in range(2) for t in range(2))
                while xq and xq[0][1] <= s: xr()
                fr[n] = self.next_af()
            a(f"ds_read_b64_tr_b16 {vr(fr[n]+2*h,2)}, {vT[f][0 if s < 9 else 1]} offset:{(s%9)*4096+2048*h}", f"f{n}")
            if h == 1:
                st["nxt"] += 1
                i = step_of[s]
                if i + 1 < len(self.STEPS) and n == first_n[i + 1] - 2: self.ctr_issue(3, CT)
        for n in range(4): half(0); half(1)
        vS, vQ = f"v{SUM}", f"v{GR}"
        q = Asm(); self.a = q
        q(f"v_and_b32 {t0}, 3, {vJ}")
        for r in range(1, 4):
            q(f"v_cmp_eq_u32 vcc, {r}, {t0}")
            q(f"v_cndmask_b32 {vQ}, {vQ}, v{GR+r}, vcc")
        q(f"v_lshrrev_b32 {t0}, 2, {vJ}\nv_cmp_eq_u32 vcc, {t0}, {vG}")
        q(f"v_cndmask_b32 {vQ}, 0, {vQ}, vcc")
        self.xlane_sum(vQ, t0)
        self.ln_consts(vS, vQ, [f"v{KR+i}" for i in range(4)], t0)
        q(f"s_lshl_b32 s65, {sW}, 8\ns_add_u32 s65, s65, {KC_OFF}\nv_lshl_add_u32 {vXR[0]}, {vJ}, 4, s65\nv_xor_b32 {vXR[1]}, 256, {vXR[0]}")
        q(f"s_lshl_b32 s65, {sW}, 6\nv_lshl_add_u32 {vXR[2]}, {vG}, 4, {vSCR}\nv_add_u32 {vXR[2]}, s65, {vXR[2]}\nv_xor_b32 {vXR[3]}, 128, {vXR[2]}")
        self.a = a
        fill = [i.text for i in q.ins]
        nstat = 0; ready = None
        def slot():
            if xq:
                xr()
                if xq: xr()
            elif ready is not None and fill: a(fill.pop(0), "kw")
        for n, (s, f) in enumerate(order):
            a.wait_lg([f"f{n}", f"x0_{s}", f"x1_{s}"])
            go = st["nxt"] < len(order)
            for t in range(2):
                a(f"{MFMA} {vr(ACC+8*f+4*t)}, {vr(fr[n])}, {vr(XF(t,s))}, {'0' if s == 0 else vr(ACC+8*f+4*t)}")
                if go: half(t)
                else: slot()
                if t == 0: slot()
            if f == 0:
                a(f"{MFMA} {vr(CS)}, {vr(fr[n])}, {vr(OB)}, {'0' if s == 0 else vr(CS)}")
                slot()
            for _ in range(2):
                if len(statq) > (1 if xq else 0):
                    k = statq.pop(0)
                    a.wait_lg(f"x0_{k}")
                    a(f"{MFMA} {vr(SUM)}, {vr(OB)}, {vr(XF(0,k))}, {'0' if k == 0 else vr(SUM)}")
                    slot(); slot()
                    a(f"{MFMA} {vr(GR)}, {vr(XF(0,k))}, {vr(XF(0,k))}, {'0' if k == 0 else vr(GR)}")
                    slot()
                    nstat += 1
            if st["done"] >= 5 and not xq and "xr" not in st:
                for uu in range(4): a(f"ds_read_b64 {vr(XR+2*uu,2)}, {vXR[uu]}", "xr")
                st["xr"] = n
            if "xr" in st and n == st["xr"] + 1:
                a.wait_lg("xr")
                if "w2late" not in self.exp: self.dsignal(1)
            if nstat == 18 and ready is None:
                ready = n
                self.stamp()
        while fill: a(fill.pop(0), "kw")
        a(f"ds_write_b128 {vXR[0]}, {vr(KR)}", "csw")
        a(f"ds_write_b128 {vXR[2]}, {vr(CS)} offset:{CS3_OFF}", "csw")
        if "w2late" not in self.exp: a.wait_vm("dsig")
        self.signal(2)
        self.stamp()
        TB = XF(0, 0)
        self.gelu_pk([(ACC, CS, KR)], TB)
        self.wait_ctr(0, 2, sleep=0)
        a(f"ds_read_b128 {vr(KR+4)}, {vXR[1]}", "rk")
        a(f"ds_read_b128 {vr(CS+4)}, {vXR[3]} offset:{CS3_OFF}", "rk")
        a.wait_lg()
        self.gelu_pk([(ACC + 4, CS, KR + 4), (ACC + 8, CS + 4, KR), (ACC + 12, CS + 4, KR + 4)], TB)
        P = TB + 20; R = TB + 28; O = KR
        for f in range(2):
            for t in range(2):
                for d in range(2): a(f"v_cvt_pk_bf16_f32 v{P+4*f+2*t+d}, v{ACC+8*f+4*t+2*d}, v{ACC+8*f+4*t+2*d+1}")
        L = a.label("Lsw")
        a(f"s_cmp_eq_u32 s67, 0\ns_cbranch_scc1 {L}")
        for e in range(4): a(f"v_swap_b32 v{P+e}, v{P+4+e}")
        a(f"{L}:")
        for u in range(2):
            for e in range(4): a(f"ds_bpermute_b32 v{R+4*u+e}, {vBP[u]}, v{P+4*u+e}", "bp")
        self.signal(3)
        a.wait_lg()
        for t in range(2):
            for u in range(2):
                for d in range(2):
                    o = O + 4 * t + 2 * u + d
                    a(f"v_cndmask_b32 v{o}, v{R+4*u+2*(1-t)+d}, v{R+4*u+2*t+d}, {MS[u][0]}")
                    a(f"v_cndmask_b32 v{o}, 0, v{o}, {VAL[u][t]}")
            a(f"buffer_store_dwordx4 {vr(O+4*t)}, {vL16}, {HS}, {'s72' if t == 0 else 's73'} offen", "hst")
        self.stamp()
        vT2 = [[f"v{ACC0+52+2*u+h}" for h in range(2)] for u in range(4)]; vSH = f"v{ACC0+60}"
        a(f"v_lshrrev_b32 {t0}, 2, {vLANE}\nv_lshlrev_b32 {t0}, 7, {t0}\nv_and_b32 {t1}, 3, {vLANE}\nv_lshl_add_u32 {t0}, {t1}, 3, {t0}\nv_bfe_u32 {t1}, {vLANE}, 3, 2\nv_add_u32 {t0}, {72*1024}, {t0}")
        for u in range(4): a(f"v_xor_b32 {t2}, {u}, {t1}\nv_lshl_add_u32 {vT2[u][0]}, {t2}, 5, {t0}\nv_add_u32 {vT2[u][1]}, {9*4096}, {vT2[u][0]}")
        a(f"v_add_u32 {vSH}, s74, {vL16}")
        self.ctr_issue(1, CT)
        self.set_flag("s71", "near")
        a(f"s_add_u32 s72, s72, {FAR}\ns_add_u32 s73, s73, {FAR}")
        a("s_mov_b32 s70, 0")
        def far_st(tag):
            for t in range(2): a(f"buffer_store_dwordx4 {vr(O+4*t)}, {vL16}, {HS}, {'s72' if t == 0 else 's73'} offen sc1", tag)
        def far_copy():
            far_st("hfar")
            self.set_flag("s71", "far")
            a("s_mov_b32 s70, 1")
        self.stamp()
        order = [(s, u) for s in range(18) for u in range(4)]
        pool = [BF0 + 72 + 4 * i for i in range(18)] + [AF0 + 4 * i for i in range(6)]
        fr = {}; nx = [0]
        def rd2():
            n = nx[0]; s, u = order[n]
            fr[n] = self.read_tr(vT2[u][0 if s < 9 else 1], (s % 9) * 4096, f"f{n}", dst=pool.pop(0)); nx[0] += 1
        self.ctr_check(1, CT, 7, tmp=CT, sleep=0)
        while pool: rd2()
        a(f"s_add_u32 s64, s76, {F1_OFF}")
        self.poll2("s64", vFLG, True, hook=far_copy)
        a(f"v_add_u32 {vSH}, s67, {vSH}")
        self.stamp()
        for s in range(18):
            a(f"buffer_load_dwordx4 {vr(HF+4*s)}, {vSH}, {HS}, {sC[s>>2]} offen offset:{(s&3)*1024} sc1", f"h{s}")
        self.signal(4)
        self.stamp()
        for n, (s, u) in enumerate(order):
            if u == 0: a.wait_vm(f"h{s}")
            a.wait_lg(f"f{n}")
            a(f"{MFMA} {vr(ACC+4*u)}, {vr(fr[n])}, {vr(HF+4*s)}, {'0' if s == 0 else vr(ACC+4*u)}")
            pool.append(fr[n])
            if nx[0] < len(order): rd2()
        self.signal(5)
        self.stamp()
        vS, vQ = f"v{SUM}", f"v{SUM+1}"
        a(f"v_mov_b32 {vS}, 0\nv_mov_b32 {vQ}, 0")
        a(f"s_mul_i32 s64, s69, 9\ns_add_u32 s64, s64, {sNT}\ns_mul_i32 s64, s64, {XG}\ns_add_u32 s64, s64, {X1_OFF}")
        for d in range(8):
            t3 = f"v{T0+3}"
            a(f"v_cvt_pk_bf16_f32 {t0}, v{ACC+2*d}, v{ACC+2*d+1}")
            a(f"v_lshlrev_b32 {t1}, 16, {t0}\nv_and_b32 {t0}, 0xffff0000, {t0}")
            a(f"v_lshlrev_b32 {t2}, 16, v{XR+d}\nv_and_b32 {t3}, 0xffff0000, v{XR+d}")
            a(f"v_add_f32 {t1}, {t1}, {t2}\nv_add_f32 {t0}, {t0}, {t3}")
            a(f"v_cvt_pk_bf16_f32 v{PK+d}, {t1}, {t0}")
            if d & 3 == 3: a(f"buffer_store_dwordx4 {vr(PK+d-3)}, {vL16}, {WS}, s64 offen offset:{1024*(d>>2)} sc1", "x1st")
        a(f"v_bitop3_b32 v{T0+4}, v{PK}, v{PK+1}, {sTAG} bitop3:0x96")
        for h in range(1, 4): a(f"v_bitop3_b32 v{T0+4}, v{T0+4}, v{PK+2*h}, v{PK+2*h+1} bitop3:0x96")
        a(f"v_lshlrev_b32 {t0}, 2, {vLANE}")
        a(f"buffer_store_dword v{T0+4}, {t0}, {WS}, s64 offen offset:2048 sc1", "x1st")
        for d in range(8):
            a(f"v_dot2_f32_bf16 {vS}, v{PK+d}, v{OB}, {vS}")
            a(f"v_dot2_f32_bf16 {vQ}, v{PK+d}, v{PK+d}, {vQ}")
        self.xlane_sum(vS, t0); self.xlane_sum(vQ, t0)
        a(f"s_lshr_b32 s64, s69, 1\ns_mul_i32 s64, s64, 12\ns_add_u32 s64, s64, {sNT}\ns_lshl_b32 s64, s64, 8")
        a(f"s_and_b32 s65, s69, 1\ns_lshl_b32 s65, s65, 7\ns_add_u32 s64, s64, s65\ns_add_u32 s64, s64, {ST_OFF}")
        a(f"v_lshlrev_b32 {t0}, 3, {vJ}\nv_mov_b32 {t1}, {sTAG8}\ns_mov_b32 s65, 0xff")
        a(f"v_bfi_b32 {vS}, s65, {t1}, {vS}\nv_bfi_b32 {vQ}, s65, {t1}, {vQ}")
        a("s_mov_b64 exec, 0xffff")
        a(f"buffer_store_dwordx2 {vr(SUM,2)}, {t0}, {WS}, s64 offen sc1", "x1st")
        a("s_mov_b64 exec, -1")
        self.signal(6)
        self.stamp()
        far_st("hfar")
        a("s_mov_b32 s101, s71")

    def h_phaseA(self):
        a = self.a
        vD1, vD2, vDX, vDX2 = "v48", "v49", "v50", "v51"
        vXB = [f"v{52+e}" for e in range(4)]; OB = 56; SUM = 60; GR = 64; KR = 68; XH = 112
        t0, t1, t2 = f"v{T0}", f"v{T0+1}", f"v{T0+2}"
        ks = 32 * 1152
        a(f"s_lshl_b32 s69, {sX}, 3\ns_lshl_b32 s64, {sMT}, 2\ns_add_u32 s69, s69, s64\ns_add_u32 s69, s69, {sW}\ns_mul_i32 s71, s69, 18432")
        a(f"v_lshrrev_b32 {t0}, 3, {vLANE}\nv_lshrrev_b32 {t1}, 4, {vLANE}\nv_and_b32 {t2}, 7, {vLANE}\nv_xor_b32 {t1}, {t1}, {t2}")
        a(f"v_mul_u32_u24 {vDX}, 1152, {t0}\nv_lshl_add_u32 {vDX}, {t1}, 4, {vDX}")
        a(f"v_xor_b32 {vDX2}, 64, {vDX}\nv_add_u32 {vDX2}, {8*1152}, {vDX2}")
        a(f"s_lshl_b32 s64, {sW}, 3\nv_add_u32 {t0}, s64, {t0}")
        a(f"v_and_b32 {t1}, 6, {t0}\nv_xor_b32 {t1}, {t1}, {t2}\nv_lshlrev_b32 {t1}, 4, {t1}")
        a(f"v_mul_u32_u24 {vD2}, 1152, {t0}\nv_add_u32 {vD2}, {vD2}, {t1}")
        a(f"v_and_b32 {t2}, 12, {t0}\nv_lshlrev_b32 {t2}, 1, {t2}\nv_and_b32 {vD1}, 3, {t0}\nv_add_u32 {t2}, {t2}, {vD1}")
        a(f"v_lshrrev_b32 {t0}, 4, {t0}\nv_lshl_add_u32 {t0}, {t0}, 2, {t2}")
        a(f"v_mul_u32_u24 {vD1}, 1152, {t0}\nv_add_u32 {vD1}, {vD1}, {t1}")
        a(f"s_lshl_b32 s79, {sNT}, 7\ns_mov_b32 s70, s79\ns_lshl_b32 s72, {sW}, 11\ns_add_u32 s72, s72, {72*1024}")
        self.kernarg_wait()
        self.srd(X, 4, 1179648); self.srd(W1, 6, 663552)
        self.stamp()
        n = 0
        vPG = "v52"
        def after():
            nonlocal n
            n += 1
            if n == 8:
                self.srd(W3, 10, 5308416); self.srd(W4, 12, 5308416)
                self.common_late()
                self.stamp()
            if n in self.NEED: self.dsignal(n, 32)
        for i, (xl, kk) in enumerate(self.STEPS):
            for L in xl:
                a(f"s_add_u32 m0, s72, {8192*L}")
                a(f"buffer_load_dwordx4 {vDX}, {X}, s71 offen lds", "ld"); after()
                a(f"s_add_u32 m0, s72, {8192*L+1024}")
                a(f"buffer_load_dwordx4 {vDX2}, {X}, s71 offen lds", "ld"); after()
                a(f"s_add_u32 s71, s71, 128")
            for s in kk:
                a(f"s_add_u32 m0, {sWK}, {4096*s}")
                a(f"buffer_load_dwordx4 {vD1}, {W1}, s70 offen lds", "ld"); after()
                a(f"s_add_u32 s70, s70, {ks}")
        if "w2own" in self.exp:
            a(f"s_lshl_b32 s64, {sR}, 2\ns_add_u32 s64, s64, {sW}\ns_mul_i32 s64, s64, 9216\nv_lshlrev_b32 {t0}, 7, {vLANE}\nv_and_b32 {t1}, 1023, {t0}")
            a(f"buffer_load_dword {DUMMY}, {t0}, {W2}, s64 offen", "pf")
            a(f"s_add_u32 s64, s64, 8192")
            a(f"buffer_load_dword {DUMMY}, {t1}, {W2}, s64 offen", "pf")
        self.stamp()
        self.wait_ctr(0, 3 if "w2late" in self.exp else 1, sleep=1)
        a(f"s_mov_b32 s70, s79")
        for s in range(18):
            a(f"s_add_u32 m0, {sWK}, {72*1024+4096*s}")
            a(f"buffer_load_dwordx4 {vD2}, {W2}, s70 offen lds", "w2")
            a(f"s_add_u32 s70, s70, {ks}")
            if s % W2G == W2G - 1: a(f"s_waitcnt vmcnt({INF})")
        self.dsignal(7)
        self.stamp()

    def repack(self):
        a = self.a
        a(f"s_sub_u32 s67, {sR}, {NACT}\ns_lshl_b32 s68, s67, 3\ns_add_u32 s68, s68, {sWV}")
        a(f"s_lshl_b32 s69, {sWV}, 13")
        vR, vCK = "v48", "v49"
        a(f"v_lshrrev_b32 {vR}, 3, {vLANE}")
        a(f"v_and_b32 v{T0}, 6, {vR}\nv_and_b32 {vCK}, 7, {vLANE}\nv_xor_b32 {vCK}, {vCK}, v{T0}\nv_lshlrev_b32 {vCK}, 4, {vCK}")
        a(f"s_lshl_b32 s70, s68, 10\ns_and_b32 s71, s70, 0x7fff\ns_add_u32 s71, s71, {112*1024}\ns_mul_i32 s72, {sX}, 147456")
        self.kernarg_wait()
        self.srd(X, 4, 1179648); self.srd(W1, 6, 663552); self.srd(W2, 8, 663552)
        self.stamp()
        DUM = vr(252)
        a(f"s_add_u32 s64, s70, s72")
        a(f"buffer_load_dwordx4 {DUM}, {vL16}, {X}, s64 offen", "pf")
        a(f"s_add_u32 s64, s71, s72")
        a(f"buffer_load_dwordx4 {DUM}, {vL16}, {X}, s64 offen", "pf")
        a(f"s_add_u32 s64, s70, {11*32*1152}")
        for i in range(3):
            a(f"buffer_load_dwordx4 {DUM}, {vL16}, {W1}, s64 offen", "pf")
            a(f"s_add_u32 s64, s64, {112*1024}")
        self.srd(W3, 10, 5308416); self.srd(W4, 12, 5308416)
        self.common_late()
        a.wait_vm()
        Lt = a.label("Ltc")
        a(f"s_mul_i32 s73, {sWV}, 14\ns_add_u32 s73, s73, s67\ns_lshl_b32 s64, s73, 12\nv_lshlrev_b32 v{T0}, 6, {vLANE}")
        a(f"s_cmp_ge_u32 s73, 92\ns_cbranch_scc1 {Lt}")
        a(f"s_add_u32 s65, s64, s72\ns_add_u32 s65, s65, {H_OFF}")
        def sel(lo, expr, base):
            a(expr + f"\ns_add_u32 s66, s66, {(base - lo*4096) & 0xffffffff}\ns_cmp_ge_u32 s73, {lo}\ns_cselect_b32 s65, s66, s65")
        sel(36, f"s_lshl_b32 s66, {sX}, 14\ns_add_u32 s66, s66, s64", F1_OFF)
        a(f"s_sub_u32 s66, s73, 40\ns_lshl_b32 s66, s66, 15\ns_lshl_b32 s74, {sX}, 12\ns_add_u32 s66, s66, s74\ns_add_u32 s66, s66, {F3_OFF}\ns_cmp_ge_u32 s73, 40\ns_cselect_b32 s65, s66, s65")
        sel(48, f"s_mul_i32 s66, {sX}, {8*XT}\ns_add_u32 s66, s66, s64", X1_OFF)
        sel(89, f"s_mul_i32 s66, {sX}, 12288\ns_add_u32 s66, s66, s64", ST_OFF)
        a(f"buffer_load_dword {DUMMY}, v{T0}, {WS}, s65 offen sc1", "_untracked")
        a(f"{Lt}:")
        for i in range(0 if "w2own" in self.exp else 6):
            a(f"buffer_load_dwordx4 {DUM}, {vL16}, {W2}, s70 offen", "pf")
            a(f"s_add_u32 s70, s70, {112*1024}")
        if "xtlb" in self.exp:
            Lt = a.label("Ltl")
            a(f"s_cmp_lg_u32 {sWV}, 7\ns_cbranch_scc1 {Lt}")
            a(f"v_lshlrev_b32 v{T0}, 20, {vLANE}\ns_mov_b64 exec, 0x0fffffff")
            a(f"s_cmp_lg_u32 s67, 13\ns_cbranch_scc1 {Lt}a")
            a(f"buffer_load_dword {DUMMY}, v{T0}, {WS}, 0 offen sc1", "_untracked")
            a(f"{Lt}a:")
            a(f"s_cmp_lg_u32 s67, 12\ns_cbranch_scc1 {Lt}b")
            a(f"buffer_load_dword {DUMMY}, v{T0}, {OUT}, 0 offen sc1", "_untracked")
            a(f"buffer_load_dword {DUMMY}, v{T0}, {W4}, 0 offen", "_untracked")
            a(f"{Lt}b:")
            a("s_mov_b64 exec, -1")
            a(f"{Lt}:")
        a("s_barrier")
        Lno = a.label("Lnj")
        a(f"s_cmp_ge_u32 {sWV}, 4\ns_cbranch_scc1 {Lno}\ns_waitcnt vmcnt(0)\ns_cmp_lt_u32 {sR}, 20\ns_cbranch_scc1 {Lno}")
        vm0 = list(a.vm)
        t0, t1 = f"v{T0}", f"v{T0+1}"
        a(f"s_sub_u32 s70, {sM}, 5\ns_mul_i32 s64, s70, {6*SL}\ns_lshl_b32 s65, {sW}, 5\ns_add_u32 s65, s65, s64")
        a(f"v_lshrrev_b32 {t0}, 2, {vLANE}\nv_mul_u32_u24 v52, 288, {t0}\nv_and_b32 {t0}, 3, {vLANE}\nv_lshl_add_u32 v52, {t0}, 3, v52")
        a(f"v_add_u32 v53, s65, v52\nv_add_u32 v54, s64, v52")
        a(f"s_cmp_eq_u32 s70, 2\ns_cselect_b32 s66, {17*SL}, 0\ns_sub_u32 s66, {5*SL}, s66\nv_add_u32 v55, s66, v53\nv_add_u32 v56, s66, v54")
        for i in range(4): a(f"v_mov_b32 v{136+i}, 0x3f803f80")
        a(f"s_mul_i32 s64, {sX}, 3\ns_add_u32 s64, s64, s70\ns_mul_i32 s64, s64, 2304\ns_mul_i32 s65, {sJ}, 576\ns_add_u32 s64, s64, s65\ns_add_u32 s72, s64, {CSP_OFF}\ns_lshl_b32 s65, {sW}, 6\ns_add_u32 s71, s72, s65")
        a(f"v_mov_b32 v{T0+4}, {sTAG8}\ns_mov_b32 s73, 0xff\nv_lshlrev_b32 v{T0+5}, 4, {vG}")
        self.wait_ctr(1, 11, sleep=4)
        self.stamp()
        for q, (va, vb, uo) in enumerate((("v53", "v55", 0), ("v53", "v55", 128), ("v54", "v56", 256))):
            for k in range(6):
                b = 60 + 4 * k
                v = va if k < 5 else vb
                a(f"ds_read_b64_tr_b16 {vr(b,2)}, {v} offset:{(k%5)*SL+uo}", f"r{k}")
                a(f"ds_read_b64_tr_b16 {vr(b+2,2)}, {v} offset:{(k%5)*SL+uo+4608}", f"r{k}")
            for k in range(6):
                a.wait_lg(f"r{k}")
                a(f"{MFMA} {vr(140+4*q)}, {vr(60+4*k)}, {vr(136)}, {'0' if k == 0 else vr(140+4*q)}")
        for e in range(12): a(f"v_bfi_b32 v{140+e}, s73, v{T0+4}, v{140+e}")
        a("s_mov_b32 exec_lo, 0x00010001\ns_mov_b32 exec_hi, 0x00010001")
        a(f"buffer_store_dwordx4 {vr(140)}, v{T0+5}, {WS}, s71 offen sc1", "st")
        a(f"buffer_store_dwordx4 {vr(144)}, v{T0+5}, {WS}, s71 offen offset:256 sc1", "st")
        a(f"buffer_store_dwordx4 {vr(148)}, v{T0+5}, {WS}, s72 offen offset:512 sc1", "st")
        a("s_mov_b64 exec, -1")
        a(f"{Lno}:")
        a.vm = vm0; a.lg = []
        self.nst = 2
        a("s_mov_b32 s101, 0")
        self.signal(10)
        a.wait_lg()
        self.stamp()

    def load_stats(self, R, vT8):
        a = self.a
        va, vb = f"v{R+12}", f"v{R+13}"; t0 = f"v{T0}"
        a(f"v_lshl_add_u32 {va}, {vG}, 5, {vJ}\nv_lshlrev_b32 {va}, 3, {va}\nv_lshlrev_b32 {vb}, 3, {vJ}")
        a(f"s_lshl_b32 s64, {sM}, 2\ns_add_u32 s64, s64, {sW}\ns_mul_i32 s64, s64, 3072\ns_add_u32 s64, s64, {ST_OFF}")
        L = a.label("Lst")
        a(f"s_mov_b32 {sTO}, 0")
        a(f"{L}:")
        for tt in range(2):
            for q in range(3):
                a(f"buffer_load_dwordx2 {vr(R+6*tt+2*q,2)}, {va if q < 2 else vb}, {WS}, s64 offen offset:{1024*q+128*tt} sc1", "st")
        a(f"s_add_u32 {sTO}, {sTO}, 1\ns_cmp_gt_u32 {sTO}, 100000\ns_cbranch_scc1 L_end")
        a.wait_vm()
        a(f"v_xor_b32 {t0}, v{R}, {vT8}")
        for e in range(1, 12): a(f"v_bitop3_b32 {t0}, {t0}, v{R+e}, {vT8} bitop3:0xf6")
        a(f"v_and_b32 {t0}, 0xff, {t0}\nv_cmp_ne_u32 vcc, 0, {t0}")
        a(f"s_cbranch_vccnz {L}")
        for e in range(12): a(f"v_and_b32 v{R+e}, 0xffffff00, v{R+e}")
    def finish_stats(self, K, R):
        a = self.a
        for c in range(2):
            a(f"v_add_f32 v{R+c}, v{R+c}, v{R+2+c}")
            self.xlane_sum(f"v{R+c}", f"v{T0}")
            a(f"v_add_f32 v{R+c}, v{R+c}, v{R+4+c}")
        self.ln_consts(f"v{R}", f"v{R+1}", K, f"v{T0}")
    def h3_base(self, dst):
        self.a(f"s_lshl_b32 s64, {sM}, 3\ns_lshl_b32 s65, {sW}, 1\ns_add_u32 s64, s64, s65\ns_lshl_b32 s64, s64, 3\ns_add_u32 s64, s64, {sX}")
        self.a(f"s_mul_i32 s64, s64, 18432\ns_add_u32 {dst}, s64, {H3_OFF}")
    def f3_base(self, dst):
        self.a(f"s_lshl_b32 s64, {sM}, 3\ns_add_u32 s64, s64, {sX}\ns_lshl_b32 s64, s64, 2\ns_add_u32 s64, s64, {sW}\ns_lshl_b32 s64, s64, 10\ns_add_u32 {dst}, s64, {F3_OFF}")

    def gelu_tile(self, acc, CSB, K, dst, vo, vo8, sPair, sSingle, sFlag, between=None):
        a = self.a
        t1 = f"v{T0+1}"
        a(f"v_lshl_add_u32 v0, {vG}, 4, {vSCR}")
        for u in range(2): a(f"ds_read_b128 {vr(CSB+4*u)}, v0 offset:{CS3_OFF+64*u}", f"cs{u}")
        for u in range(9):
            a.wait_lg(f"cs{u}")
            self.gelu4(acc(u), CSB + 4 * (u & 1), K, T0)
            if u + 2 < 9:
                a(f"v_lshl_add_u32 v0, {vG}, 4, {vSCR}")
                a(f"ds_read_b128 {vr(CSB+4*(u&1))}, v0 offset:{CS3_OFF+64*(u+2)}", f"cs{u+2}")
            p = u >> 1
            for d in range(2): a(f"v_cvt_pk_bf16_f32 v{dst(p)+2*(u&1)+d}, v{acc(u)+2*d}, v{acc(u)+2*d+1}")
            if u & 1: a(f"buffer_store_dwordx4 {vr(dst(p))}, {vo}, {WS}, {sPair} offen offset:{1024*p} sc1", f"h3_{p>>1}")
            if u == 8: a(f"buffer_store_dwordx2 {vr(dst(4),2)}, {vo8}, {WS}, {sSingle} offen sc1", "h3_1")
            if between: between(u)
            if u == 8: self.set_flag(sFlag, "both", "h3_0")
    def c_mlp(self):
        a = self.a
        t0, t1 = f"v{T0}", f"v{T0+1}"
        vX2, vH2, vF3, vEX = (f"v{T0+4+i}" for i in range(4))
        vA = ["v5", "v6", "v8"]
        CT = T0
        ACC = 40
        vL8 = [vX2, DUMMY]
        def B(k, tt): return BF0 + 8 * k + 4 * tt
        a(f"v_add_u32 {vX2}, {XT}, {vL16}\nv_add_u32 {vH2}, 147456, {vL16}")
        a(f"v_min_u32 {vF3}, 7, {vLANE}\nv_lshlrev_b32 {vF3}, 7, {vF3}")
        a(f"s_mul_i32 s64, {sW}, {13*1024}\ns_add_u32 s64, s64, {EX1*SL}\nv_add_u32 {vEX}, s64, {vL16}")
        a(f"s_lshl_b32 s64, {sM}, 3\ns_lshl_b32 s65, {sW}, 1\ns_add_u32 s64, s64, s65\ns_mul_i32 s64, s64, {XT}\ns_add_u32 s68, s64, {X1_OFF}")
        self.rot3("s69"); a("s_lshl_b32 s69, s69, 10")
        self.h3_base("s70")
        for d in range(4): a(f"s_xor_b32 s64, {sJ}, {d}\ns_lshl_b32 s64, s64, 12\ns_add_u32 s{71+d}, s64, s70")
        for e in range(2): a(f"s_lshr_b32 s64, {sJ}, 1\ns_xor_b32 s64, s64, {e}\ns_add_u32 s64, s64, 16\ns_lshl_b32 s64, s64, 10\ns_add_u32 s{75+e}, s64, s70")
        self.f3_base("s77")
        a(f"s_lshl_b32 s64, {sM}, 2\ns_add_u32 s64, s64, {sW}\ns_mul_i32 s64, s64, 3072\ns_add_u32 s78, s64, {ST_OFF}")
        a(f"v_lshrrev_b32 {t0}, 2, {vLANE}\nv_mul_u32_u24 {vA[0]}, 288, {t0}\nv_and_b32 {t0}, 3, {vLANE}\nv_lshl_add_u32 {vA[0]}, {t0}, 3, {vA[0]}")
        a(f"v_add_u32 {vA[1]}, {6*SL}, {vA[0]}")
        a(f"s_lshl_b32 s64, s69, 0\ns_lshr_b32 s64, s64, 3\nv_add_u32 {vFLG}, s64, {vFLG}\nv_subrev_u32 {t0}, {18*128}, {vFLG}\nv_min_u32 {vFLG}, {vFLG}, {t0}")
        a(f"s_lshr_b32 s66, s69, 11")
        for g in range(9):
            a(f"s_mul_i32 s64, s66, {XG}\ns_add_u32 s{92+g}, s64, s68\ns_add_u32 s66, s66, 1"); self.modn("s66", 9)
        a(f"v_lshlrev_b32 {DUMMY}, 2, {vLANE}\nv_add_u32 {vEX}, {XT}, {DUMMY}")
        CKR = [B(9, 0), B(11, 0), B(13, 0), B(15, 0), B(17, 0), B(1, 0), B(2, 0), B(3, 0), B(4, 0)]
        def hint(mask):
            L = a.label("Lpoll"); L2 = a.label("Lpoll")
            a(f"s_mov_b32 {sTO}, 0\ns_branch {L2}")
            a(f"{L}:")
            a(f"s_sleep {HS_}")
            a(f"{L2}:")
            a(f"buffer_load_ubyte {t0}, {vFLG}, {WS}, s78 offen sc1")
            a(f"s_add_u32 {sTO}, {sTO}, 1\ns_cmp_gt_u32 {sTO}, 100000\ns_cbranch_scc1 L_end")
            a.wait_vm()
            a(f"v_cmp_ne_u32 vcc, {sTAG8}, {t0}")
            if mask == 0xf:
                Lf = a.label("Lff")
                a(f"s_cmp_eq_u32 s101, 0\ns_cbranch_scc1 {Lf}")
                self.set_flag("s101", "far", "none")
                a(f"s_mov_b32 s101, 0")
                a(f"{Lf}:")
                a.vm = []
            a(f"s_and_b32 s66, vcc_lo, 0x3ffff\ns_and_b32 vcc_lo, vcc_lo, {mask}\ns_cbranch_scc1 {L}")
        def grp_ops(g, tag):
            o = []
            for tt in range(2): o.append((f"buffer_load_dword v{CKR[g]+tt}, {DUMMY if tt == 0 else vEX}, {WS}, s{92+g} offen offset:2048 sc1", tag))
            for q in range(2):
                for tt in range(2): o.append((f"buffer_load_dwordx4 {vr(B(2*g+q,tt))}, {vL16 if tt == 0 else vX2}, {WS}, s{92+g} offen offset:{1024*q} sc1", tag))
            return o
        def chk_ops(g):
            o = []
            for tt in range(2):
                t = f"v{CKR[g]+tt}"
                for q in range(2):
                    b = B(2 * g + q, tt)
                    o += [f"v_bitop3_b32 {t}, {t}, v{b}, v{b+1} bitop3:0x96", f"v_bitop3_b32 {t}, {t}, v{b+2}, v{b+3} bitop3:0x96"]
            o += [f"v_bitop3_b32 v{CKR[g]}, v{CKR[g]}, v{CKR[g]+1}, {sTAG} bitop3:0x7e", f"v_cmp_eq_u32 vcc, 0, v{CKR[g]}"]
            return o
        def chk_branch(g):
            a("s_cmp_eq_u64 vcc, -1")
            def retry():
                L = a.label("Lxr")
                a(f"s_mov_b32 {sTO}, 0")
                a(f"{L}:")
                a(f"s_add_u32 {sTO}, {sTO}, 1\ns_cmp_gt_u32 {sTO}, 100000\ns_cbranch_scc1 L_end")
                for o in grp_ops(g, "r"): a(*o)
                a.wait_vm()
                for o in chk_ops(g): a(o)
                a(f"s_cmp_eq_u64 vcc, -1\ns_cbranch_scc0 {L}")
            a.slow(retry)
        self.stamp()
        self.wait_ctr(1, 12, sleep=2)
        hint(0xf)
        self.stamp()
        for g in range(2):
            for o in grp_ops(g, f"b{g}"): a(*o)
        self.fs(FS2_OFF)
        Lh = a.label("Lh2")
        vm = list(a.vm)
        a(f"s_cmp_eq_u32 s66, 0\ns_cbranch_scc1 {Lh}")
        hint(0x3ffff)
        a(f"{Lh}:")
        a.vm = vm
        a(f"v_add_u32 {vA[2]}, {12*SL}, {vA[0]}")
        for g in range(2, 4):
            for o in grp_ops(g, f"b{g}"): a(*o)
        a.wait_vm("b0")
        for o in chk_ops(0): a(o)
        chk_branch(0)
        self.signal(11)
        self.stamp()
        LOOK = 6
        base_pool = [20, 24, 28, 32, 36]
        def rd(addr, tag, dst):
            v, off = addr
            a(f"ds_read_b64_tr_b16 {vr(dst,2)}, {v} offset:{off}", tag)
            a(f"ds_read_b64_tr_b16 {vr(dst+2,2)}, {v} offset:{off+4608}", tag)
        def stream(items, hooks_issue, hooks_after, pool, mid={}):
            fr = {}; nxt = [0]
            def can(i): return bool(nxt[0] < len(items) and nxt[0] <= i + LOOK and pool)
            def half(h):
                n = nxt[0]
                if h == 0:
                    if n in hooks_issue: hooks_issue[n]()
                    fr[n] = pool.pop(0)
                v, off = items[n][0]
                a(f"ds_read_b64_tr_b16 {vr(fr[n]+2*h,2)}, {v} offset:{off+4608*h}", f"f{n}")
                if h == 1: nxt[0] += 1
            while can(-1): half(0); half(1)
            for i, (n, mm, pre) in enumerate(items):
                if pre: a.wait_vm(pre)
                a.wait_lg(f"f{i}")
                go = can(i)
                for q, (acc, breg, first) in enumerate(mm):
                    a(f"{MFMA} {vr(acc)}, {vr(fr[i])}, {vr(breg)}, {'0' if first else vr(acc)}")
                    if go: half(q)
                    if q == 0 and i in mid: mid[i]()
                pool.append(fr[i])
                if i in hooks_after:
                    for h in hooks_after[i]: h(pool)
                if nxt[0] <= i + 1 or (len(pool) > 1 and can(i) and (i & 1)):
                    if can(i): half(0); half(1)
        def hook(d, i, f): d.setdefault(i, []).append(f)
        def slot_addr(bases, f, extra):
            sl = f % NSL
            return bases[sl // 6], (sl % 6) * SL + extra
        items = [(slot_addr(vA, s, 32 * u), [(ACC + 8 * u + 4 * tt, B(s, tt), s == 0) for tt in range(2)], None)
                 for s in range(18) for u in range(9)]
        hi = {}; ha = {}
        CT = B(5, 0)
        mid = {}
        for g in range(9):
            i0 = 18 * g
            if g + 4 < 9:
                for n, o in enumerate(grp_ops(g + 4, f"b{g+4}")): mid[i0 + n] = (lambda o=o: a(*o))
            if g + 1 < 9:
                hook(ha, i0 + 6, lambda pool, g=g: a.wait_vm(f"b{g+1}"))
                for n, o in enumerate(chk_ops(g + 1)): mid[i0 + 7 + n] = (lambda o=o: a(o))
                mid[i0 + 17] = (lambda g=g: chk_branch(g + 1))
        for ks_, val in ((8, 13), (12, 14), (16, 15)):
            hi[9 * ks_ - 5] = lambda: self.ctr_issue(1, CT)
            hi[9 * ks_] = (lambda val=val: self.ctr_check(1, CT, val, tmp=CT))
        hook(ha, 8, lambda pool: pool.extend([B(0, 0), B(0, 1)]))
        hook(ha, 9 * 5 - 1, lambda pool: self.signal(12))
        hook(ha, 9 * 9 - 1, lambda pool: self.signal(13))
        hook(ha, 9 * 13 - 1, lambda pool: self.signal(14))
        KB = B(5, 0); CSB = B(6, 0); TB = B(11, 0); S8 = B(12, 0)
        def consts(pool):
            a(f"s_lshl_b32 s64, {sW}, 9\ns_add_u32 s64, s64, {KC_OFF}\nv_lshl_add_u32 v0, {vJ}, 4, s64")
            for tt in range(2): a(f"ds_read_b128 {vr(KB+4*tt)}, v0 offset:{256*tt}", "kc")
        def csums(pool, u):
            if u == 0: a(f"v_lshl_add_u32 v{T0+2}, {vG}, 4, {vSCR}")
            a(f"ds_read_b128 {vr(CSB+4*u)}, v{T0+2} offset:{CS3_OFF+64*u}", "kc")
        if "p1" in self.exp:
            for k_ in (1, 3, 5, 7, 9, 11, 13, 15): hook(ha, 9 * k_ + 3, lambda pool: self.stamp())
        hook(ha, 9 * 16 + 2, consts)
        for u in range(9): hook(ha, 9 * 16 + 4 + u, lambda pool, u=u: csums(pool, u))
        stream(items, hi, ha, list(base_pool), mid)
        self.signal(15)
        self.stamp()
        a(f"s_and_b32 s64, {sJ}, 1\ns_lshl_b32 s64, s64, 9\ns_add_u32 s67, s64, s75")
        a(f"v_lshlrev_b32 {vL8[0]}, 3, {vLANE}\nv_add_u32 {vL8[1]}, 147456, {vL8[0]}")
        a(f"s_lshl_b32 s64, {sJ}, 8\ns_add_u32 s79, s64, s77")
        def h3ops(k):
            if k < 16:
                d, p = 1 + (k - 4) % 3, (k - 4) // 3
                return [(f"buffer_load_dwordx4 {vr(B(k,tt))}, {vL16 if tt == 0 else vH2}, {WS}, s{71+d} offen offset:{1024*p} sc1", f"g{k}") for tt in range(2)]
            return [(f"buffer_load_dwordx2 {vr(B(k,tt)+2*hf,2)}, {vL8[tt]}, {WS}, s{75+k-16} offen offset:{512*hf} sc1", f"g{k}") for tt in range(2) for hf in range(2)]
        def ap_issue(): a(f"buffer_load_dword {vEX}, {vF3}, {WS}, s77 offen sc1", "ap")
        def ap_check(mask):
            a.wait_vm("ap")
            a(f"v_subrev_u32 {vEX}, {sTAG}, {vEX}")
            a(f"v_cmp_le_u32 vcc, 16, {vEX}")
            a(f"s_and_b32 s64, vcc_lo, {mask}\ns_cmp_eq_u32 s64, 0")
            a.slow(lambda: self.poll2("s77", vF3, False, mask=mask))
        a.wait_lg()
        for u in range(9):
            self.gelu_pk([(ACC + 8 * u + 4 * tt, CSB + 4 * u, KB + 4 * tt) for tt in range(2)], TB)
            p = u >> 1
            for tt in range(2):
                dst = B(p, tt) + 2 * (u & 1) if u < 8 else S8 + 2 * tt
                b = ACC + 8 * u + 4 * tt
                for d in range(2): a(f"v_cvt_pk_bf16_f32 v{dst+d}, v{b+2*d}, v{b+2*d+1}")
            for tt in range(2):
                if u & 1: a(f"buffer_store_dwordx4 {vr(B(p,tt))}, {vL16 if tt == 0 else vH2}, {WS}, s71 offen offset:{1024*p} sc1", f"h3_{p>>1}")
                if u == 8: a(f"buffer_store_dwordx2 {vr(S8+2*tt,2)}, {vL8[tt]}, {WS}, s67 offen sc1", "h3_1")
            if u == 6: self.set_flag("s79", "both", "h3_0")
            if u == 7:
                self.ctr_issue(1, B(13, 0))
                for o in range(9):
                    if o == 0: a("s_mov_b32 s92, 256")
                    else: a(f"s_add_u32 s64, {sX}, {o}\ns_and_b32 s64, s64, 7\ns_lshl_b32 s{92+o}, s64, 5")
        self.stamp()
        self.ctr_check(1, B(13, 0), 17, tmp=B(13, 0))
        items = []; hi = {}; ha = {}; mid = {}
        def base1(reg, o): hi[len(items)] = (lambda: a(f"v_add_u32 {reg}, s{92+o}, {vA[0]}"))
        for o in range(9):
            reg = f"v{B(17,1)+(o&1)}"; base1(reg, o)
            for k in range(4): items.append(((reg, (1 + k) * SL), [(ACC + 8 * o + 4 * tt, B(k, tt), k == 0) for tt in range(2)], None))
        hook(ha, FL, lambda pool: (a(f"s_add_u32 s64, s79, 128"), self.set_flag("s64", "both", "h3_1", T0=B(17, 0))))
        mid[F0] = ap_issue
        hook(ha, FL - 1, lambda pool: ap_check(0x55))
        n = FL + 1
        for k in range(4, 10):
            for o_ in h3ops(k): mid[n] = (lambda o_=o_: a(*o_)); n += 1
        mid[FB] = ap_issue
        hook(ha, FB + 7, lambda pool: ap_check(0xff))
        n = FB + 8
        for k in range(10, 18):
            for o_ in h3ops(k): mid[n] = (lambda o_=o_: a(*o_)); n += 1
        hook(ha, 35, lambda pool: (self.signal(17), pool.extend([B(0, 0), B(0, 1)])))
        UB = [[f"v{B(2,0)+4*q+i}" for i in range(3)] for q in range(2)]
        C0 = B(3, 0); CT4 = B(1, 0); CT5 = B(1, 1)
        for o in range(9):
            reg = f"v{T0+2+(o&1)}"
            hi[len(items)] = (lambda reg=reg, o=o: a(f"v_add_u32 {reg}, s{92+o}, {vA[0]}\nv_add_u32 {reg}, {5*SL}, {reg}"))
            for k in range(4, KE): items.append(((reg, (k - 4) * SL), [(ACC + 8 * o + 4 * tt, B(k, tt), False) for tt in range(2)], f"g{k}" if o == 0 else None))
        n0 = len(items)
        hook(ha, n0 - 14, lambda pool: self.ctr_issue(1, CT4))
        hook(ha, n0 - 8, lambda pool: self.ctr_check(1, CT4, 18, tmp=CT4))
        for o in range(NSK):
            reg = f"v{T0+2+((o+1)&1)}"
            hi[len(items)] = (lambda reg=reg, o=o: a(f"v_add_u32 {reg}, s{92+o}, {vA[1]}"))
            for k in (7, 8, 9): items.append(((reg, (k + 1 - 6) * SL), [(ACC + 8 * o + 4 * tt, B(k, tt), False) for tt in range(2)], f"g{k}" if o == 0 else None))
        n1 = len(items)
        hook(ha, n1 - 8, lambda pool: self.ctr_issue(1, CT4))
        hook(ha, n1 - 2, lambda pool: self.ctr_check(1, CT4, 19, tmp=CT4))
        hook(ha, n1 - 1, lambda pool: self.ctr_issue(0, CT5))
        hook(ha, n1 + 5, lambda pool: (self.ctr_check(0, CT5, 17, tmp=CT5), a(f"s_lshl_b32 s64, {sW}, 11\nv_add_u32 {vEX}, s64, {vL16}\nv_xor_b32 v{C0+1}, 16, {vCTR}")))
        if self.stamps: hook(ha, n1 - 1, lambda pool: self.stamp())
        for o in range(9):
            acc = ACC + 8 * o
            ub = UB[o & 1]
            def setb(o=o, ub=ub):
                for i in range(3): a(f"v_add_u32 {ub[i]}, s{92+o}, {vA[i]}")
            hi[len(items)] = setb
            for k in range(10 if o < NSK else KE, 18):
                items.append((slot_addr(ub, 18 + k, 0), [(acc + 4 * tt, B(k, tt), False) for tt in range(2)], f"g{k}" if o == 0 else None))
            n = len(items) - (0 if o < 8 else 2)
            if o >= 3:
                mid[n - 3] = (lambda: a(f"ds_read_b32 v{C0}, v{C0+1}", "pc"))
                def chk(pool, o=o):
                    a.wait_lg("pc")
                    a(f"v_readfirstlane_b32 s64, v{C0}")
                    a(f"s_cmp_ge_u32 s64, {20+o-3}")
                    a.slow(lambda o=o: self.wait_ctr(1, 20 + o - 3, one=True, tmp=C0))
                hook(ha, n, chk)
            if o < 8:
                for tt in range(2): mid[n + 1 + tt] = (lambda o=o, acc=acc, tt=tt: a(f"ds_write_b128 {vEX}, {vr(acc+4*tt)} offset:{(2+o%3)*SL+1024*tt}", "ex"))
                mid[n + 3] = (lambda o=o: a(f"v_mov_b32 v0, {19+o}"))
                mid[n + 4] = (lambda: a(f"ds_write_b32 {vCTR}, v0", "sig"))
            else:
                def dump(pool, o=o, acc=acc):
                    for tt in range(2): a(f"ds_write_b128 {vEX}, {vr(acc+4*tt)} offset:{(2+o%3)*SL+1024*tt}", "ex")
                    self.signal(19 + o)
                hook(ha, len(items) - 1, dump)
        XRr = ACC + 32 - 4; G8 = ACC; SUM8 = B(10, 0); vT8 = f"v{B(11,0)}"; vO = f"v{B(11,0)+1}"; U = B(12, 0)
        g_issue, g_take = self.part_helpers(vT8, U)
        def early8(pool):
            Le = a.label("Ls_e8")
            a(f"s_lshr_b32 s64, {sX}, 1\ns_cmp_lg_u32 s64, {sW}\ns_cbranch_scc1 {Le}")
            a(f"s_lshl_b32 s64, {sM}, 2\ns_add_u32 s64, s64, {sJ}\ns_mul_i32 s64, s64, {9*32*1024}\ns_add_u32 s69, s64, {P_OFF+8*32768}\ns_add_u32 s69, s69, {sWK}")
            for i in range(8): g_issue(i, "s69", G8, "p8")
            a(f"s_mul_i32 s64, {sJ}, 9\ns_add_u32 s78, s64, 8\ns_lshl_b32 s64, {sM}, 3\ns_add_u32 s79, s64, {sX}")
            a(f"s_mul_i32 s64, s79, 9\ns_lshr_b32 s65, s78, 2\ns_add_u32 s64, s64, s65\ns_mul_i32 s64, s64, {XG}\ns_and_b32 s65, s78, 2\ns_lshl_b32 s65, s65, 9\ns_add_u32 s64, s64, s65\ns_and_b32 s65, s78, 1\ns_lshl_b32 s65, s65, 3\ns_add_u32 s64, s64, s65\ns_add_u32 s64, s64, {X1_OFF}")
            a(f"buffer_load_dwordx2 {vr(XRr+4,2)}, {vL16}, {WS}, s64 offen sc1", "xr")
            a(f"{Le}:")
        hook(ha, len(items) - 14, early8)
        if "g4" in self.exp:
            for i_ in (0, 12, FL - 1, FL, 35, 39, FB + 6, FB + 7, n0 - 9, n0 - 1, n1 - 3, n1 + 7, n1 + 15, n1 + 31, n1 + 53, n1 + 75): hook(ha, i_, lambda pool: self.stamp())
        stream(items, hi, ha, list(base_pool), mid)
        self.stamp()
        L8 = a.label("Lu8")
        a(f"s_lshr_b32 s64, {sX}, 1\ns_cmp_lg_u32 s64, {sW}\ns_cbranch_scc1 {L8}")
        self.part_consts(vT8)
        a(f"v_mul_u32_u24 {vO}, 1152, {vJ}\nv_lshl_add_u32 {vO}, {vG}, 3, {vO}")
        a(f"s_bitcmp1_b32 {sX}, 0\ns_cselect_b64 s[98:99], -1, 0")
        for e in range(4): a(f"v_mov_b32 v{SUM8+e}, 0")
        for i in range(8): g_take(i, "s69", G8, "p8", SUM8, half="s[98:99]")
        a.wait_vm("xr")
        self.finish_out(SUM8, XRr + 4, vO, "s79", "s78")
        a(f"{L8}:")

    def rot3(self, dst):
        self.a(f"s_lshl_b32 {dst}, {sJ}, 2\ns_and_b32 s64, {sJ}, 2\ns_add_u32 {dst}, {dst}, s64")

    def h_mlp(self):
        a = self.a
        t0, t1, t2 = f"v{T0}", f"v{T0+1}", f"v{T0+2}"
        vH2, vEX, vT8 = (f"v{T0+5+i}" for i in range(3))
        vH8 = f"v{T0+8}"
        if self.stop <= 2:
            self.epoch_advance(); return
        a(f"v_add_u32 {vH2}, 147456, {vL16}\nv_lshlrev_b32 {vH8}, 3, {vLANE}\nv_add_u32 {vH8}, 147456, {vH8}")
        a(f"s_mul_i32 s64, {sW}, {13*1024}\ns_add_u32 s64, s64, {EX1*SL}\nv_add_u32 {vEX}, s64, {vL16}\nv_mov_b32 {vT8}, {sTAG8}")
        self.h3_base("s71"); self.f3_base("s72")
        a(f"s_lshr_b32 s64, {sJ}, 1\ns_add_u32 s64, s64, 16\ns_lshl_b32 s64, s64, 10\ns_add_u32 s68, s64, s71\ns_and_b32 s64, {sJ}, 1\ns_lshl_b32 s64, s64, 9\ns_add_u32 s68, s68, s64")
        a(f"s_lshl_b32 s64, {sJ}, 12\ns_add_u32 s71, s71, s64\ns_lshl_b32 s64, {sJ}, 8\ns_add_u32 s72, s72, s64")
        V3 = [f"v{200+i}" for i in range(5)]; V4 = [f"v{205+i}" for i in range(5)]; V4s = [f"v{210+i}" for i in range(5)]
        sP = [f"s{92+i}" for i in range(5)]
        for i in range(5):
            a(f"s_add_u32 s64, {sW}, {4*i}\ns_sub_u32 s65, s64, 9\ns_min_u32 s64, s64, s65\ns_lshl_b32 {sP[i]}, s64, 10\ns_lshl_b32 s64, s64, 6")
            a(f"v_add_u32 {t0}, s64, {vLANE}\nv_mul_u32_u24 {t1}, 3641, {t0}\nv_lshrrev_b32 {t1}, 16, {t1}")
            a(f"v_mul_u32_u24 {t2}, 18, {t1}\nv_sub_u32 {t0}, {t0}, {t2}\nv_lshlrev_b32 {t0}, 4, {t0}")
            a(f"v_mul_u32_u24 {V3[i]}, 9216, {t1}\nv_add_u32 {V3[i]}, {V3[i]}, {t0}")
            a(f"v_mul_u32_u24 {V4[i]}, 1152, {t1}\nv_add_u32 {V4[i]}, {V4[i]}, {t0}")
            a(f"v_lshrrev_b32 {t1}, 4, {t1}\nv_mul_u32_u24 {t1}, {128*1152}, {t1}\nv_add_u32 {V4s[i]}, {V4[i]}, {t1}")
        thr = [None]
        mods = [""]
        def pair(f, srd, V, sA, sB, tag):
            rA, rB = (f % NSL) * SL, ((f + 1) % NSL) * SL
            L = a.label("Lx")
            a(f"s_cmp_ge_u32 {sW}, 2\ns_cbranch_scc1 {L}")
            a(f"s_add_u32 m0, {sP[4]}, {rB}")
            a(f"buffer_load_dwordx4 {V[4]}, {srd}, {sB} offen {mods[0]} lds", "_untracked")
            a(f"{L}:")
            for i in range(4):
                if i < 2: a(f"s_add_u32 m0, {sP[i]}, {rA}"); so = sA
                elif i == 3: a(f"s_add_u32 m0, {sP[i]}, {rB}"); so = sB
                else:
                    a(f"s_mov_b32 s64, {rB}\ns_cmp_eq_u32 {sW}, 0\ns_cselect_b32 s64, {rA}, s64\ns_cselect_b32 s66, {sA}, {sB}\ns_add_u32 m0, {sP[i]}, s64"); so = "s66"
                a(f"buffer_load_dwordx4 {V[i]}, {srd}, {so} offen {mods[0]} lds", tag)
                if thr[0] is not None:
                    a(f"s_waitcnt vmcnt({thr[0]})"); a.vm = a.vm[max(0, len(a.vm)-thr[0]):] if thr[0] else []
        k3 = 32 * 9216
        self.rot3("s69")
        a(f"s_lshl_b32 s64, {sX}, 2\ns_add_u32 s64, s64, {sJ}\ns_mul_i32 s70, s64, 288")
        def w3pair(s, tag):
            a(f"s_add_u32 s73, s69, {s}\ns_sub_u32 s65, s73, 18\ns_min_u32 s73, s73, s65\ns_mul_i32 s73, s73, {k3}\ns_add_u32 s73, s73, s70\ns_add_u32 s74, s73, {k3}")
            pair(s, W3, V3, "s73", "s74", tag)
        a(f"s_mul_i32 s64, {sX}, {576*1152}\ns_mul_i32 s65, {sJ}, 288\ns_add_u32 s101, s64, s65")
        for d in range(4): a(f"s_xor_b32 s64, {sJ}, {d}\ns_mul_i32 s64, s64, {144*1152}\ns_add_u32 s{97+d}, s64, s101")
        def w4src(k, dst):
            if k < 4: d, p = 0, k
            elif k < 16: d, p = 1 + (k - 4) % 3, (k - 4) // 3
            else:
                a(f"s_lshr_b32 s64, {sJ}, 1\ns_xor_b32 s64, s64, {k-16}\ns_mul_i32 s64, s64, {288*1152}\ns_add_u32 s64, s64, s101\ns_add_u32 {dst}, s64, {128*1152}")
                return
            a(f"s_add_u32 {dst}, s{97+d}, {32*p*1152}")
        def w4pair(k, tag):
            w4src(k, "s73"); w4src(k + 1, "s74")
            pair(18 + k, W4, V4 if k < 16 else V4s, "s73", "s74", tag)
        a(f"v_and_b32 {t0}, 3, {vLANE}\nv_lshlrev_b32 {t0}, 7, {t0}")
        self.stamp()
        Le = a.label("Learly"); Lj = a.label("Learly")
        a(f"s_cmp_lt_u32 {sR}, {NACT}\ns_cbranch_scc1 {Le}")
        Lq = [a.label("Lq") for _ in range(4)]
        a(f"s_cmp_eq_u32 {sM}, 6\ns_cbranch_scc1 {Lq[1]}\ns_cmp_eq_u32 {sM}, 7\ns_cbranch_scc1 {Lq[2]}")
        for v, order in enumerate(((0, 2, 4, 6, 8, 10, 12, 14), (6, 8, 10, 0, 2, 4, 12, 14), (12, 14, 16, 2, 4, 6, 8, 10, 0))):
            if v: a(f"{Lq[v]}:"); a.vm = []
            for n, s in enumerate(order):
                if v == 2 and s == 0: self.wait_ctr(0, 10, sleep=2)
                mods[0] = "nt" if n < 3 and "w3nt" in self.exp else ""
                w3pair(s, "d0")
                if n == 2: self.dsignal(11)
            if v < 2: a(f"s_branch {Lq[3]}")
        a(f"{Lq[3]}:")
        self.dsignal(12)
        a(f"s_sub_u32 s64, {sR}, {NACT}\ns_lshl_b32 s64, s64, 2\ns_add_u32 s64, s64, {sW}\ns_mul_i32 s64, s64, {93*128}\ns_min_u32 s64, s64, {663552-93*128}\ns_mul_i32 s65, {sX}, 663552\ns_add_u32 s66, s64, s65")
        a(f"v_lshlrev_b32 {t0}, 7, {vLANE}\nv_min_u32 {t1}, {28*128}, {t0}")
        a(f"buffer_load_dword {DUMMY}, {t0}, {W4}, s66 offen", "_untracked")
        a(f"s_add_u32 s66, s66, 8192")
        a(f"buffer_load_dword {DUMMY}, {t1}, {W4}, s66 offen", "_untracked")
        a(f"s_branch {Lj}")
        a(f"{Le}:")
        a.vm = []
        self.wait_ctr(0, 3, sleep=2)
        thr[0] = THR
        for s in range(0, 8, 2): w3pair(s, "d0")
        a("s_waitcnt vmcnt(0)")
        self.signal(12)
        self.wait_ctr(0, 6, sleep=2)
        for s in (8, 10): w3pair(s, "d0")
        thr[0] = None
        a(f"{Lj}:")
        a("s_waitcnt vmcnt(0)"); a.vm = []
        self.signal(13)
        self.stamp()
        self.wait_ctr(0, 11, sleep=3)
        Le = a.label("Llate")
        a(f"s_cmp_ge_u32 {sR}, {NACT}\ns_cbranch_scc1 {Le}")
        for s in (12, 14): w3pair(s, "_untracked")
        a("s_waitcnt vmcnt(0)")
        a(f"s_branch {Le}b")
        a(f"{Le}:")
        a(f"{Le}b:")
        self.signal(14)
        self.stamp()
        self.load_stats(100, vT8)
        for tt in range(2): self.finish_stats([f"v{48+4*tt+i}" for i in range(4)], 100 + 6 * tt)
        a(f"s_lshl_b32 s64, {sW}, 9\ns_add_u32 s64, s64, {KC_OFF}\nv_lshl_add_u32 {t1}, {vJ}, 4, s64")
        for tt in range(2): a(f"ds_write_b128 {t1}, {vr(48+4*tt)} offset:{256*tt}", "kc")
        CP = 100
        a(f"s_lshl_b32 s64, {sW}, 6\nv_add_u32 {t1}, s64, {vLANE}\nv_min_u32 {t1}, 143, {t1}\nv_lshlrev_b32 v{CP+9}, 2, {t1}")
        L = a.label("Lcs")
        a(f"s_mov_b32 {sTO}, 0")
        a(f"{L}:")
        a(f"s_mul_i32 s64, {sX}, {3*2304}\ns_mul_i32 s65, {sJ}, 576\ns_add_u32 s64, s64, s65\ns_add_u32 s64, s64, {CSP_OFF}")
        for k in range(3):
            a(f"buffer_load_dword v{CP+k}, v{CP+9}, {WS}, s64 offen sc1", "cp")
            a(f"s_add_u32 s64, s64, 2304")
        a(f"s_add_u32 {sTO}, {sTO}, 1\ns_cmp_gt_u32 {sTO}, 100000\ns_cbranch_scc1 L_end")
        a.wait_vm()
        a(f"v_xor_b32 {t0}, v{CP}, {vT8}")
        for k in range(1, 3): a(f"v_bitop3_b32 {t0}, {t0}, v{CP+k}, {vT8} bitop3:0xf6")
        a(f"v_and_b32 {t0}, 0xff, {t0}\nv_cmp_ne_u32 vcc, 0, {t0}")
        a(f"s_cbranch_vccnz {L}")
        for k in range(3): a(f"v_and_b32 v{CP+k}, 0xffffff00, v{CP+k}")
        for k in range(1, 3): a(f"v_add_f32 v{CP}, v{CP}, v{CP+k}")
        a(f"v_add_u32 {t1}, {vSCR}, v{CP+9}")
        a(f"ds_write_b32 {t1}, v{CP} offset:{CS3_OFF}", "csw")
        self.wait_ctr(0, 12, sleep=3)
        w3pair(16, "e0")
        a.wait_vm("e0"); self.signal(15)
        self.wait_ctr(0, 14, sleep=3)
        thr[0] = T4
        for k in (0, 2, 4, 6): w4pair(k, "e1")
        self.dsignal(17)
        for k in (8, 10): w4pair(k, "e2")
        self.epoch_advance()
        self.stamp()
        self.wait_ctr(0, 15, sleep=3)
        thr[0] = 2
        for k in (12, 14): w4pair(k, "e3")
        thr[0] = None
        a.wait_vm(); self.signal(18)
        self.wait_ctr(0, 17, sleep=3)
        w4pair(16, "e3")
        a(f"s_lshl_b32 s64, {sM}, 2\ns_add_u32 s64, s64, {sJ}\ns_mul_i32 s64, s64, {9*32*1024}\ns_add_u32 s73, s64, {P_OFF}")
        a(f"s_lshl_b32 s64, {sW}, 11\nv_add_u32 {vEX}, s64, {vL16}")
        a(f"s_lshl_b32 s65, {sX}, 12\ns_add_u32 s74, {sWK}, s65\ns_add_u32 s74, s74, s73")
        self.part_consts(vT8)
        a("s_mov_b32 s75, 0x1fff\ns_mov_b32 s92, 0x03ffffff\ns_mov_b32 s93, 0x0c000000\ns_mov_b32 s94, 0x4b400000")
        a.wait_vm("e3"); self.signal(19)
        self.stamp()
        XRr = 100
        a(f"s_mul_i32 s64, {sJ}, 9\ns_add_u32 s76, s64, {sX}")
        a(f"s_lshl_b32 s64, {sM}, 3\ns_lshl_b32 s65, {sW}, 1\ns_add_u32 s77, s64, s65")
        a(f"s_mul_i32 s64, s77, 9\ns_lshr_b32 s65, s76, 2\ns_add_u32 s64, s64, s65\ns_mul_i32 s64, s64, {XG}\ns_and_b32 s65, s76, 2\ns_lshl_b32 s65, s65, 9\ns_add_u32 s64, s64, s65\ns_and_b32 s65, s76, 1\ns_lshl_b32 s65, s65, 3\ns_add_u32 s64, s64, s65\ns_add_u32 s64, s64, {X1_OFF}")
        a(f"v_add_u32 {t1}, {XT}, {vL16}")
        a(f"buffer_load_dwordx2 {vr(XRr,2)}, {vL16}, {WS}, s64 offen sc1", "xr")
        a(f"buffer_load_dwordx2 {vr(XRr+2,2)}, {t1}, {WS}, s64 offen sc1", "xr")
        vO = "v106"
        a(f"v_mul_u32_u24 {vO}, 1152, {vJ}\nv_lshl_add_u32 {vO}, {vG}, 3, {vO}")
        a(f"s_lshl_b32 s64, {sX}, 15\ns_add_u32 s68, s64, s73\ns_add_u32 s68, s68, {sWK}")
        a(f"s_add_u32 s69, s73, {8*32768}\ns_add_u32 s69, s69, {sWK}")
        DB = 108; GR = 128; G8 = 160; SUMR = 56; SUM8 = 64; PKD = 72; U = 80
        for e in range(16): a(f"v_mov_b32 v{SUMR+e}, 0")
        g_issue, g_take = self.part_helpers(vT8, U)
        if "ptouch" in self.exp:
            a(f"v_lshlrev_b32 {t1}, 6, {vJ}")
            a("s_mov_b64 exec, 0xffff")
            for o in range(4, 8):
                a(f"s_add_u32 s64, {sX}, {o}\ns_and_b32 s64, s64, 7\ns_lshl_b32 s64, s64, 15\ns_add_u32 s66, s64, s74")
                a(f"buffer_load_dword {DUMMY}, {t1}, {WS}, s66 offen sc1", "pt")
            a("s_mov_b64 exec, -1")
        for o in range(9):
            if o == HP: a("s_setprio 3")
            self.wait_ctr(0, 19 + o, one=True, sleep=1)
            d = DB + 8 * (o & 1)
            for tt in range(2): a(f"ds_read_b128 {vr(d+4*tt)}, {vEX} offset:{(2+o%3)*SL+1024*tt}", "dp")
            if o == 8: break
            if o == 0: a(f"s_add_u32 s66, s74, {8*32768}")
            else: a(f"s_add_u32 s64, {sX}, {o}\ns_and_b32 s64, s64, 7\ns_lshl_b32 s64, s64, 15\ns_add_u32 s66, s64, s74")
            a.wait_lg()
            self.signal(20 + o)
            p = PKD + 4 * (o & 1)
            a(f"v_max3_f32 {t0}, |v{d}|, |v{d+1}|, |v{d+2}|\nv_max3_f32 {t1}, |v{d+3}|, |v{d+4}|, |v{d+5}|")
            a(f"v_max3_f32 {t0}, {t0}, |v{d+6}|, |v{d+7}|\nv_max_f32 {t0}, {t0}, {t1}")
            a(f"v_and_b32 {t0}, 0x7f800000, {t0}\nv_max_u32 {t0}, {12<<23}, {t0}\nv_sub_u32 {t1}, {(264<<23)|0x7ff000}, {t0}")
            for e in range(8): a(f"v_fma_f32 v{d+e}, v{d+e}, {t1}, s94")
            for i in range(4):
                sh = 3 - 2 * i
                a(f"v_lshlrev_b32 v{d+2*i+1}, 13, v{d+2*i+1}\nv_bfi_b32 v{d+2*i}, s75, v{d+2*i}, v{d+2*i+1}")
                a((f"v_lshlrev_b32 {t2}, {sh}, {t0}" if sh > 0 else f"v_lshrrev_b32 {t2}, {-sh}, {t0}") + f"\nv_bfi_b32 {t2}, s93, {t2}, {vT8}")
                a(f"v_bfi_b32 v{p+i}, s92, v{d+2*i}, {t2}")
            a(f"buffer_store_dwordx4 {vr(p)}, {vL16}, {WS}, s66 offen sc1", "pst")
            if "glate" in self.exp:
                if o == 7:
                    self.stamp()
                    for i in (1, 2, 3): g_issue(i, "s68", GR, "pg")
                    for i in (1, 2): g_take(i, "s68", GR, "pg", SUMR)
                    g_issue(4, "s68", GR, "pg")
                    g_take(3, "s68", GR, "pg", SUMR)
                continue
            if o >= 4: g_issue(o - 3, "s68", GR, "pg")
            if o == 7:
                self.stamp()
                for i in (1, 2, 3): g_take(i, "s68", GR, "pg", SUMR)
                g_issue(5, "s68", GR, "pg")
                g_take(4, "s68", GR, "pg", SUMR)
                g_issue(6, "s68", GR, "pg")
        if "glate" in self.exp:
            g_issue(5, "s68", GR, "pg")
            a.wait_lg()
            for e in range(8): a(f"v_add_f32 v{SUMR+e}, v{SUMR+e}, v{DB+e}")
            g_take(4, "s68", GR, "pg", SUMR)
            g_issue(6, "s68", GR, "pg")
            g_take(5, "s68", GR, "pg", SUMR)
            g_issue(7, "s68", GR, "pg")
            for i in (6, 7): g_take(i, "s68", GR, "pg", SUMR)
        else:
            g_issue(7, "s68", GR, "pg")
            a.wait_lg()
            for e in range(8): a(f"v_add_f32 v{SUMR+e}, v{SUMR+e}, v{DB+e}")
            for i in (5, 6, 7): g_take(i, "s68", GR, "pg", SUMR)
        self.stamp()
        for tt in range(2):
            a(f"s_add_u32 s79, s77, {tt}")
            self.finish_out(SUMR + 4 * tt, XRr + 2 * tt, vO, "s79", "s76")

    def part_consts(self, vT8):
        a = self.a
        a(f"s_and_b32 s64, {sE}, 0xf0000000\nv_mov_b32 {vT8}, s64")
        a("s_mov_b32 s95, 0x01800000\ns_mov_b32 s96, 0x07800000\ns_mov_b32 s97, 0x1f800000")
    def part_helpers(self, vT8, U):
        a = self.a
        t0, t1 = f"v{T0}", f"v{T0+1}"
        def g_issue(i, base, R, tag):
            a(f"s_sub_u32 s64, {sX}, {i}\ns_and_b32 s64, s64, 7\ns_lshl_b32 s64, s64, 12\ns_add_u32 s64, s64, {base}")
            a(f"buffer_load_dwordx4 {vr(R+4*i)}, {vL16}, {WS}, s64 offen sc1", f"{tag}{i}")
        def g_take(i, base, R, tag, S, half=None):
            r = R + 4 * i
            a.wait_vm(f"{tag}{i}")
            def check():
                a(f"v_xor_b32 {t0}, v{r}, {vT8}")
                for e in range(1, 4): a(f"v_bitop3_b32 {t0}, {t0}, v{r+e}, {vT8} bitop3:0xf6")
                a(f"v_cmp_gt_u32 vcc, 0x10000000, {t0}")
                a("s_cmp_eq_u64 vcc, -1")
            check()
            def retry():
                L = a.label("Lg")
                a(f"s_mov_b32 {sTO}, 0")
                a(f"{L}:")
                a(f"s_add_u32 {sTO}, {sTO}, 1\ns_cmp_gt_u32 {sTO}, 100000\ns_cbranch_scc1 L_end")
                g_issue(i, base, R, tag)
                a.wait_vm()
                check()
                a(f"s_cbranch_scc0 {L}")
            a.slow(retry)
            a(f"v_lshrrev_b32 {t0}, 3, v{r}\nv_lshrrev_b32 {t1}, 1, v{r+1}\nv_bfi_b32 {t0}, s95, {t0}, {t1}")
            a(f"v_lshlrev_b32 {t1}, 1, v{r+2}\nv_bfi_b32 {t0}, s96, {t0}, {t1}\nv_lshlrev_b32 {t1}, 3, v{r+3}\nv_bfi_b32 {t0}, s97, {t0}, {t1}")
            a(f"v_and_b32 {t0}, 0x7f800000, {t0}\nv_add_u32 {t0}, {(0x800 - (11 << 23)) & 0xffffffff}, {t0}")
            n = 8
            if half:
                for e in range(2): a(f"v_cndmask_b32 v{r+e}, v{r+e}, v{r+2+e}, {half}")
                n = 4
            for e in range(n): a(f"v_bfe_i32 v{U+e}, v{r+(e>>1)}, {13*(e&1)}, 13")
            for e in range(n): a(f"v_cvt_f32_i32 v{U+e}, v{U+e}")
            for e in range(n): a(f"v_fma_f32 v{S+e}, v{U+e}, {t0}, v{S+e}")
        return g_issue, g_take
    def finish_out(self, S, XR, vO, sTile, sU):
        a = self.a
        t0, t1, t2, t3 = (f"v{T0+i}" for i in range(4))
        for d in range(2):
            a(f"v_cvt_pk_bf16_f32 {t0}, v{S+2*d}, v{S+2*d+1}")
            a(f"v_lshlrev_b32 {t1}, 16, {t0}\nv_and_b32 {t0}, 0xffff0000, {t0}")
            a(f"v_lshlrev_b32 {t2}, 16, v{XR+d}\nv_and_b32 {t3}, 0xffff0000, v{XR+d}")
            a(f"v_add_f32 {t1}, {t1}, {t2}\nv_add_f32 {t0}, {t0}, {t3}")
            a(f"v_cvt_pk_bf16_f32 v{S+d}, {t1}, {t0}")
        a(f"s_mul_i32 s64, {sTile}, 18432\ns_lshl_b32 s65, {sU}, 5\ns_add_u32 s64, s64, s65")
        a(f"buffer_store_dwordx2 {vr(S,2)}, {vO}, {OUT}, s64 offen", "out")
    def epoch_advance(self):
        a = self.a
        L = a.label("Lep"); L2 = a.label("Lep")
        a(f"s_cmp_lg_u32 s2, 255\ns_cbranch_scc1 {L}\ns_cmp_lg_u32 {sW}, 3\ns_cbranch_scc1 {L}")
        vm = list(a.vm)
        a(f"s_mov_b32 {sTO}, 0")
        a(f"{L2}:")
        a(f"v_lshlrev_b32 v247, 7, {vLANE}\ns_mov_b32 s64, {FS2_OFF}")
        for i in range(4):
            a(f"buffer_load_dword v{T0+i}, v247, {WS}, s64 offen sc1")
            a(f"s_add_u32 s64, s64, 8192")
        a(f"s_add_u32 {sTO}, {sTO}, 1\ns_cmp_gt_u32 {sTO}, 100000\ns_cbranch_scc1 L_end")
        a.wait_vm()
        a(f"v_xor_b32 v{T0}, {sTAG}, v{T0}\nv_xor_b32 v{T0+1}, {sTAG}, v{T0+1}\nv_xor_b32 v{T0+2}, {sTAG}, v{T0+2}\nv_xor_b32 v{T0+3}, {sTAG}, v{T0+3}")
        a(f"v_or3_b32 v{T0}, v{T0}, v{T0+1}, v{T0+2}\nv_or_b32 v{T0}, v{T0}, v{T0+3}\nv_cmp_ne_u32 vcc, 0, v{T0}")
        a(f"s_cbranch_vccnz {L2}")
        a(f"v_mov_b32 v{T0}, {sE}\nv_mov_b32 v{T0+1}, 0\ns_mov_b64 exec, 1")
        a(f"buffer_store_dword v{T0}, v{T0+1}, {WS}, 0 offen sc1", "_untracked")
        a("s_mov_b64 exec, -1")
        a(f"{L}:")
        a.vm = vm

    def wrap(self, body):
        hdr = open("standalone__mixer_s_mlp__sampling.s.ref").read().split("; Override")[0]
        s = hdr + "; @launch grid=(256,1,1) block=(512,1,1) lds=163840\n"
        s += '.amdgcn_target "amdgcn-amd-amdhsa--gfx950"\n.text\n'
        s += f".globl {KNAME}\n.p2align 8\n.type {KNAME},@function\n{KNAME}:\n"
        s += body
        s += f'.section .rodata,"a"\n.p2align 6\n.amdhsa_kernel {KNAME}\n'
        s += "  .amdhsa_next_free_vgpr 256\n  .amdhsa_next_free_sgpr 102\n  .amdhsa_accum_offset 256\n"
        s += "  .amdhsa_group_segment_fixed_size 0\n  .amdhsa_kernarg_size 64\n  .amdhsa_user_sgpr_count 2\n"
        s += "  .amdhsa_user_sgpr_kernarg_segment_ptr 1\n  .amdhsa_system_sgpr_workgroup_id_x 1\n"
        s += "  .amdhsa_float_denorm_mode_32 3\n.end_amdhsa_kernel\n"
        return s

if __name__ == "__main__":
    import argparse
    p = argparse.ArgumentParser()
    p.add_argument("-o", default="mk.s"); p.add_argument("--stop", type=int, default=99)
    p.add_argument("--stamps", action="store_true"); p.add_argument("--plain", action="store_true"); p.add_argument("--exp", default="")
    p.add_argument("--thr", type=int, default=1); p.add_argument("--fl", type=int, default=16); p.add_argument("--f0", type=int, default=6); p.add_argument("--npre", type=int, default=16); p.add_argument("--hp", type=int, default=0); p.add_argument("--fb", type=int, default=44); p.add_argument("--nsk", type=int, default=4); p.add_argument("--hs", type=int, default=1); p.add_argument("--inf", type=int, default=2); p.add_argument("--w2g", type=int, default=99); p.add_argument("--t4", type=int, default=8)
    args = p.parse_args()
    THR = args.thr; FL = args.fl; F0 = args.f0; NPRE = args.npre; HP = args.hp; FB = args.fb; NSK = args.nsk; HS_ = args.hs; INF = args.inf; W2G = args.w2g; T4 = args.t4
    open(args.o, "w").write(Gen(args.stop, args.stamps, args.plain, args.exp).build())
```

```python
import sys
sys.path.insert(0, "dev")
from asmlib import Asm

KNAME = "standalone__mixer_s_mlp__sampling_kernel"
NB = 159
SCR = NB * 1024
CS3_OFF = 256
KC_OFF = 153 * 1024
NACT = 18
KE = 7
SL = 9216; NSL = 17
EX1 = 11
ROT3 = (0, 4, 10, 14)
T4 = 3; INF = 2; W2G = 4; HS_ = 1; NPRE = 16; F0 = 6; HP = 0; THR = 1; FL = 16; FB = 44; NSK = 4
FS2_OFF = 0x1000; ST_OFF = 0x10000; CSP_OFF = 0x28000
F1_OFF = 0x60000; F2_OFF = 0x80000; F3_OFF = 0xA0000
H_OFF = 0xE0000; X1_OFF = 0x200000; H3_OFF = 0x400000; P_OFF = 0xE00000; STAMP_OFF = 0x3000000
XG = 2304; XT = 9 * XG
FAR = 0x1800000
FRAGSZ = 0x120000
X, W1, W2, W3, W4, OUT, WS, DBG, HS = (f"s[{b}:{b+3}]" for b in (20, 24, 28, 32, 36, 40, 44, 48, 52))
sTAG, sW, sX, sR, sMT, sNT, sM, sJ = (f"s{i}" for i in range(56, 64))
sE = "s3"
sC = [f"s{84+i}" for i in range(5)]
sTAGX = "s80"; sTO = "s89"; sTAG8 = "s82"; sWV = "s81"; sWK = "s83"
vLANE, vG, vJ = "v1", "v2", "v3"
vLB = ["v4", "v5", "v6"]
vL16 = "v4"; vFLG = "v8"; vSTAMP = "v9"; vCTR = "v10"; vSCR = "v11"
T0 = 12
AF0 = 24; NAF = 6
ACC0 = 48
BF0 = 112
DUMMY = "v7"

def vr(b, n=4): return f"v[{b}:{b+n-1}]"
MFMA = "v_mfma_f32_16x16x32_bf16"

def kprime(k, j):
    if k >= 16: return 16 + ((k - 16) ^ (j >> 1))
    d, p = (k >> 2) ^ j, k & 3
    return p if d == 0 else 4 + 3 * p + (d - 1)

class Gen:
    def __init__(self, stop=99, stamps=False, local_plain=False, exp=""):
        self.exp = exp.split(",")
        self.psleep = 0
        for e in self.exp:
            if e.startswith("ps"): self.psleep = int(e[2:])
        self.ld_local = "nt" if "ldnt" in self.exp else ("" if "ldplain" in self.exp else "sc1")
        self.a = Asm(); self.stop = stop; self.stamps = stamps; self.nst = 0
        self.af = 0
        self.st_local = "" if local_plain else "sc1"
    def reset(self, nst=None):
        self.a.vm = []; self.a.lg = []
        if nst is not None: self.nst = nst
    def stamp(self):
        if not self.stamps: return
        a = self.a
        a.wait_lg()
        a(("s_memtime" if "cyc" in self.exp else "s_memrealtime") + " s[90:91]\ns_waitcnt lgkmcnt(0)")
        a(f"v_writelane_b32 {vSTAMP}, s90, {self.nst}")
        self.nst += 1
    def next_af(self):
        b = AF0 + 4 * (self.af % NAF); self.af += 1
        return b
    def lb(self, kb):
        off = kb * 1024
        return vLB[off >> 16], off & 0xffff
    def read_blk(self, n, tag, dst=None):
        b = self.next_af() if dst is None else dst
        v, off = self.lb(n % NB)
        self.a(f"ds_read_b128 {vr(b)}, {v} offset:{off}", tag)
        return b
    def read_tr(self, vbase, off, tag, dst=None):
        b = self.next_af() if dst is None else dst
        self.a(f"ds_read_b64_tr_b16 {vr(b,2)}, {vbase} offset:{off}", tag)
        self.a(f"ds_read_b64_tr_b16 {vr(b+2,2)}, {vbase} offset:{off+2048}", tag)
        return b
    def poll(self, soff, vflag, mask=None, sleep=None):
        a = self.a
        t = f"v{T0}"
        if sleep is None: sleep = self.psleep
        L = a.label("Lpoll"); L2 = a.label("Lpoll")
        a(f"s_mov_b32 {sTO}, 0\ns_branch {L2}")
        a(f"{L}:")
        if sleep: a(f"s_sleep {sleep}")
        a(f"{L2}:")
        a(f"buffer_load_dword {t}, {vflag}, {WS}, {soff} offen sc1")
        a(f"s_add_u32 {sTO}, {sTO}, 1\ns_cmp_gt_u32 {sTO}, 100000\ns_cbranch_scc1 L_end")
        a.wait_vm()
        a(f"v_cmp_ne_u32 vcc, {sTAG}, {t}")
        if mask is not None:
            a(f"s_and_b32 vcc_lo, vcc_lo, {mask}\ns_cbranch_scc1 {L}")
        else:
            a(f"s_cbranch_vccnz {L}")
    def poll_one(self, soff, vflag, val):
        a = self.a
        L = a.label("Lp1"); L2 = a.label("Lp1"); L3 = a.label("Lp1")
        vm = list(a.vm)
        a(f"s_cmp_lg_u32 {sW}, 0\ns_cbranch_scc1 {L}")
        self.poll(soff, vflag)
        a(f"v_mov_b32 v{T0}, {val}\ns_mov_b64 exec, 1")
        a(f"ds_write_b32 {vSCR}, v{T0} offset:32", "sig")
        a("s_mov_b64 exec, -1")
        a.wait_lg()
        a(f"s_branch {L3}")
        a(f"{L}:")
        a(f"s_mov_b32 {sTO}, 0")
        a(f"{L2}:")
        a(f"s_sleep 2\nds_read_b32 v{T0}, {vSCR} offset:32", "ctr")
        a(f"s_add_u32 {sTO}, {sTO}, 1\ns_cmp_gt_u32 {sTO}, 1000000\ns_cbranch_scc1 L_end")
        a.wait_lg()
        a(f"v_readfirstlane_b32 s64, v{T0}")
        a(f"s_cmp_lt_u32 s64, {val}\ns_cbranch_scc1 {L2}")
        a(f"{L3}:")
        a.vm = vm
    def set_flag(self, soff, mods, tags=None, T0=T0):
        a = self.a
        for i in range(4): a(f"v_mov_b32 v{T0+i}, {sTAG if mods == 'sc1' else sTAGX}")
        if mods in ("far", "both"): a(f"s_add_u32 s65, {soff}, {FAR}")
        a.wait_vm(tags)
        a("s_mov_b64 exec, 0xff")
        if mods == "sc1": a(f"buffer_store_dwordx4 {vr(T0)}, {vL16}, {WS}, {soff} offen sc1", "flag")
        if mods in ("near", "both") and not ("far" in self.exp and mods == "both"): a(f"buffer_store_dwordx4 {vr(T0)}, {vL16}, {WS}, {soff} offen", "flag")
        if mods in ("far", "both"): a(f"buffer_store_dwordx4 {vr(T0)}, {vL16}, {WS}, s65 offen sc1", "flag")
        a("s_mov_b64 exec, -1")
    def poll2(self, soff, vflag, same_die, mask=None, hook=None):
        a = self.a
        t = f"v{T0}"
        L = a.label("Lpoll"); L2 = a.label("Lpoll"); L3 = a.label("Lpoll")
        a(f"s_mov_b32 {sTO}, 0\ns_branch {L2}")
        a(f"{L}:")
        if self.psleep: a(f"s_sleep {self.psleep}")
        a(f"{L2}:")
        a(f"s_and_b32 s65, {sTO}, 7\ns_cmp_eq_u32 s65, 7\ns_cselect_b32 s67, {FAR}, 0\ns_add_u32 s65, {soff}, s67")
        a(f"buffer_load_dword {t}, {vflag}, {WS}, s65 offen sc1")
        a(f"s_add_u32 {sTO}, {sTO}, 1\ns_cmp_gt_u32 {sTO}, 100000\ns_cbranch_scc1 L_end")
        a.wait_vm()
        if hook:
            a(f"s_cmp_lg_u32 {sTO}, 5\ns_cbranch_scc1 {L3}")
            a(f"v_mov_b32 v0, {t}")
            hook()
            a(f"v_mov_b32 {t}, v0")
            a(f"{L3}:")
        if same_die: a(f"s_cmp_eq_u32 s67, 0\ns_cselect_b32 s65, {sTAGX}, {sTAG}\ns_cselect_b32 s66, 1, 16")
        else: a(f"s_mov_b32 s65, {sTAG}\ns_mov_b32 s66, 16")
        a(f"v_subrev_u32 {t}, s65, {t}")
        a(f"v_cmp_le_u32 vcc, s66, {t}")
        if mask is not None: a(f"s_and_b32 vcc_lo, vcc_lo, {mask}\ns_cbranch_scc1 {L}")
        else: a(f"s_cbranch_vccnz {L}")
        a.vm = ["flag"] if hook else []
    def signal(self, val):
        a = self.a
        a(f"v_mov_b32 v0, {val}")
        a(f"ds_write_b32 {vCTR}, v0", "sig")
    def dsignal(self, val, extra=0):
        a = self.a
        a(f"s_add_u32 m0, s50, {extra}\nv_mov_b32 v0, {4*val}\ns_mov_b64 exec, 1")
        a("global_load_lds_dword v0, s[48:49]", "dsig")
        a("s_mov_b64 exec, -1")
    def wait_ctr(self, grp, val, one=False, sleep=1, tmp=None):
        a = self.a
        L = a.label("Lw"); L2 = a.label("Lw")
        a(f"s_mov_b32 {sTO}, 0\ns_branch {L2}")
        a(f"{L}:")
        if sleep: a(f"s_sleep {sleep}")
        a(f"{L2}:")
        t = T0 if tmp is None else tmp
        if one:
            a(f"v_xor_b32 v{t+1}, {16 if one is True else one}, {vCTR}")
            a(f"ds_read_b32 v{t}, v{t+1}", "ctr")
        else:
            a(f"ds_read_b128 {vr(t)}, {vSCR} offset:{16*grp}", "ctr")
        a(f"s_add_u32 {sTO}, {sTO}, 1\ns_cmp_gt_u32 {sTO}, 1000000\ns_cbranch_scc1 L_end")
        a.wait_lg()
        if not one:
            a(f"v_min_u32 v{t}, v{t}, v{t+1}\nv_min3_u32 v{t}, v{t}, v{t+2}, v{t+3}")
        a(f"v_readfirstlane_b32 s64, v{t}")
        a(f"s_cmp_lt_u32 s64, {val}\ns_cbranch_scc1 {L}")
    def wait_word(self, off, val):
        a = self.a
        L = a.label("Lw")
        a(f"s_mov_b32 {sTO}, 0")
        a(f"{L}:")
        a(f"ds_read_b32 v{T0}, {vSCR} offset:{off}", "ctr")
        a(f"s_add_u32 {sTO}, {sTO}, 1\ns_cmp_gt_u32 {sTO}, 1000000\ns_cbranch_scc1 L_end")
        a.wait_lg()
        a(f"v_readfirstlane_b32 s64, v{T0}")
        a(f"s_cmp_lt_u32 s64, {val}\ns_cbranch_scc1 {L}")
    def xlane_sum(self, v, t):
        a = self.a
        a(f"v_mov_b32 {t}, {v}\nv_permlane16_swap_b32 {v}, {t}\nv_add_f32 {v}, {v}, {t}")
        a(f"v_mov_b32 {t}, {v}\nv_permlane32_swap_b32 {v}, {t}\nv_add_f32 {v}, {v}, {t}")
    def bf16r(self, v):
        self.a(f"v_cvt_pk_bf16_f32 {v}, {v}, {v}\nv_lshlrev_b32 {v}, 16, {v}")
    def ln_consts(self, vS, vQ, K, t):
        a = self.a
        vNM, vSD, vC1, vC2 = K
        a(f"v_mul_f32 {vS}, 0x3ae38e39, {vS}")
        a(f"v_mul_f32 {t}, {vS}, {vS}")
        a(f"v_mov_b32 {vC1}, 0x3ae38e39")
        a(f"v_fma_f32 {vQ}, {vQ}, {vC1}, -{t}")
        a(f"v_max_f32 {vQ}, 0, {vQ}")
        self.bf16r(vQ)
        a(f"v_add_f32 {vQ}, 0x3727c5ac, {vQ}")
        self.bf16r(vQ)
        a(f"v_sqrt_f32 {vSD}, {vQ}")
        self.bf16r(vSD)
        self.bf16r(vS)
        a(f"v_sub_f32 {vNM}, 0, {vS}")
        a(f"v_rcp_f32 {t}, {vSD}")
        a(f"v_mul_f32 {vC1}, 0xc0135761, {t}")
        a(f"v_mul_f32 {vC2}, {t}, {t}")
        a(f"v_mul_f32 {vC2}, {vC2}, {t}")
        a(f"v_mul_f32 {vC2}, 0xbdd2d3e8, {vC2}")
    def gelu_ops(self, acc, cs, K, t):
        vNM, vSD, vC1, vC2 = K
        return [f"v_fma_f32 {acc}, {cs}, {vNM}, {acc}",
                f"v_mul_f32 {t}, {acc}, {acc}",
                f"v_fma_f32 {t}, {t}, {vC2}, {vC1}",
                f"v_mul_f32 {t}, {t}, {acc}",
                f"v_exp_f32 {t}, {t}",
                f"v_fma_f32 {t}, {t}, {vSD}, {vSD}",
                f"v_rcp_f32 {t}, {t}",
                f"v_mul_f32 {acc}, {acc}, {t}"]
    def gelu4(self, acc0, cs0, K, t0):
        seqs = [self.gelu_ops(f"v{acc0+i}", f"v{cs0+i}", K, f"v{t0+i}") for i in range(4)]
        for k in range(8):
            for s in seqs: self.a(s[k])
    def gelu_pk(self, groups, t0):
        a = self.a
        P = [(acc + 2 * h, cs + 2 * h, K, t0 + 4 * g + 2 * h) for g, (acc, cs, K) in enumerate(groups) for h in range(2)]
        for x, c, K, t in P: a(f"v_pk_fma_f32 {vr(x,2)}, {vr(c,2)}, {vr(K,2)}, {vr(x,2)} op_sel_hi:[1,0,1]")
        for x, c, K, t in P: a(f"v_pk_mul_f32 {vr(t,2)}, {vr(x,2)}, {vr(x,2)}")
        for x, c, K, t in P: a(f"v_pk_fma_f32 {vr(t,2)}, {vr(t,2)}, {vr(K+2,2)}, {vr(K+2,2)} op_sel:[0,1,0] op_sel_hi:[1,1,0]")
        for x, c, K, t in P: a(f"v_pk_mul_f32 {vr(t,2)}, {vr(t,2)}, {vr(x,2)}")
        for x, c, K, t in P: a(f"v_exp_f32 v{t}, v{t}\nv_exp_f32 v{t+1}, v{t+1}")
        for x, c, K, t in P: a(f"v_pk_fma_f32 {vr(t,2)}, {vr(t,2)}, {vr(K,2)}, {vr(K,2)} op_sel:[0,1,1] op_sel_hi:[1,1,1]")
        for x, c, K, t in P: a(f"v_rcp_f32 v{t}, v{t}\nv_rcp_f32 v{t+1}, v{t+1}")
        for x, c, K, t in P: a(f"v_pk_mul_f32 {vr(x,2)}, {vr(x,2)}, {vr(t,2)}")
    def srd(self, name, ptr, nbytes):
        b = int(name[2:name.index(":")]); a = self.a
        a(f"s_mov_b32 s{b}, s{ptr}\ns_mov_b32 s{b+1}, s{ptr+1}\ns_mov_b32 s{b+2}, {nbytes}\ns_mov_b32 s{b+3}, 0x20000")
    def modn(self, s, n):
        self.a(f"s_sub_u32 s65, {s}, {n}\ns_min_u32 {s}, {s}, s65")
    def tr_bases(self, dst, base):
        a = self.a; t0, t1 = f"v{T0}", f"v{T0+1}"
        a(f"v_lshrrev_b32 {t0}, 2, {vLANE}")
        a(f"v_bfe_u32 {t1}, {vLANE}, 3, 2")
        a(f"v_lshlrev_b32 {t0}, 7, {t0}\nv_and_b32 {dst[0]}, 3, {vLANE}\nv_lshl_add_u32 {t0}, {dst[0]}, 3, {t0}")
        a(f"v_add_u32 {t0}, {base}, {t0}")
        for u in range(4):
            a(f"v_xor_b32 {dst[u]}, {u}, {t1}\nv_lshl_add_u32 {dst[u]}, {dst[u]}, 5, {t0}")
    def common_late(self, barrier=True):
        a = self.a
        for i in range(5): a(f"s_mov_b32 {sC[i]}, {4096*i}")
        self.srd(W2, 8, 663552)
        self.srd(OUT, 14, 1179648); self.srd(WS, 18, 0x10000000)
        a(f"s_add_u32 s52, s18, {H_OFF}\ns_addc_u32 s53, s19, 0\ns_mov_b32 s54, {FRAGSZ+FAR}\ns_mov_b32 s55, 0x20000")
        if "tlb" in self.exp:
            L = a.label("Ltlb")
            a(f"s_cmp_lg_u32 {sWV}, 2\ns_cbranch_scc1 {L}")
            a(f"v_mov_b32 v{T0}, 0\ns_mov_b64 exec, 1")
            def touch(srd, so): a(f"buffer_load_dword {DUMMY}, v{T0}, {srd}, {so} offen", "_untracked")
            a(f"s_mov_b32 s64, {ST_OFF}"); touch(WS, "s64")
            a(f"s_mov_b32 s64, {X1_OFF}"); touch(WS, "s64")
            touch(W2, 0)
            a(f"s_mul_i32 s64, {sM}, {8*147456}\ns_add_u32 s64, s64, {H3_OFF}"); touch(WS, "s64")
            a(f"s_add_u32 s64, s64, {8*147456-4}"); touch(WS, "s64")
            a(f"s_mul_i32 s64, {sR}, {9*32*1024}\ns_add_u32 s64, s64, {P_OFF}"); touch(WS, "s64")
            a(f"s_add_u32 s64, s64, {9*32*1024-4}"); touch(WS, "s64")
            for q in range(3):
                a(f"s_mov_b32 s64, {q*0x200000}"); touch(W3, "s64")
            a(f"s_mov_b32 s64, {5308416-4}"); touch(W3, "s64")
            a(f"s_mul_i32 s64, {sX}, 663552"); touch(W4, "s64")
            a(f"s_add_u32 s64, s64, {663552-4}"); touch(W4, "s64")
            touch(OUT, 0)
            a("s_mov_b64 exec, -1")
            a(f"{L}:")
        a(f"v_add_u32 {vLB[1]}, 0x10000, {vLB[0]}\nv_add_u32 {vLB[2]}, 0x20000, {vLB[0]}")
        a(f"v_min_u32 {vFLG}, 17, {vLANE}\nv_lshlrev_b32 {vFLG}, 7, {vFLG}")
        a.wait_lg()
        a("s_waitcnt lgkmcnt(0)")
        a(f"s_add_u32 {sE}, {sE}, 0x10000001\ns_and_b32 {sTAG8}, {sE}, 0xff\ns_mul_i32 {sTAG}, {sE}, 0x9e3779b1\ns_xor_b32 {sTAG}, {sTAG}, 0x5bd1e995")
        def fs(off):
            L = a.label("Lfs")
            a(f"s_cmp_lg_u32 {sWV}, 3\ns_cbranch_scc1 {L}")
            a(f"s_getreg_b32 s65, hwreg(HW_REG_XCC_ID)\ns_and_b32 s65, s65, 15\ns_add_u32 s65, s65, {sTAG}")
            a(f"s_lshl_b32 s64, {sX}, 5\ns_add_u32 s64, s64, {sR}\ns_lshl_b32 s64, s64, 7\ns_add_u32 s64, s64, {off}")
            a(f"v_mov_b32 v{T0}, {sTAG}\nv_mov_b32 v{T0+1}, s65\nv_mov_b32 v{T0+2}, {sTAG}\nv_mov_b32 v{T0+3}, s65\ns_mov_b64 exec, 0xff")
            a(f"buffer_store_dwordx4 {vr(T0)}, {vL16}, {WS}, s64 offen sc1", "_untracked")
            a("s_mov_b64 exec, -1")
            a(f"{L}:")
        self.fs = fs
        a(f"s_getreg_b32 s65, hwreg(HW_REG_XCC_ID)\ns_and_b32 s65, s65, 15\ns_add_u32 {sTAGX}, s65, {sTAG}")
        if "far" in self.exp: a(f"s_and_b32 s65, s2, 15\ns_add_u32 {sTAGX}, s65, {sTAG}")

    def build(self):
        a = self.a
        a("s_cmp_ge_u32 s2, 256\ns_cbranch_scc1 L_end")
        a("s_load_dwordx16 s[4:19], s[0:1], 0")
        if "dbg" in self.exp: a("s_memrealtime s[86:87]\ns_load_dwordx2 s[90:91], s[0:1], 48\ns_waitcnt lgkmcnt(0)\ns_mov_b32 s51, s86")
        a("s_getpc_b64 s[66:67]\nL_pc:")
        a(f"v_and_b32 {vLANE}, 63, v0\nv_lshrrev_b32 {vG}, 6, v0")
        a(f"s_and_b32 {sX}, s2, 7\ns_lshr_b32 {sR}, s2, 3")
        a(f"v_readfirstlane_b32 {sWV}, {vG}")
        a(f"s_lshl_b32 s64, {sR}, 11\nv_lshlrev_b32 v{T0}, 2, v0\nv_add_u32 v{T0}, s64, v{T0}")
        a(f"v_min_u32 v{T0}, L_code_end-L_pc-4, v{T0}")
        a(f"global_load_dword {DUMMY}, v{T0}, s[66:67]", "code")
        a(f"v_lshlrev_b32 {vL16}, 4, {vLANE}\nv_lshrrev_b32 {vG}, 4, {vLANE}\nv_and_b32 {vJ}, 15, {vLANE}")
        a(f"s_and_b32 {sW}, {sWV}, 3\ns_lshl_b32 {sWK}, {sW}, 10")
        a(f"v_mov_b32 {vSTAMP}, 0")
        a(f"s_add_u32 s48, s66, L_tab-L_pc\ns_addc_u32 s49, s67, 0\ns_lshl_b32 s50, {sWV}, 2\ns_add_u32 s50, s50, {SCR}")
        a(f"v_mov_b32 {vSCR}, {SCR}\nv_mov_b32 {vCTR}, s50\nds_write_b32 {vCTR}, {vSTAMP}\nds_write_b32 {vCTR}, {vSTAMP} offset:32")
        a.lg = []
        a(f"s_lshr_b32 {sM}, {sR}, 2\ns_and_b32 {sJ}, {sR}, 3")
        a(f"s_cmp_ge_u32 {sR}, 9\ns_cselect_b32 {sMT}, 1, 0\ns_mul_i32 s64, {sMT}, 9\ns_sub_u32 {sNT}, {sR}, s64")
        a(f"s_cmp_ge_u32 {sR}, {NACT}\ns_cbranch_scc1 L_repack")
        a(f"s_cmp_ge_u32 {sWV}, 4\ns_cbranch_scc1 L_h_act")
        self.c_phaseA()
        a("s_branch L_c_mlp")
        a("L_h_act:")
        self.reset(0); a.vm = ["code"]
        self.h_phaseA()
        a("s_branch L_h_mlp")
        a("L_repack:")
        self.reset(0); a.vm = ["code"]
        self.repack()
        a("L_split:")
        a(f"s_cmp_ge_u32 {sWV}, 4\ns_cbranch_scc1 L_h_mlp")
        a("L_c_mlp:")
        a("s_waitcnt lgkmcnt(0)")
        self.reset(24); a.vm = ["old"] * 4
        if self.stop > 2: self.c_mlp()
        a("s_branch L_fin")
        a("L_h_mlp:")
        a("s_waitcnt lgkmcnt(0)")
        self.reset(24); a.vm = ["old"] * 4
        self.h_mlp()
        a("L_fin:")
        self.reset(63)
        if "dbg" in self.exp:
            a("s_memrealtime s[64:65]\ns_waitcnt lgkmcnt(0)\ns_not_b32 s66, s51\nv_mov_b32 v12, s66\nv_mov_b32 v13, s64\nv_mov_b32 v14, 0\nv_mov_b32 v15, s51\ns_mov_b64 exec, 1")
            a("global_atomic_umax v14, v12, s[90:91]\nglobal_atomic_umax v14, v13, s[90:91] offset:4\nglobal_atomic_umax v14, v15, s[90:91] offset:8")
        if self.stamps:
            self.stamp()
            a(f"s_lshl_b32 s64, s2, 3\ns_add_u32 s64, s64, {sWV}\ns_lshl_b32 s64, s64, 8\ns_add_u32 s64, s64, {STAMP_OFF}")
            a(f"v_lshlrev_b32 v{T0}, 2, {vLANE}")
            a(f"buffer_store_dword {vSTAMP}, v{T0}, {WS}, s64 offen")
        a("L_end:\ns_endpgm")
        a.flush_deferred()
        a(".p2align 7\n.type L_tab,@object\nL_tab:")
        for i in range(0, 64, 8): a(".long " + ", ".join(str(i + k) for k in range(8)))
        a("L_code_end:")
        return self.wrap(a.text())

    def kernarg_wait(self):
        a = self.a
        a("s_waitcnt lgkmcnt(0)")
        a(f"s_load_dword {sE}, s[18:19], 0")
        a("s_barrier")

    STEPS = (((0,), (0, 1)), ((1,), (2, 3)), ((2, 3), (4, 5)), ((4, 5), (6, 7)), ((6, 7), (8, 9)), ((8,), (10, 11)), ((), (12, 13, 14)), ((), (15, 16, 17)))
    NEED = []
    for _xl, _kk in STEPS: NEED.append((NEED[-1] if NEED else 0) + 2 * len(_xl) + len(_kk))
    def ctr_issue(self, grp, dst):
        self.a(f"ds_read_b128 {vr(dst)}, {vSCR} offset:{16*grp}", f"ctrp{dst}")
    def ctr_check(self, grp, dst, val, tmp=None, sleep=1):
        a = self.a
        a.wait_lg(f"ctrp{dst}")
        a(f"v_min_u32 v{dst}, v{dst}, v{dst+1}\nv_min3_u32 v{dst}, v{dst}, v{dst+2}, v{dst+3}")
        a(f"v_readfirstlane_b32 s64, v{dst}")
        a(f"s_cmp_ge_u32 s64, {val}")
        a.slow(lambda: self.wait_ctr(grp, val, tmp=tmp, sleep=sleep))
    def c_phaseA(self):
        a = self.a
        def XF(t, s): return BF0 + 72 * t + 4 * s
        HF = BF0
        t0, t1, t2 = f"v{T0}", f"v{T0+1}", f"v{T0+2}"
        CT = T0 + 8
        ACC = ACC0; CS = ACC0 + 16; SUM = ACC0 + 24; GR = ACC0 + 28; OB = ACC0 + 32; XR = ACC0 + 36; KR = ACC0 + 44; PK = ACC0 + 16
        vXB = [[f"v{ACC0+52+2*t+q}" for q in range(2)] for t in range(2)]
        vT = [[f"v{ACC0+56+2*f+h}" for h in range(2)] for f in range(2)]
        vBP = [f"v{ACC0+60}", f"v{ACC0+61}"]
        vXR = [f"v{T0+4+i}" for i in range(4)]
        a(f"s_lshl_b32 s69, {sX}, 3\ns_lshl_b32 s64, {sMT}, 2\ns_add_u32 s69, s69, s64\ns_add_u32 s69, s69, {sW}")
        a(f"v_lshlrev_b32 {t0}, 6, {vLANE}")
        a(f"s_lshl_b32 s64, {sR}, 2\ns_add_u32 s64, s64, {sW}\ns_lshl_b32 s70, s64, 12\ns_add_u32 s70, s70, {3*32*1152}")
        self.kernarg_wait()
        self.srd(W1, 6, 663552)
        self.stamp()
        a(f"buffer_load_dword {DUMMY}, {t0}, {W1}, s70 offen", "pf")
        if "wstlb" in self.exp:
            a(f"v_mov_b32 {t1}, 256")
            a(f"global_load_dword {DUMMY}, {t1}, s[18:19]", "pf")
        self.srd(X, 4, 1179648); self.srd(W3, 10, 5308416); self.srd(W4, 12, 5308416)
        self.common_late()
        for i in range(4): a(f"v_mov_b32 v{OB+i}, 0x3f803f80")
        a(f"s_and_b32 s68, {sW}, 1\ns_lshr_b32 s67, {sW}, 1")
        a(f"v_lshlrev_b32 {t0}, 7, {vJ}\nv_lshrrev_b32 {t1}, 1, {vJ}")
        for t in range(2):
            a(f"s_xor_b32 s64, {sW}, {t}\ns_lshl_b32 s64, s64, 11\ns_add_u32 s64, s64, {72*1024}")
            for par in range(2):
                a(f"v_add_u32 {t2}, {4*par}, {vG}\nv_xor_b32 {t2}, {t2}, {t1}\nv_lshl_add_u32 {t2}, {t2}, 4, {t0}\nv_add_u32 {vXB[t][par]}, s64, {t2}")
        a(f"v_lshrrev_b32 {t0}, 2, {vLANE}\nv_lshlrev_b32 {t0}, 7, {t0}\nv_and_b32 {t1}, 3, {vLANE}\nv_lshl_add_u32 {t0}, {t1}, 3, {t0}\nv_bfe_u32 {t1}, {vLANE}, 3, 2")
        for f in range(2):
            a(f"s_xor_b32 s64, s67, {f}\ns_lshl_b32 s65, s68, 1\ns_add_u32 s64, s64, s65")
            a(f"v_xor_b32 {t2}, s64, {t1}\nv_lshl_add_u32 {vT[f][0]}, {t2}, 5, {t0}\nv_add_u32 {vT[f][1]}, {9*4096}, {vT[f][0]}")
        a(f"s_lshl_b32 s64, {sW}, 11\ns_lshl_b32 s65, {sNT}, 13\ns_add_u32 s64, s64, s65\ns_add_u32 s64, s64, {72*1024}")
        a(f"v_lshlrev_b32 {t0}, 7, {vJ}\nv_add_u32 {t0}, s64, {t0}\nv_and_b32 {t1}, 1, {vG}\nv_lshl_add_u32 {t0}, {t1}, 3, {t0}")
        a(f"v_lshrrev_b32 {t1}, 1, {vJ}\nv_lshrrev_b32 {t2}, 1, {vG}\nv_xor_b32 {t1}, {t1}, {t2}")
        for u in range(4): a(f"v_xor_b32 {t2}, {2*u}, {t1}\nv_lshl_add_u32 {vXR[u]}, {t2}, 4, {t0}")
        a(f"s_mul_i32 s64, s69, 18\ns_lshl_b32 s65, {sNT}, 1\ns_add_u32 s64, s64, s65\ns_lshl_b32 s77, s64, 10")
        a(f"s_lshl_b32 s64, s68, 10\ns_add_u32 s72, s77, s64")
        a(f"s_mul_i32 s64, s68, {2*18432}\ns_sub_u32 s73, s72, s64\ns_add_u32 s73, s73, 18432")
        a(f"s_lshr_b32 s64, s69, 1\ns_lshl_b32 s76, s64, 12")
        a(f"s_mul_i32 s64, s68, 9\ns_add_u32 s64, s64, {sNT}\ns_lshl_b32 s64, s64, 7\ns_add_u32 s75, s64, s76")
        a(f"s_lshl_b32 s64, {sNT}, 1\ns_add_u32 s64, s64, s68\ns_lshl_b32 s64, s64, 7\ns_add_u32 s71, s64, s76\ns_add_u32 s71, s71, {F1_OFF}")
        a(f"s_mul_i32 s74, s69, 18432")
        MS = [[f"s[{92+4*u+2*t}:{93+4*u+2*t}]" for t in range(2)] for u in range(2)]
        MO = [["s[100:101]", "s[78:79]"], ["s[0:1]", "vcc"]]
        for u in range(2):
            a(f"s_lshl_b32 s64, {sNT}, 2\ns_lshl_b32 s65, s68, 1\ns_add_u32 s64, s64, s65\ns_add_u32 s64, s64, {u}\ns_mul_i32 s64, s64, 7282\ns_lshr_b32 s64, s64, 16")
            a(f"s_lshr_b32 s65, s64, 1\ns_add_u32 s65, s65, 1\ns_sub_u32 s66, 0, s65\ns_bitcmp1_b32 s64, 0\ns_cselect_b32 s65, s66, s65")
            a(f"v_subrev_u32 {t0}, s65, {vJ}")
            a(f"v_and_b32 {t1}, 15, {t0}\nv_lshl_add_u32 {t1}, {vG}, 4, {t1}\nv_lshlrev_b32 {vBP[u]}, 2, {t1}")
            a(f"v_cmp_gt_u32 {MS[u][0]}, 16, {t0}")
            for t in range(2):
                a(f"s_xor_b32 s64, s68, {t}\ns_lshl_b32 s64, s64, 4\nv_add_u32 {t1}, s64, {t0}")
                dst = MS[u][1] if t == 0 else ("s[100:101]" if u == 0 else "s[78:79]")
                a(f"v_cmp_gt_u32 {dst}, 32, {t1}")
        VAL = [[MS[0][1], "s[100:101]"], [MS[1][1], "s[78:79]"]]
        def xread(t, k):
            off = 8192 * (k >> 1)
            if off < 65536: a(f"ds_read_b128 {vr(XF(t,k))}, {vXB[t][k&1]} offset:{off}", f"x{t}_{k}")
            else:
                a(f"v_add_u32 v0, {off}, {vXB[t][k&1]}")
                a(f"ds_read_b128 {vr(XF(t,k))}, v0", f"x{t}_{k}")
        order = [(s, f) for s in range(18) for f in range(2)]
        step_of = {s: i for i, (xl, kk) in enumerate(self.STEPS) for s in kk}
        first_n = {i: 2 * kk[0] for i, (xl, kk) in enumerate(self.STEPS)}
        fr = {}; st = {"done": -1, "nxt": 0}
        xq = []; statq = []
        LOOK = 5
        def xr():
            t, k = xq.pop(0); xread(t, k)
            if t == 0: statq.append(k)
        def half(h):
            n = st["nxt"]; s, f = order[n]
            if h == 0:
                i = step_of[s]
                if i > st["done"]:
                    if i == 0: self.wait_ctr(3, self.NEED[0], sleep=0, tmp=CT); self.stamp()
                    else: self.ctr_check(3, CT, self.NEED[i], tmp=CT, sleep=0)
                    st["done"] = i
                    xq.extend((t, 2 * L + q) for L in self.STEPS[i][0] for q in range(2) for t in range(2))
                while xq and xq[0][1] <= s: xr()
                fr[n] = self.next_af()
            a(f"ds_read_b64_tr_b16 {vr(fr[n]+2*h,2)}, {vT[f][0 if s < 9 else 1]} offset:{(s%9)*4096+2048*h}", f"f{n}")
            if h == 1:
                st["nxt"] += 1
                i = step_of[s]
                if i + 1 < len(self.STEPS) and n == first_n[i + 1] - 2: self.ctr_issue(3, CT)
        for n in range(4): half(0); half(1)
        vS, vQ = f"v{SUM}", f"v{GR}"
        q = Asm(); self.a = q
        q(f"v_and_b32 {t0}, 3, {vJ}")
        for r in range(1, 4):
            q(f"v_cmp_eq_u32 vcc, {r}, {t0}")
            q(f"v_cndmask_b32 {vQ}, {vQ}, v{GR+r}, vcc")
        q(f"v_lshrrev_b32 {t0}, 2, {vJ}\nv_cmp_eq_u32 vcc, {t0}, {vG}")
        q(f"v_cndmask_b32 {vQ}, 0, {vQ}, vcc")
        self.xlane_sum(vQ, t0)
        self.ln_consts(vS, vQ, [f"v{KR+i}" for i in range(4)], t0)
        q(f"s_lshl_b32 s65, {sW}, 8\ns_add_u32 s65, s65, {KC_OFF}\nv_lshl_add_u32 {vXR[0]}, {vJ}, 4, s65\nv_xor_b32 {vXR[1]}, 256, {vXR[0]}")
        q(f"s_lshl_b32 s65, {sW}, 6\nv_lshl_add_u32 {vXR[2]}, {vG}, 4, {vSCR}\nv_add_u32 {vXR[2]}, s65, {vXR[2]}\nv_xor_b32 {vXR[3]}, 128, {vXR[2]}")
        self.a = a
        fill = [i.text for i in q.ins]
        nstat = 0; ready = None
        def slot():
            if xq:
                xr()
                if xq: xr()
            elif ready is not None and fill: a(fill.pop(0), "kw")
        for n, (s, f) in enumerate(order):
            a.wait_lg([f"f{n}", f"x0_{s}", f"x1_{s}"])
            go = st["nxt"] < len(order)
            for t in range(2):
                a(f"{MFMA} {vr(ACC+8*f+4*t)}, {vr(fr[n])}, {vr(XF(t,s))}, {'0' if s == 0 else vr(ACC+8*f+4*t)}")
                if go: half(t)
                else: slot()
                if t == 0: slot()
            if f == 0:
                a(f"{MFMA} {vr(CS)}, {vr(fr[n])}, {vr(OB)}, {'0' if s == 0 else vr(CS)}")
                slot()
            for _ in range(2):
                if len(statq) > (1 if xq else 0):
                    k = statq.pop(0)
                    a.wait_lg(f"x0_{k}")
                    a(f"{MFMA} {vr(SUM)}, {vr(OB)}, {vr(XF(0,k))}, {'0' if k == 0 else vr(SUM)}")
                    slot(); slot()
                    a(f"{MFMA} {vr(GR)}, {vr(XF(0,k))}, {vr(XF(0,k))}, {'0' if k == 0 else vr(GR)}")
                    slot()
                    nstat += 1
            if st["done"] >= 5 and not xq and "xr" not in st:
                for uu in range(4): a(f"ds_read_b64 {vr(XR+2*uu,2)}, {vXR[uu]}", "xr")
                st["xr"] = n
            if "xr" in st and n == st["xr"] + 1:
                a.wait_lg("xr")
                if "w2late" not in self.exp: self.dsignal(1)
            if nstat == 18 and ready is None:
                ready = n
                self.stamp()
        while fill: a(fill.pop(0), "kw")
        a(f"ds_write_b128 {vXR[0]}, {vr(KR)}", "csw")
        a(f"ds_write_b128 {vXR[2]}, {vr(CS)} offset:{CS3_OFF}", "csw")
        if "w2late" not in self.exp: a.wait_vm("dsig")
        self.signal(2)
        self.stamp()
        TB = XF(0, 0)
        self.gelu_pk([(ACC, CS, KR)], TB)
        self.wait_ctr(0, 2, sleep=0)
        a(f"ds_read_b128 {vr(KR+4)}, {vXR[1]}", "rk")
        a(f"ds_read_b128 {vr(CS+4)}, {vXR[3]} offset:{CS3_OFF}", "rk")
        a.wait_lg()
        self.gelu_pk([(ACC + 4, CS, KR + 4), (ACC + 8, CS + 4, KR), (ACC + 12, CS + 4, KR + 4)], TB)
        P = TB + 20; R = TB + 28; O = KR
        for f in range(2):
            for t in range(2):
                for d in range(2): a(f"v_cvt_pk_bf16_f32 v{P+4*f+2*t+d}, v{ACC+8*f+4*t+2*d}, v{ACC+8*f+4*t+2*d+1}")
        L = a.label("Lsw")
        a(f"s_cmp_eq_u32 s67, 0\ns_cbranch_scc1 {L}")
        for e in range(4): a(f"v_swap_b32 v{P+e}, v{P+4+e}")
        a(f"{L}:")
        for u in range(2):
            for e in range(4): a(f"ds_bpermute_b32 v{R+4*u+e}, {vBP[u]}, v{P+4*u+e}", "bp")
        self.signal(3)
        a.wait_lg()
        for t in range(2):
            for u in range(2):
                for d in range(2):
                    o = O + 4 * t + 2 * u + d
                    a(f"v_cndmask_b32 v{o}, v{R+4*u+2*(1-t)+d}, v{R+4*u+2*t+d}, {MS[u][0]}")
                    a(f"v_cndmask_b32 v{o}, 0, v{o}, {VAL[u][t]}")
            a(f"buffer_store_dwordx4 {vr(O+4*t)}, {vL16}, {HS}, {'s72' if t == 0 else 's73'} offen", "hst")
        self.stamp()
        vT2 = [[f"v{ACC0+52+2*u+h}" for h in range(2)] for u in range(4)]; vSH = f"v{ACC0+60}"
        a(f"v_lshrrev_b32 {t0}, 2, {vLANE}\nv_lshlrev_b32 {t0}, 7, {t0}\nv_and_b32 {t1}, 3, {vLANE}\nv_lshl_add_u32 {t0}, {t1}, 3, {t0}\nv_bfe_u32 {t1}, {vLANE}, 3, 2\nv_add_u32 {t0}, {72*1024}, {t0}")
        for u in range(4): a(f"v_xor_b32 {t2}, {u}, {t1}\nv_lshl_add_u32 {vT2[u][0]}, {t2}, 5, {t0}\nv_add_u32 {vT2[u][1]}, {9*4096}, {vT2[u][0]}")
        a(f"v_add_u32 {vSH}, s74, {vL16}")
        self.ctr_issue(1, CT)
        self.set_flag("s71", "near")
        a(f"s_add_u32 s72, s72, {FAR}\ns_add_u32 s73, s73, {FAR}")
        a("s_mov_b32 s70, 0")
        def far_st(tag):
            for t in range(2): a(f"buffer_store_dwordx4 {vr(O+4*t)}, {vL16}, {HS}, {'s72' if t == 0 else 's73'} offen sc1", tag)
        def far_copy():
            far_st("hfar")
            self.set_flag("s71", "far")
            a("s_mov_b32 s70, 1")
        self.stamp()
        order = [(s, u) for s in range(18) for u in range(4)]
        pool = [BF0 + 72 + 4 * i for i in range(18)] + [AF0 + 4 * i for i in range(6)]
        fr = {}; nx = [0]
        def rd2():
            n = nx[0]; s, u = order[n]
            fr[n] = self.read_tr(vT2[u][0 if s < 9 else 1], (s % 9) * 4096, f"f{n}", dst=pool.pop(0)); nx[0] += 1
        self.ctr_check(1, CT, 7, tmp=CT, sleep=0)
        while pool: rd2()
        a(f"s_add_u32 s64, s76, {F1_OFF}")
        self.poll2("s64", vFLG, True, hook=far_copy)
        a(f"v_add_u32 {vSH}, s67, {vSH}")
        self.stamp()
        for s in range(18):
            a(f"buffer_load_dwordx4 {vr(HF+4*s)}, {vSH}, {HS}, {sC[s>>2]} offen offset:{(s&3)*1024} sc1", f"h{s}")
        self.stamp()
        for n, (s, u) in enumerate(order):
            if u == 0: a.wait_vm(f"h{s}")
            a.wait_lg(f"f{n}")
            a(f"{MFMA} {vr(ACC+4*u)}, {vr(fr[n])}, {vr(HF+4*s)}, {'0' if s == 0 else vr(ACC+4*u)}")
            pool.append(fr[n])
            if nx[0] < len(order): rd2()
        self.stamp()
        vS, vQ = f"v{SUM}", f"v{SUM+1}"
        a(f"v_mov_b32 {vS}, 0\nv_mov_b32 {vQ}, 0")
        a(f"s_mul_i32 s64, s69, 9\ns_add_u32 s64, s64, {sNT}\ns_mul_i32 s64, s64, {XG}\ns_add_u32 s64, s64, {X1_OFF}")
        for d in range(8):
            t3 = f"v{T0+3}"
            a(f"v_cvt_pk_bf16_f32 {t0}, v{ACC+2*d}, v{ACC+2*d+1}")
            a(f"v_lshlrev_b32 {t1}, 16, {t0}\nv_and_b32 {t0}, 0xffff0000, {t0}")
            a(f"v_lshlrev_b32 {t2}, 16, v{XR+d}\nv_and_b32 {t3}, 0xffff0000, v{XR+d}")
            a(f"v_add_f32 {t1}, {t1}, {t2}\nv_add_f32 {t0}, {t0}, {t3}")
            a(f"v_cvt_pk_bf16_f32 v{PK+d}, {t1}, {t0}")
            if d & 3 == 3: a(f"buffer_store_dwordx4 {vr(PK+d-3)}, {vL16}, {WS}, s64 offen offset:{1024*(d>>2)} sc1", "x1st")
        a(f"v_bitop3_b32 v{T0+4}, v{PK}, v{PK+1}, {sTAG} bitop3:0x96")
        for h in range(1, 4): a(f"v_bitop3_b32 v{T0+4}, v{T0+4}, v{PK+2*h}, v{PK+2*h+1} bitop3:0x96")
        a(f"v_lshlrev_b32 {t0}, 2, {vLANE}")
        a(f"buffer_store_dword v{T0+4}, {t0}, {WS}, s64 offen offset:2048 sc1", "x1st")
        for d in range(8):
            a(f"v_dot2_f32_bf16 {vS}, v{PK+d}, v{OB}, {vS}")
            a(f"v_dot2_f32_bf16 {vQ}, v{PK+d}, v{PK+d}, {vQ}")
        self.xlane_sum(vS, t0); self.xlane_sum(vQ, t0)
        a(f"s_lshr_b32 s64, s69, 1\ns_mul_i32 s64, s64, 12\ns_add_u32 s64, s64, {sNT}\ns_lshl_b32 s64, s64, 8")
        a(f"s_and_b32 s65, s69, 1\ns_lshl_b32 s65, s65, 7\ns_add_u32 s64, s64, s65\ns_add_u32 s64, s64, {ST_OFF}")
        a(f"v_lshlrev_b32 {t0}, 3, {vJ}\nv_mov_b32 {t1}, {sTAG8}\ns_mov_b32 s65, 0xff")
        a(f"v_bfi_b32 {vS}, s65, {t1}, {vS}\nv_bfi_b32 {vQ}, s65, {t1}, {vQ}")
        a("s_mov_b64 exec, 0xffff")
        a(f"buffer_store_dwordx2 {vr(SUM,2)}, {t0}, {WS}, s64 offen sc1", "x1st")
        a("s_mov_b64 exec, -1")
        self.signal(6)
        self.stamp()
        far_st("hfar")
        a("s_mov_b32 s101, s71")

    def h_phaseA(self):
        a = self.a
        vD1, vD2, vDX, vDX2 = "v48", "v49", "v50", "v51"
        vXB = [f"v{52+e}" for e in range(4)]; OB = 56; SUM = 60; GR = 64; KR = 68; XH = 112
        t0, t1, t2 = f"v{T0}", f"v{T0+1}", f"v{T0+2}"
        ks = 32 * 1152
        a(f"s_lshl_b32 s69, {sX}, 3\ns_lshl_b32 s64, {sMT}, 2\ns_add_u32 s69, s69, s64\ns_add_u32 s69, s69, {sW}\ns_mul_i32 s71, s69, 18432")
        a(f"v_lshrrev_b32 {t0}, 3, {vLANE}\nv_lshrrev_b32 {t1}, 4, {vLANE}\nv_and_b32 {t2}, 7, {vLANE}\nv_xor_b32 {t1}, {t1}, {t2}")
        a(f"v_mul_u32_u24 {vDX}, 1152, {t0}\nv_lshl_add_u32 {vDX}, {t1}, 4, {vDX}")
        a(f"v_xor_b32 {vDX2}, 64, {vDX}\nv_add_u32 {vDX2}, {8*1152}, {vDX2}")
        a(f"s_lshl_b32 s64, {sW}, 3\nv_add_u32 {t0}, s64, {t0}")
        a(f"v_and_b32 {t1}, 6, {t0}\nv_xor_b32 {t1}, {t1}, {t2}\nv_lshlrev_b32 {t1}, 4, {t1}")
        a(f"v_mul_u32_u24 {vD2}, 1152, {t0}\nv_add_u32 {vD2}, {vD2}, {t1}")
        a(f"v_and_b32 {t2}, 12, {t0}\nv_lshlrev_b32 {t2}, 1, {t2}\nv_and_b32 {vD1}, 3, {t0}\nv_add_u32 {t2}, {t2}, {vD1}")
        a(f"v_lshrrev_b32 {t0}, 4, {t0}\nv_lshl_add_u32 {t0}, {t0}, 2, {t2}")
        a(f"v_mul_u32_u24 {vD1}, 1152, {t0}\nv_add_u32 {vD1}, {vD1}, {t1}")
        a(f"s_lshl_b32 s79, {sNT}, 7\ns_mov_b32 s70, s79\ns_lshl_b32 s72, {sW}, 11\ns_add_u32 s72, s72, {72*1024}")
        self.kernarg_wait()
        self.srd(X, 4, 1179648); self.srd(W1, 6, 663552)
        self.stamp()
        n = 0
        vPG = "v52"
        def after():
            nonlocal n
            n += 1
            if n == 8:
                self.srd(W3, 10, 5308416); self.srd(W4, 12, 5308416)
                self.common_late()
                self.stamp()
            if n in self.NEED: self.dsignal(n, 32)
        for i, (xl, kk) in enumerate(self.STEPS):
            for L in xl:
                a(f"s_add_u32 m0, s72, {8192*L}")
                a(f"buffer_load_dwordx4 {vDX}, {X}, s71 offen lds", "ld"); after()
                a(f"s_add_u32 m0, s72, {8192*L+1024}")
                a(f"buffer_load_dwordx4 {vDX2}, {X}, s71 offen lds", "ld"); after()
                a(f"s_add_u32 s71, s71, 128")
            for s in kk:
                a(f"s_add_u32 m0, {sWK}, {4096*s}")
                a(f"buffer_load_dwordx4 {vD1}, {W1}, s70 offen lds", "ld"); after()
                a(f"s_add_u32 s70, s70, {ks}")
        if "w2own" in self.exp:
            a(f"s_lshl_b32 s64, {sR}, 2\ns_add_u32 s64, s64, {sW}\ns_mul_i32 s64, s64, 9216\nv_lshlrev_b32 {t0}, 7, {vLANE}\nv_and_b32 {t1}, 1023, {t0}")
            a(f"buffer_load_dword {DUMMY}, {t0}, {W2}, s64 offen", "pf")
            a(f"s_add_u32 s64, s64, 8192")
            a(f"buffer_load_dword {DUMMY}, {t1}, {W2}, s64 offen", "pf")
        self.stamp()
        self.wait_ctr(0, 3 if "w2late" in self.exp else 1, sleep=1)
        a(f"s_mov_b32 s70, s79")
        for s in range(18):
            a(f"s_add_u32 m0, {sWK}, {72*1024+4096*s}")
            a(f"buffer_load_dwordx4 {vD2}, {W2}, s70 offen lds", "w2")
            a(f"s_add_u32 s70, s70, {ks}")
            if s % W2G == W2G - 1: a(f"s_waitcnt vmcnt({INF})")
        self.dsignal(7)
        self.stamp()

    def repack(self):
        a = self.a
        a(f"s_sub_u32 s67, {sR}, {NACT}\ns_lshl_b32 s68, s67, 3\ns_add_u32 s68, s68, {sWV}")
        a(f"s_lshl_b32 s69, {sWV}, 13")
        vR, vCK = "v48", "v49"
        a(f"v_lshrrev_b32 {vR}, 3, {vLANE}")
        a(f"v_and_b32 v{T0}, 6, {vR}\nv_and_b32 {vCK}, 7, {vLANE}\nv_xor_b32 {vCK}, {vCK}, v{T0}\nv_lshlrev_b32 {vCK}, 4, {vCK}")
        a(f"s_lshl_b32 s70, s68, 10\ns_and_b32 s71, s70, 0x7fff\ns_add_u32 s71, s71, {112*1024}\ns_mul_i32 s72, {sX}, 147456")
        self.kernarg_wait()
        self.srd(X, 4, 1179648); self.srd(W1, 6, 663552); self.srd(W2, 8, 663552)
        self.stamp()
        DUM = vr(252)
        a(f"s_add_u32 s64, s70, s72")
        a(f"buffer_load_dwordx4 {DUM}, {vL16}, {X}, s64 offen", "pf")
        a(f"s_add_u32 s64, s71, s72")
        a(f"buffer_load_dwordx4 {DUM}, {vL16}, {X}, s64 offen", "pf")
        a(f"s_add_u32 s64, s70, {11*32*1152}")
        for i in range(3):
            a(f"buffer_load_dwordx4 {DUM}, {vL16}, {W1}, s64 offen", "pf")
            a(f"s_add_u32 s64, s64, {112*1024}")
        self.srd(W3, 10, 5308416); self.srd(W4, 12, 5308416)
        self.common_late()
        a.wait_vm()
        Lt = a.label("Ltc")
        a(f"s_mul_i32 s73, {sWV}, 14\ns_add_u32 s73, s73, s67\ns_lshl_b32 s64, s73, 12\nv_lshlrev_b32 v{T0}, 6, {vLANE}")
        a(f"s_cmp_ge_u32 s73, 92\ns_cbranch_scc1 {Lt}")
        a(f"s_add_u32 s65, s64, s72\ns_add_u32 s65, s65, {H_OFF}")
        def sel(lo, expr, base):
            a(expr + f"\ns_add_u32 s66, s66, {(base - lo*4096) & 0xffffffff}\ns_cmp_ge_u32 s73, {lo}\ns_cselect_b32 s65, s66, s65")
        sel(36, f"s_lshl_b32 s66, {sX}, 14\ns_add_u32 s66, s66, s64", F1_OFF)
        a(f"s_sub_u32 s66, s73, 40\ns_lshl_b32 s66, s66, 15\ns_lshl_b32 s74, {sX}, 12\ns_add_u32 s66, s66, s74\ns_add_u32 s66, s66, {F3_OFF}\ns_cmp_ge_u32 s73, 40\ns_cselect_b32 s65, s66, s65")
        sel(48, f"s_mul_i32 s66, {sX}, {8*XT}\ns_add_u32 s66, s66, s64", X1_OFF)
        sel(89, f"s_mul_i32 s66, {sX}, 12288\ns_add_u32 s66, s66, s64", ST_OFF)
        a(f"buffer_load_dword {DUMMY}, v{T0}, {WS}, s65 offen sc1", "_untracked")
        a(f"{Lt}:")
        for i in range(0 if "w2own" in self.exp else 6):
            a(f"buffer_load_dwordx4 {DUM}, {vL16}, {W2}, s70 offen", "pf")
            a(f"s_add_u32 s70, s70, {112*1024}")
        if "xtlb" in self.exp:
            Lt = a.label("Ltl")
            a(f"s_cmp_lg_u32 {sWV}, 7\ns_cbranch_scc1 {Lt}")
            a(f"v_lshlrev_b32 v{T0}, 20, {vLANE}\ns_mov_b64 exec, 0x0fffffff")
            a(f"s_cmp_lg_u32 s67, 13\ns_cbranch_scc1 {Lt}a")
            a(f"buffer_load_dword {DUMMY}, v{T0}, {WS}, 0 offen sc1", "_untracked")
            a(f"{Lt}a:")
            a(f"s_cmp_lg_u32 s67, 12\ns_cbranch_scc1 {Lt}b")
            a(f"buffer_load_dword {DUMMY}, v{T0}, {OUT}, 0 offen sc1", "_untracked")
            a(f"buffer_load_dword {DUMMY}, v{T0}, {W4}, 0 offen", "_untracked")
            a(f"{Lt}b:")
            a("s_mov_b64 exec, -1")
            a(f"{Lt}:")
        a("s_barrier")
        Lno = a.label("Lnj")
        a(f"s_cmp_ge_u32 {sWV}, 4\ns_cbranch_scc1 {Lno}\ns_waitcnt vmcnt(0)\ns_cmp_lt_u32 {sR}, 20\ns_cbranch_scc1 {Lno}")
        vm0 = list(a.vm)
        t0, t1 = f"v{T0}", f"v{T0+1}"
        a(f"s_sub_u32 s70, {sM}, 5\ns_mul_i32 s64, s70, {6*SL}\ns_lshl_b32 s65, {sW}, 5\ns_add_u32 s65, s65, s64")
        a(f"v_lshrrev_b32 {t0}, 2, {vLANE}\nv_mul_u32_u24 v52, 288, {t0}\nv_and_b32 {t0}, 3, {vLANE}\nv_lshl_add_u32 v52, {t0}, 3, v52")
        a(f"v_add_u32 v53, s65, v52\nv_add_u32 v54, s64, v52")
        a(f"s_cmp_eq_u32 s70, 2\ns_cselect_b32 s66, {17*SL}, 0\ns_sub_u32 s66, {5*SL}, s66\nv_add_u32 v55, s66, v53\nv_add_u32 v56, s66, v54")
        for i in range(4): a(f"v_mov_b32 v{136+i}, 0x3f803f80")
        a(f"s_mul_i32 s64, {sX}, 3\ns_add_u32 s64, s64, s70\ns_mul_i32 s64, s64, 2304\ns_mul_i32 s65, {sJ}, 576\ns_add_u32 s64, s64, s65\ns_add_u32 s72, s64, {CSP_OFF}\ns_lshl_b32 s65, {sW}, 6\ns_add_u32 s71, s72, s65")
        a(f"v_mov_b32 v{T0+4}, {sTAG8}\ns_mov_b32 s73, 0xff\nv_lshlrev_b32 v{T0+5}, 4, {vG}")
        self.wait_ctr(1, 11, sleep=4)
        self.stamp()
        for q, (va, vb, uo) in enumerate((("v53", "v55", 0), ("v53", "v55", 128), ("v54", "v56", 256))):
            for k in range(6):
                b = 60 + 4 * k
                v = va if k < 5 else vb
                a(f"ds_read_b64_tr_b16 {vr(b,2)}, {v} offset:{(k%5)*SL+uo}", f"r{k}")
                a(f"ds_read_b64_tr_b16 {vr(b+2,2)}, {v} offset:{(k%5)*SL+uo+4608}", f"r{k}")
            for k in range(6):
                a.wait_lg(f"r{k}")
                a(f"{MFMA} {vr(140+4*q)}, {vr(60+4*k)}, {vr(136)}, {'0' if k == 0 else vr(140+4*q)}")
        for e in range(12): a(f"v_bfi_b32 v{140+e}, s73, v{T0+4}, v{140+e}")
        a("s_mov_b32 exec_lo, 0x00010001\ns_mov_b32 exec_hi, 0x00010001")
        a(f"buffer_store_dwordx4 {vr(140)}, v{T0+5}, {WS}, s71 offen sc1", "st")
        a(f"buffer_store_dwordx4 {vr(144)}, v{T0+5}, {WS}, s71 offen offset:256 sc1", "st")
        a(f"buffer_store_dwordx4 {vr(148)}, v{T0+5}, {WS}, s72 offen offset:512 sc1", "st")
        a("s_mov_b64 exec, -1")
        a(f"{Lno}:")
        a.vm = vm0; a.lg = []
        self.nst = 2
        a("s_mov_b32 s101, 0")
        self.signal(10)
        a.wait_lg()
        self.stamp()

    def load_stats(self, R, vT8):
        a = self.a
        va, vb = f"v{R+12}", f"v{R+13}"; t0 = f"v{T0}"
        a(f"v_lshl_add_u32 {va}, {vG}, 5, {vJ}\nv_lshlrev_b32 {va}, 3, {va}\nv_lshlrev_b32 {vb}, 3, {vJ}")
        a(f"s_lshl_b32 s64, {sM}, 2\ns_add_u32 s64, s64, {sW}\ns_mul_i32 s64, s64, 3072\ns_add_u32 s64, s64, {ST_OFF}")
        L = a.label("Lst")
        a(f"s_mov_b32 {sTO}, 0")
        a(f"{L}:")
        for tt in range(2):
            for q in range(3):
                a(f"buffer_load_dwordx2 {vr(R+6*tt+2*q,2)}, {va if q < 2 else vb}, {WS}, s64 offen offset:{1024*q+128*tt} sc1", "st")
        a(f"s_add_u32 {sTO}, {sTO}, 1\ns_cmp_gt_u32 {sTO}, 100000\ns_cbranch_scc1 L_end")
        a.wait_vm()
        a(f"v_xor_b32 {t0}, v{R}, {vT8}")
        for e in range(1, 12): a(f"v_bitop3_b32 {t0}, {t0}, v{R+e}, {vT8} bitop3:0xf6")
        a(f"v_and_b32 {t0}, 0xff, {t0}\nv_cmp_ne_u32 vcc, 0, {t0}")
        a(f"s_cbranch_vccnz {L}")
        for e in range(12): a(f"v_and_b32 v{R+e}, 0xffffff00, v{R+e}")
    def finish_stats(self, K, R):
        a = self.a
        for c in range(2):
            a(f"v_add_f32 v{R+c}, v{R+c}, v{R+2+c}")
            self.xlane_sum(f"v{R+c}", f"v{T0}")
            a(f"v_add_f32 v{R+c}, v{R+c}, v{R+4+c}")
        self.ln_consts(f"v{R}", f"v{R+1}", K, f"v{T0}")
    def h3_base(self, dst):
        self.a(f"s_lshl_b32 s64, {sM}, 3\ns_lshl_b32 s65, {sW}, 1\ns_add_u32 s64, s64, s65\ns_lshl_b32 s64, s64, 3\ns_add_u32 s64, s64, {sX}")
        self.a(f"s_mul_i32 s64, s64, 18432\ns_add_u32 {dst}, s64, {H3_OFF}")
    def f3_base(self, dst):
        self.a(f"s_lshl_b32 s64, {sM}, 3\ns_add_u32 s64, s64, {sX}\ns_lshl_b32 s64, s64, 2\ns_add_u32 s64, s64, {sW}\ns_lshl_b32 s64, s64, 10\ns_add_u32 {dst}, s64, {F3_OFF}")

    def gelu_tile(self, acc, CSB, K, dst, vo, vo8, sPair, sSingle, sFlag, between=None):
        a = self.a
        t1 = f"v{T0+1}"
        a(f"v_lshl_add_u32 v0, {vG}, 4, {vSCR}")
        for u in range(2): a(f"ds_read_b128 {vr(CSB+4*u)}, v0 offset:{CS3_OFF+64*u}", f"cs{u}")
        for u in range(9):
            a.wait_lg(f"cs{u}")
            self.gelu4(acc(u), CSB + 4 * (u & 1), K, T0)
            if u + 2 < 9:
                a(f"v_lshl_add_u32 v0, {vG}, 4, {vSCR}")
                a(f"ds_read_b128 {vr(CSB+4*(u&1))}, v0 offset:{CS3_OFF+64*(u+2)}", f"cs{u+2}")
            p = u >> 1
            for d in range(2): a(f"v_cvt_pk_bf16_f32 v{dst(p)+2*(u&1)+d}, v{acc(u)+2*d}, v{acc(u)+2*d+1}")
            if u & 1: a(f"buffer_store_dwordx4 {vr(dst(p))}, {vo}, {WS}, {sPair} offen offset:{1024*p} sc1", f"h3_{p>>1}")
            if u == 8: a(f"buffer_store_dwordx2 {vr(dst(4),2)}, {vo8}, {WS}, {sSingle} offen sc1", "h3_1")
            if between: between(u)
            if u == 8: self.set_flag(sFlag, "both", "h3_0")
    def c_mlp(self):
        a = self.a
        t0, t1 = f"v{T0}", f"v{T0+1}"
        vX2, vH2, vF3, vEX = (f"v{T0+4+i}" for i in range(4))
        vA = ["v5", "v6", "v8"]
        CT = T0
        ACC = 40
        vL8 = [vX2, DUMMY]
        def B(k, tt): return BF0 + 8 * k + 4 * tt
        a(f"v_add_u32 {vX2}, {XT}, {vL16}\nv_add_u32 {vH2}, 147456, {vL16}")
        a(f"v_min_u32 {vF3}, 7, {vLANE}\nv_lshlrev_b32 {vF3}, 7, {vF3}")
        a(f"s_mul_i32 s64, {sW}, {13*1024}\ns_add_u32 s64, s64, {EX1*SL}\nv_add_u32 {vEX}, s64, {vL16}")
        a(f"s_lshl_b32 s64, {sM}, 3\ns_lshl_b32 s65, {sW}, 1\ns_add_u32 s64, s64, s65\ns_mul_i32 s64, s64, {XT}\ns_add_u32 s68, s64, {X1_OFF}")
        self.rot3("s69"); a("s_lshl_b32 s69, s69, 10")
        self.h3_base("s70")
        for d in range(4): a(f"s_xor_b32 s64, {sJ}, {d}\ns_lshl_b32 s64, s64, 12\ns_add_u32 s{71+d}, s64, s70")
        for e in range(2): a(f"s_lshr_b32 s64, {sJ}, 1\ns_xor_b32 s64, s64, {e}\ns_add_u32 s64, s64, 16\ns_lshl_b32 s64, s64, 10\ns_add_u32 s{75+e}, s64, s70")
        self.f3_base("s77")
        a(f"s_lshl_b32 s64, {sM}, 2\ns_add_u32 s64, s64, {sW}\ns_mul_i32 s64, s64, 3072\ns_add_u32 s78, s64, {ST_OFF}")
        a(f"v_lshrrev_b32 {t0}, 2, {vLANE}\nv_mul_u32_u24 {vA[0]}, 288, {t0}\nv_and_b32 {t0}, 3, {vLANE}\nv_lshl_add_u32 {vA[0]}, {t0}, 3, {vA[0]}")
        a(f"v_add_u32 {vA[1]}, {6*SL}, {vA[0]}")
        a(f"s_lshl_b32 s64, s69, 0\ns_lshr_b32 s64, s64, 3\nv_add_u32 {vFLG}, s64, {vFLG}\nv_subrev_u32 {t0}, {18*128}, {vFLG}\nv_min_u32 {vFLG}, {vFLG}, {t0}")
        a(f"s_lshr_b32 s66, s69, 11")
        for g in range(9):
            a(f"s_mul_i32 s64, s66, {XG}\ns_add_u32 s{92+g}, s64, s68\ns_add_u32 s66, s66, 1"); self.modn("s66", 9)
        a(f"v_lshlrev_b32 {DUMMY}, 2, {vLANE}\nv_add_u32 {vEX}, {XT}, {DUMMY}")
        CKR = [B(9, 0), B(11, 0), B(13, 0), B(15, 0), B(17, 0), B(1, 0), B(2, 0), B(3, 0), B(4, 0)]
        def hint(mask):
            L = a.label("Lpoll"); L2 = a.label("Lpoll")
            a(f"s_mov_b32 {sTO}, 0\ns_branch {L2}")
            a(f"{L}:")
            a(f"s_sleep {HS_}")
            a(f"{L2}:")
            a(f"buffer_load_ubyte {t0}, {vFLG}, {WS}, s78 offen sc1")
            a(f"s_add_u32 {sTO}, {sTO}, 1\ns_cmp_gt_u32 {sTO}, 100000\ns_cbranch_scc1 L_end")
            a.wait_vm()
            a(f"v_cmp_ne_u32 vcc, {sTAG8}, {t0}")
            if mask == 0xf:
                Lf = a.label("Lff")
                a(f"s_cmp_eq_u32 s101, 0\ns_cbranch_scc1 {Lf}")
                self.set_flag("s101", "far", "none")
                a(f"s_mov_b32 s101, 0")
                a(f"{Lf}:")
                a.vm = []
            a(f"s_and_b32 s66, vcc_lo, 0x3ffff\ns_and_b32 vcc_lo, vcc_lo, {mask}\ns_cbranch_scc1 {L}")
        def grp_ops(g, tag):
            o = []
            for tt in range(2): o.append((f"buffer_load_dword v{CKR[g]+tt}, {DUMMY if tt == 0 else vEX}, {WS}, s{92+g} offen offset:2048 sc1", tag))
            for q in range(2):
                for tt in range(2): o.append((f"buffer_load_dwordx4 {vr(B(2*g+q,tt))}, {vL16 if tt == 0 else vX2}, {WS}, s{92+g} offen offset:{1024*q} sc1", tag))
            return o
        def chk_ops(g):
            o = []
            for tt in range(2):
                t = f"v{CKR[g]+tt}"
                for q in range(2):
                    b = B(2 * g + q, tt)
                    o += [f"v_bitop3_b32 {t}, {t}, v{b}, v{b+1} bitop3:0x96", f"v_bitop3_b32 {t}, {t}, v{b+2}, v{b+3} bitop3:0x96"]
            o += [f"v_bitop3_b32 v{CKR[g]}, v{CKR[g]}, v{CKR[g]+1}, {sTAG} bitop3:0x7e", f"v_cmp_eq_u32 vcc, 0, v{CKR[g]}"]
            return o
        def chk_branch(g):
            a("s_cmp_eq_u64 vcc, -1")
            def retry():
                L = a.label("Lxr")
                a(f"s_mov_b32 {sTO}, 0")
                a(f"{L}:")
                a(f"s_add_u32 {sTO}, {sTO}, 1\ns_cmp_gt_u32 {sTO}, 100000\ns_cbranch_scc1 L_end")
                for o in grp_ops(g, "r"): a(*o)
                a.wait_vm()
                for o in chk_ops(g): a(o)
                a(f"s_cmp_eq_u64 vcc, -1\ns_cbranch_scc0 {L}")
            a.slow(retry)
        self.stamp()
        self.wait_ctr(1, 12, sleep=2)
        hint(0xf)
        self.stamp()
        for g in range(2):
            for o in grp_ops(g, f"b{g}"): a(*o)
        self.fs(FS2_OFF)
        Lh = a.label("Lh2")
        vm = list(a.vm)
        a(f"s_cmp_eq_u32 s66, 0\ns_cbranch_scc1 {Lh}")
        hint(0x3ffff)
        a(f"{Lh}:")
        a.vm = vm
        a(f"v_add_u32 {vA[2]}, {12*SL}, {vA[0]}")
        for g in range(2, 4):
            for o in grp_ops(g, f"b{g}"): a(*o)
        a.wait_vm("b0")
        for o in chk_ops(0): a(o)
        chk_branch(0)
        self.dsignal(11)
        self.stamp()
        LOOK = 6
        base_pool = [20, 24, 28, 32, 36]
        def rd(addr, tag, dst):
            v, off = addr
            a(f"ds_read_b64_tr_b16 {vr(dst,2)}, {v} offset:{off}", tag)
            a(f"ds_read_b64_tr_b16 {vr(dst+2,2)}, {v} offset:{off+4608}", tag)
        def stream(items, hooks_issue, hooks_after, pool, mid={}):
            fr = {}; nxt = [0]
            def can(i): return bool(nxt[0] < len(items) and nxt[0] <= i + LOOK and pool)
            def half(h):
                n = nxt[0]
                if h == 0:
                    if n in hooks_issue: hooks_issue[n]()
                    fr[n] = pool.pop(0)
                v, off = items[n][0]
                a(f"ds_read_b64_tr_b16 {vr(fr[n]+2*h,2)}, {v} offset:{off+4608*h}", f"f{n}")
                if h == 1: nxt[0] += 1
            while can(-1): half(0); half(1)
            for i, (n, mm, pre) in enumerate(items):
                if pre: a.wait_vm(pre)
                a.wait_lg(f"f{i}")
                go = can(i)
                for q, (acc, breg, first) in enumerate(mm):
                    a(f"{MFMA} {vr(acc)}, {vr(fr[i])}, {vr(breg)}, {'0' if first else vr(acc)}")
                    if go: half(q)
                    if q == 0 and i in mid: mid[i]()
                pool.append(fr[i])
                if i in hooks_after:
                    for h in hooks_after[i]: h(pool)
                if nxt[0] <= i + 1 or (len(pool) > 1 and can(i) and (i & 1)):
                    if can(i): half(0); half(1)
        def hook(d, i, f): d.setdefault(i, []).append(f)
        def slot_addr(bases, f, extra):
            sl = f % NSL
            return bases[sl // 6], (sl % 6) * SL + extra
        items = [(slot_addr(vA, s, 32 * u), [(ACC + 8 * u + 4 * tt, B(s, tt), s == 0) for tt in range(2)], None)
                 for s in range(18) for u in range(9)]
        hi = {}; ha = {}
        CT = B(5, 0)
        mid = {}
        for g in range(9):
            i0 = 18 * g
            if g + 4 < 9:
                for n, o in enumerate(grp_ops(g + 4, f"b{g+4}")): mid[i0 + n] = (lambda o=o: a(*o))
            if g + 1 < 9:
                hook(ha, i0 + 6, lambda pool, g=g: a.wait_vm(f"b{g+1}"))
                for n, o in enumerate(chk_ops(g + 1)): mid[i0 + 7 + n] = (lambda o=o: a(o))
                mid[i0 + 17] = (lambda g=g: chk_branch(g + 1))
        for ks_, val in ((8, 13), (12, 14), (16, 15)):
            hi[9 * ks_ - 5] = lambda: self.ctr_issue(1, CT)
            hi[9 * ks_] = (lambda val=val: self.ctr_check(1, CT, val, tmp=CT))
        hook(ha, 8, lambda pool: pool.extend([B(0, 0), B(0, 1)]))
        hook(ha, 9 * 5 - 1, lambda pool: self.dsignal(12))
        hook(ha, 9 * 13 - 1, lambda pool: self.dsignal(14))
        KB = B(5, 0); CSB = B(6, 0); TB = B(11, 0); S8 = B(12, 0)
        def consts(pool):
            a(f"s_lshl_b32 s64, {sW}, 9\ns_add_u32 s64, s64, {KC_OFF}\nv_lshl_add_u32 v0, {vJ}, 4, s64")
            for tt in range(2): a(f"ds_read_b128 {vr(KB+4*tt)}, v0 offset:{256*tt}", "kc")
        def csums(pool, u):
            if u == 0: a(f"v_lshl_add_u32 v{T0+2}, {vG}, 4, {vSCR}")
            a(f"ds_read_b128 {vr(CSB+4*u)}, v{T0+2} offset:{CS3_OFF+64*u}", "kc")
        if "p1" in self.exp:
            for k_ in (1, 3, 5, 7, 9, 11, 13, 15): hook(ha, 9 * k_ + 3, lambda pool: self.stamp())
        hook(ha, 9 * 16 + 2, consts)
        for u in range(9): hook(ha, 9 * 16 + 4 + u, lambda pool, u=u: csums(pool, u))
        stream(items, hi, ha, list(base_pool), mid)
        self.dsignal(15)
        self.stamp()
        a(f"s_and_b32 s64, {sJ}, 1\ns_lshl_b32 s64, s64, 9\ns_add_u32 s67, s64, s75")
        a(f"v_lshlrev_b32 {vL8[0]}, 3, {vLANE}\nv_add_u32 {vL8[1]}, 147456, {vL8[0]}")
        a(f"s_lshl_b32 s64, {sJ}, 8\ns_add_u32 s79, s64, s77")
        def h3ops(k):
            if k < 16:
                d, p = 1 + (k - 4) % 3, (k - 4) // 3
                return [(f"buffer_load_dwordx4 {vr(B(k,tt))}, {vL16 if tt == 0 else vH2}, {WS}, s{71+d} offen offset:{1024*p} sc1", f"g{k}") for tt in range(2)]
            return [(f"buffer_load_dwordx2 {vr(B(k,tt)+2*hf,2)}, {vL8[tt]}, {WS}, s{75+k-16} offen offset:{512*hf} sc1", f"g{k}") for tt in range(2) for hf in range(2)]
        def ap_issue(): a(f"buffer_load_dword {vEX}, {vF3}, {WS}, s77 offen sc1", "ap")
        def ap_check(mask):
            a.wait_vm("ap")
            a(f"v_subrev_u32 {vEX}, {sTAG}, {vEX}")
            a(f"v_cmp_le_u32 vcc, 16, {vEX}")
            a(f"s_and_b32 s64, vcc_lo, {mask}\ns_cmp_eq_u32 s64, 0")
            a.slow(lambda: self.poll2("s77", vF3, False, mask=mask))
        a.wait_lg("kc")
        for u in range(9):
            self.gelu_pk([(ACC + 8 * u + 4 * tt, CSB + 4 * u, KB + 4 * tt) for tt in range(2)], TB)
            p = u >> 1
            for tt in range(2):
                dst = B(p, tt) + 2 * (u & 1) if u < 8 else S8 + 2 * tt
                b = ACC + 8 * u + 4 * tt
                for d in range(2): a(f"v_cvt_pk_bf16_f32 v{dst+d}, v{b+2*d}, v{b+2*d+1}")
            for tt in range(2):
                if u & 1: a(f"buffer_store_dwordx4 {vr(B(p,tt))}, {vL16 if tt == 0 else vH2}, {WS}, s71 offen offset:{1024*p} sc1", f"h3_{p>>1}")
                if u == 8: a(f"buffer_store_dwordx2 {vr(S8+2*tt,2)}, {vL8[tt]}, {WS}, s67 offen sc1", "h3_1")
            if u == 6: self.set_flag("s79", "both", "h3_0")
            if u == 7:
                self.ctr_issue(1, B(13, 0))
                for o in range(9):
                    if o == 0: a("s_mov_b32 s92, 256")
                    else: a(f"s_add_u32 s64, {sX}, {o}\ns_and_b32 s64, s64, 7\ns_lshl_b32 s{92+o}, s64, 5")
        self.stamp()
        self.ctr_check(1, B(13, 0), 17, tmp=B(13, 0))
        items = []; hi = {}; ha = {}; mid = {}
        def base1(reg, o): hi[len(items)] = (lambda: a(f"v_add_u32 {reg}, s{92+o}, {vA[0]}"))
        for o in range(9):
            reg = f"v{B(17,1)+(o&1)}"; base1(reg, o)
            for k in range(4): items.append(((reg, (1 + k) * SL), [(ACC + 8 * o + 4 * tt, B(k, tt), k == 0) for tt in range(2)], None))
        hook(ha, FL, lambda pool: (a(f"s_add_u32 s64, s79, 128"), self.set_flag("s64", "both", "h3_1", T0=B(17, 0))))
        mid[F0] = ap_issue
        hook(ha, FL - 1, lambda pool: ap_check(0x55))
        n = FL + 1
        for k in range(4, 10):
            for o_ in h3ops(k): mid[n] = (lambda o_=o_: a(*o_)); n += 1
        mid[FB] = ap_issue
        hook(ha, FB + 7, lambda pool: ap_check(0xff))
        n = FB + 8
        for k in range(10, 18):
            for o_ in h3ops(k): mid[n] = (lambda o_=o_: a(*o_)); n += 1
        hook(ha, 35, lambda pool: (self.signal(17), pool.extend([B(0, 0), B(0, 1)])))
        UB = [[f"v{B(2,0)+4*q+i}" for i in range(3)] for q in range(2)]
        C0 = B(3, 0); CT4 = B(1, 0); CT5 = B(1, 1)
        for o in range(9):
            reg = f"v{T0+2+(o&1)}"
            hi[len(items)] = (lambda reg=reg, o=o: a(f"v_add_u32 {reg}, s{92+o}, {vA[0]}\nv_add_u32 {reg}, {5*SL}, {reg}"))
            for k in range(4, KE): items.append(((reg, (k - 4) * SL), [(ACC + 8 * o + 4 * tt, B(k, tt), False) for tt in range(2)], f"g{k}" if o == 0 else None))
        n0 = len(items)
        hook(ha, n0 - 14, lambda pool: self.ctr_issue(1, CT4))
        hook(ha, n0 - 8, lambda pool: self.ctr_check(1, CT4, 18, tmp=CT4))
        for o in range(NSK):
            reg = f"v{T0+2+((o+1)&1)}"
            hi[len(items)] = (lambda reg=reg, o=o: a(f"v_add_u32 {reg}, s{92+o}, {vA[1]}"))
            for k in (7, 8, 9): items.append(((reg, (k + 1 - 6) * SL), [(ACC + 8 * o + 4 * tt, B(k, tt), False) for tt in range(2)], f"g{k}" if o == 0 else None))
        n1 = len(items)
        hook(ha, n1 - 8, lambda pool: self.ctr_issue(1, CT4))
        hook(ha, n1 - 2, lambda pool: self.ctr_check(1, CT4, 19, tmp=CT4))
        hook(ha, n1 - 1, lambda pool: self.ctr_issue(0, CT5))
        hook(ha, n1 + 5, lambda pool: (self.ctr_check(0, CT5, 17, tmp=CT5), a(f"s_lshl_b32 s64, {sW}, 11\nv_add_u32 {vEX}, s64, {vL16}\nv_xor_b32 v{C0+1}, 16, {vCTR}")))
        if self.stamps: hook(ha, n1 - 1, lambda pool: self.stamp())
        for o in range(9):
            acc = ACC + 8 * o
            ub = UB[o & 1]
            def setb(o=o, ub=ub):
                for i in range(3): a(f"v_add_u32 {ub[i]}, s{92+o}, {vA[i]}")
            hi[len(items)] = setb
            for k in range(10 if o < NSK else KE, 18):
                items.append((slot_addr(ub, 18 + k, 0), [(acc + 4 * tt, B(k, tt), False) for tt in range(2)], f"g{k}" if o == 0 else None))
            n = len(items) - (0 if o < 8 else 2)
            if o >= 3:
                mid[n - 3] = (lambda: a(f"ds_read_b32 v{C0}, v{C0+1}", "pc"))
                def chk(pool, o=o):
                    a.wait_lg("pc")
                    a(f"v_readfirstlane_b32 s64, v{C0}")
                    a(f"s_cmp_ge_u32 s64, {20+o-3}")
                    a.slow(lambda o=o: self.wait_ctr(1, 20 + o - 3, one=True, tmp=C0))
                hook(ha, n, chk)
            if o < 8:
                for tt in range(2): mid[n + 1 + tt] = (lambda o=o, acc=acc, tt=tt: a(f"ds_write_b128 {vEX}, {vr(acc+4*tt)} offset:{(2+o%3)*SL+1024*tt}", "ex"))
                mid[n + 3] = (lambda o=o: a(f"v_mov_b32 v0, {19+o}"))
                mid[n + 4] = (lambda: a(f"ds_write_b32 {vCTR}, v0", "sig"))
            else:
                def dump(pool, o=o, acc=acc):
                    for tt in range(2): a(f"ds_write_b128 {vEX}, {vr(acc+4*tt)} offset:{(2+o%3)*SL+1024*tt}", "ex")
                    self.signal(19 + o)
                hook(ha, len(items) - 1, dump)
        XRr = ACC + 32 - 4; G8 = ACC; SUM8 = B(10, 0); vT8 = f"v{B(11,0)}"; vO = f"v{B(11,0)+1}"; U = B(12, 0)
        g_issue, g_take = self.part_helpers(vT8, U)
        def early8(pool):
            Le = a.label("Ls_e8")
            a(f"s_lshr_b32 s64, {sX}, 1\ns_cmp_lg_u32 s64, {sW}\ns_cbranch_scc1 {Le}")
            a(f"s_lshl_b32 s64, {sM}, 2\ns_add_u32 s64, s64, {sJ}\ns_mul_i32 s64, s64, {9*32*1024}\ns_add_u32 s69, s64, {P_OFF+8*32768}\ns_add_u32 s69, s69, {sWK}")
            for i in range(8): g_issue(i, "s69", G8, "p8")
            a(f"s_mul_i32 s64, {sJ}, 9\ns_add_u32 s78, s64, 8\ns_lshl_b32 s64, {sM}, 3\ns_add_u32 s79, s64, {sX}")
            a(f"s_mul_i32 s64, s79, 9\ns_lshr_b32 s65, s78, 2\ns_add_u32 s64, s64, s65\ns_mul_i32 s64, s64, {XG}\ns_and_b32 s65, s78, 2\ns_lshl_b32 s65, s65, 9\ns_add_u32 s64, s64, s65\ns_and_b32 s65, s78, 1\ns_lshl_b32 s65, s65, 3\ns_add_u32 s64, s64, s65\ns_add_u32 s64, s64, {X1_OFF}")
            a(f"buffer_load_dwordx2 {vr(XRr+4,2)}, {vL16}, {WS}, s64 offen sc1", "xr")
            a(f"{Le}:")
        hook(ha, len(items) - 14, early8)
        if "g4" in self.exp:
            for i_ in (0, 12, FL - 1, FL, 35, 39, FB + 6, FB + 7, n0 - 9, n0 - 1, n1 - 3, n1 + 7, n1 + 15, n1 + 31, n1 + 53, n1 + 75): hook(ha, i_, lambda pool: self.stamp())
        stream(items, hi, ha, list(base_pool), mid)
        self.stamp()
        L8 = a.label("Lu8")
        a(f"s_lshr_b32 s64, {sX}, 1\ns_cmp_lg_u32 s64, {sW}\ns_cbranch_scc1 {L8}")
        self.part_consts(vT8)
        a(f"v_mul_u32_u24 {vO}, 1152, {vJ}\nv_lshl_add_u32 {vO}, {vG}, 3, {vO}")
        a(f"s_bitcmp1_b32 {sX}, 0\ns_cselect_b64 s[98:99], -1, 0")
        for e in range(4): a(f"v_mov_b32 v{SUM8+e}, 0")
        for i in range(8): g_take(i, "s69", G8, "p8", SUM8, half="s[98:99]")
        a.wait_vm("xr")
        self.finish_out(SUM8, XRr + 4, vO, "s79", "s78")
        a(f"{L8}:")

    def rot3(self, dst):
        self.a(f"s_lshl_b32 {dst}, {sJ}, 2\ns_and_b32 s64, {sJ}, 2\ns_add_u32 {dst}, {dst}, s64")

    def h_mlp(self):
        a = self.a
        t0, t1, t2 = f"v{T0}", f"v{T0+1}", f"v{T0+2}"
        vH2, vEX, vT8 = (f"v{T0+5+i}" for i in range(3))
        vH8 = f"v{T0+8}"
        if self.stop <= 2:
            self.epoch_advance(); return
        a(f"v_add_u32 {vH2}, 147456, {vL16}\nv_lshlrev_b32 {vH8}, 3, {vLANE}\nv_add_u32 {vH8}, 147456, {vH8}")
        a(f"s_mul_i32 s64, {sW}, {13*1024}\ns_add_u32 s64, s64, {EX1*SL}\nv_add_u32 {vEX}, s64, {vL16}\nv_mov_b32 {vT8}, {sTAG8}")
        self.h3_base("s71"); self.f3_base("s72")
        a(f"s_lshr_b32 s64, {sJ}, 1\ns_add_u32 s64, s64, 16\ns_lshl_b32 s64, s64, 10\ns_add_u32 s68, s64, s71\ns_and_b32 s64, {sJ}, 1\ns_lshl_b32 s64, s64, 9\ns_add_u32 s68, s68, s64")
        a(f"s_lshl_b32 s64, {sJ}, 12\ns_add_u32 s71, s71, s64\ns_lshl_b32 s64, {sJ}, 8\ns_add_u32 s72, s72, s64")
        V3 = [f"v{200+i}" for i in range(5)]; V4 = [f"v{205+i}" for i in range(5)]; V4s = [f"v{210+i}" for i in range(5)]
        sP = [f"s{92+i}" for i in range(5)]
        for i in range(5):
            a(f"s_add_u32 s64, {sW}, {4*i}\ns_sub_u32 s65, s64, 9\ns_min_u32 s64, s64, s65\ns_lshl_b32 {sP[i]}, s64, 10\ns_lshl_b32 s64, s64, 6")
            a(f"v_add_u32 {t0}, s64, {vLANE}\nv_mul_u32_u24 {t1}, 3641, {t0}\nv_lshrrev_b32 {t1}, 16, {t1}")
            a(f"v_mul_u32_u24 {t2}, 18, {t1}\nv_sub_u32 {t0}, {t0}, {t2}\nv_lshlrev_b32 {t0}, 4, {t0}")
            a(f"v_mul_u32_u24 {V3[i]}, 9216, {t1}\nv_add_u32 {V3[i]}, {V3[i]}, {t0}")
            a(f"v_mul_u32_u24 {V4[i]}, 1152, {t1}\nv_add_u32 {V4[i]}, {V4[i]}, {t0}")
            a(f"v_lshrrev_b32 {t1}, 4, {t1}\nv_mul_u32_u24 {t1}, {128*1152}, {t1}\nv_add_u32 {V4s[i]}, {V4[i]}, {t1}")
        thr = [None]
        mods = [""]
        def pair(f, srd, V, sA, sB, tag):
            rA, rB = (f % NSL) * SL, ((f + 1) % NSL) * SL
            L = a.label("Lx")
            a(f"s_cmp_ge_u32 {sW}, 2\ns_cbranch_scc1 {L}")
            a(f"s_add_u32 m0, {sP[4]}, {rB}")
            a(f"buffer_load_dwordx4 {V[4]}, {srd}, {sB} offen {mods[0]} lds", "_untracked")
            a(f"{L}:")
            for i in range(4):
                if i < 2: a(f"s_add_u32 m0, {sP[i]}, {rA}"); so = sA
                elif i == 3: a(f"s_add_u32 m0, {sP[i]}, {rB}"); so = sB
                else:
                    a(f"s_mov_b32 s64, {rB}\ns_cmp_eq_u32 {sW}, 0\ns_cselect_b32 s64, {rA}, s64\ns_cselect_b32 s66, {sA}, {sB}\ns_add_u32 m0, {sP[i]}, s64"); so = "s66"
                a(f"buffer_load_dwordx4 {V[i]}, {srd}, {so} offen {mods[0]} lds", tag)
                if thr[0] is not None:
                    a(f"s_waitcnt vmcnt({thr[0]})"); a.vm = a.vm[max(0, len(a.vm)-thr[0]):] if thr[0] else []
        k3 = 32 * 9216
        self.rot3("s69")
        a(f"s_lshl_b32 s64, {sX}, 2\ns_add_u32 s64, s64, {sJ}\ns_mul_i32 s70, s64, 288")
        def w3pair(s, tag):
            a(f"s_add_u32 s73, s69, {s}\ns_sub_u32 s65, s73, 18\ns_min_u32 s73, s73, s65\ns_mul_i32 s73, s73, {k3}\ns_add_u32 s73, s73, s70\ns_add_u32 s74, s73, {k3}")
            pair(s, W3, V3, "s73", "s74", tag)
        a(f"s_mul_i32 s64, {sX}, {576*1152}\ns_mul_i32 s65, {sJ}, 288\ns_add_u32 s101, s64, s65")
        for d in range(4): a(f"s_xor_b32 s64, {sJ}, {d}\ns_mul_i32 s64, s64, {144*1152}\ns_add_u32 s{97+d}, s64, s101")
        def w4src(k, dst):
            if k < 4: d, p = 0, k
            elif k < 16: d, p = 1 + (k - 4) % 3, (k - 4) // 3
            else:
                a(f"s_lshr_b32 s64, {sJ}, 1\ns_xor_b32 s64, s64, {k-16}\ns_mul_i32 s64, s64, {288*1152}\ns_add_u32 s64, s64, s101\ns_add_u32 {dst}, s64, {128*1152}")
                return
            a(f"s_add_u32 {dst}, s{97+d}, {32*p*1152}")
        def w4pair(k, tag):
            w4src(k, "s73"); w4src(k + 1, "s74")
            pair(18 + k, W4, V4 if k < 16 else V4s, "s73", "s74", tag)
        a(f"v_and_b32 {t0}, 3, {vLANE}\nv_lshlrev_b32 {t0}, 7, {t0}")
        self.stamp()
        Le = a.label("Learly"); Lj = a.label("Learly")
        a(f"s_cmp_lt_u32 {sR}, {NACT}\ns_cbranch_scc1 {Le}")
        Lq = [a.label("Lq") for _ in range(4)]
        a(f"s_cmp_eq_u32 {sM}, 6\ns_cbranch_scc1 {Lq[1]}\ns_cmp_eq_u32 {sM}, 7\ns_cbranch_scc1 {Lq[2]}")
        for v, order in enumerate(((0, 2, 4, 6, 8, 10, 12, 14), (6, 8, 10, 0, 2, 4, 12, 14), (12, 14, 16, 2, 4, 6, 8, 10, 0))):
            if v: a(f"{Lq[v]}:"); a.vm = []
            for n, s in enumerate(order):
                if v == 2 and s == 0: self.wait_ctr(0, 10, sleep=2)
                mods[0] = "nt" if n < 3 and "w3nt" in self.exp else ""
                w3pair(s, "d0")
                if n == 2: self.dsignal(11)
            if v < 2: a(f"s_branch {Lq[3]}")
        a(f"{Lq[3]}:")
        self.dsignal(12)
        a(f"s_sub_u32 s64, {sR}, {NACT}\ns_lshl_b32 s64, s64, 2\ns_add_u32 s64, s64, {sW}\ns_mul_i32 s64, s64, {93*128}\ns_min_u32 s64, s64, {663552-93*128}\ns_mul_i32 s65, {sX}, 663552\ns_add_u32 s66, s64, s65")
        a(f"v_lshlrev_b32 {t0}, 7, {vLANE}\nv_min_u32 {t1}, {28*128}, {t0}")
        a(f"buffer_load_dword {DUMMY}, {t0}, {W4}, s66 offen", "_untracked")
        a(f"s_add_u32 s66, s66, 8192")
        a(f"buffer_load_dword {DUMMY}, {t1}, {W4}, s66 offen", "_untracked")
        a(f"s_branch {Lj}")
        a(f"{Le}:")
        a.vm = []
        self.wait_ctr(0, 3, sleep=2)
        thr[0] = THR
        for s in range(0, 8, 2): w3pair(s, "d0")
        a("s_waitcnt vmcnt(0)")
        self.signal(12)
        self.wait_ctr(0, 6, sleep=2)
        for s in (8, 10): w3pair(s, "d0")
        thr[0] = None
        a(f"{Lj}:")
        a("s_waitcnt vmcnt(0)"); a.vm = []
        self.signal(13)
        self.stamp()
        self.wait_ctr(0, 11, sleep=3)
        Le = a.label("Llate")
        a(f"s_cmp_ge_u32 {sR}, {NACT}\ns_cbranch_scc1 {Le}")
        for s in (12, 14): w3pair(s, "_untracked")
        a("s_waitcnt vmcnt(0)")
        a(f"s_branch {Le}b")
        a(f"{Le}:")
        a(f"{Le}b:")
        self.signal(14)
        self.stamp()
        self.load_stats(100, vT8)
        for tt in range(2): self.finish_stats([f"v{48+4*tt+i}" for i in range(4)], 100 + 6 * tt)
        a(f"s_lshl_b32 s64, {sW}, 9\ns_add_u32 s64, s64, {KC_OFF}\nv_lshl_add_u32 {t1}, {vJ}, 4, s64")
        for tt in range(2): a(f"ds_write_b128 {t1}, {vr(48+4*tt)} offset:{256*tt}", "kc")
        CP = 100
        a(f"s_lshl_b32 s64, {sW}, 6\nv_add_u32 {t1}, s64, {vLANE}\nv_min_u32 {t1}, 143, {t1}\nv_lshlrev_b32 v{CP+9}, 2, {t1}")
        L = a.label("Lcs")
        a(f"s_mov_b32 {sTO}, 0")
        a(f"{L}:")
        a(f"s_mul_i32 s64, {sX}, {3*2304}\ns_mul_i32 s65, {sJ}, 576\ns_add_u32 s64, s64, s65\ns_add_u32 s64, s64, {CSP_OFF}")
        for k in range(3):
            a(f"buffer_load_dword v{CP+k}, v{CP+9}, {WS}, s64 offen sc1", "cp")
            a(f"s_add_u32 s64, s64, 2304")
        a(f"s_add_u32 {sTO}, {sTO}, 1\ns_cmp_gt_u32 {sTO}, 100000\ns_cbranch_scc1 L_end")
        a.wait_vm()
        a(f"v_xor_b32 {t0}, v{CP}, {vT8}")
        for k in range(1, 3): a(f"v_bitop3_b32 {t0}, {t0}, v{CP+k}, {vT8} bitop3:0xf6")
        a(f"v_and_b32 {t0}, 0xff, {t0}\nv_cmp_ne_u32 vcc, 0, {t0}")
        a(f"s_cbranch_vccnz {L}")
        for k in range(3): a(f"v_and_b32 v{CP+k}, 0xffffff00, v{CP+k}")
        for k in range(1, 3): a(f"v_add_f32 v{CP}, v{CP}, v{CP+k}")
        a(f"v_add_u32 {t1}, {vSCR}, v{CP+9}")
        a(f"ds_write_b32 {t1}, v{CP} offset:{CS3_OFF}", "csw")
        self.wait_ctr(0, 12, sleep=3)
        w3pair(16, "e0")
        if "warmh" in self.exp:
            for e in range(4): a(f"v_mov_b32 v{120+e}, 0")
            for p in range(4):
                for vo in (vL16, vH2): a(f"buffer_store_dwordx4 {vr(120)}, {vo}, {WS}, s71 offen offset:{1024*p} sc1", "e0")
        a.wait_vm("e0"); self.signal(15)
        if "warmp" in self.exp:
            a(f"s_not_b32 s64, {sE}")
            for e in range(4): a(f"v_mov_b32 v{120+e}, s64")
            a(f"s_lshl_b32 s64, {sM}, 2\ns_add_u32 s64, s64, {sJ}\ns_mul_i32 s64, s64, {9*32*1024}\ns_lshl_b32 s65, {sX}, 12\ns_add_u32 s64, s64, s65\ns_add_u32 s64, s64, {sWK}\ns_add_u32 s64, s64, {P_OFF}")
            for u in range(9):
                a(f"buffer_store_dwordx4 {vr(120)}, {vL16}, {WS}, s64 offen sc1", "wp")
                a(f"s_add_u32 s64, s64, 32768")
        self.wait_ctr(0, 14, sleep=3)
        thr[0] = T4
        for k in (0, 2, 4, 6): w4pair(k, "e1")
        self.dsignal(17)
        for k in (8, 10): w4pair(k, "e2")
        self.epoch_advance()
        self.stamp()
        self.wait_ctr(0, 15, sleep=3)
        thr[0] = 2
        for k in (12, 14): w4pair(k, "e3")
        thr[0] = None
        a.wait_vm(); self.signal(18)
        self.wait_ctr(0, 17, sleep=3)
        w4pair(16, "e3")
        a(f"s_lshl_b32 s64, {sM}, 2\ns_add_u32 s64, s64, {sJ}\ns_mul_i32 s64, s64, {9*32*1024}\ns_add_u32 s73, s64, {P_OFF}")
        a(f"s_lshl_b32 s64, {sW}, 11\nv_add_u32 {vEX}, s64, {vL16}")
        a(f"s_lshl_b32 s65, {sX}, 12\ns_add_u32 s74, {sWK}, s65\ns_add_u32 s74, s74, s73")
        self.part_consts(vT8)
        a("s_mov_b32 s75, 0x1fff\ns_mov_b32 s92, 0x03ffffff\ns_mov_b32 s93, 0x0c000000\ns_mov_b32 s94, 0x4b400000")
        a.wait_vm("e3"); self.signal(19)
        self.stamp()
        XRr = 100
        a(f"s_mul_i32 s64, {sJ}, 9\ns_add_u32 s76, s64, {sX}")
        a(f"s_lshl_b32 s64, {sM}, 3\ns_lshl_b32 s65, {sW}, 1\ns_add_u32 s77, s64, s65")
        a(f"s_mul_i32 s64, s77, 9\ns_lshr_b32 s65, s76, 2\ns_add_u32 s64, s64, s65\ns_mul_i32 s64, s64, {XG}\ns_and_b32 s65, s76, 2\ns_lshl_b32 s65, s65, 9\ns_add_u32 s64, s64, s65\ns_and_b32 s65, s76, 1\ns_lshl_b32 s65, s65, 3\ns_add_u32 s64, s64, s65\ns_add_u32 s64, s64, {X1_OFF}")
        a(f"v_add_u32 {t1}, {XT}, {vL16}")
        a(f"buffer_load_dwordx2 {vr(XRr,2)}, {vL16}, {WS}, s64 offen sc1", "xr")
        a(f"buffer_load_dwordx2 {vr(XRr+2,2)}, {t1}, {WS}, s64 offen sc1", "xr")
        vO = "v106"
        a(f"v_mul_u32_u24 {vO}, 1152, {vJ}\nv_lshl_add_u32 {vO}, {vG}, 3, {vO}")
        a(f"s_lshl_b32 s64, {sX}, 15\ns_add_u32 s68, s64, s73\ns_add_u32 s68, s68, {sWK}")
        a(f"s_add_u32 s69, s73, {8*32768}\ns_add_u32 s69, s69, {sWK}")
        DB = 108; GR = 128; G8 = 160; SUMR = 56; SUM8 = 64; PKD = 72; U = 80
        for e in range(16): a(f"v_mov_b32 v{SUMR+e}, 0")
        g_issue, g_take = self.part_helpers(vT8, U)
        if "ptouch" in self.exp:
            a(f"v_lshlrev_b32 {t1}, 6, {vJ}")
            a("s_mov_b64 exec, 0xffff")
            for o in range(4, 8):
                a(f"s_add_u32 s64, {sX}, {o}\ns_and_b32 s64, s64, 7\ns_lshl_b32 s64, s64, 15\ns_add_u32 s66, s64, s74")
                a(f"buffer_load_dword {DUMMY}, {t1}, {WS}, s66 offen sc1", "pt")
            a("s_mov_b64 exec, -1")
        for o in range(9):
            if o == HP: a("s_setprio 3")
            self.wait_ctr(0, 19 + o, one=True, sleep=1)
            d = DB + 8 * (o & 1)
            for tt in range(2): a(f"ds_read_b128 {vr(d+4*tt)}, {vEX} offset:{(2+o%3)*SL+1024*tt}", "dp")
            if o == 8: break
            if o == 0: a(f"s_add_u32 s66, s74, {8*32768}")
            else: a(f"s_add_u32 s64, {sX}, {o}\ns_and_b32 s64, s64, 7\ns_lshl_b32 s64, s64, 15\ns_add_u32 s66, s64, s74")
            a.wait_lg()
            self.signal(20 + o)
            p = PKD + 4 * (o & 1)
            a(f"v_max3_f32 {t0}, |v{d}|, |v{d+1}|, |v{d+2}|\nv_max3_f32 {t1}, |v{d+3}|, |v{d+4}|, |v{d+5}|")
            a(f"v_max3_f32 {t0}, {t0}, |v{d+6}|, |v{d+7}|\nv_max_f32 {t0}, {t0}, {t1}")
            a(f"v_and_b32 {t0}, 0x7f800000, {t0}\nv_max_u32 {t0}, {12<<23}, {t0}\nv_sub_u32 {t1}, {(264<<23)|0x7ff000}, {t0}")
            for e in range(8): a(f"v_fma_f32 v{d+e}, v{d+e}, {t1}, s94")
            for i in range(4):
                sh = 3 - 2 * i
                a(f"v_lshlrev_b32 v{d+2*i+1}, 13, v{d+2*i+1}\nv_bfi_b32 v{d+2*i}, s75, v{d+2*i}, v{d+2*i+1}")
                a((f"v_lshlrev_b32 {t2}, {sh}, {t0}" if sh > 0 else f"v_lshrrev_b32 {t2}, {-sh}, {t0}") + f"\nv_bfi_b32 {t2}, s93, {t2}, {vT8}")
                a(f"v_bfi_b32 v{p+i}, s92, v{d+2*i}, {t2}")
            a(f"buffer_store_dwordx4 {vr(p)}, {vL16}, {WS}, s66 offen sc1", "pst")
            if "glate" in self.exp:
                if o == 7:
                    self.stamp()
                    for i in (1, 2, 3): g_issue(i, "s68", GR, "pg")
                    for i in (1, 2): g_take(i, "s68", GR, "pg", SUMR)
                    g_issue(4, "s68", GR, "pg")
                    g_take(3, "s68", GR, "pg", SUMR)
                continue
            if o >= 4: g_issue(o - 3, "s68", GR, "pg")
            if o == 7:
                self.stamp()
                for i in (1, 2, 3): g_take(i, "s68", GR, "pg", SUMR)
                g_issue(5, "s68", GR, "pg")
                g_take(4, "s68", GR, "pg", SUMR)
                g_issue(6, "s68", GR, "pg")
        if "glate" in self.exp:
            g_issue(5, "s68", GR, "pg")
            a.wait_lg()
            for e in range(8): a(f"v_add_f32 v{SUMR+e}, v{SUMR+e}, v{DB+e}")
            g_take(4, "s68", GR, "pg", SUMR)
            g_issue(6, "s68", GR, "pg")
            g_take(5, "s68", GR, "pg", SUMR)
            g_issue(7, "s68", GR, "pg")
            for i in (6, 7): g_take(i, "s68", GR, "pg", SUMR)
        else:
            g_issue(7, "s68", GR, "pg")
            a.wait_lg()
            for e in range(8): a(f"v_add_f32 v{SUMR+e}, v{SUMR+e}, v{DB+e}")
            for i in (5, 6, 7): g_take(i, "s68", GR, "pg", SUMR)
        self.stamp()
        for tt in range(2):
            a(f"s_add_u32 s79, s77, {tt}")
            self.finish_out(SUMR + 4 * tt, XRr + 2 * tt, vO, "s79", "s76")

    def part_consts(self, vT8):
        a = self.a
        a(f"s_and_b32 s64, {sE}, 0xf0000000\nv_mov_b32 {vT8}, s64")
        a("s_mov_b32 s95, 0x01800000\ns_mov_b32 s96, 0x07800000\ns_mov_b32 s97, 0x1f800000")
    def part_helpers(self, vT8, U):
        a = self.a
        t0, t1 = f"v{T0}", f"v{T0+1}"
        def g_issue(i, base, R, tag):
            a(f"s_sub_u32 s64, {sX}, {i}\ns_and_b32 s64, s64, 7\ns_lshl_b32 s64, s64, 12\ns_add_u32 s64, s64, {base}")
            a(f"buffer_load_dwordx4 {vr(R+4*i)}, {vL16}, {WS}, s64 offen sc1", f"{tag}{i}")
        def g_take(i, base, R, tag, S, half=None):
            r = R + 4 * i
            a.wait_vm(f"{tag}{i}")
            def check():
                a(f"v_xor_b32 {t0}, v{r}, {vT8}")
                for e in range(1, 4): a(f"v_bitop3_b32 {t0}, {t0}, v{r+e}, {vT8} bitop3:0xf6")
                a(f"v_cmp_gt_u32 vcc, 0x10000000, {t0}")
                a("s_cmp_eq_u64 vcc, -1")
            check()
            def retry():
                L = a.label("Lg")
                a(f"s_mov_b32 {sTO}, 0")
                a(f"{L}:")
                a(f"s_add_u32 {sTO}, {sTO}, 1\ns_cmp_gt_u32 {sTO}, 100000\ns_cbranch_scc1 L_end")
                g_issue(i, base, R, tag)
                a.wait_vm()
                check()
                a(f"s_cbranch_scc0 {L}")
            a.slow(retry)
            a(f"v_lshrrev_b32 {t0}, 3, v{r}\nv_lshrrev_b32 {t1}, 1, v{r+1}\nv_bfi_b32 {t0}, s95, {t0}, {t1}")
            a(f"v_lshlrev_b32 {t1}, 1, v{r+2}\nv_bfi_b32 {t0}, s96, {t0}, {t1}\nv_lshlrev_b32 {t1}, 3, v{r+3}\nv_bfi_b32 {t0}, s97, {t0}, {t1}")
            a(f"v_and_b32 {t0}, 0x7f800000, {t0}\nv_add_u32 {t0}, {(0x800 - (11 << 23)) & 0xffffffff}, {t0}")
            n = 8
            if half:
                for e in range(2): a(f"v_cndmask_b32 v{r+e}, v{r+e}, v{r+2+e}, {half}")
                n = 4
            for e in range(n): a(f"v_bfe_i32 v{U+e}, v{r+(e>>1)}, {13*(e&1)}, 13")
            for e in range(n): a(f"v_cvt_f32_i32 v{U+e}, v{U+e}")
            for e in range(n): a(f"v_fma_f32 v{S+e}, v{U+e}, {t0}, v{S+e}")
        return g_issue, g_take
    def finish_out(self, S, XR, vO, sTile, sU):
        a = self.a
        t0, t1, t2, t3 = (f"v{T0+i}" for i in range(4))
        for d in range(2):
            a(f"v_cvt_pk_bf16_f32 {t0}, v{S+2*d}, v{S+2*d+1}")
            a(f"v_lshlrev_b32 {t1}, 16, {t0}\nv_and_b32 {t0}, 0xffff0000, {t0}")
            a(f"v_lshlrev_b32 {t2}, 16, v{XR+d}\nv_and_b32 {t3}, 0xffff0000, v{XR+d}")
            a(f"v_add_f32 {t1}, {t1}, {t2}\nv_add_f32 {t0}, {t0}, {t3}")
            a(f"v_cvt_pk_bf16_f32 v{S+d}, {t1}, {t0}")
        a(f"s_mul_i32 s64, {sTile}, 18432\ns_lshl_b32 s65, {sU}, 5\ns_add_u32 s64, s64, s65")
        a(f"buffer_store_dwordx2 {vr(S,2)}, {vO}, {OUT}, s64 offen", "out")
    def epoch_advance(self):
        a = self.a
        L = a.label("Lep"); L2 = a.label("Lep")
        a(f"s_cmp_lg_u32 s2, 255\ns_cbranch_scc1 {L}\ns_cmp_lg_u32 {sW}, 3\ns_cbranch_scc1 {L}")
        vm = list(a.vm)
        a(f"s_mov_b32 {sTO}, 0")
        a(f"{L2}:")
        a(f"v_lshlrev_b32 v247, 7, {vLANE}\ns_mov_b32 s64, {FS2_OFF}")
        for i in range(4):
            a(f"buffer_load_dword v{T0+i}, v247, {WS}, s64 offen sc1")
            a(f"s_add_u32 s64, s64, 8192")
        a(f"s_add_u32 {sTO}, {sTO}, 1\ns_cmp_gt_u32 {sTO}, 100000\ns_cbranch_scc1 L_end")
        a.wait_vm()
        a(f"v_xor_b32 v{T0}, {sTAG}, v{T0}\nv_xor_b32 v{T0+1}, {sTAG}, v{T0+1}\nv_xor_b32 v{T0+2}, {sTAG}, v{T0+2}\nv_xor_b32 v{T0+3}, {sTAG}, v{T0+3}")
        a(f"v_or3_b32 v{T0}, v{T0}, v{T0+1}, v{T0+2}\nv_or_b32 v{T0}, v{T0}, v{T0+3}\nv_cmp_ne_u32 vcc, 0, v{T0}")
        a(f"s_cbranch_vccnz {L2}")
        a(f"v_mov_b32 v{T0}, {sE}\nv_mov_b32 v{T0+1}, 0\ns_mov_b64 exec, 1")
        a(f"buffer_store_dword v{T0}, v{T0+1}, {WS}, 0 offen sc1", "_untracked")
        a("s_mov_b64 exec, -1")
        a(f"{L}:")
        a.vm = vm

    def wrap(self, body):
        hdr = open("standalone__mixer_s_mlp__sampling.s.ref").read().split("; Override")[0]
        s = hdr + "; @launch grid=(256,1,1) block=(512,1,1) lds=163840\n"
        s += '.amdgcn_target "amdgcn-amd-amdhsa--gfx950"\n.text\n'
        s += f".globl {KNAME}\n.p2align 8\n.type {KNAME},@function\n{KNAME}:\n"
        s += body
        s += f'.section .rodata,"a"\n.p2align 6\n.amdhsa_kernel {KNAME}\n'
        s += "  .amdhsa_next_free_vgpr 256\n  .amdhsa_next_free_sgpr 102\n  .amdhsa_accum_offset 256\n"
        s += "  .amdhsa_group_segment_fixed_size 0\n  .amdhsa_kernarg_size 64\n  .amdhsa_user_sgpr_count 2\n"
        s += "  .amdhsa_user_sgpr_kernarg_segment_ptr 1\n  .amdhsa_system_sgpr_workgroup_id_x 1\n"
        s += "  .amdhsa_float_denorm_mode_32 3\n.end_amdhsa_kernel\n"
        return s

if __name__ == "__main__":
    import argparse
    p = argparse.ArgumentParser()
    p.add_argument("-o", default="mk.s"); p.add_argument("--stop", type=int, default=99)
    p.add_argument("--stamps", action="store_true"); p.add_argument("--plain", action="store_true"); p.add_argument("--exp", default="")
    p.add_argument("--thr", type=int, default=1); p.add_argument("--fl", type=int, default=16); p.add_argument("--f0", type=int, default=6); p.add_argument("--npre", type=int, default=16); p.add_argument("--hp", type=int, default=0); p.add_argument("--fb", type=int, default=44); p.add_argument("--nsk", type=int, default=4); p.add_argument("--hs", type=int, default=1); p.add_argument("--inf", type=int, default=2); p.add_argument("--w2g", type=int, default=99); p.add_argument("--t4", type=int, default=8)
    args = p.parse_args()
    THR = args.thr; FL = args.fl; F0 = args.f0; NPRE = args.npre; HP = args.hp; FB = args.fb; NSK = args.nsk; HS_ = args.hs; INF = args.inf; W2G = args.w2g; T4 = args.t4
    open(args.o, "w").write(Gen(args.stop, args.stamps, args.plain, args.exp).build())
```

```python
import sys
sys.path.insert(0, "dev")
from asmlib import Asm

KNAME = "standalone__mixer_s_mlp__sampling_kernel"
NB = 159
SCR = NB * 1024
CS3_OFF = 256
KC_OFF = 153 * 1024
NACT = 18
KE = 7
SL = 9216; NSL = 17
EX1 = 11
ROT3 = (0, 4, 10, 14)
T4 = 3; INF = 2; W2G = 4; HS_ = 1; NPRE = 16; F0 = 6; HP = 0; THR = 1; FL = 16; FB = 44; NSK = 4
FS2_OFF = 0x1000; ST_OFF = 0x10000; CSP_OFF = 0x28000
F1_OFF = 0x60000; F2_OFF = 0x80000; F3_OFF = 0xA0000
H_OFF = 0xE0000; X1_OFF = 0x200000; H3_OFF = 0x400000; P_OFF = 0xE00000; STAMP_OFF = 0x3000000
XG = 2304; XT = 9 * XG
FAR = 0x1800000
FRAGSZ = 0x120000
X, W1, W2, W3, W4, OUT, WS, DBG, HS = (f"s[{b}:{b+3}]" for b in (20, 24, 28, 32, 36, 40, 44, 48, 52))
sTAG, sW, sX, sR, sMT, sNT, sM, sJ = (f"s{i}" for i in range(56, 64))
sE = "s3"
sC = [f"s{84+i}" for i in range(5)]
sTAGX = "s80"; sTO = "s89"; sTAG8 = "s82"; sWV = "s81"; sWK = "s83"
vLANE, vG, vJ = "v1", "v2", "v3"
vLB = ["v4", "v5", "v6"]
vL16 = "v4"; vFLG = "v8"; vSTAMP = "v9"; vCTR = "v10"; vSCR = "v11"
T0 = 12
AF0 = 24; NAF = 6
ACC0 = 48
BF0 = 112
DUMMY = "v7"

def vr(b, n=4): return f"v[{b}:{b+n-1}]"
MFMA = "v_mfma_f32_16x16x32_bf16"

def kprime(k, j):
    if k >= 16: return 16 + ((k - 16) ^ (j >> 1))
    d, p = (k >> 2) ^ j, k & 3
    return p if d == 0 else 4 + 3 * p + (d - 1)

class Gen:
    def __init__(self, stop=99, stamps=False, local_plain=False, exp=""):
        self.exp = exp.split(",")
        self.psleep = 0
        for e in self.exp:
            if e.startswith("ps"): self.psleep = int(e[2:])
        self.ld_local = "nt" if "ldnt" in self.exp else ("" if "ldplain" in self.exp else "sc1")
        self.a = Asm(); self.stop = stop; self.stamps = stamps; self.nst = 0
        self.af = 0
        self.st_local = "" if local_plain else "sc1"
    def reset(self, nst=None):
        self.a.vm = []; self.a.lg = []
        if nst is not None: self.nst = nst
    def stamp(self):
        if not self.stamps: return
        a = self.a
        a.wait_lg()
        a(("s_memtime" if "cyc" in self.exp else "s_memrealtime") + " s[90:91]\ns_waitcnt lgkmcnt(0)")
        a(f"v_writelane_b32 {vSTAMP}, s90, {self.nst}")
        self.nst += 1
    def next_af(self):
        b = AF0 + 4 * (self.af % NAF); self.af += 1
        return b
    def lb(self, kb):
        off = kb * 1024
        return vLB[off >> 16], off & 0xffff
    def read_blk(self, n, tag, dst=None):
        b = self.next_af() if dst is None else dst
        v, off = self.lb(n % NB)
        self.a(f"ds_read_b128 {vr(b)}, {v} offset:{off}", tag)
        return b
    def read_tr(self, vbase, off, tag, dst=None):
        b = self.next_af() if dst is None else dst
        self.a(f"ds_read_b64_tr_b16 {vr(b,2)}, {vbase} offset:{off}", tag)
        self.a(f"ds_read_b64_tr_b16 {vr(b+2,2)}, {vbase} offset:{off+2048}", tag)
        return b
    def poll(self, soff, vflag, mask=None, sleep=None):
        a = self.a
        t = f"v{T0}"
        if sleep is None: sleep = self.psleep
        L = a.label("Lpoll"); L2 = a.label("Lpoll")
        a(f"s_mov_b32 {sTO}, 0\ns_branch {L2}")
        a(f"{L}:")
        if sleep: a(f"s_sleep {sleep}")
        a(f"{L2}:")
        a(f"buffer_load_dword {t}, {vflag}, {WS}, {soff} offen sc1")
        a(f"s_add_u32 {sTO}, {sTO}, 1\ns_cmp_gt_u32 {sTO}, 100000\ns_cbranch_scc1 L_end")
        a.wait_vm()
        a(f"v_cmp_ne_u32 vcc, {sTAG}, {t}")
        if mask is not None:
            a(f"s_and_b32 vcc_lo, vcc_lo, {mask}\ns_cbranch_scc1 {L}")
        else:
            a(f"s_cbranch_vccnz {L}")
    def poll_one(self, soff, vflag, val):
        a = self.a
        L = a.label("Lp1"); L2 = a.label("Lp1"); L3 = a.label("Lp1")
        vm = list(a.vm)
        a(f"s_cmp_lg_u32 {sW}, 0\ns_cbranch_scc1 {L}")
        self.poll(soff, vflag)
        a(f"v_mov_b32 v{T0}, {val}\ns_mov_b64 exec, 1")
        a(f"ds_write_b32 {vSCR}, v{T0} offset:32", "sig")
        a("s_mov_b64 exec, -1")
        a.wait_lg()
        a(f"s_branch {L3}")
        a(f"{L}:")
        a(f"s_mov_b32 {sTO}, 0")
        a(f"{L2}:")
        a(f"s_sleep 2\nds_read_b32 v{T0}, {vSCR} offset:32", "ctr")
        a(f"s_add_u32 {sTO}, {sTO}, 1\ns_cmp_gt_u32 {sTO}, 1000000\ns_cbranch_scc1 L_end")
        a.wait_lg()
        a(f"v_readfirstlane_b32 s64, v{T0}")
        a(f"s_cmp_lt_u32 s64, {val}\ns_cbranch_scc1 {L2}")
        a(f"{L3}:")
        a.vm = vm
    def set_flag(self, soff, mods, tags=None, T0=T0):
        a = self.a
        for i in range(4): a(f"v_mov_b32 v{T0+i}, {sTAG if mods == 'sc1' else sTAGX}")
        if mods in ("far", "both"): a(f"s_add_u32 s65, {soff}, {FAR}")
        a.wait_vm(tags)
        a("s_mov_b64 exec, 0xff")
        if mods == "sc1": a(f"buffer_store_dwordx4 {vr(T0)}, {vL16}, {WS}, {soff} offen sc1", "flag")
        if mods in ("near", "both") and not ("far" in self.exp and mods == "both"): a(f"buffer_store_dwordx4 {vr(T0)}, {vL16}, {WS}, {soff} offen", "flag")
        if mods in ("far", "both"): a(f"buffer_store_dwordx4 {vr(T0)}, {vL16}, {WS}, s65 offen sc1", "flag")
        a("s_mov_b64 exec, -1")
    def poll2(self, soff, vflag, same_die, mask=None, hook=None):
        a = self.a
        t = f"v{T0}"
        L = a.label("Lpoll"); L2 = a.label("Lpoll"); L3 = a.label("Lpoll")
        a(f"s_mov_b32 {sTO}, 0\ns_branch {L2}")
        a(f"{L}:")
        if self.psleep: a(f"s_sleep {self.psleep}")
        a(f"{L2}:")
        a(f"s_and_b32 s65, {sTO}, 7\ns_cmp_eq_u32 s65, 7\ns_cselect_b32 s67, {FAR}, 0\ns_add_u32 s65, {soff}, s67")
        a(f"buffer_load_dword {t}, {vflag}, {WS}, s65 offen sc1")
        a(f"s_add_u32 {sTO}, {sTO}, 1\ns_cmp_gt_u32 {sTO}, 100000\ns_cbranch_scc1 L_end")
        a.wait_vm()
        if hook:
            a(f"s_cmp_lg_u32 {sTO}, 5\ns_cbranch_scc1 {L3}")
            a(f"v_mov_b32 v0, {t}")
            hook()
            a(f"v_mov_b32 {t}, v0")
            a(f"{L3}:")
        if same_die: a(f"s_cmp_eq_u32 s67, 0\ns_cselect_b32 s65, {sTAGX}, {sTAG}\ns_cselect_b32 s66, 1, 16")
        else: a(f"s_mov_b32 s65, {sTAG}\ns_mov_b32 s66, 16")
        a(f"v_subrev_u32 {t}, s65, {t}")
        a(f"v_cmp_le_u32 vcc, s66, {t}")
        if mask is not None: a(f"s_and_b32 vcc_lo, vcc_lo, {mask}\ns_cbranch_scc1 {L}")
        else: a(f"s_cbranch_vccnz {L}")
        a.vm = ["flag"] if hook else []
    def signal(self, val):
        a = self.a
        a(f"v_mov_b32 v0, {val}")
        a(f"ds_write_b32 {vCTR}, v0", "sig")
    def dsignal(self, val, extra=0):
        a = self.a
        a(f"s_add_u32 m0, s50, {extra}\nv_mov_b32 v0, {4*val}\ns_mov_b64 exec, 1")
        a("global_load_lds_dword v0, s[48:49]", "dsig")
        a("s_mov_b64 exec, -1")
    def wait_ctr(self, grp, val, one=False, sleep=1, tmp=None):
        a = self.a
        L = a.label("Lw"); L2 = a.label("Lw")
        a(f"s_mov_b32 {sTO}, 0\ns_branch {L2}")
        a(f"{L}:")
        if sleep: a(f"s_sleep {sleep}")
        a(f"{L2}:")
        t = T0 if tmp is None else tmp
        if one:
            a(f"v_xor_b32 v{t+1}, {16 if one is True else one}, {vCTR}")
            a(f"ds_read_b32 v{t}, v{t+1}", "ctr")
        else:
            a(f"ds_read_b128 {vr(t)}, {vSCR} offset:{16*grp}", "ctr")
        a(f"s_add_u32 {sTO}, {sTO}, 1\ns_cmp_gt_u32 {sTO}, 1000000\ns_cbranch_scc1 L_end")
        a.wait_lg()
        if not one:
            a(f"v_min_u32 v{t}, v{t}, v{t+1}\nv_min3_u32 v{t}, v{t}, v{t+2}, v{t+3}")
        a(f"v_readfirstlane_b32 s64, v{t}")
        a(f"s_cmp_lt_u32 s64, {val}\ns_cbranch_scc1 {L}")
    def wait_word(self, off, val):
        a = self.a
        L = a.label("Lw")
        a(f"s_mov_b32 {sTO}, 0")
        a(f"{L}:")
        a(f"ds_read_b32 v{T0}, {vSCR} offset:{off}", "ctr")
        a(f"s_add_u32 {sTO}, {sTO}, 1\ns_cmp_gt_u32 {sTO}, 1000000\ns_cbranch_scc1 L_end")
        a.wait_lg()
        a(f"v_readfirstlane_b32 s64, v{T0}")
        a(f"s_cmp_lt_u32 s64, {val}\ns_cbranch_scc1 {L}")
    def xlane_sum(self, v, t):
        a = self.a
        a(f"v_mov_b32 {t}, {v}\nv_permlane16_swap_b32 {v}, {t}\nv_add_f32 {v}, {v}, {t}")
        a(f"v_mov_b32 {t}, {v}\nv_permlane32_swap_b32 {v}, {t}\nv_add_f32 {v}, {v}, {t}")
    def bf16r(self, v):
        self.a(f"v_cvt_pk_bf16_f32 {v}, {v}, {v}\nv_lshlrev_b32 {v}, 16, {v}")
    def ln_consts(self, vS, vQ, K, t):
        a = self.a
        vNM, vSD, vC1, vC2 = K
        a(f"v_mul_f32 {vS}, 0x3ae38e39, {vS}")
        a(f"v_mul_f32 {t}, {vS}, {vS}")
        a(f"v_mov_b32 {vC1}, 0x3ae38e39")
        a(f"v_fma_f32 {vQ}, {vQ}, {vC1}, -{t}")
        a(f"v_max_f32 {vQ}, 0, {vQ}")
        self.bf16r(vQ)
        a(f"v_add_f32 {vQ}, 0x3727c5ac, {vQ}")
        self.bf16r(vQ)
        a(f"v_sqrt_f32 {vSD}, {vQ}")
        self.bf16r(vSD)
        self.bf16r(vS)
        a(f"v_sub_f32 {vNM}, 0, {vS}")
        a(f"v_rcp_f32 {t}, {vSD}")
        a(f"v_mul_f32 {vC1}, 0xc0135761, {t}")
        a(f"v_mul_f32 {vC2}, {t}, {t}")
        a(f"v_mul_f32 {vC2}, {vC2}, {t}")
        a(f"v_mul_f32 {vC2}, 0xbdd2d3e8, {vC2}")
    def gelu_ops(self, acc, cs, K, t):
        vNM, vSD, vC1, vC2 = K
        return [f"v_fma_f32 {acc}, {cs}, {vNM}, {acc}",
                f"v_mul_f32 {t}, {acc}, {acc}",
                f"v_fma_f32 {t}, {t}, {vC2}, {vC1}",
                f"v_mul_f32 {t}, {t}, {acc}",
                f"v_exp_f32 {t}, {t}",
                f"v_fma_f32 {t}, {t}, {vSD}, {vSD}",
                f"v_rcp_f32 {t}, {t}",
                f"v_mul_f32 {acc}, {acc}, {t}"]
    def gelu4(self, acc0, cs0, K, t0):
        seqs = [self.gelu_ops(f"v{acc0+i}", f"v{cs0+i}", K, f"v{t0+i}") for i in range(4)]
        for k in range(8):
            for s in seqs: self.a(s[k])
    def gelu_pk(self, groups, t0):
        a = self.a
        P = [(acc + 2 * h, cs + 2 * h, K, t0 + 4 * g + 2 * h) for g, (acc, cs, K) in enumerate(groups) for h in range(2)]
        for x, c, K, t in P: a(f"v_pk_fma_f32 {vr(x,2)}, {vr(c,2)}, {vr(K,2)}, {vr(x,2)} op_sel_hi:[1,0,1]")
        for x, c, K, t in P: a(f"v_pk_mul_f32 {vr(t,2)}, {vr(x,2)}, {vr(x,2)}")
        for x, c, K, t in P: a(f"v_pk_fma_f32 {vr(t,2)}, {vr(t,2)}, {vr(K+2,2)}, {vr(K+2,2)} op_sel:[0,1,0] op_sel_hi:[1,1,0]")
        for x, c, K, t in P: a(f"v_pk_mul_f32 {vr(t,2)}, {vr(t,2)}, {vr(x,2)}")
        for x, c, K, t in P: a(f"v_exp_f32 v{t}, v{t}\nv_exp_f32 v{t+1}, v{t+1}")
        for x, c, K, t in P: a(f"v_pk_fma_f32 {vr(t,2)}, {vr(t,2)}, {vr(K,2)}, {vr(K,2)} op_sel:[0,1,1] op_sel_hi:[1,1,1]")
        for x, c, K, t in P: a(f"v_rcp_f32 v{t}, v{t}\nv_rcp_f32 v{t+1}, v{t+1}")
        for x, c, K, t in P: a(f"v_pk_mul_f32 {vr(x,2)}, {vr(x,2)}, {vr(t,2)}")
    def srd(self, name, ptr, nbytes):
        b = int(name[2:name.index(":")]); a = self.a
        a(f"s_mov_b32 s{b}, s{ptr}\ns_mov_b32 s{b+1}, s{ptr+1}\ns_mov_b32 s{b+2}, {nbytes}\ns_mov_b32 s{b+3}, 0x20000")
    def modn(self, s, n):
        self.a(f"s_sub_u32 s65, {s}, {n}\ns_min_u32 {s}, {s}, s65")
    def tr_bases(self, dst, base):
        a = self.a; t0, t1 = f"v{T0}", f"v{T0+1}"
        a(f"v_lshrrev_b32 {t0}, 2, {vLANE}")
        a(f"v_bfe_u32 {t1}, {vLANE}, 3, 2")
        a(f"v_lshlrev_b32 {t0}, 7, {t0}\nv_and_b32 {dst[0]}, 3, {vLANE}\nv_lshl_add_u32 {t0}, {dst[0]}, 3, {t0}")
        a(f"v_add_u32 {t0}, {base}, {t0}")
        for u in range(4):
            a(f"v_xor_b32 {dst[u]}, {u}, {t1}\nv_lshl_add_u32 {dst[u]}, {dst[u]}, 5, {t0}")
    def common_late(self, barrier=True):
        a = self.a
        for i in range(5): a(f"s_mov_b32 {sC[i]}, {4096*i}")
        self.srd(W2, 8, 663552)
        self.srd(OUT, 14, 1179648); self.srd(WS, 18, 0x10000000)
        a(f"s_add_u32 s52, s18, {H_OFF}\ns_addc_u32 s53, s19, 0\ns_mov_b32 s54, {FRAGSZ+FAR}\ns_mov_b32 s55, 0x20000")
        if "tlb" in self.exp:
            L = a.label("Ltlb")
            a(f"s_cmp_lg_u32 {sWV}, 2\ns_cbranch_scc1 {L}")
            a(f"v_mov_b32 v{T0}, 0\ns_mov_b64 exec, 1")
            def touch(srd, so): a(f"buffer_load_dword {DUMMY}, v{T0}, {srd}, {so} offen", "_untracked")
            a(f"s_mov_b32 s64, {ST_OFF}"); touch(WS, "s64")
            a(f"s_mov_b32 s64, {X1_OFF}"); touch(WS, "s64")
            touch(W2, 0)
            a(f"s_mul_i32 s64, {sM}, {8*147456}\ns_add_u32 s64, s64, {H3_OFF}"); touch(WS, "s64")
            a(f"s_add_u32 s64, s64, {8*147456-4}"); touch(WS, "s64")
            a(f"s_mul_i32 s64, {sR}, {9*32*1024}\ns_add_u32 s64, s64, {P_OFF}"); touch(WS, "s64")
            a(f"s_add_u32 s64, s64, {9*32*1024-4}"); touch(WS, "s64")
            for q in range(3):
                a(f"s_mov_b32 s64, {q*0x200000}"); touch(W3, "s64")
            a(f"s_mov_b32 s64, {5308416-4}"); touch(W3, "s64")
            a(f"s_mul_i32 s64, {sX}, 663552"); touch(W4, "s64")
            a(f"s_add_u32 s64, s64, {663552-4}"); touch(W4, "s64")
            touch(OUT, 0)
            a("s_mov_b64 exec, -1")
            a(f"{L}:")
        a(f"v_add_u32 {vLB[1]}, 0x10000, {vLB[0]}\nv_add_u32 {vLB[2]}, 0x20000, {vLB[0]}")
        a(f"v_min_u32 {vFLG}, 17, {vLANE}\nv_lshlrev_b32 {vFLG}, 7, {vFLG}")
        a.wait_lg()
        a("s_waitcnt lgkmcnt(0)")
        a(f"s_add_u32 {sE}, {sE}, 0x10000001\ns_and_b32 {sTAG8}, {sE}, 0xff\ns_mul_i32 {sTAG}, {sE}, 0x9e3779b1\ns_xor_b32 {sTAG}, {sTAG}, 0x5bd1e995")
        def fs(off):
            L = a.label("Lfs")
            a(f"s_cmp_lg_u32 {sWV}, 3\ns_cbranch_scc1 {L}")
            a(f"s_getreg_b32 s65, hwreg(HW_REG_XCC_ID)\ns_and_b32 s65, s65, 15\ns_add_u32 s65, s65, {sTAG}")
            a(f"s_lshl_b32 s64, {sX}, 5\ns_add_u32 s64, s64, {sR}\ns_lshl_b32 s64, s64, 7\ns_add_u32 s64, s64, {off}")
            a(f"v_mov_b32 v{T0}, {sTAG}\nv_mov_b32 v{T0+1}, s65\nv_mov_b32 v{T0+2}, {sTAG}\nv_mov_b32 v{T0+3}, s65\ns_mov_b64 exec, 0xff")
            a(f"buffer_store_dwordx4 {vr(T0)}, {vL16}, {WS}, s64 offen sc1", "_untracked")
            a("s_mov_b64 exec, -1")
            a(f"{L}:")
        self.fs = fs
        a(f"s_getreg_b32 s65, hwreg(HW_REG_XCC_ID)\ns_and_b32 s65, s65, 15\ns_add_u32 {sTAGX}, s65, {sTAG}")
        if "far" in self.exp: a(f"s_and_b32 s65, s2, 15\ns_add_u32 {sTAGX}, s65, {sTAG}")

    def build(self):
        a = self.a
        a("s_cmp_ge_u32 s2, 256\ns_cbranch_scc1 L_end")
        a("s_load_dwordx16 s[4:19], s[0:1], 0")
        if "dbg" in self.exp: a("s_memrealtime s[86:87]\ns_load_dwordx2 s[90:91], s[0:1], 48\ns_waitcnt lgkmcnt(0)\ns_mov_b32 s51, s86")
        a("s_getpc_b64 s[66:67]\nL_pc:")
        a(f"v_and_b32 {vLANE}, 63, v0\nv_lshrrev_b32 {vG}, 6, v0")
        a(f"s_and_b32 {sX}, s2, 7\ns_lshr_b32 {sR}, s2, 3")
        a(f"v_readfirstlane_b32 {sWV}, {vG}")
        a(f"s_lshl_b32 s64, {sR}, 11\nv_lshlrev_b32 v{T0}, 2, v0\nv_add_u32 v{T0}, s64, v{T0}")
        a(f"v_min_u32 v{T0}, L_code_end-L_pc-4, v{T0}")
        a(f"global_load_dword {DUMMY}, v{T0}, s[66:67]", "code")
        a(f"v_lshlrev_b32 {vL16}, 4, {vLANE}\nv_lshrrev_b32 {vG}, 4, {vLANE}\nv_and_b32 {vJ}, 15, {vLANE}")
        a(f"s_and_b32 {sW}, {sWV}, 3\ns_lshl_b32 {sWK}, {sW}, 10")
        a(f"v_mov_b32 {vSTAMP}, 0")
        a(f"s_add_u32 s48, s66, L_tab-L_pc\ns_addc_u32 s49, s67, 0\ns_lshl_b32 s50, {sWV}, 2\ns_add_u32 s50, s50, {SCR}")
        a(f"v_mov_b32 {vSCR}, {SCR}\nv_mov_b32 {vCTR}, s50\nds_write_b32 {vCTR}, {vSTAMP}\nds_write_b32 {vCTR}, {vSTAMP} offset:32")
        a.lg = []
        a(f"s_lshr_b32 {sM}, {sR}, 2\ns_and_b32 {sJ}, {sR}, 3")
        a(f"s_cmp_ge_u32 {sR}, 9\ns_cselect_b32 {sMT}, 1, 0\ns_mul_i32 s64, {sMT}, 9\ns_sub_u32 {sNT}, {sR}, s64")
        a(f"s_cmp_ge_u32 {sR}, {NACT}\ns_cbranch_scc1 L_repack")
        a(f"s_cmp_ge_u32 {sWV}, 4\ns_cbranch_scc1 L_h_act")
        self.c_phaseA()
        a("s_branch L_c_mlp")
        a("L_h_act:")
        self.reset(0); a.vm = ["code"]
        self.h_phaseA()
        a("s_branch L_h_mlp")
        a("L_repack:")
        self.reset(0); a.vm = ["code"]
        self.repack()
        a("L_split:")
        a(f"s_cmp_ge_u32 {sWV}, 4\ns_cbranch_scc1 L_h_mlp")
        a("L_c_mlp:")
        a("s_waitcnt lgkmcnt(0)")
        self.reset(24); a.vm = ["old"] * 4
        if self.stop > 2: self.c_mlp()
        a("s_branch L_fin")
        a("L_h_mlp:")
        a("s_waitcnt lgkmcnt(0)")
        self.reset(24); a.vm = ["old"] * 4
        self.h_mlp()
        a("L_fin:")
        self.reset(63)
        if "dbg" in self.exp:
            a("s_memrealtime s[64:65]\ns_waitcnt lgkmcnt(0)\ns_not_b32 s66, s51\nv_mov_b32 v12, s66\nv_mov_b32 v13, s64\nv_mov_b32 v14, 0\nv_mov_b32 v15, s51\ns_mov_b64 exec, 1")
            a("global_atomic_umax v14, v12, s[90:91]\nglobal_atomic_umax v14, v13, s[90:91] offset:4\nglobal_atomic_umax v14, v15, s[90:91] offset:8")
        if self.stamps:
            self.stamp()
            a(f"s_lshl_b32 s64, s2, 3\ns_add_u32 s64, s64, {sWV}\ns_lshl_b32 s64, s64, 8\ns_add_u32 s64, s64, {STAMP_OFF}")
            a(f"v_lshlrev_b32 v{T0}, 2, {vLANE}")
            a(f"buffer_store_dword {vSTAMP}, v{T0}, {WS}, s64 offen")
        a("L_end:\ns_endpgm")
        a.flush_deferred()
        a(".p2align 7\n.type L_tab,@object\nL_tab:")
        for i in range(0, 64, 8): a(".long " + ", ".join(str(i + k) for k in range(8)))
        a("L_code_end:")
        return self.wrap(a.text())

    def kernarg_wait(self):
        a = self.a
        a("s_waitcnt lgkmcnt(0)")
        a(f"s_load_dword {sE}, s[18:19], 0")
        a("s_barrier")

    STEPS = (((0,), (0, 1)), ((1,), (2, 3)), ((2, 3), (4, 5)), ((4, 5), (6, 7)), ((6, 7), (8, 9)), ((8,), (10, 11)), ((), (12, 13, 14)), ((), (15, 16, 17)))
    NEED = []
    for _xl, _kk in STEPS: NEED.append((NEED[-1] if NEED else 0) + 2 * len(_xl) + len(_kk))
    def ctr_issue(self, grp, dst):
        self.a(f"ds_read_b128 {vr(dst)}, {vSCR} offset:{16*grp}", f"ctrp{dst}")
    def ctr_check(self, grp, dst, val, tmp=None, sleep=1):
        a = self.a
        a.wait_lg(f"ctrp{dst}")
        a(f"v_min_u32 v{dst}, v{dst}, v{dst+1}\nv_min3_u32 v{dst}, v{dst}, v{dst+2}, v{dst+3}")
        a(f"v_readfirstlane_b32 s64, v{dst}")
        a(f"s_cmp_ge_u32 s64, {val}")
        a.slow(lambda: self.wait_ctr(grp, val, tmp=tmp, sleep=sleep))
    def c_phaseA(self):
        a = self.a
        def XF(t, s): return BF0 + 72 * t + 4 * s
        HF = BF0
        t0, t1, t2 = f"v{T0}", f"v{T0+1}", f"v{T0+2}"
        CT = T0 + 8
        ACC = ACC0; CS = ACC0 + 16; SUM = ACC0 + 24; GR = ACC0 + 28; OB = ACC0 + 32; XR = ACC0 + 36; KR = ACC0 + 44; PK = ACC0 + 16
        vXB = [[f"v{ACC0+52+2*t+q}" for q in range(2)] for t in range(2)]
        vT = [[f"v{ACC0+56+2*f+h}" for h in range(2)] for f in range(2)]
        vBP = [f"v{ACC0+60}", f"v{ACC0+61}"]
        vXR = [f"v{T0+4+i}" for i in range(4)]
        a(f"s_lshl_b32 s69, {sX}, 3\ns_lshl_b32 s64, {sMT}, 2\ns_add_u32 s69, s69, s64\ns_add_u32 s69, s69, {sW}")
        a(f"v_lshlrev_b32 {t0}, 6, {vLANE}")
        a(f"s_lshl_b32 s64, {sR}, 2\ns_add_u32 s64, s64, {sW}\ns_lshl_b32 s70, s64, 12\ns_add_u32 s70, s70, {3*32*1152}")
        self.kernarg_wait()
        self.srd(W1, 6, 663552)
        self.stamp()
        a(f"buffer_load_dword {DUMMY}, {t0}, {W1}, s70 offen", "pf")
        if "wstlb" in self.exp:
            a(f"v_mov_b32 {t1}, 256")
            a(f"global_load_dword {DUMMY}, {t1}, s[18:19]", "pf")
        self.srd(X, 4, 1179648); self.srd(W3, 10, 5308416); self.srd(W4, 12, 5308416)
        self.common_late()
        for i in range(4): a(f"v_mov_b32 v{OB+i}, 0x3f803f80")
        a(f"s_and_b32 s68, {sW}, 1\ns_lshr_b32 s67, {sW}, 1")
        a(f"v_lshlrev_b32 {t0}, 7, {vJ}\nv_lshrrev_b32 {t1}, 1, {vJ}")
        for t in range(2):
            a(f"s_xor_b32 s64, {sW}, {t}\ns_lshl_b32 s64, s64, 11\ns_add_u32 s64, s64, {72*1024}")
            for par in range(2):
                a(f"v_add_u32 {t2}, {4*par}, {vG}\nv_xor_b32 {t2}, {t2}, {t1}\nv_lshl_add_u32 {t2}, {t2}, 4, {t0}\nv_add_u32 {vXB[t][par]}, s64, {t2}")
        a(f"v_lshrrev_b32 {t0}, 2, {vLANE}\nv_lshlrev_b32 {t0}, 7, {t0}\nv_and_b32 {t1}, 3, {vLANE}\nv_lshl_add_u32 {t0}, {t1}, 3, {t0}\nv_bfe_u32 {t1}, {vLANE}, 3, 2")
        for f in range(2):
            a(f"s_xor_b32 s64, s67, {f}\ns_lshl_b32 s65, s68, 1\ns_add_u32 s64, s64, s65")
            a(f"v_xor_b32 {t2}, s64, {t1}\nv_lshl_add_u32 {vT[f][0]}, {t2}, 5, {t0}\nv_add_u32 {vT[f][1]}, {9*4096}, {vT[f][0]}")
        a(f"s_lshl_b32 s64, {sW}, 11\ns_lshl_b32 s65, {sNT}, 13\ns_add_u32 s64, s64, s65\ns_add_u32 s64, s64, {72*1024}")
        a(f"v_lshlrev_b32 {t0}, 7, {vJ}\nv_add_u32 {t0}, s64, {t0}\nv_and_b32 {t1}, 1, {vG}\nv_lshl_add_u32 {t0}, {t1}, 3, {t0}")
        a(f"v_lshrrev_b32 {t1}, 1, {vJ}\nv_lshrrev_b32 {t2}, 1, {vG}\nv_xor_b32 {t1}, {t1}, {t2}")
        for u in range(4): a(f"v_xor_b32 {t2}, {2*u}, {t1}\nv_lshl_add_u32 {vXR[u]}, {t2}, 4, {t0}")
        a(f"s_mul_i32 s64, s69, 18\ns_lshl_b32 s65, {sNT}, 1\ns_add_u32 s64, s64, s65\ns_lshl_b32 s77, s64, 10")
        a(f"s_lshl_b32 s64, s68, 10\ns_add_u32 s72, s77, s64")
        a(f"s_mul_i32 s64, s68, {2*18432}\ns_sub_u32 s73, s72, s64\ns_add_u32 s73, s73, 18432")
        a(f"s_lshr_b32 s64, s69, 1\ns_lshl_b32 s76, s64, 12")
        a(f"s_mul_i32 s64, s68, 9\ns_add_u32 s64, s64, {sNT}\ns_lshl_b32 s64, s64, 7\ns_add_u32 s75, s64, s76")
        a(f"s_lshl_b32 s64, {sNT}, 1\ns_add_u32 s64, s64, s68\ns_lshl_b32 s64, s64, 7\ns_add_u32 s71, s64, s76\ns_add_u32 s71, s71, {F1_OFF}")
        a(f"s_mul_i32 s74, s69, 18432")
        MS = [[f"s[{92+4*u+2*t}:{93+4*u+2*t}]" for t in range(2)] for u in range(2)]
        MO = [["s[100:101]", "s[78:79]"], ["s[0:1]", "vcc"]]
        for u in range(2):
            a(f"s_lshl_b32 s64, {sNT}, 2\ns_lshl_b32 s65, s68, 1\ns_add_u32 s64, s64, s65\ns_add_u32 s64, s64, {u}\ns_mul_i32 s64, s64, 7282\ns_lshr_b32 s64, s64, 16")
            a(f"s_lshr_b32 s65, s64, 1\ns_add_u32 s65, s65, 1\ns_sub_u32 s66, 0, s65\ns_bitcmp1_b32 s64, 0\ns_cselect_b32 s65, s66, s65")
            a(f"v_subrev_u32 {t0}, s65, {vJ}")
            a(f"v_and_b32 {t1}, 15, {t0}\nv_lshl_add_u32 {t1}, {vG}, 4, {t1}\nv_lshlrev_b32 {vBP[u]}, 2, {t1}")
            a(f"v_cmp_gt_u32 {MS[u][0]}, 16, {t0}")
            for t in range(2):
                a(f"s_xor_b32 s64, s68, {t}\ns_lshl_b32 s64, s64, 4\nv_add_u32 {t1}, s64, {t0}")
                dst = MS[u][1] if t == 0 else ("s[100:101]" if u == 0 else "s[78:79]")
                a(f"v_cmp_gt_u32 {dst}, 32, {t1}")
        VAL = [[MS[0][1], "s[100:101]"], [MS[1][1], "s[78:79]"]]
        def xread(t, k):
            off = 8192 * (k >> 1)
            if off < 65536: a(f"ds_read_b128 {vr(XF(t,k))}, {vXB[t][k&1]} offset:{off}", f"x{t}_{k}")
            else:
                a(f"v_add_u32 v0, {off}, {vXB[t][k&1]}")
                a(f"ds_read_b128 {vr(XF(t,k))}, v0", f"x{t}_{k}")
        order = [(s, f) for s in range(18) for f in range(2)]
        step_of = {s: i for i, (xl, kk) in enumerate(self.STEPS) for s in kk}
        first_n = {i: 2 * kk[0] for i, (xl, kk) in enumerate(self.STEPS)}
        fr = {}; st = {"done": -1, "nxt": 0}
        xq = []; statq = []
        LOOK = 5
        def xr():
            t, k = xq.pop(0); xread(t, k)
            if t == 0: statq.append(k)
        def half(h):
            n = st["nxt"]; s, f = order[n]
            if h == 0:
                i = step_of[s]
                if i > st["done"]:
                    if i == 0: self.wait_ctr(3, self.NEED[0], sleep=0, tmp=CT); self.stamp()
                    else: self.ctr_check(3, CT, self.NEED[i], tmp=CT, sleep=0)
                    st["done"] = i
                    xq.extend((t, 2 * L + q) for L in self.STEPS[i][0] for q in range(2) for t in range(2))
                while xq and xq[0][1] <= s: xr()
                fr[n] = self.next_af()
            a(f"ds_read_b64_tr_b16 {vr(fr[n]+2*h,2)}, {vT[f][0 if s < 9 else 1]} offset:{(s%9)*4096+2048*h}", f"f{n}")
            if h == 1:
                st["nxt"] += 1
                i = step_of[s]
                if i + 1 < len(self.STEPS) and n == first_n[i + 1] - 2: self.ctr_issue(3, CT)
        for n in range(4): half(0); half(1)
        vS, vQ = f"v{SUM}", f"v{GR}"
        q = Asm(); self.a = q
        q(f"v_and_b32 {t0}, 3, {vJ}")
        for r in range(1, 4):
            q(f"v_cmp_eq_u32 vcc, {r}, {t0}")
            q(f"v_cndmask_b32 {vQ}, {vQ}, v{GR+r}, vcc")
        q(f"v_lshrrev_b32 {t0}, 2, {vJ}\nv_cmp_eq_u32 vcc, {t0}, {vG}")
        q(f"v_cndmask_b32 {vQ}, 0, {vQ}, vcc")
        self.xlane_sum(vQ, t0)
        self.ln_consts(vS, vQ, [f"v{KR+i}" for i in range(4)], t0)
        q(f"s_lshl_b32 s65, {sW}, 8\ns_add_u32 s65, s65, {KC_OFF}\nv_lshl_add_u32 {vXR[0]}, {vJ}, 4, s65\nv_xor_b32 {vXR[1]}, 256, {vXR[0]}")
        q(f"s_lshl_b32 s65, {sW}, 6\nv_lshl_add_u32 {vXR[2]}, {vG}, 4, {vSCR}\nv_add_u32 {vXR[2]}, s65, {vXR[2]}\nv_xor_b32 {vXR[3]}, 128, {vXR[2]}")
        self.a = a
        fill = [i.text for i in q.ins]
        nstat = 0; ready = None
        def slot():
            if xq:
                xr()
                if xq: xr()
            elif ready is not None and fill: a(fill.pop(0), "kw")
        for n, (s, f) in enumerate(order):
            a.wait_lg([f"f{n}", f"x0_{s}", f"x1_{s}"])
            go = st["nxt"] < len(order)
            for t in range(2):
                a(f"{MFMA} {vr(ACC+8*f+4*t)}, {vr(fr[n])}, {vr(XF(t,s))}, {'0' if s == 0 else vr(ACC+8*f+4*t)}")
                if go: half(t)
                else: slot()
                if t == 0: slot()
            if f == 0:
                a(f"{MFMA} {vr(CS)}, {vr(fr[n])}, {vr(OB)}, {'0' if s == 0 else vr(CS)}")
                slot()
            for _ in range(2):
                if len(statq) > (1 if xq else 0):
                    k = statq.pop(0)
                    a.wait_lg(f"x0_{k}")
                    a(f"{MFMA} {vr(SUM)}, {vr(OB)}, {vr(XF(0,k))}, {'0' if k == 0 else vr(SUM)}")
                    slot(); slot()
                    a(f"{MFMA} {vr(GR)}, {vr(XF(0,k))}, {vr(XF(0,k))}, {'0' if k == 0 else vr(GR)}")
                    slot()
                    nstat += 1
            if st["done"] >= 5 and not xq and "xr" not in st:
                for uu in range(4): a(f"ds_read_b64 {vr(XR+2*uu,2)}, {vXR[uu]}", "xr")
                st["xr"] = n
            if "xr" in st and n == st["xr"] + 1:
                a.wait_lg("xr")
                if "w2late" not in self.exp: self.dsignal(1)
            if nstat == 18 and ready is None:
                ready = n
                self.stamp()
        while fill: a(fill.pop(0), "kw")
        a(f"ds_write_b128 {vXR[0]}, {vr(KR)}", "csw")
        a(f"ds_write_b128 {vXR[2]}, {vr(CS)} offset:{CS3_OFF}", "csw")
        if "w2late" not in self.exp: a.wait_vm("dsig")
        self.signal(2)
        self.stamp()
        TB = XF(0, 0)
        self.gelu_pk([(ACC, CS, KR)], TB)
        self.wait_ctr(0, 2, sleep=0)
        a(f"ds_read_b128 {vr(KR+4)}, {vXR[1]}", "rk")
        a(f"ds_read_b128 {vr(CS+4)}, {vXR[3]} offset:{CS3_OFF}", "rk")
        a.wait_lg()
        self.gelu_pk([(ACC + 4, CS, KR + 4), (ACC + 8, CS + 4, KR), (ACC + 12, CS + 4, KR + 4)], TB)
        P = TB + 20; R = TB + 28; O = KR
        for f in range(2):
            for t in range(2):
                for d in range(2): a(f"v_cvt_pk_bf16_f32 v{P+4*f+2*t+d}, v{ACC+8*f+4*t+2*d}, v{ACC+8*f+4*t+2*d+1}")
        L = a.label("Lsw")
        a(f"s_cmp_eq_u32 s67, 0\ns_cbranch_scc1 {L}")
        for e in range(4): a(f"v_swap_b32 v{P+e}, v{P+4+e}")
        a(f"{L}:")
        for u in range(2):
            for e in range(4): a(f"ds_bpermute_b32 v{R+4*u+e}, {vBP[u]}, v{P+4*u+e}", "bp")
        self.signal(3)
        a.wait_lg()
        for t in range(2):
            for u in range(2):
                for d in range(2):
                    o = O + 4 * t + 2 * u + d
                    a(f"v_cndmask_b32 v{o}, v{R+4*u+2*(1-t)+d}, v{R+4*u+2*t+d}, {MS[u][0]}")
                    a(f"v_cndmask_b32 v{o}, 0, v{o}, {VAL[u][t]}")
            a(f"buffer_store_dwordx4 {vr(O+4*t)}, {vL16}, {HS}, {'s72' if t == 0 else 's73'} offen", "hst")
        self.stamp()
        vT2 = [[f"v{ACC0+52+2*u+h}" for h in range(2)] for u in range(4)]; vSH = f"v{ACC0+60}"
        a(f"v_lshrrev_b32 {t0}, 2, {vLANE}\nv_lshlrev_b32 {t0}, 7, {t0}\nv_and_b32 {t1}, 3, {vLANE}\nv_lshl_add_u32 {t0}, {t1}, 3, {t0}\nv_bfe_u32 {t1}, {vLANE}, 3, 2\nv_add_u32 {t0}, {72*1024}, {t0}")
        for u in range(4): a(f"v_xor_b32 {t2}, {u}, {t1}\nv_lshl_add_u32 {vT2[u][0]}, {t2}, 5, {t0}\nv_add_u32 {vT2[u][1]}, {9*4096}, {vT2[u][0]}")
        a(f"v_add_u32 {vSH}, s74, {vL16}")
        self.ctr_issue(1, CT)
        self.set_flag("s71", "near")
        a(f"s_add_u32 s72, s72, {FAR}\ns_add_u32 s73, s73, {FAR}")
        a("s_mov_b32 s70, 0")
        def far_st(tag):
            for t in range(2): a(f"buffer_store_dwordx4 {vr(O+4*t)}, {vL16}, {HS}, {'s72' if t == 0 else 's73'} offen sc1", tag)
        def far_copy():
            far_st("hfar")
            self.set_flag("s71", "far")
            a("s_mov_b32 s70, 1")
        self.stamp()
        order = [(s, u) for s in range(18) for u in range(4)]
        pool = [BF0 + 72 + 4 * i for i in range(18)] + [AF0 + 4 * i for i in range(6)]
        fr = {}; nx = [0]
        def rd2():
            n = nx[0]; s, u = order[n]
            fr[n] = self.read_tr(vT2[u][0 if s < 9 else 1], (s % 9) * 4096, f"f{n}", dst=pool.pop(0)); nx[0] += 1
        self.ctr_check(1, CT, 7, tmp=CT, sleep=0)
        while pool: rd2()
        a(f"s_add_u32 s64, s76, {F1_OFF}")
        self.poll2("s64", vFLG, True, hook=far_copy)
        a(f"v_add_u32 {vSH}, s67, {vSH}")
        self.stamp()
        for s in range(18):
            a(f"buffer_load_dwordx4 {vr(HF+4*s)}, {vSH}, {HS}, {sC[s>>2]} offen offset:{(s&3)*1024} sc1", f"h{s}")
        self.stamp()
        for n, (s, u) in enumerate(order):
            if u == 0: a.wait_vm(f"h{s}")
            a.wait_lg(f"f{n}")
            a(f"{MFMA} {vr(ACC+4*u)}, {vr(fr[n])}, {vr(HF+4*s)}, {'0' if s == 0 else vr(ACC+4*u)}")
            pool.append(fr[n])
            if nx[0] < len(order): rd2()
        self.stamp()
        vS, vQ = f"v{SUM}", f"v{SUM+1}"
        a(f"v_mov_b32 {vS}, 0\nv_mov_b32 {vQ}, 0")
        a(f"s_mul_i32 s64, s69, 9\ns_add_u32 s64, s64, {sNT}\ns_mul_i32 s64, s64, {XG}\ns_add_u32 s64, s64, {X1_OFF}")
        for d in range(8):
            t3 = f"v{T0+3}"
            a(f"v_cvt_pk_bf16_f32 {t0}, v{ACC+2*d}, v{ACC+2*d+1}")
            a(f"v_lshlrev_b32 {t1}, 16, {t0}\nv_and_b32 {t0}, 0xffff0000, {t0}")
            a(f"v_lshlrev_b32 {t2}, 16, v{XR+d}\nv_and_b32 {t3}, 0xffff0000, v{XR+d}")
            a(f"v_add_f32 {t1}, {t1}, {t2}\nv_add_f32 {t0}, {t0}, {t3}")
            a(f"v_cvt_pk_bf16_f32 v{PK+d}, {t1}, {t0}")
            if d & 3 == 3: a(f"buffer_store_dwordx4 {vr(PK+d-3)}, {vL16}, {WS}, s64 offen offset:{1024*(d>>2)} sc1", "x1st")
        a(f"v_bitop3_b32 v{T0+4}, v{PK}, v{PK+1}, {sTAG} bitop3:0x96")
        for h in range(1, 4): a(f"v_bitop3_b32 v{T0+4}, v{T0+4}, v{PK+2*h}, v{PK+2*h+1} bitop3:0x96")
        a(f"v_lshlrev_b32 {t0}, 2, {vLANE}")
        a(f"buffer_store_dword v{T0+4}, {t0}, {WS}, s64 offen offset:2048 sc1", "x1st")
        for d in range(8):
            a(f"v_dot2_f32_bf16 {vS}, v{PK+d}, v{OB}, {vS}")
            a(f"v_dot2_f32_bf16 {vQ}, v{PK+d}, v{PK+d}, {vQ}")
        self.xlane_sum(vS, t0); self.xlane_sum(vQ, t0)
        a(f"s_lshr_b32 s64, s69, 1\ns_mul_i32 s64, s64, 12\ns_add_u32 s64, s64, {sNT}\ns_lshl_b32 s64, s64, 8")
        a(f"s_and_b32 s65, s69, 1\ns_lshl_b32 s65, s65, 7\ns_add_u32 s64, s64, s65\ns_add_u32 s64, s64, {ST_OFF}")
        a(f"v_lshlrev_b32 {t0}, 3, {vJ}\nv_mov_b32 {t1}, {sTAG8}\ns_mov_b32 s65, 0xff")
        a(f"v_bfi_b32 {vS}, s65, {t1}, {vS}\nv_bfi_b32 {vQ}, s65, {t1}, {vQ}")
        a("s_mov_b64 exec, 0xffff")
        a(f"buffer_store_dwordx2 {vr(SUM,2)}, {t0}, {WS}, s64 offen sc1", "x1st")
        a("s_mov_b64 exec, -1")
        self.signal(6)
        self.stamp()
        far_st("hfar")
        a("s_mov_b32 s101, s71")

    def h_phaseA(self):
        a = self.a
        vD1, vD2, vDX, vDX2 = "v48", "v49", "v50", "v51"
        vXB = [f"v{52+e}" for e in range(4)]; OB = 56; SUM = 60; GR = 64; KR = 68; XH = 112
        t0, t1, t2 = f"v{T0}", f"v{T0+1}", f"v{T0+2}"
        ks = 32 * 1152
        a(f"s_lshl_b32 s69, {sX}, 3\ns_lshl_b32 s64, {sMT}, 2\ns_add_u32 s69, s69, s64\ns_add_u32 s69, s69, {sW}\ns_mul_i32 s71, s69, 18432")
        a(f"v_lshrrev_b32 {t0}, 3, {vLANE}\nv_lshrrev_b32 {t1}, 4, {vLANE}\nv_and_b32 {t2}, 7, {vLANE}\nv_xor_b32 {t1}, {t1}, {t2}")
        a(f"v_mul_u32_u24 {vDX}, 1152, {t0}\nv_lshl_add_u32 {vDX}, {t1}, 4, {vDX}")
        a(f"v_xor_b32 {vDX2}, 64, {vDX}\nv_add_u32 {vDX2}, {8*1152}, {vDX2}")
        a(f"s_lshl_b32 s64, {sW}, 3\nv_add_u32 {t0}, s64, {t0}")
        a(f"v_and_b32 {t1}, 6, {t0}\nv_xor_b32 {t1}, {t1}, {t2}\nv_lshlrev_b32 {t1}, 4, {t1}")
        a(f"v_mul_u32_u24 {vD2}, 1152, {t0}\nv_add_u32 {vD2}, {vD2}, {t1}")
        a(f"v_and_b32 {t2}, 12, {t0}\nv_lshlrev_b32 {t2}, 1, {t2}\nv_and_b32 {vD1}, 3, {t0}\nv_add_u32 {t2}, {t2}, {vD1}")
        a(f"v_lshrrev_b32 {t0}, 4, {t0}\nv_lshl_add_u32 {t0}, {t0}, 2, {t2}")
        a(f"v_mul_u32_u24 {vD1}, 1152, {t0}\nv_add_u32 {vD1}, {vD1}, {t1}")
        a(f"s_lshl_b32 s79, {sNT}, 7\ns_mov_b32 s70, s79\ns_lshl_b32 s72, {sW}, 11\ns_add_u32 s72, s72, {72*1024}")
        self.kernarg_wait()
        self.srd(X, 4, 1179648); self.srd(W1, 6, 663552)
        self.stamp()
        n = 0
        vPG = "v52"
        def after():
            nonlocal n
            n += 1
            if n == 8:
                self.srd(W3, 10, 5308416); self.srd(W4, 12, 5308416)
                self.common_late()
                self.stamp()
            if n in self.NEED: self.dsignal(n, 32)
        for i, (xl, kk) in enumerate(self.STEPS):
            for L in xl:
                a(f"s_add_u32 m0, s72, {8192*L}")
                a(f"buffer_load_dwordx4 {vDX}, {X}, s71 offen lds", "ld"); after()
                a(f"s_add_u32 m0, s72, {8192*L+1024}")
                a(f"buffer_load_dwordx4 {vDX2}, {X}, s71 offen lds", "ld"); after()
                a(f"s_add_u32 s71, s71, 128")
            for s in kk:
                a(f"s_add_u32 m0, {sWK}, {4096*s}")
                a(f"buffer_load_dwordx4 {vD1}, {W1}, s70 offen lds", "ld"); after()
                a(f"s_add_u32 s70, s70, {ks}")
        if "w2own" in self.exp:
            a(f"s_lshl_b32 s64, {sR}, 2\ns_add_u32 s64, s64, {sW}\ns_mul_i32 s64, s64, 9216\nv_lshlrev_b32 {t0}, 7, {vLANE}\nv_and_b32 {t1}, 1023, {t0}")
            a(f"buffer_load_dword {DUMMY}, {t0}, {W2}, s64 offen", "pf")
            a(f"s_add_u32 s64, s64, 8192")
            a(f"buffer_load_dword {DUMMY}, {t1}, {W2}, s64 offen", "pf")
        self.stamp()
        self.wait_ctr(0, 3 if "w2late" in self.exp else 1, sleep=1)
        a(f"s_mov_b32 s70, s79")
        for s in range(18):
            a(f"s_add_u32 m0, {sWK}, {72*1024+4096*s}")
            a(f"buffer_load_dwordx4 {vD2}, {W2}, s70 offen lds", "w2")
            a(f"s_add_u32 s70, s70, {ks}")
            if s % W2G == W2G - 1: a(f"s_waitcnt vmcnt({INF})")
        self.dsignal(7)
        self.stamp()

    def repack(self):
        a = self.a
        a(f"s_sub_u32 s67, {sR}, {NACT}\ns_lshl_b32 s68, s67, 3\ns_add_u32 s68, s68, {sWV}")
        a(f"s_lshl_b32 s69, {sWV}, 13")
        vR, vCK = "v48", "v49"
        a(f"v_lshrrev_b32 {vR}, 3, {vLANE}")
        a(f"v_and_b32 v{T0}, 6, {vR}\nv_and_b32 {vCK}, 7, {vLANE}\nv_xor_b32 {vCK}, {vCK}, v{T0}\nv_lshlrev_b32 {vCK}, 4, {vCK}")
        a(f"s_lshl_b32 s70, s68, 10\ns_and_b32 s71, s70, 0x7fff\ns_add_u32 s71, s71, {112*1024}\ns_mul_i32 s72, {sX}, 147456")
        self.kernarg_wait()
        self.srd(X, 4, 1179648); self.srd(W1, 6, 663552); self.srd(W2, 8, 663552)
        self.stamp()
        DUM = vr(252)
        a(f"s_add_u32 s64, s70, s72")
        a(f"buffer_load_dwordx4 {DUM}, {vL16}, {X}, s64 offen", "pf")
        a(f"s_add_u32 s64, s71, s72")
        a(f"buffer_load_dwordx4 {DUM}, {vL16}, {X}, s64 offen", "pf")
        a(f"s_add_u32 s64, s70, {11*32*1152}")
        for i in range(3):
            a(f"buffer_load_dwordx4 {DUM}, {vL16}, {W1}, s64 offen", "pf")
            a(f"s_add_u32 s64, s64, {112*1024}")
        self.srd(W3, 10, 5308416); self.srd(W4, 12, 5308416)
        self.common_late()
        a.wait_vm()
        Lt = a.label("Ltc")
        a(f"s_mul_i32 s73, {sWV}, 14\ns_add_u32 s73, s73, s67\ns_lshl_b32 s64, s73, 12\nv_lshlrev_b32 v{T0}, 6, {vLANE}")
        a(f"s_cmp_ge_u32 s73, 92\ns_cbranch_scc1 {Lt}")
        a(f"s_add_u32 s65, s64, s72\ns_add_u32 s65, s65, {H_OFF}")
        def sel(lo, expr, base):
            a(expr + f"\ns_add_u32 s66, s66, {(base - lo*4096) & 0xffffffff}\ns_cmp_ge_u32 s73, {lo}\ns_cselect_b32 s65, s66, s65")
        sel(36, f"s_lshl_b32 s66, {sX}, 14\ns_add_u32 s66, s66, s64", F1_OFF)
        a(f"s_sub_u32 s66, s73, 40\ns_lshl_b32 s66, s66, 15\ns_lshl_b32 s74, {sX}, 12\ns_add_u32 s66, s66, s74\ns_add_u32 s66, s66, {F3_OFF}\ns_cmp_ge_u32 s73, 40\ns_cselect_b32 s65, s66, s65")
        sel(48, f"s_mul_i32 s66, {sX}, {8*XT}\ns_add_u32 s66, s66, s64", X1_OFF)
        sel(89, f"s_mul_i32 s66, {sX}, 12288\ns_add_u32 s66, s66, s64", ST_OFF)
        a(f"buffer_load_dword {DUMMY}, v{T0}, {WS}, s65 offen sc1", "_untracked")
        a(f"{Lt}:")
        for i in range(0 if "w2own" in self.exp else 6):
            a(f"buffer_load_dwordx4 {DUM}, {vL16}, {W2}, s70 offen", "pf")
            a(f"s_add_u32 s70, s70, {112*1024}")
        if "xtlb" in self.exp:
            Lt = a.label("Ltl")
            a(f"s_cmp_lg_u32 {sWV}, 7\ns_cbranch_scc1 {Lt}")
            a(f"v_lshlrev_b32 v{T0}, 20, {vLANE}\ns_mov_b64 exec, 0x0fffffff")
            a(f"s_cmp_lg_u32 s67, 13\ns_cbranch_scc1 {Lt}a")
            a(f"buffer_load_dword {DUMMY}, v{T0}, {WS}, 0 offen sc1", "_untracked")
            a(f"{Lt}a:")
            a(f"s_cmp_lg_u32 s67, 12\ns_cbranch_scc1 {Lt}b")
            a(f"buffer_load_dword {DUMMY}, v{T0}, {OUT}, 0 offen sc1", "_untracked")
            a(f"buffer_load_dword {DUMMY}, v{T0}, {W4}, 0 offen", "_untracked")
            a(f"{Lt}b:")
            a("s_mov_b64 exec, -1")
            a(f"{Lt}:")
        a("s_barrier")
        Lno = a.label("Lnj")
        a(f"s_cmp_ge_u32 {sWV}, 4\ns_cbranch_scc1 {Lno}\ns_waitcnt vmcnt(0)\ns_cmp_lt_u32 {sR}, 20\ns_cbranch_scc1 {Lno}")
        vm0 = list(a.vm)
        t0, t1 = f"v{T0}", f"v{T0+1}"
        a(f"s_sub_u32 s70, {sM}, 5\ns_mul_i32 s64, s70, {6*SL}\ns_lshl_b32 s65, {sW}, 5\ns_add_u32 s65, s65, s64")
        a(f"v_lshrrev_b32 {t0}, 2, {vLANE}\nv_mul_u32_u24 v52, 288, {t0}\nv_and_b32 {t0}, 3, {vLANE}\nv_lshl_add_u32 v52, {t0}, 3, v52")
        a(f"v_add_u32 v53, s65, v52\nv_add_u32 v54, s64, v52")
        a(f"s_cmp_eq_u32 s70, 2\ns_cselect_b32 s66, {17*SL}, 0\ns_sub_u32 s66, {5*SL}, s66\nv_add_u32 v55, s66, v53\nv_add_u32 v56, s66, v54")
        for i in range(4): a(f"v_mov_b32 v{136+i}, 0x3f803f80")
        a(f"s_mul_i32 s64, {sX}, 3\ns_add_u32 s64, s64, s70\ns_mul_i32 s64, s64, 2304\ns_mul_i32 s65, {sJ}, 576\ns_add_u32 s64, s64, s65\ns_add_u32 s72, s64, {CSP_OFF}\ns_lshl_b32 s65, {sW}, 6\ns_add_u32 s71, s72, s65")
        a(f"v_mov_b32 v{T0+4}, {sTAG8}\ns_mov_b32 s73, 0xff\nv_lshlrev_b32 v{T0+5}, 4, {vG}")
        self.wait_ctr(1, 11, sleep=4)
        self.stamp()
        for q, (va, vb, uo) in enumerate((("v53", "v55", 0), ("v53", "v55", 128), ("v54", "v56", 256))):
            for k in range(6):
                b = 60 + 4 * k
                v = va if k < 5 else vb
                a(f"ds_read_b64_tr_b16 {vr(b,2)}, {v} offset:{(k%5)*SL+uo}", f"r{k}")
                a(f"ds_read_b64_tr_b16 {vr(b+2,2)}, {v} offset:{(k%5)*SL+uo+4608}", f"r{k}")
            for k in range(6):
                a.wait_lg(f"r{k}")
                a(f"{MFMA} {vr(140+4*q)}, {vr(60+4*k)}, {vr(136)}, {'0' if k == 0 else vr(140+4*q)}")
        for e in range(12): a(f"v_bfi_b32 v{140+e}, s73, v{T0+4}, v{140+e}")
        a("s_mov_b32 exec_lo, 0x00010001\ns_mov_b32 exec_hi, 0x00010001")
        a(f"buffer_store_dwordx4 {vr(140)}, v{T0+5}, {WS}, s71 offen sc1", "st")
        a(f"buffer_store_dwordx4 {vr(144)}, v{T0+5}, {WS}, s71 offen offset:256 sc1", "st")
        a(f"buffer_store_dwordx4 {vr(148)}, v{T0+5}, {WS}, s72 offen offset:512 sc1", "st")
        a("s_mov_b64 exec, -1")
        a(f"{Lno}:")
        a.vm = vm0; a.lg = []
        self.nst = 2
        a("s_mov_b32 s101, 0")
        self.signal(10)
        a.wait_lg()
        self.stamp()

    def load_stats(self, R, vT8):
        a = self.a
        va, vb = f"v{R+12}", f"v{R+13}"; t0 = f"v{T0}"
        a(f"v_lshl_add_u32 {va}, {vG}, 5, {vJ}\nv_lshlrev_b32 {va}, 3, {va}\nv_lshlrev_b32 {vb}, 3, {vJ}")
        a(f"s_lshl_b32 s64, {sM}, 2\ns_add_u32 s64, s64, {sW}\ns_mul_i32 s64, s64, 3072\ns_add_u32 s64, s64, {ST_OFF}")
        L = a.label("Lst")
        a(f"s_mov_b32 {sTO}, 0")
        a(f"{L}:")
        for tt in range(2):
            for q in range(3):
                a(f"buffer_load_dwordx2 {vr(R+6*tt+2*q,2)}, {va if q < 2 else vb}, {WS}, s64 offen offset:{1024*q+128*tt} sc1", "st")
        a(f"s_add_u32 {sTO}, {sTO}, 1\ns_cmp_gt_u32 {sTO}, 100000\ns_cbranch_scc1 L_end")
        a.wait_vm()
        a(f"v_xor_b32 {t0}, v{R}, {vT8}")
        for e in range(1, 12): a(f"v_bitop3_b32 {t0}, {t0}, v{R+e}, {vT8} bitop3:0xf6")
        a(f"v_and_b32 {t0}, 0xff, {t0}\nv_cmp_ne_u32 vcc, 0, {t0}")
        a(f"s_cbranch_vccnz {L}")
        for e in range(12): a(f"v_and_b32 v{R+e}, 0xffffff00, v{R+e}")
    def finish_stats(self, K, R):
        a = self.a
        for c in range(2):
            a(f"v_add_f32 v{R+c}, v{R+c}, v{R+2+c}")
            self.xlane_sum(f"v{R+c}", f"v{T0}")
            a(f"v_add_f32 v{R+c}, v{R+c}, v{R+4+c}")
        self.ln_consts(f"v{R}", f"v{R+1}", K, f"v{T0}")
    def h3_base(self, dst):
        self.a(f"s_lshl_b32 s64, {sM}, 3\ns_lshl_b32 s65, {sW}, 1\ns_add_u32 s64, s64, s65\ns_lshl_b32 s64, s64, 3\ns_add_u32 s64, s64, {sX}")
        self.a(f"s_mul_i32 s64, s64, 18432\ns_add_u32 {dst}, s64, {H3_OFF}")
    def f3_base(self, dst):
        self.a(f"s_lshl_b32 s64, {sM}, 3\ns_add_u32 s64, s64, {sX}\ns_lshl_b32 s64, s64, 2\ns_add_u32 s64, s64, {sW}\ns_lshl_b32 s64, s64, 10\ns_add_u32 {dst}, s64, {F3_OFF}")

    def gelu_tile(self, acc, CSB, K, dst, vo, vo8, sPair, sSingle, sFlag, between=None):
        a = self.a
        t1 = f"v{T0+1}"
        a(f"v_lshl_add_u32 v0, {vG}, 4, {vSCR}")
        for u in range(2): a(f"ds_read_b128 {vr(CSB+4*u)}, v0 offset:{CS3_OFF+64*u}", f"cs{u}")
        for u in range(9):
            a.wait_lg(f"cs{u}")
            self.gelu4(acc(u), CSB + 4 * (u & 1), K, T0)
            if u + 2 < 9:
                a(f"v_lshl_add_u32 v0, {vG}, 4, {vSCR}")
                a(f"ds_read_b128 {vr(CSB+4*(u&1))}, v0 offset:{CS3_OFF+64*(u+2)}", f"cs{u+2}")
            p = u >> 1
            for d in range(2): a(f"v_cvt_pk_bf16_f32 v{dst(p)+2*(u&1)+d}, v{acc(u)+2*d}, v{acc(u)+2*d+1}")
            if u & 1: a(f"buffer_store_dwordx4 {vr(dst(p))}, {vo}, {WS}, {sPair} offen offset:{1024*p} sc1", f"h3_{p>>1}")
            if u == 8: a(f"buffer_store_dwordx2 {vr(dst(4),2)}, {vo8}, {WS}, {sSingle} offen sc1", "h3_1")
            if between: between(u)
            if u == 8: self.set_flag(sFlag, "both", "h3_0")
    def c_mlp(self):
        a = self.a
        t0, t1 = f"v{T0}", f"v{T0+1}"
        vX2, vH2, vF3, vEX = (f"v{T0+4+i}" for i in range(4))
        vA = ["v5", "v6", "v8"]
        CT = T0
        ACC = 40
        vL8 = [vX2, DUMMY]
        def B(k, tt): return BF0 + 8 * k + 4 * tt
        a(f"v_add_u32 {vX2}, {XT}, {vL16}\nv_add_u32 {vH2}, 147456, {vL16}")
        a(f"v_min_u32 {vF3}, 7, {vLANE}\nv_lshlrev_b32 {vF3}, 7, {vF3}")
        a(f"s_mul_i32 s64, {sW}, {13*1024}\ns_add_u32 s64, s64, {EX1*SL}\nv_add_u32 {vEX}, s64, {vL16}")
        a(f"s_lshl_b32 s64, {sM}, 3\ns_lshl_b32 s65, {sW}, 1\ns_add_u32 s64, s64, s65\ns_mul_i32 s64, s64, {XT}\ns_add_u32 s68, s64, {X1_OFF}")
        self.rot3("s69"); a("s_lshl_b32 s69, s69, 10")
        self.h3_base("s70")
        for d in range(4): a(f"s_xor_b32 s64, {sJ}, {d}\ns_lshl_b32 s64, s64, 12\ns_add_u32 s{71+d}, s64, s70")
        for e in range(2): a(f"s_lshr_b32 s64, {sJ}, 1\ns_xor_b32 s64, s64, {e}\ns_add_u32 s64, s64, 16\ns_lshl_b32 s64, s64, 10\ns_add_u32 s{75+e}, s64, s70")
        self.f3_base("s77")
        a(f"s_lshl_b32 s64, {sM}, 2\ns_add_u32 s64, s64, {sW}\ns_mul_i32 s64, s64, 3072\ns_add_u32 s78, s64, {ST_OFF}")
        a(f"v_lshrrev_b32 {t0}, 2, {vLANE}\nv_mul_u32_u24 {vA[0]}, 288, {t0}\nv_and_b32 {t0}, 3, {vLANE}\nv_lshl_add_u32 {vA[0]}, {t0}, 3, {vA[0]}")
        a(f"v_add_u32 {vA[1]}, {6*SL}, {vA[0]}")
        a(f"s_lshl_b32 s64, s69, 0\ns_lshr_b32 s64, s64, 3\nv_add_u32 {vFLG}, s64, {vFLG}\nv_subrev_u32 {t0}, {18*128}, {vFLG}\nv_min_u32 {vFLG}, {vFLG}, {t0}")
        a(f"s_lshr_b32 s66, s69, 11")
        for g in range(9):
            a(f"s_mul_i32 s64, s66, {XG}\ns_add_u32 s{92+g}, s64, s68\ns_add_u32 s66, s66, 1"); self.modn("s66", 9)
        a(f"v_lshlrev_b32 {DUMMY}, 2, {vLANE}\nv_add_u32 {vEX}, {XT}, {DUMMY}")
        CKR = [B(9, 0), B(11, 0), B(13, 0), B(15, 0), B(17, 0), B(1, 0), B(2, 0), B(3, 0), B(4, 0)]
        def hint(mask, anyone=False):
            L = a.label("Lpoll"); L2 = a.label("Lpoll")
            a(f"s_mov_b32 {sTO}, 0\ns_branch {L2}")
            a(f"{L}:")
            a(f"s_sleep {HS_}")
            a(f"{L2}:")
            a(f"buffer_load_ubyte {t0}, {vFLG}, {WS}, s78 offen sc1")
            a(f"s_add_u32 {sTO}, {sTO}, 1\ns_cmp_gt_u32 {sTO}, 100000\ns_cbranch_scc1 L_end")
            a.wait_vm()
            a(f"v_cmp_ne_u32 vcc, {sTAG8}, {t0}")
            if mask == 0xf:
                Lf = a.label("Lff")
                a(f"s_cmp_eq_u32 s101, 0\ns_cbranch_scc1 {Lf}")
                self.set_flag("s101", "far", "none")
                a(f"s_mov_b32 s101, 0")
                a(f"{Lf}:")
                a.vm = []
            if anyone: a(f"s_and_b32 s66, vcc_lo, 0x3ffff\ns_cmp_eq_u32 s66, 0x3ffff\ns_cbranch_scc1 {L}")
            else: a(f"s_and_b32 s66, vcc_lo, 0x3ffff\ns_and_b32 vcc_lo, vcc_lo, {mask}\ns_cbranch_scc1 {L}")
        def grp_ops(g, tag):
            o = []
            for tt in range(2): o.append((f"buffer_load_dword v{CKR[g]+tt}, {DUMMY if tt == 0 else vEX}, {WS}, s{92+g} offen offset:2048 sc1", tag))
            for q in range(2):
                for tt in range(2): o.append((f"buffer_load_dwordx4 {vr(B(2*g+q,tt))}, {vL16 if tt == 0 else vX2}, {WS}, s{92+g} offen offset:{1024*q} sc1", tag))
            return o
        def chk_ops(g):
            o = []
            for tt in range(2):
                t = f"v{CKR[g]+tt}"
                for q in range(2):
                    b = B(2 * g + q, tt)
                    o += [f"v_bitop3_b32 {t}, {t}, v{b}, v{b+1} bitop3:0x96", f"v_bitop3_b32 {t}, {t}, v{b+2}, v{b+3} bitop3:0x96"]
            o += [f"v_bitop3_b32 v{CKR[g]}, v{CKR[g]}, v{CKR[g]+1}, {sTAG} bitop3:0x7e", f"v_cmp_eq_u32 vcc, 0, v{CKR[g]}"]
            return o
        def chk_branch(g):
            a("s_cmp_eq_u64 vcc, -1")
            def retry():
                L = a.label("Lxr")
                a(f"s_mov_b32 {sTO}, 0")
                a(f"{L}:")
                a(f"s_add_u32 {sTO}, {sTO}, 1\ns_cmp_gt_u32 {sTO}, 100000\ns_cbranch_scc1 L_end")
                for o in grp_ops(g, "r"): a(*o)
                a.wait_vm()
                for o in chk_ops(g): a(o)
                a(f"s_cmp_eq_u64 vcc, -1\ns_cbranch_scc0 {L}")
            a.slow(retry)
        self.stamp()
        self.wait_ctr(1, 12, sleep=2)
        if "dpoll" in self.exp:
            hint(0xf, anyone=True)
            self.stamp()
            self.fs(FS2_OFF)
            Ld = a.label("Ldp")
            a(f"s_mov_b32 {sTO}, 0")
            a(f"{Ld}:")
            for o in grp_ops(0, "b0"): a(*o)
            a(f"buffer_load_ubyte {t0}, {vFLG}, {WS}, s78 offen sc1")
            a(f"s_add_u32 {sTO}, {sTO}, 1\ns_cmp_gt_u32 {sTO}, 100000\ns_cbranch_scc1 L_end")
            a.wait_vm()
            a(f"v_cmp_ne_u32 vcc, {sTAG8}, {t0}")
            a(f"s_and_b32 s66, vcc_lo, 0x3ffff")
            for o in chk_ops(0): a(o)
            a(f"s_cmp_eq_u64 vcc, -1\ns_cbranch_scc0 {Ld}")
            Lh = a.label("Lh2")
            a(f"s_cmp_eq_u32 s66, 0\ns_cbranch_scc1 {Lh}")
            hint(0x3ffff)
            a(f"{Lh}:")
            a(f"v_add_u32 {vA[2]}, {12*SL}, {vA[0]}")
            for g in range(1, 4):
                for o in grp_ops(g, f"b{g}"): a(*o)
        else:
            hint(0xf)
            self.stamp()
            for g in range(2):
                for o in grp_ops(g, f"b{g}"): a(*o)
            self.fs(FS2_OFF)
            Lh = a.label("Lh2")
            vm = list(a.vm)
            a(f"s_cmp_eq_u32 s66, 0\ns_cbranch_scc1 {Lh}")
            hint(0x3ffff)
            a(f"{Lh}:")
            a.vm = vm
            a(f"v_add_u32 {vA[2]}, {12*SL}, {vA[0]}")
            for g in range(2, 4):
                for o in grp_ops(g, f"b{g}"): a(*o)
            a.wait_vm("b0")
            for o in chk_ops(0): a(o)
            chk_branch(0)
        self.dsignal(11)
        self.stamp()
        LOOK = 6
        base_pool = [20, 24, 28, 32, 36]
        def rd(addr, tag, dst):
            v, off = addr
            a(f"ds_read_b64_tr_b16 {vr(dst,2)}, {v} offset:{off}", tag)
            a(f"ds_read_b64_tr_b16 {vr(dst+2,2)}, {v} offset:{off+4608}", tag)
        def stream(items, hooks_issue, hooks_after, pool, mid={}):
            fr = {}; nxt = [0]
            def can(i): return bool(nxt[0] < len(items) and nxt[0] <= i + LOOK and pool)
            def half(h):
                n = nxt[0]
                if h == 0:
                    if n in hooks_issue: hooks_issue[n]()
                    fr[n] = pool.pop(0)
                v, off = items[n][0]
                a(f"ds_read_b64_tr_b16 {vr(fr[n]+2*h,2)}, {v} offset:{off+4608*h}", f"f{n}")
                if h == 1: nxt[0] += 1
            while can(-1): half(0); half(1)
            for i, (n, mm, pre) in enumerate(items):
                if pre: a.wait_vm(pre)
                a.wait_lg(f"f{i}")
                go = can(i)
                for q, (acc, breg, first) in enumerate(mm):
                    a(f"{MFMA} {vr(acc)}, {vr(fr[i])}, {vr(breg)}, {'0' if first else vr(acc)}")
                    if go: half(q)
                    if q == 0 and i in mid: mid[i]()
                pool.append(fr[i])
                if i in hooks_after:
                    for h in hooks_after[i]: h(pool)
                if nxt[0] <= i + 1 or (len(pool) > 1 and can(i) and (i & 1)):
                    if can(i): half(0); half(1)
        def hook(d, i, f): d.setdefault(i, []).append(f)
        def slot_addr(bases, f, extra):
            sl = f % NSL
            return bases[sl // 6], (sl % 6) * SL + extra
        items = [(slot_addr(vA, s, 32 * u), [(ACC + 8 * u + 4 * tt, B(s, tt), s == 0) for tt in range(2)], None)
                 for s in range(18) for u in range(9)]
        hi = {}; ha = {}
        CT = B(5, 0)
        mid = {}
        for g in range(9):
            i0 = 18 * g
            if g + 4 < 9:
                for n, o in enumerate(grp_ops(g + 4, f"b{g+4}")): mid[i0 + n] = (lambda o=o: a(*o))
            if g + 1 < 9:
                hook(ha, i0 + 6, lambda pool, g=g: a.wait_vm(f"b{g+1}"))
                for n, o in enumerate(chk_ops(g + 1)): mid[i0 + 7 + n] = (lambda o=o: a(o))
                mid[i0 + 17] = (lambda g=g: chk_branch(g + 1))
        for ks_, val in ((8, 13), (12, 14), (16, 15)):
            hi[9 * ks_ - 5] = lambda: self.ctr_issue(1, CT)
            hi[9 * ks_] = (lambda val=val: self.ctr_check(1, CT, val, tmp=CT))
        hook(ha, 8, lambda pool: pool.extend([B(0, 0), B(0, 1)]))
        hook(ha, 9 * 5 - 1, lambda pool: self.dsignal(12))
        hook(ha, 9 * 13 - 1, lambda pool: self.dsignal(14))
        KB = B(5, 0); CSB = B(6, 0); TB = B(11, 0); S8 = B(12, 0)
        def consts(pool):
            a(f"s_lshl_b32 s64, {sW}, 9\ns_add_u32 s64, s64, {KC_OFF}\nv_lshl_add_u32 v0, {vJ}, 4, s64")
            for tt in range(2): a(f"ds_read_b128 {vr(KB+4*tt)}, v0 offset:{256*tt}", "kc")
        def csums(pool, u):
            if u == 0: a(f"v_lshl_add_u32 v{T0+2}, {vG}, 4, {vSCR}")
            a(f"ds_read_b128 {vr(CSB+4*u)}, v{T0+2} offset:{CS3_OFF+64*u}", "kc")
        if "p1" in self.exp:
            for k_ in (1, 3, 5, 7, 9, 11, 13, 15): hook(ha, 9 * k_ + 3, lambda pool: self.stamp())
        hook(ha, 9 * 16 + 2, consts)
        for u in range(9): hook(ha, 9 * 16 + 4 + u, lambda pool, u=u: csums(pool, u))
        stream(items, hi, ha, list(base_pool), mid)
        self.dsignal(15)
        self.stamp()
        a(f"s_and_b32 s64, {sJ}, 1\ns_lshl_b32 s64, s64, 9\ns_add_u32 s67, s64, s75")
        a(f"v_lshlrev_b32 {vL8[0]}, 3, {vLANE}\nv_add_u32 {vL8[1]}, 147456, {vL8[0]}")
        a(f"s_lshl_b32 s64, {sJ}, 8\ns_add_u32 s79, s64, s77")
        def h3ops(k):
            if k < 16:
                d, p = 1 + (k - 4) % 3, (k - 4) // 3
                return [(f"buffer_load_dwordx4 {vr(B(k,tt))}, {vL16 if tt == 0 else vH2}, {WS}, s{71+d} offen offset:{1024*p} sc1", f"g{k}") for tt in range(2)]
            return [(f"buffer_load_dwordx2 {vr(B(k,tt)+2*hf,2)}, {vL8[tt]}, {WS}, s{75+k-16} offen offset:{512*hf} sc1", f"g{k}") for tt in range(2) for hf in range(2)]
        def ap_issue(): a(f"buffer_load_dword {vEX}, {vF3}, {WS}, s77 offen sc1", "ap")
        def ap_check(mask):
            a.wait_vm("ap")
            a(f"v_subrev_u32 {vEX}, {sTAG}, {vEX}")
            a(f"v_cmp_le_u32 vcc, 16, {vEX}")
            a(f"s_and_b32 s64, vcc_lo, {mask}\ns_cmp_eq_u32 s64, 0")
            a.slow(lambda: self.poll2("s77", vF3, False, mask=mask))
        a.wait_lg("kc")
        for u in range(9):
            self.gelu_pk([(ACC + 8 * u + 4 * tt, CSB + 4 * u, KB + 4 * tt) for tt in range(2)], TB)
            p = u >> 1
            for tt in range(2):
                dst = B(p, tt) + 2 * (u & 1) if u < 8 else S8 + 2 * tt
                b = ACC + 8 * u + 4 * tt
                for d in range(2): a(f"v_cvt_pk_bf16_f32 v{dst+d}, v{b+2*d}, v{b+2*d+1}")
            for tt in range(2):
                if u & 1: a(f"buffer_store_dwordx4 {vr(B(p,tt))}, {vL16 if tt == 0 else vH2}, {WS}, s71 offen offset:{1024*p} sc1", f"h3_{p>>1}")
                if u == 8: a(f"buffer_store_dwordx2 {vr(S8+2*tt,2)}, {vL8[tt]}, {WS}, s67 offen sc1", "h3_1")
            if u == 6: self.set_flag("s79", "both", "h3_0")
            if u == 7:
                self.ctr_issue(1, B(13, 0))
                for o in range(9):
                    if o == 0: a("s_mov_b32 s92, 256")
                    else: a(f"s_add_u32 s64, {sX}, {o}\ns_and_b32 s64, s64, 7\ns_lshl_b32 s{92+o}, s64, 5")
        self.stamp()
        self.ctr_check(1, B(13, 0), 17, tmp=B(13, 0))
        items = []; hi = {}; ha = {}; mid = {}
        def base1(reg, o): hi[len(items)] = (lambda: a(f"v_add_u32 {reg}, s{92+o}, {vA[0]}"))
        for o in range(9):
            reg = f"v{B(17,1)+(o&1)}"; base1(reg, o)
            for k in range(4): items.append(((reg, (1 + k) * SL), [(ACC + 8 * o + 4 * tt, B(k, tt), k == 0) for tt in range(2)], None))
        hook(ha, FL, lambda pool: (a(f"s_add_u32 s64, s79, 128"), self.set_flag("s64", "both", "h3_1", T0=B(17, 0))))
        if "hpoll" in self.exp:
            def hp_issue(): a(f"ds_read_b32 {vEX}, {vCTR} offset:48", "hp")
            def hp_check(val):
                a.wait_lg("hp")
                a(f"v_readfirstlane_b32 s64, {vEX}")
                a(f"s_cmp_ge_u32 s64, {val}")
                def slow():
                    L = a.label("Lhp")
                    a(f"s_mov_b32 {sTO}, 0")
                    a(f"{L}:")
                    hp_issue()
                    a(f"s_add_u32 {sTO}, {sTO}, 1\ns_cmp_gt_u32 {sTO}, 1000000\ns_cbranch_scc1 L_end")
                    a.wait_lg()
                    a(f"v_readfirstlane_b32 s64, {vEX}")
                    a(f"s_cmp_lt_u32 s64, {val}\ns_cbranch_scc1 {L}")
                a.slow(slow)
            ap_issue = hp_issue
            ap_check = lambda mask: hp_check(40 if mask == 0x55 else 41)
            mid[F0] = ap_issue
            hook(ha, F0 + 4, lambda pool: ap_check(0x55))
            n = F0 + 5
        else:
            mid[F0] = ap_issue
            hook(ha, FL - 1, lambda pool: ap_check(0x55))
            n = FL + 1
        for k in range(4, 10):
            for o_ in h3ops(k): mid[n] = (lambda o_=o_: a(*o_)); n += 1
        mid[FB] = ap_issue
        hook(ha, FB + 7, lambda pool: ap_check(0xff))
        n = FB + 8
        for k in range(10, 18):
            for o_ in h3ops(k): mid[n] = (lambda o_=o_: a(*o_)); n += 1
        hook(ha, 35, lambda pool: (self.signal(17), pool.extend([B(0, 0), B(0, 1)])))
        UB = [[f"v{B(2,0)+4*q+i}" for i in range(3)] for q in range(2)]
        C0 = B(3, 0); CT4 = B(1, 0); CT5 = B(1, 1)
        for o in range(9):
            reg = f"v{T0+2+(o&1)}"
            hi[len(items)] = (lambda reg=reg, o=o: a(f"v_add_u32 {reg}, s{92+o}, {vA[0]}\nv_add_u32 {reg}, {5*SL}, {reg}"))
            for k in range(4, KE): items.append(((reg, (k - 4) * SL), [(ACC + 8 * o + 4 * tt, B(k, tt), False) for tt in range(2)], f"g{k}" if o == 0 else None))
        n0 = len(items)
        hook(ha, n0 - 14, lambda pool: self.ctr_issue(1, CT4))
        hook(ha, n0 - 8, lambda pool: self.ctr_check(1, CT4, 18, tmp=CT4))
        for o in range(NSK):
            reg = f"v{T0+2+((o+1)&1)}"
            hi[len(items)] = (lambda reg=reg, o=o: a(f"v_add_u32 {reg}, s{92+o}, {vA[1]}"))
            for k in (7, 8, 9): items.append(((reg, (k + 1 - 6) * SL), [(ACC + 8 * o + 4 * tt, B(k, tt), False) for tt in range(2)], f"g{k}" if o == 0 else None))
        n1 = len(items)
        hook(ha, n1 - 8, lambda pool: self.ctr_issue(1, CT4))
        hook(ha, n1 - 2, lambda pool: self.ctr_check(1, CT4, 19, tmp=CT4))
        hook(ha, n1 - 1, lambda pool: self.ctr_issue(0, CT5))
        hook(ha, n1 + 5, lambda pool: (self.ctr_check(0, CT5, 17, tmp=CT5), a(f"s_lshl_b32 s64, {sW}, 11\nv_add_u32 {vEX}, s64, {vL16}\nv_xor_b32 v{C0+1}, 16, {vCTR}")))
        if self.stamps: hook(ha, n1 - 1, lambda pool: self.stamp())
        for o in range(9):
            acc = ACC + 8 * o
            ub = UB[o & 1]
            def setb(o=o, ub=ub):
                for i in range(3): a(f"v_add_u32 {ub[i]}, s{92+o}, {vA[i]}")
            hi[len(items)] = setb
            for k in range(10 if o < NSK else KE, 18):
                items.append((slot_addr(ub, 18 + k, 0), [(acc + 4 * tt, B(k, tt), False) for tt in range(2)], f"g{k}" if o == 0 else None))
            n = len(items) - (0 if o < 8 else 2)
            if o >= 3:
                mid[n - 3] = (lambda: a(f"ds_read_b32 v{C0}, v{C0+1}", "pc"))
                def chk(pool, o=o):
                    a.wait_lg("pc")
                    a(f"v_readfirstlane_b32 s64, v{C0}")
                    a(f"s_cmp_ge_u32 s64, {20+o-3}")
                    a.slow(lambda o=o: self.wait_ctr(1, 20 + o - 3, one=True, tmp=C0))
                hook(ha, n, chk)
            if o < 8:
                for tt in range(2): mid[n + 1 + tt] = (lambda o=o, acc=acc, tt=tt: a(f"ds_write_b128 {vEX}, {vr(acc+4*tt)} offset:{(2+o%3)*SL+1024*tt}", "ex"))
                mid[n + 3] = (lambda o=o: a(f"v_mov_b32 v0, {19+o}"))
                mid[n + 4] = (lambda: a(f"ds_write_b32 {vCTR}, v0", "sig"))
            else:
                def dump(pool, o=o, acc=acc):
                    for tt in range(2): a(f"ds_write_b128 {vEX}, {vr(acc+4*tt)} offset:{(2+o%3)*SL+1024*tt}", "ex")
                    self.signal(19 + o)
                hook(ha, len(items) - 1, dump)
        XRr = ACC + 32 - 4; G8 = ACC; SUM8 = B(10, 0); vT8 = f"v{B(11,0)}"; vO = f"v{B(11,0)+1}"; U = B(12, 0)
        g_issue, g_take = self.part_helpers(vT8, U)
        def early8(pool):
            Le = a.label("Ls_e8")
            a(f"s_lshr_b32 s64, {sX}, 1\ns_cmp_lg_u32 s64, {sW}\ns_cbranch_scc1 {Le}")
            a(f"s_lshl_b32 s64, {sM}, 2\ns_add_u32 s64, s64, {sJ}\ns_mul_i32 s64, s64, {9*32*1024}\ns_add_u32 s69, s64, {P_OFF+8*32768}\ns_add_u32 s69, s69, {sWK}")
            for i in range(8): g_issue(i, "s69", G8, "p8")
            a(f"s_mul_i32 s64, {sJ}, 9\ns_add_u32 s78, s64, 8\ns_lshl_b32 s64, {sM}, 3\ns_add_u32 s79, s64, {sX}")
            a(f"s_mul_i32 s64, s79, 9\ns_lshr_b32 s65, s78, 2\ns_add_u32 s64, s64, s65\ns_mul_i32 s64, s64, {XG}\ns_and_b32 s65, s78, 2\ns_lshl_b32 s65, s65, 9\ns_add_u32 s64, s64, s65\ns_and_b32 s65, s78, 1\ns_lshl_b32 s65, s65, 3\ns_add_u32 s64, s64, s65\ns_add_u32 s64, s64, {X1_OFF}")
            a(f"buffer_load_dwordx2 {vr(XRr+4,2)}, {vL16}, {WS}, s64 offen sc1", "xr")
            a(f"{Le}:")
        hook(ha, len(items) - 14, early8)
        if "g4" in self.exp:
            for i_ in (0, 12, FL - 1, FL, 35, 39, FB + 6, FB + 7, n0 - 9, n0 - 1, n1 - 3, n1 + 7, n1 + 15, n1 + 31, n1 + 53, n1 + 75): hook(ha, i_, lambda pool: self.stamp())
        stream(items, hi, ha, list(base_pool), mid)
        self.stamp()
        L8 = a.label("Lu8")
        a(f"s_lshr_b32 s64, {sX}, 1\ns_cmp_lg_u32 s64, {sW}\ns_cbranch_scc1 {L8}")
        self.part_consts(vT8)
        a(f"v_mul_u32_u24 {vO}, 1152, {vJ}\nv_lshl_add_u32 {vO}, {vG}, 3, {vO}")
        a(f"s_bitcmp1_b32 {sX}, 0\ns_cselect_b64 s[98:99], -1, 0")
        for e in range(4): a(f"v_mov_b32 v{SUM8+e}, 0")
        for i in range(8): g_take(i, "s69", G8, "p8", SUM8, half="s[98:99]")
        a.wait_vm("xr")
        self.finish_out(SUM8, XRr + 4, vO, "s79", "s78")
        a(f"{L8}:")

    def rot3(self, dst):
        self.a(f"s_lshl_b32 {dst}, {sJ}, 2\ns_and_b32 s64, {sJ}, 2\ns_add_u32 {dst}, {dst}, s64")

    def h_mlp(self):
        a = self.a
        t0, t1, t2 = f"v{T0}", f"v{T0+1}", f"v{T0+2}"
        vH2, vEX, vT8 = (f"v{T0+5+i}" for i in range(3))
        vH8 = f"v{T0+8}"
        if self.stop <= 2:
            self.epoch_advance(); return
        a(f"v_add_u32 {vH2}, 147456, {vL16}\nv_lshlrev_b32 {vH8}, 3, {vLANE}\nv_add_u32 {vH8}, 147456, {vH8}")
        a(f"s_mul_i32 s64, {sW}, {13*1024}\ns_add_u32 s64, s64, {EX1*SL}\nv_add_u32 {vEX}, s64, {vL16}\nv_mov_b32 {vT8}, {sTAG8}")
        self.h3_base("s71"); self.f3_base("s72")
        a(f"s_lshr_b32 s64, {sJ}, 1\ns_add_u32 s64, s64, 16\ns_lshl_b32 s64, s64, 10\ns_add_u32 s68, s64, s71\ns_and_b32 s64, {sJ}, 1\ns_lshl_b32 s64, s64, 9\ns_add_u32 s68, s68, s64")
        a(f"s_lshl_b32 s64, {sJ}, 12\ns_add_u32 s71, s71, s64\ns_lshl_b32 s64, {sJ}, 8\ns_add_u32 s72, s72, s64")
        V3 = [f"v{200+i}" for i in range(5)]; V4 = [f"v{205+i}" for i in range(5)]; V4s = [f"v{210+i}" for i in range(5)]
        sP = [f"s{92+i}" for i in range(5)]
        for i in range(5):
            a(f"s_add_u32 s64, {sW}, {4*i}\ns_sub_u32 s65, s64, 9\ns_min_u32 s64, s64, s65\ns_lshl_b32 {sP[i]}, s64, 10\ns_lshl_b32 s64, s64, 6")
            a(f"v_add_u32 {t0}, s64, {vLANE}\nv_mul_u32_u24 {t1}, 3641, {t0}\nv_lshrrev_b32 {t1}, 16, {t1}")
            a(f"v_mul_u32_u24 {t2}, 18, {t1}\nv_sub_u32 {t0}, {t0}, {t2}\nv_lshlrev_b32 {t0}, 4, {t0}")
            a(f"v_mul_u32_u24 {V3[i]}, 9216, {t1}\nv_add_u32 {V3[i]}, {V3[i]}, {t0}")
            a(f"v_mul_u32_u24 {V4[i]}, 1152, {t1}\nv_add_u32 {V4[i]}, {V4[i]}, {t0}")
            a(f"v_lshrrev_b32 {t1}, 4, {t1}\nv_mul_u32_u24 {t1}, {128*1152}, {t1}\nv_add_u32 {V4s[i]}, {V4[i]}, {t1}")
        thr = [None]
        mods = [""]
        def pair(f, srd, V, sA, sB, tag):
            rA, rB = (f % NSL) * SL, ((f + 1) % NSL) * SL
            L = a.label("Lx")
            a(f"s_cmp_ge_u32 {sW}, 2\ns_cbranch_scc1 {L}")
            a(f"s_add_u32 m0, {sP[4]}, {rB}")
            a(f"buffer_load_dwordx4 {V[4]}, {srd}, {sB} offen {mods[0]} lds", "_untracked")
            a(f"{L}:")
            for i in range(4):
                if i < 2: a(f"s_add_u32 m0, {sP[i]}, {rA}"); so = sA
                elif i == 3: a(f"s_add_u32 m0, {sP[i]}, {rB}"); so = sB
                else:
                    a(f"s_mov_b32 s64, {rB}\ns_cmp_eq_u32 {sW}, 0\ns_cselect_b32 s64, {rA}, s64\ns_cselect_b32 s66, {sA}, {sB}\ns_add_u32 m0, {sP[i]}, s64"); so = "s66"
                a(f"buffer_load_dwordx4 {V[i]}, {srd}, {so} offen {mods[0]} lds", tag)
                if thr[0] is not None:
                    a(f"s_waitcnt vmcnt({thr[0]})"); a.vm = a.vm[max(0, len(a.vm)-thr[0]):] if thr[0] else []
        k3 = 32 * 9216
        self.rot3("s69")
        a(f"s_lshl_b32 s64, {sX}, 2\ns_add_u32 s64, s64, {sJ}\ns_mul_i32 s70, s64, 288")
        def w3pair(s, tag):
            a(f"s_add_u32 s73, s69, {s}\ns_sub_u32 s65, s73, 18\ns_min_u32 s73, s73, s65\ns_mul_i32 s73, s73, {k3}\ns_add_u32 s73, s73, s70\ns_add_u32 s74, s73, {k3}")
            pair(s, W3, V3, "s73", "s74", tag)
        a(f"s_mul_i32 s64, {sX}, {576*1152}\ns_mul_i32 s65, {sJ}, 288\ns_add_u32 s101, s64, s65")
        for d in range(4): a(f"s_xor_b32 s64, {sJ}, {d}\ns_mul_i32 s64, s64, {144*1152}\ns_add_u32 s{97+d}, s64, s101")
        def w4src(k, dst):
            if k < 4: d, p = 0, k
            elif k < 16: d, p = 1 + (k - 4) % 3, (k - 4) // 3
            else:
                a(f"s_lshr_b32 s64, {sJ}, 1\ns_xor_b32 s64, s64, {k-16}\ns_mul_i32 s64, s64, {288*1152}\ns_add_u32 s64, s64, s101\ns_add_u32 {dst}, s64, {128*1152}")
                return
            a(f"s_add_u32 {dst}, s{97+d}, {32*p*1152}")
        def w4pair(k, tag):
            w4src(k, "s73"); w4src(k + 1, "s74")
            pair(18 + k, W4, V4 if k < 16 else V4s, "s73", "s74", tag)
        a(f"v_and_b32 {t0}, 3, {vLANE}\nv_lshlrev_b32 {t0}, 7, {t0}")
        self.stamp()
        Le = a.label("Learly"); Lj = a.label("Learly")
        a(f"s_cmp_lt_u32 {sR}, {NACT}\ns_cbranch_scc1 {Le}")
        Lq = [a.label("Lq") for _ in range(4)]
        a(f"s_cmp_eq_u32 {sM}, 6\ns_cbranch_scc1 {Lq[1]}\ns_cmp_eq_u32 {sM}, 7\ns_cbranch_scc1 {Lq[2]}")
        for v, order in enumerate(((0, 2, 4, 6, 8, 10, 12, 14), (6, 8, 10, 0, 2, 4, 12, 14), (12, 14, 16, 2, 4, 6, 8, 10, 0))):
            if v: a(f"{Lq[v]}:"); a.vm = []
            for n, s in enumerate(order):
                if v == 2 and s == 0: self.wait_ctr(0, 10, sleep=2)
                mods[0] = "nt" if n < 3 and "w3nt" in self.exp else ""
                w3pair(s, "d0")
                if n == 2: self.dsignal(11)
            if v < 2: a(f"s_branch {Lq[3]}")
        a(f"{Lq[3]}:")
        self.dsignal(12)
        a(f"s_sub_u32 s64, {sR}, {NACT}\ns_lshl_b32 s64, s64, 2\ns_add_u32 s64, s64, {sW}\ns_mul_i32 s64, s64, {93*128}\ns_min_u32 s64, s64, {663552-93*128}\ns_mul_i32 s65, {sX}, 663552\ns_add_u32 s66, s64, s65")
        a(f"v_lshlrev_b32 {t0}, 7, {vLANE}\nv_min_u32 {t1}, {28*128}, {t0}")
        a(f"buffer_load_dword {DUMMY}, {t0}, {W4}, s66 offen", "_untracked")
        a(f"s_add_u32 s66, s66, 8192")
        a(f"buffer_load_dword {DUMMY}, {t1}, {W4}, s66 offen", "_untracked")
        a(f"s_branch {Lj}")
        a(f"{Le}:")
        a.vm = []
        self.wait_ctr(0, 3, sleep=2)
        thr[0] = THR
        for s in range(0, 8, 2): w3pair(s, "d0")
        a("s_waitcnt vmcnt(0)")
        self.signal(12)
        self.wait_ctr(0, 6, sleep=2)
        for s in (8, 10): w3pair(s, "d0")
        thr[0] = None
        a(f"{Lj}:")
        a("s_waitcnt vmcnt(0)"); a.vm = []
        self.signal(13)
        self.stamp()
        self.wait_ctr(0, 11, sleep=3)
        Le = a.label("Llate")
        a(f"s_cmp_ge_u32 {sR}, {NACT}\ns_cbranch_scc1 {Le}")
        for s in (12, 14): w3pair(s, "_untracked")
        a("s_waitcnt vmcnt(0)")
        a(f"s_branch {Le}b")
        a(f"{Le}:")
        a(f"{Le}b:")
        self.signal(14)
        self.stamp()
        self.load_stats(100, vT8)
        for tt in range(2): self.finish_stats([f"v{48+4*tt+i}" for i in range(4)], 100 + 6 * tt)
        a(f"s_lshl_b32 s64, {sW}, 9\ns_add_u32 s64, s64, {KC_OFF}\nv_lshl_add_u32 {t1}, {vJ}, 4, s64")
        for tt in range(2): a(f"ds_write_b128 {t1}, {vr(48+4*tt)} offset:{256*tt}", "kc")
        CP = 100
        a(f"s_lshl_b32 s64, {sW}, 6\nv_add_u32 {t1}, s64, {vLANE}\nv_min_u32 {t1}, 143, {t1}\nv_lshlrev_b32 v{CP+9}, 2, {t1}")
        L = a.label("Lcs")
        a(f"s_mov_b32 {sTO}, 0")
        a(f"{L}:")
        a(f"s_mul_i32 s64, {sX}, {3*2304}\ns_mul_i32 s65, {sJ}, 576\ns_add_u32 s64, s64, s65\ns_add_u32 s64, s64, {CSP_OFF}")
        for k in range(3):
            a(f"buffer_load_dword v{CP+k}, v{CP+9}, {WS}, s64 offen sc1", "cp")
            a(f"s_add_u32 s64, s64, 2304")
        a(f"s_add_u32 {sTO}, {sTO}, 1\ns_cmp_gt_u32 {sTO}, 100000\ns_cbranch_scc1 L_end")
        a.wait_vm()
        a(f"v_xor_b32 {t0}, v{CP}, {vT8}")
        for k in range(1, 3): a(f"v_bitop3_b32 {t0}, {t0}, v{CP+k}, {vT8} bitop3:0xf6")
        a(f"v_and_b32 {t0}, 0xff, {t0}\nv_cmp_ne_u32 vcc, 0, {t0}")
        a(f"s_cbranch_vccnz {L}")
        for k in range(3): a(f"v_and_b32 v{CP+k}, 0xffffff00, v{CP+k}")
        for k in range(1, 3): a(f"v_add_f32 v{CP}, v{CP}, v{CP+k}")
        a(f"v_add_u32 {t1}, {vSCR}, v{CP+9}")
        a(f"ds_write_b32 {t1}, v{CP} offset:{CS3_OFF}", "csw")
        self.wait_ctr(0, 12, sleep=3)
        w3pair(16, "e0")
        if "warmh" in self.exp:
            for e in range(4): a(f"v_mov_b32 v{120+e}, 0")
            for p in range(4):
                for vo in (vL16, vH2): a(f"buffer_store_dwordx4 {vr(120)}, {vo}, {WS}, s71 offen offset:{1024*p} sc1", "e0")
        a.wait_vm("e0"); self.signal(15)
        if "warmp" in self.exp:
            a(f"s_not_b32 s64, {sE}")
            for e in range(4): a(f"v_mov_b32 v{120+e}, s64")
            a(f"s_lshl_b32 s64, {sM}, 2\ns_add_u32 s64, s64, {sJ}\ns_mul_i32 s64, s64, {9*32*1024}\ns_lshl_b32 s65, {sX}, 12\ns_add_u32 s64, s64, s65\ns_add_u32 s64, s64, {sWK}\ns_add_u32 s64, s64, {P_OFF}")
            for u in range(9):
                a(f"buffer_store_dwordx4 {vr(120)}, {vL16}, {WS}, s64 offen sc1", "wp")
                a(f"s_add_u32 s64, s64, 32768")
        self.wait_ctr(0, 14, sleep=3)
        thr[0] = T4
        for k in (0, 2, 4, 6): w4pair(k, "e1")
        self.dsignal(17)
        for k in (8, 10): w4pair(k, "e2")
        self.epoch_advance()
        self.stamp()
        self.wait_ctr(0, 15, sleep=3)
        thr[0] = 2
        for k in (12, 14): w4pair(k, "e3")
        thr[0] = None
        a.wait_vm(); self.signal(18)
        def hpoll(mask, val):
            self.poll2("s75", "v249", False, mask=mask)
            a(f"v_mov_b32 v0, {val}")
            a(f"ds_write_b32 {vCTR}, v0 offset:32", "sig")
        if "hpoll" in self.exp:
            self.f3_base("s75")
            a(f"v_min_u32 v249, 7, {vLANE}\nv_lshlrev_b32 v249, 7, v249")
            hpoll(0x55, 40)
        self.wait_ctr(0, 17, sleep=3)
        w4pair(16, "e3")
        if "hpoll" in self.exp: hpoll(0xff, 41)
        a(f"s_lshl_b32 s64, {sM}, 2\ns_add_u32 s64, s64, {sJ}\ns_mul_i32 s64, s64, {9*32*1024}\ns_add_u32 s73, s64, {P_OFF}")
        a(f"s_lshl_b32 s64, {sW}, 11\nv_add_u32 {vEX}, s64, {vL16}")
        a(f"s_lshl_b32 s65, {sX}, 12\ns_add_u32 s74, {sWK}, s65\ns_add_u32 s74, s74, s73")
        self.part_consts(vT8)
        a("s_mov_b32 s75, 0x1fff\ns_mov_b32 s92, 0x03ffffff\ns_mov_b32 s93, 0x0c000000\ns_mov_b32 s94, 0x4b400000")
        a.wait_vm("e3"); self.signal(19)
        self.stamp()
        XRr = 100
        a(f"s_mul_i32 s64, {sJ}, 9\ns_add_u32 s76, s64, {sX}")
        a(f"s_lshl_b32 s64, {sM}, 3\ns_lshl_b32 s65, {sW}, 1\ns_add_u32 s77, s64, s65")
        a(f"s_mul_i32 s64, s77, 9\ns_lshr_b32 s65, s76, 2\ns_add_u32 s64, s64, s65\ns_mul_i32 s64, s64, {XG}\ns_and_b32 s65, s76, 2\ns_lshl_b32 s65, s65, 9\ns_add_u32 s64, s64, s65\ns_and_b32 s65, s76, 1\ns_lshl_b32 s65, s65, 3\ns_add_u32 s64, s64, s65\ns_add_u32 s64, s64, {X1_OFF}")
        a(f"v_add_u32 {t1}, {XT}, {vL16}")
        a(f"buffer_load_dwordx2 {vr(XRr,2)}, {vL16}, {WS}, s64 offen sc1", "xr")
        a(f"buffer_load_dwordx2 {vr(XRr+2,2)}, {t1}, {WS}, s64 offen sc1", "xr")
        vO = "v106"
        a(f"v_mul_u32_u24 {vO}, 1152, {vJ}\nv_lshl_add_u32 {vO}, {vG}, 3, {vO}")
        a(f"s_lshl_b32 s64, {sX}, 15\ns_add_u32 s68, s64, s73\ns_add_u32 s68, s68, {sWK}")
        a(f"s_add_u32 s69, s73, {8*32768}\ns_add_u32 s69, s69, {sWK}")
        DB = 108; GR = 128; G8 = 160; SUMR = 56; SUM8 = 64; PKD = 72; U = 80
        for e in range(16): a(f"v_mov_b32 v{SUMR+e}, 0")
        g_issue, g_take = self.part_helpers(vT8, U)
        if "ptouch" in self.exp:
            a(f"v_lshlrev_b32 {t1}, 6, {vJ}")
            a("s_mov_b64 exec, 0xffff")
            for o in range(4, 8):
                a(f"s_add_u32 s64, {sX}, {o}\ns_and_b32 s64, s64, 7\ns_lshl_b32 s64, s64, 15\ns_add_u32 s66, s64, s74")
                a(f"buffer_load_dword {DUMMY}, {t1}, {WS}, s66 offen sc1", "pt")
            a("s_mov_b64 exec, -1")
        for o in range(9):
            if o == HP: a("s_setprio 3")
            self.wait_ctr(0, 19 + o, one=True, sleep=1)
            d = DB + 8 * (o & 1)
            for tt in range(2): a(f"ds_read_b128 {vr(d+4*tt)}, {vEX} offset:{(2+o%3)*SL+1024*tt}", "dp")
            if o == 8: break
            if o == 0: a(f"s_add_u32 s66, s74, {8*32768}")
            else: a(f"s_add_u32 s64, {sX}, {o}\ns_and_b32 s64, s64, 7\ns_lshl_b32 s64, s64, 15\ns_add_u32 s66, s64, s74")
            a.wait_lg()
            self.signal(20 + o)
            p = PKD + 4 * (o & 1)
            a(f"v_max3_f32 {t0}, |v{d}|, |v{d+1}|, |v{d+2}|\nv_max3_f32 {t1}, |v{d+3}|, |v{d+4}|, |v{d+5}|")
            a(f"v_max3_f32 {t0}, {t0}, |v{d+6}|, |v{d+7}|\nv_max_f32 {t0}, {t0}, {t1}")
            a(f"v_and_b32 {t0}, 0x7f800000, {t0}\nv_max_u32 {t0}, {12<<23}, {t0}\nv_sub_u32 {t1}, {(264<<23)|0x7ff000}, {t0}")
            for e in range(8): a(f"v_fma_f32 v{d+e}, v{d+e}, {t1}, s94")
            for i in range(4):
                sh = 3 - 2 * i
                a(f"v_lshlrev_b32 v{d+2*i+1}, 13, v{d+2*i+1}\nv_bfi_b32 v{d+2*i}, s75, v{d+2*i}, v{d+2*i+1}")
                a((f"v_lshlrev_b32 {t2}, {sh}, {t0}" if sh > 0 else f"v_lshrrev_b32 {t2}, {-sh}, {t0}") + f"\nv_bfi_b32 {t2}, s93, {t2}, {vT8}")
                a(f"v_bfi_b32 v{p+i}, s92, v{d+2*i}, {t2}")
            a(f"buffer_store_dwordx4 {vr(p)}, {vL16}, {WS}, s66 offen sc1", "pst")
            if "glate" in self.exp:
                if o == 7:
                    self.stamp()
                    for i in (1, 2, 3): g_issue(i, "s68", GR, "pg")
                    for i in (1, 2): g_take(i, "s68", GR, "pg", SUMR)
                    g_issue(4, "s68", GR, "pg")
                    g_take(3, "s68", GR, "pg", SUMR)
                continue
            if o >= 4: g_issue(o - 3, "s68", GR, "pg")
            if o == 7:
                self.stamp()
                for i in (1, 2, 3): g_take(i, "s68", GR, "pg", SUMR)
                g_issue(5, "s68", GR, "pg")
                g_take(4, "s68", GR, "pg", SUMR)
                g_issue(6, "s68", GR, "pg")
        if "glate" in self.exp:
            g_issue(5, "s68", GR, "pg")
            a.wait_lg()
            for e in range(8): a(f"v_add_f32 v{SUMR+e}, v{SUMR+e}, v{DB+e}")
            g_take(4, "s68", GR, "pg", SUMR)
            g_issue(6, "s68", GR, "pg")
            g_take(5, "s68", GR, "pg", SUMR)
            g_issue(7, "s68", GR, "pg")
            for i in (6, 7): g_take(i, "s68", GR, "pg", SUMR)
        else:
            g_issue(7, "s68", GR, "pg")
            a.wait_lg()
            for e in range(8): a(f"v_add_f32 v{SUMR+e}, v{SUMR+e}, v{DB+e}")
            for i in (5, 6, 7): g_take(i, "s68", GR, "pg", SUMR)
        self.stamp()
        for tt in range(2):
            a(f"s_add_u32 s79, s77, {tt}")
            self.finish_out(SUMR + 4 * tt, XRr + 2 * tt, vO, "s79", "s76")

    def part_consts(self, vT8):
        a = self.a
        a(f"s_and_b32 s64, {sE}, 0xf0000000\nv_mov_b32 {vT8}, s64")
        a("s_mov_b32 s95, 0x01800000\ns_mov_b32 s96, 0x07800000\ns_mov_b32 s97, 0x1f800000")
    def part_helpers(self, vT8, U):
        a = self.a
        t0, t1 = f"v{T0}", f"v{T0+1}"
        def g_issue(i, base, R, tag):
            a(f"s_sub_u32 s64, {sX}, {i}\ns_and_b32 s64, s64, 7\ns_lshl_b32 s64, s64, 12\ns_add_u32 s64, s64, {base}")
            a(f"buffer_load_dwordx4 {vr(R+4*i)}, {vL16}, {WS}, s64 offen sc1", f"{tag}{i}")
        def g_take(i, base, R, tag, S, half=None):
            r = R + 4 * i
            a.wait_vm(f"{tag}{i}")
            def check():
                a(f"v_xor_b32 {t0}, v{r}, {vT8}")
                for e in range(1, 4): a(f"v_bitop3_b32 {t0}, {t0}, v{r+e}, {vT8} bitop3:0xf6")
                a(f"v_cmp_gt_u32 vcc, 0x10000000, {t0}")
                a("s_cmp_eq_u64 vcc, -1")
            check()
            def retry():
                L = a.label("Lg")
                a(f"s_mov_b32 {sTO}, 0")
                a(f"{L}:")
                a(f"s_add_u32 {sTO}, {sTO}, 1\ns_cmp_gt_u32 {sTO}, 100000\ns_cbranch_scc1 L_end")
                g_issue(i, base, R, tag)
                a.wait_vm()
                check()
                a(f"s_cbranch_scc0 {L}")
            a.slow(retry)
            a(f"v_lshrrev_b32 {t0}, 3, v{r}\nv_lshrrev_b32 {t1}, 1, v{r+1}\nv_bfi_b32 {t0}, s95, {t0}, {t1}")
            a(f"v_lshlrev_b32 {t1}, 1, v{r+2}\nv_bfi_b32 {t0}, s96, {t0}, {t1}\nv_lshlrev_b32 {t1}, 3, v{r+3}\nv_bfi_b32 {t0}, s97, {t0}, {t1}")
            a(f"v_and_b32 {t0}, 0x7f800000, {t0}\nv_add_u32 {t0}, {(0x800 - (11 << 23)) & 0xffffffff}, {t0}")
            n = 8
            if half:
                for e in range(2): a(f"v_cndmask_b32 v{r+e}, v{r+e}, v{r+2+e}, {half}")
                n = 4
            for e in range(n): a(f"v_bfe_i32 v{U+e}, v{r+(e>>1)}, {13*(e&1)}, 13")
            for e in range(n): a(f"v_cvt_f32_i32 v{U+e}, v{U+e}")
            for e in range(n): a(f"v_fma_f32 v{S+e}, v{U+e}, {t0}, v{S+e}")
        return g_issue, g_take
    def finish_out(self, S, XR, vO, sTile, sU):
        a = self.a
        t0, t1, t2, t3 = (f"v{T0+i}" for i in range(4))
        for d in range(2):
            a(f"v_cvt_pk_bf16_f32 {t0}, v{S+2*d}, v{S+2*d+1}")
            a(f"v_lshlrev_b32 {t1}, 16, {t0}\nv_and_b32 {t0}, 0xffff0000, {t0}")
            a(f"v_lshlrev_b32 {t2}, 16, v{XR+d}\nv_and_b32 {t3}, 0xffff0000, v{XR+d}")
            a(f"v_add_f32 {t1}, {t1}, {t2}\nv_add_f32 {t0}, {t0}, {t3}")
            a(f"v_cvt_pk_bf16_f32 v{S+d}, {t1}, {t0}")
        a(f"s_mul_i32 s64, {sTile}, 18432\ns_lshl_b32 s65, {sU}, 5\ns_add_u32 s64, s64, s65")
        a(f"buffer_store_dwordx2 {vr(S,2)}, {vO}, {OUT}, s64 offen", "out")
    def epoch_advance(self):
        a = self.a
        L = a.label("Lep"); L2 = a.label("Lep")
        a(f"s_cmp_lg_u32 s2, 255\ns_cbranch_scc1 {L}\ns_cmp_lg_u32 {sW}, 3\ns_cbranch_scc1 {L}")
        vm = list(a.vm)
        if "noep" in self.exp:
            a(f"v_mov_b32 v{T0}, {sE}\nv_mov_b32 v{T0+1}, 0\ns_mov_b64 exec, 1")
            a(f"buffer_store_dword v{T0}, v{T0+1}, {WS}, 0 offen sc1", "_untracked")
            a("s_mov_b64 exec, -1")
            a(f"{L}:")
            return
        a(f"s_mov_b32 {sTO}, 0")
        a(f"{L2}:")
        a(f"v_lshlrev_b32 v247, 7, {vLANE}\ns_mov_b32 s64, {FS2_OFF}")
        for i in range(4):
            a(f"buffer_load_dword v{T0+i}, v247, {WS}, s64 offen sc1")
            a(f"s_add_u32 s64, s64, 8192")
        a(f"s_add_u32 {sTO}, {sTO}, 1\ns_cmp_gt_u32 {sTO}, 100000\ns_cbranch_scc1 L_end")
        a.wait_vm()
        a(f"v_xor_b32 v{T0}, {sTAG}, v{T0}\nv_xor_b32 v{T0+1}, {sTAG}, v{T0+1}\nv_xor_b32 v{T0+2}, {sTAG}, v{T0+2}\nv_xor_b32 v{T0+3}, {sTAG}, v{T0+3}")
        a(f"v_or3_b32 v{T0}, v{T0}, v{T0+1}, v{T0+2}\nv_or_b32 v{T0}, v{T0}, v{T0+3}\nv_cmp_ne_u32 vcc, 0, v{T0}")
        a(f"s_cbranch_vccnz {L2}")
        a(f"v_mov_b32 v{T0}, {sE}\nv_mov_b32 v{T0+1}, 0\ns_mov_b64 exec, 1")
        a(f"buffer_store_dword v{T0}, v{T0+1}, {WS}, 0 offen sc1", "_untracked")
        a("s_mov_b64 exec, -1")
        a(f"{L}:")
        a.vm = vm

    def wrap(self, body):
        hdr = open("standalone__mixer_s_mlp__sampling.s.ref").read().split("; Override")[0]
        s = hdr + "; @launch grid=(256,1,1) block=(512,1,1) lds=163840\n"
        s += '.amdgcn_target "amdgcn-amd-amdhsa--gfx950"\n.text\n'
        s += f".globl {KNAME}\n.p2align 8\n.type {KNAME},@function\n{KNAME}:\n"
        s += body
        s += f'.section .rodata,"a"\n.p2align 6\n.amdhsa_kernel {KNAME}\n'
        s += "  .amdhsa_next_free_vgpr 256\n  .amdhsa_next_free_sgpr 102\n  .amdhsa_accum_offset 256\n"
        s += "  .amdhsa_group_segment_fixed_size 0\n  .amdhsa_kernarg_size 64\n  .amdhsa_user_sgpr_count 2\n"
        s += "  .amdhsa_user_sgpr_kernarg_segment_ptr 1\n  .amdhsa_system_sgpr_workgroup_id_x 1\n"
        s += "  .amdhsa_float_denorm_mode_32 3\n.end_amdhsa_kernel\n"
        return s

if __name__ == "__main__":
    import argparse
    p = argparse.ArgumentParser()
    p.add_argument("-o", default="mk.s"); p.add_argument("--stop", type=int, default=99)
    p.add_argument("--stamps", action="store_true"); p.add_argument("--plain", action="store_true"); p.add_argument("--exp", default="")
    p.add_argument("--thr", type=int, default=1); p.add_argument("--fl", type=int, default=16); p.add_argument("--f0", type=int, default=6); p.add_argument("--npre", type=int, default=16); p.add_argument("--hp", type=int, default=0); p.add_argument("--fb", type=int, default=44); p.add_argument("--nsk", type=int, default=4); p.add_argument("--hs", type=int, default=1); p.add_argument("--inf", type=int, default=2); p.add_argument("--w2g", type=int, default=99); p.add_argument("--t4", type=int, default=8)
    args = p.parse_args()
    THR = args.thr; FL = args.fl; F0 = args.f0; NPRE = args.npre; HP = args.hp; FB = args.fb; NSK = args.nsk; HS_ = args.hs; INF = args.inf; W2G = args.w2g; T4 = args.t4
    open(args.o, "w").write(Gen(args.stop, args.stamps, args.plain, args.exp).build())
```
